```python
import torch

def _softmax(x, axis=-1):
    return torch.softmax(x, dim=axis)
def _gelu(x):
    return torch.nn.functional.gelu(x, approximate="tanh")
def _silu(x):
    return torch.nn.functional.silu(x)
def _sigmoid(x):
    return torch.sigmoid(x)
def _layernorm(x, axis=-1, eps=1e-5):
    m = x.mean(dim=axis, keepdim=True)
    v = x.var(dim=axis, keepdim=True, unbiased=False)
    return (x - m) / torch.sqrt(v + eps)
def _scatter_add(tgt, idx, src, axis=0):
    return tgt.clone().index_add_(axis, idx, src)
def _segment_sum(src, seg, n):
    out = torch.zeros((n,) + src.shape[1:], dtype=src.dtype)
    return out.index_add_(0, seg, src)
def _pad(x, pw):
    flat = tuple(v for pair in reversed(pw) for v in pair)
    return torch.nn.functional.pad(x, flat)

kernel_name = 'recurrent_scan__sliding_block__dense_activation_silu__prompt'

def setup_inputs():

    _w = (lambda a: (lambda t: t.to(torch.bfloat16) if t.is_floating_point() else t)(torch.as_tensor(a)))
    def _A_setup():
        B, S, D = 1, 2048, 448
        return {
            "x": _w((lambda *s: torch.randn(*s, dtype=torch.bfloat16) * 0.05)(B, S, D)),
            "wqkv": _w((lambda *s: torch.randn(*s, dtype=torch.bfloat16) * 0.2)(D, 3 * D)),
            "wo": _w((lambda *s: torch.randn(*s, dtype=torch.bfloat16) * 0.2)(D, D)),
        }
    _A_in = _A_setup()

    def _B_setup():
        B, S, D, F = 1, 2048, 448, 1792
        return {
            "x": _w((lambda *s: torch.randn(*s, dtype=torch.bfloat16) * 0.05)(B, S, D)),
            "w1": _w((lambda *s: torch.randn(*s, dtype=torch.bfloat16) * 3.2)(D, F) * (D ** -0.5)),
            "w2": _w((lambda *s: torch.randn(*s, dtype=torch.bfloat16) * 0.2)(F, D) * (F ** -0.5)),
        }
    _B_in = _B_setup()

    return {
        "A_x": _A_in["x"],
        "A_wqkv": _A_in["wqkv"],
        "A_wo": _A_in["wo"],
        "B_x": _B_in["x"],
        "B_w1": _B_in["w1"],
        "B_w2": _B_in["w2"],
    }

def reference(A_x, A_wqkv, A_wo, B_x, B_w1, B_w2):
    def _A_ref(x, wqkv, wo):
        B, S, D = x.shape
        H = 16; Dh = D // H; W = 256
        qkv = (lambda x, *d: x.permute(*d))((x @ wqkv).reshape(B, S, 3, H, Dh), 2, 0, 3, 1, 4)
        q, k, v = qkv[0], qkv[1], qkv[2]
        scores = torch.einsum("bhqd,bhkd->bhqk", q, k) * (Dh ** -0.5)
        idx = torch.arange(S)
        mask = (idx[:, None] - idx[None, :] >= 0) & (idx[:, None] - idx[None, :] < W)
        scores = torch.where(mask[None, None], scores, -1e9)
        p = _softmax(scores, axis=-1)
        o = torch.einsum("bhqk,bhkd->bhqd", p, v)
        return (lambda x, *d: x.permute(*d))(o, 0, 2, 1, 3).reshape(B, S, D) @ wo

    def _B_ref(x, w1, w2):
        h = torch.einsum("bsd,df->bsf", x, w1)
        h = _silu(h)
        out = torch.einsum("bsf,fd->bsd", h, w2)
        return out

    x = A_x
    xn = _layernorm(x, axis=-1)
    s = _A_ref(xn, A_wqkv, A_wo)
    g = _silu(_B_ref(xn, B_w1, B_w2))
    return x + s * g
```

```python
import re

def vr(b, n=1):
    return f'v{b}' if n == 1 else f'v[{b}:{b+n-1}]'
def ar(b, n=1):
    return f'a{b}' if n == 1 else f'a[{b}:{b+n-1}]'
def sr(b, n=1):
    return f's{b}' if n == 1 else f's[{b}:{b+n-1}]'

_reg_re = re.compile(r'^(-?)(abs\()?([vas])(\d+|\[(\d+):(\d+)\])\)?$')

def parse_reg(tok):
    tok = tok.strip()
    if tok == 'vcc': return [('s', 106), ('s', 107)]
    if tok == 'vcc_lo': return [('s', 106)]
    if tok == 'vcc_hi': return [('s', 107)]
    if tok == 'exec': return [('s', 126), ('s', 127)]
    if tok == 'm0': return [('s', 124)]
    tok = tok.replace('|', '')
    m = _reg_re.match(tok)
    if not m: return []
    k = m.group(3)
    if m.group(5) is not None:
        return [(k, i) for i in range(int(m.group(5)), int(m.group(6)) + 1)]
    return [(k, int(m.group(4)))]

TRANS = ('v_exp_f32', 'v_log_f32', 'v_rcp_f32', 'v_rsq_f32', 'v_sqrt_f32', 'v_sin_f32', 'v_cos_f32', 'v_rcp_iflag_f32')

class Ins:
    __slots__ = ('text', 'op', 'ops', 'defs', 'uses', 'kind', 'A', 'B', 'C', 'passes', 'target', 'mods', 'data')
    def __init__(self, text):
        self.text = text
        t = text.split(';')[0].strip()
        parts = t.split(None, 1)
        self.op = parts[0]
        rest = parts[1] if len(parts) > 1 else ''
        ops = []; depth = 0; cur = ''
        for ch in rest:
            if ch in '[(': depth += 1
            if ch in '])': depth -= 1
            if ch == ',' and depth == 0:
                ops.append(cur.strip()); cur = ''
            else: cur += ch
        if cur.strip(): ops.append(cur.strip())
        mods = ''
        if ops:
            sp = ops[-1].split(None, 1)
            if len(sp) > 1 and not self.op.startswith('s_waitcnt'):
                ops[-1] = sp[0]; mods = sp[1]
        self.ops = ops; self.mods = mods
        self.defs = []; self.uses = []; self.A = self.B = self.C = []; self.passes = 0; self.target = None; self.data = []
        op = self.op
        R = [parse_reg(o) for o in ops]
        if op.startswith('v_mfma'):
            self.kind = 'mfma'
            self.defs = R[0]; self.A = R[1]; self.B = R[2]; self.C = R[3]
            self.uses = R[1] + R[2] + R[3]
            self.passes = 8 if '32x32x16' in op else 4 if '16x16x32' in op else None
            assert self.passes, op
        elif op.startswith('v_'):
            self.kind = 'valu'
            base = op.replace('_e32', '').replace('_e64', '').replace('_dpp', '').replace('_sdwa', '')
            if base.startswith('v_cmpx'):
                self.defs = R[0] + [('s', 126), ('s', 127)]; self.uses = sum(R[1:], [])
            elif base.startswith('v_permlane') and 'swap' in base:
                self.defs = R[0] + R[1]; self.uses = R[0] + R[1]
            elif base in ('v_add_co_u32', 'v_sub_co_u32', 'v_addc_co_u32', 'v_subb_co_u32', 'v_mad_u64_u32'):
                self.defs = R[0] + R[1]; self.uses = sum(R[2:], [])
            elif base == 'v_nop':
                pass
            else:
                self.defs = R[0]; self.uses = sum(R[1:], [])
                if base in ('v_fmac_f32', 'v_dot2c_f32_bf16', 'v_writelane_b32', 'v_pk_fmac_f16') or '_dpp' in op or 'row_' in mods or 'quad_perm' in mods:
                    self.uses = self.uses + R[0]
        elif op.startswith('ds_'):
            self.kind = 'ds'
            if op.startswith('ds_read') or op.startswith('ds_bpermute') or op.startswith('ds_swizzle') or op.startswith('ds_permute') or '_rtn' in op:
                self.defs = R[0]; self.uses = sum(R[1:], [])
            else:
                self.uses = sum(R, []); self.data = sum(R[1:], [])
        elif op.startswith('buffer_') or op.startswith('global_'):
            self.kind = 'vmem'
            if op in ('buffer_inv', 'buffer_wbl2'):
                pass
            elif op.startswith('buffer_load'):
                if re.search(r'\blds\b', mods):
                    self.uses = sum(R, []) + [('s', 124)]
                else:
                    self.defs = R[0]; self.uses = sum(R[1:], [])
            elif op.startswith('global_load_lds'):
                self.uses = sum(R, []) + [('s', 124)]
            elif op.startswith('global_load'):
                self.defs = R[0]; self.uses = sum(R[1:], [])
            elif op.startswith('buffer_store'):
                self.uses = sum(R, []); self.data = R[0]
            elif op.startswith('global_store'):
                self.uses = sum(R, []); self.data = R[1]
            elif op.startswith('buffer_atomic'):
                self.uses = sum(R, []); self.data = R[0]
                if 'sc0' in mods: self.defs = R[0]
            elif op.startswith('global_atomic'):
                if 'sc0' in mods:
                    self.defs = R[0]; self.uses = sum(R[1:], []); self.data = R[2]
                else:
                    self.uses = sum(R, []); self.data = R[1]
            else: raise ValueError(text)
        elif op.startswith('s_load') or op.startswith('s_buffer_load') or op in ('s_memtime', 's_memrealtime'):
            self.kind = 'smem'; self.defs = R[0]; self.uses = sum(R[1:], [])
        elif op.startswith('s_'):
            self.kind = 'salu'
            if op.startswith('s_cbranch') or op == 's_branch':
                self.kind = 'branch'; self.target = ops[0]
            elif op in ('s_waitcnt', 's_nop', 's_barrier', 's_endpgm', 's_sleep', 's_setprio'):
                pass
            elif op.startswith('s_cmp') or op.startswith('s_bitcmp'):
                self.uses = sum(R, [])
            elif 'saveexec' in op:
                self.defs = R[0] + [('s', 126), ('s', 127)]; self.uses = R[1] + [('s', 126), ('s', 127)]
            else:
                self.defs = R[0]; self.uses = sum(R[1:], [])
                if op in ('s_addk_i32', 's_mulk_i32'): self.uses += R[0]
        else:
            raise ValueError('unknown instr: ' + text)
    def states(self):
        if self.op == 's_nop': return int(self.ops[0], 0) + 1
        return 1

def _ov(a, b):
    return bool(set(a) & set(b))

def required(p, c):
    need = 0
    vg = lambda l: [r for r in l if r[0] in 'va']
    sg = lambda l: [r for r in l if r[0] == 's']
    pb = p.op.replace('_e32', '').replace('_e64', '')
    cb = c.op.replace('_e32', '').replace('_e64', '')
    if p.kind == 'valu':
        pdv = vg(p.defs); pds = sg(p.defs)
        isdot = pb.startswith('v_dot')
        if c.kind == 'mfma' and _ov(pdv, c.uses): need = max(need, 3 if isdot else 2)
        if c.kind == 'mfma' and _ov(pds, [('s', 126), ('s', 127)]): need = max(need, 4)
        if isdot:
            if cb == pb:
                srcs = sum([parse_reg(o) for o in c.ops[1:3]], [])
                if _ov(pdv, srcs): need = max(need, 3)
            elif _ov(pdv, c.uses + c.defs): need = max(need, 3)
        if c.kind == 'valu':
            if any(pb.startswith(t) for t in TRANS) and not any(cb.startswith(t) for t in TRANS) and _ov(pdv, c.uses): need = max(need, 1)
            if cb.startswith('v_permlane') and _ov(pdv, c.uses): need = max(need, 2)
            if ('dpp' in c.op or 'quad_perm' in c.mods or 'row_' in c.mods) and _ov(pdv, c.uses): need = max(need, 2)
            if ('dpp' in c.op or 'quad_perm' in c.mods or 'row_' in c.mods) and _ov(pds, [('s', 126), ('s', 127)]): need = max(need, 5)
            if cb in ('v_readfirstlane_b32', 'v_readlane_b32') and _ov(pdv, c.uses): need = max(need, 1)
            if _ov(pds, sg(c.uses)):
                need = max(need, 4 if cb in ('v_readlane_b32', 'v_writelane_b32') else 2)
            if cb in ('v_cndmask_b32', 'v_addc_co_u32') and _ov(pds, [('s', 106)]) and 'vcc' in c.text: need = max(need, 2)
            if _ov(pds, [('s', 126), ('s', 127)]) and (cb in ('v_readfirstlane_b32', 'v_readlane_b32', 'v_writelane_b32') or cb.startswith('v_permlane')): need = max(need, 4)
            if ('sdwa' in p.op or 'op_sel' in p.mods) and not pb.startswith('v_pk_') and _ov(pdv, c.uses + c.defs): need = max(need, 1)
        if c.kind == 'vmem' and _ov(pds, sg(c.uses)): need = max(need, 5)
        if c.kind in ('salu', 'smem', 'branch') and _ov(pds, sg(c.uses)): need = max(need, 1)
        if c.kind == 'branch' and c.op in ('s_cbranch_vccz', 's_cbranch_vccnz') and _ov(pds, [('s', 106)]): need = max(need, 1)
    if p.kind == 'mfma':
        D = p.defs; n = p.passes
        big = {4: 8, 8: 12}[n]
        if c.kind == 'mfma':
            if _ov(D, c.A + c.B): need = max(need, big)
            if _ov(D, c.C):
                if not (c.C == D and c.passes == n): need = max(need, {4: 6, 8: 10}[n])
            elif _ov(D, c.defs): need = max(need, {4: 6, 8: 10}[n])
        elif c.kind in ('valu', 'vmem', 'ds'):
            if _ov(D, c.uses + c.defs): need = max(need, big)
        if c.kind == 'valu' and _ov(p.C, c.defs): need = max(need, {4: 3, 8: 7}[n])
    if p.kind == 'salu' and _ov(p.defs, [('s', 124)]):
        if c.kind in ('vmem', 'ds') and ('s', 124) in c.uses: need = max(need, 1)
    if p.kind == 'vmem' and p.data and len(p.data) >= 3:
        if _ov(p.data, c.defs): need = max(need, 2 if c.kind in ('valu', 'mfma') else 1)
    return need

class Asm:
    def __init__(self):
        self.items = []
    def __call__(self, text):
        for line in text.split('\n'):
            line = line.strip()
            if not line or line.startswith(';'): continue
            if line.endswith(':'): self.items.append(('label', line[:-1]))
            elif line.startswith('.'): self.items.append(('raw', line))
            else: self.items.append(Ins(line))
    def label(self, n): self.items.append(('label', n))
    def raw(self, t): self.items.append(('raw', t))
    def comment(self, t): self.items.append(('raw', '; ' + t))

    def pad_hazards(self, verbose=False):
        items = self.items
        changed = True; total = 0
        while changed:
            changed = False
            labels = {it[1]: i for i, it in enumerate(items) if isinstance(it, tuple) and it[0] == 'label'}
            branches = {}
            for i, it in enumerate(items):
                if isinstance(it, Ins) and it.kind == 'branch': branches.setdefault(it.target, []).append(i)
            for i, c in enumerate(items):
                if not isinstance(c, Ins): continue
                worst = 0
                stack = [(i - 1, 0)]; seen = set()
                while stack:
                    k, dist = stack.pop()
                    while k >= 0 and dist < 20:
                        if (k, dist) in seen: break
                        seen.add((k, dist))
                        it = items[k]
                        if isinstance(it, tuple):
                            if it[0] == 'label':
                                for b in branches.get(it[1], []): stack.append((b, dist))
                                if it[1].endswith('_kernel'): break
                            k -= 1; continue
                        if it.op in ('s_branch', 's_endpgm', 's_setpc_b64') and not (k in [b for bl in branches.values() for b in bl] and (k, dist) in [(x, y) for x, y in [(k, dist)]] and self._came_by_branch(k, i, items)):
                            if not getattr(self, '_edge', None) == (k, dist):
                                pass
                        need = required(it, c) - dist
                        if need > worst: worst = need
                        dist += it.states()
                        k -= 1
                if worst > 0:
                    items.insert(i, Ins(f's_nop {worst-1}'))
                    total += 1
                    if verbose: print('pad', worst, 'before', c.text)
                    changed = True
                    break_outer = True
                    break
        return total
    def _came_by_branch(self, k, i, items): return True

    def pad_hazards_fast(self, verbose=False):
        for _ in range(4):
            items = self.items
            branches = {}
            for i, it in enumerate(items):
                if isinstance(it, Ins) and it.kind == 'branch': branches.setdefault(it.target, []).append(i)
            ins_at = {}
            extra = {}
            for i, c in enumerate(items):
                if not isinstance(c, Ins): continue
                worst = 0; stack = [(i - 1, 0, False)]; seen = set()
                while stack:
                    k, dist, viabr = stack.pop()
                    while k >= 0 and dist < 14:
                        if (k, dist) in seen: break
                        seen.add((k, dist))
                        it = items[k]
                        if isinstance(it, tuple):
                            if it[0] == 'label':
                                for b in branches.get(it[1], []): stack.append((b, dist, True))
                                if it[1].endswith('_kernel'): break
                            k -= 1; continue
                        if it.op in ('s_branch', 's_endpgm') and not viabr: break
                        viabr = False
                        need = required(it, c) - dist
                        if need > worst: worst = need
                        dist += it.states() + extra.get(k, 0)
                        k -= 1
                if worst > 0:
                    extra[i] = worst
                    if verbose: print('pad', worst, 'before', c.text)
            if not extra: return
            new = []
            for i, it in enumerate(items):
                if i in extra: new.append(Ins(f's_nop {extra[i]-1}'))
                new.append(it)
            self.items = new

    def check_waits(self):
        vm = []; lg = []; errs = []
        for it in self.items:
            if not isinstance(it, Ins):
                continue
            if it.op == 's_waitcnt':
                m = re.search(r'vmcnt\((\d+)\)', it.text)
                if m:
                    n = int(m.group(1)); vm = vm[len(vm) - n:] if n < len(vm) and n > 0 else ([] if n == 0 else vm)
                m = re.search(r'lgkmcnt\((\d+)\)', it.text)
                if m:
                    n = int(m.group(1))
                    if n == 0: lg = []
                    else:
                        if any(x[1] == 'smem' for x in lg): errs.append('counted lgkmcnt with smem outstanding: ' + it.text)
                        lg = lg[len(lg) - n:] if n < len(lg) else lg
                continue
            if it.op in ('s_endpgm', 's_branch'):
                vm = []; lg = []; continue
            touched = set(it.uses + it.defs)
            for d, _k, t in vm + lg:
                if touched & set(d): errs.append(f'{it.text}  touches pending result of  {t}')
            if it.kind == 'vmem' and it.op not in ('buffer_inv', 'buffer_wbl2'):
                vm.append((it.defs, 'vmem', it.text))
                if len(vm) > 63: errs.append('vmcnt overflow at ' + it.text)
            elif it.kind == 'ds': lg.append((it.defs, 'ds', it.text))
            elif it.kind == 'smem': lg.append((it.defs, 'smem', it.text))
        return errs

    def text(self):
        out = []
        for it in self.items:
            if isinstance(it, Ins): out.append('    ' + it.text)
            elif it[0] == 'label': out.append(it[1] + ':')
            else: out.append(it[1])
        return '\n'.join(out) + '\n'

def interleave(main, fill, ratio=None):
    out = []; n = len(main); m = len(fill); j = 0
    for i, x in enumerate(main):
        out.append(x)
        tgt = (i + 1) * m // n
        while j < tgt:
            out.append(fill[j]); j += 1
    out += fill[j:]
    return out
```

```python
from asmlib import *
import struct
def f2u(x): return struct.unpack('<I', struct.pack('<f', x))[0]
QKVF = 0; HF = 0x600000; OF = 0xE00000; WS_USED = 0x1000000
XBYTES = 2048 * 448 * 2
LOG2E = 0x3fb8aa3b
SCALE = f2u(28 ** -0.5)
def srd(a, d, ptr, size):
    a(f's_mov_b32 s{d}, s{ptr}')
    a(f's_and_b32 s{d+1}, s{ptr+1}, 0xffff')
    a(f's_mov_b32 s{d+2}, {size}')
    a(f's_mov_b32 s{d+3}, 0x20000')

def gen_k2(a, OPT):
    K = 'k2_kernel'
    a.raw(f'.globl {K}'); a.raw('.p2align 8'); a.raw(f'.type {K},@function'); a.label(K)
    a('s_cmp_ge_u32 s2, 256'); a('s_cbranch_scc1 L_k2_end')
    a('s_load_dwordx2 s[10:11], s[0:1], 64')
    sW, sRB, sHD, sST0, sG0, sTQ = 12, 13, 14, 15, 18, 19
    a(f'v_readfirstlane_b32 s{sW}, v0'); a(f's_lshr_b32 s{sW}, s{sW}, 6')
    a('s_and_b32 s3, s2, 7'); a('s_lshr_b32 s16, s2, 3')
    a(f's_lshr_b32 s{sRB}, s16, 1'); a('s_and_b32 s16, s16, 1'); a(f's_lshl_b32 s{sHD}, s3, 1'); a(f's_add_u32 s{sHD}, s{sHD}, s16')
    a(f's_mul_i32 s16, s{sHD}, 7'); a(f's_lshr_b32 s{sST0}, s16, 2'); a(f's_and_b32 s{sG0}, s16, 3')
    a(f's_lshl_b32 s{sTQ}, s{sRB}, 2'); a(f's_add_u32 s{sTQ}, s{sTQ}, s{sW}')
    vL, vL16, vVe, vVo = 1, 2, 3, 4
    a(f'v_and_b32 v{vL}, 63, v0'); a(f'v_lshlrev_b32 v{vL16}, 4, v{vL}')
    a(f'v_lshrrev_b32 v5, 5, v{vL}'); a('v_lshlrev_b32 v5, 6, v5'); a(f'v_xor_b32 v{vVe}, v5, v{vL16}'); a(f'v_xor_b32 v{vVo}, 128, v{vVe}')
    SWS = 28
    a('s_waitcnt lgkmcnt(0)')
    srd(a, SWS, 10, WS_USED)
    S = f's[{SWS}:{SWS+3}]'
    vQ = 8
    a(f's_mul_i32 s16, s{sTQ}, 84'); a(f's_add_u32 s16, s16, s{sST0}'); a('s_lshl_b32 s16, s16, 10')
    for s in range(3): a(f'buffer_load_dwordx4 {vr(vQ+4*s,4)}, v{vL16}, {S}, s16 offen offset:{1024*s}')
    KB, VB = 0, 36864
    a(f's_mul_i32 s20, s{sW}, 3')
    for which in range(2):
        for t in range(3):
            a(f's_lshl_b32 s16, s{sRB}, 2'); a('s_add_u32 s16, s16, s20'); a(f's_add_i32 s16, s16, {t-8}'); a('s_max_i32 s16, s16, 0')
            a('s_mul_i32 s16, s16, 84'); a(f's_add_u32 s16, s16, s{sST0}'); a(f's_add_u32 s16, s16, {28*(which+1)}'); a('s_lshl_b32 s16, s16, 10')
            a(f's_mul_i32 s17, s20, 3072'); a(f's_add_u32 m0, s17, {(KB, VB)[which] + t*3072}')
            a('s_nop 0')
            for s in range(3):
                v = vL16 if which == 0 else (vVo if s & 1 else vVe)
                a(f'buffer_load_dwordx4 v{v}, {S}, s16 offen offset:{1024*s} lds')
    vKa, vV0, vV1 = 5, 6, 7
    a(f's_mul_i32 s16, s{sW}, 3072'); a(f'v_add_u32 v{vKa}, s16, v{vL16}')
    a(f'v_bfe_u32 v20, v{vL}, 4, 1'); a(f'v_and_b32 v21, 3, v{vL}'); a('v_lshl_add_u32 v20, v20, 2, v21'); a(f'v_add_u32 v20, s{sG0}, v20')
    a('v_lshrrev_b32 v21, 2, v20')
    a('v_and_b32 v22, 1, v20')
    a('v_bfe_u32 v23, v20, 1, 1')
    a(f'v_lshrrev_b32 v24, 5, v{vL}'); a(f'v_bfe_u32 v25, v{vL}, 2, 2'); a('v_lshl_add_u32 v24, v24, 2, v25')
    a('v_and_b32 v25, 1, v21'); a('v_lshl_add_u32 v25, v25, 1, v22'); a('v_lshlrev_b32 v25, 2, v25'); a('v_xor_b32 v24, v24, v25')
    a(f'v_lshlrev_b32 v{vV0}, 4, v24'); a(f'v_lshl_add_u32 v{vV0}, v23, 3, v{vV0}'); a(f'v_lshl_add_u32 v{vV0}, v22, 9, v{vV0}')
    a(f'v_lshl_add_u32 v{vV0}, v21, 10, v{vV0}')
    a(f'v_xor_b32 v{vV1}, 128, v{vV0}')
    a(f's_add_u32 s16, s16, {VB}')
    a(f'v_add_u32 v{vV0}, s16, v{vV0}'); a(f'v_add_u32 v{vV1}, s16, v{vV1}')
    sM = 40
    a(f'v_and_b32 v20, 31, v{vL}'); a(f'v_lshrrev_b32 v21, 5, v{vL}'); a('v_lshlrev_b32 v22, 2, v21'); a('v_sub_u32 v20, v20, v22')
    for j in range(16): a(f'v_cmp_le_i32 s[{sM+2*j}:{sM+2*j+1}], {8*(j>>2)+(j&3)}, v20')
    a(f'v_subrev_u32 v21, s{sG0}, v21')
    a('s_waitcnt vmcnt(18)')
    for s in range(3):
        for ap in range(2):
            a(f'v_add_u32 v22, {4*s+2*ap}, v21'); a('v_cmp_gt_u32 vcc, 7, v22')
            for k in range(2):
                r = vQ + 4*s + 2*ap + k
                a(f'v_cndmask_b32 v{r}, 0, v{r}, vcc')
    vOnes = 20
    for k in range(4): a(f'v_mov_b32 v{vOnes+k}, 0x3f803f80')
    a('s_waitcnt vmcnt(0)'); a('s_barrier')
    vKF = 24
    vSb = 64
    vO, vLs = 192, 208
    vP0 = 224
    def sreg(r): return vO if r == 0 else vSb + 16 * (r - 1)
    def kreads(r): return [f'ds_read_b128 {vr(vKF+12*(r&1)+4*s,4)}, v{vKa} offset:{KB + r*3072 + s*1024}' for s in range(3)]
    for t in kreads(0): a(t)
    for r in range(9):
        if r + 1 < 9:
            for t in kreads(r + 1): a(t)
            a('s_waitcnt lgkmcnt(3)')
        else: a('s_waitcnt lgkmcnt(0)')
        for s in range(3):
            a(f'v_mfma_f32_32x32x16_bf16 {vr(sreg(r),16)}, {vr(vKF+12*(r&1)+4*s,4)}, {vr(vQ+4*s,4)}, ' + ('0' if s == 0 else vr(sreg(r),16)))
    a(f's_cmp_ge_u32 s{sTQ}, 8'); a('s_cbranch_scc1 L_k2_valid')
    a('s_nop 15')
    NEG = f2u(-1e30)
    for r in range(8):
        a(f's_cmp_ge_u32 s{sTQ}, {8-r}'); a('s_cbranch_scc1 L_k2_valid')
        for j in range(16): a(f'v_mov_b32 v{sreg(r)+j}, {NEG:#x}')
    a.label('L_k2_valid')
    vVF = 24
    def vreads(r): return [f'ds_read_b64_tr_b16 {vr(vVF+8*(r&1)+4*ks+2*q,2)}, v{(vV0,vV1)[q]} offset:{r*3072 + ks*256}' for ks in range(2) for q in range(2)]
    m8 = sreg(8)
    for j in range(16): a(f'v_cndmask_b32 v{m8+j}, v{vO+j}, v{m8+j}, s[{sM+2*j}:{sM+2*j+1}]')
    vM = 48
    regs = list(range(vSb, vSb + 128))
    for c in range(4):
        a(f'v_max3_f32 v{vM+c}, v{regs[c]}, v{regs[4+c]}, v{regs[8+c]}')
    k = 12
    while k < 128:
        for c in range(4):
            if k + 4 + c < 128: a(f'v_max3_f32 v{vM+c}, v{vM+c}, v{regs[k+c]}, v{regs[k+4+c]}')
            else: a(f'v_max_f32 v{vM+c}, v{vM+c}, v{regs[k+c]}')
        k += 8
    a(f'v_max3_f32 v{vM}, v{vM}, v{vM+1}, v{vM+2}'); a(f'v_max_f32 v{vM}, v{vM}, v{vM+3}')
    a(f'v_mov_b32 v{vM+1}, v{vM}'); a(f'v_permlane32_swap_b32 v{vM}, v{vM+1}'); a(f'v_max_f32 v{vM}, v{vM}, v{vM+1}')
    vC, vLg = 52, 53
    if OPT['s_mimic']:
        a(f'v_mov_b32 v{vC}, {SCALE:#x}'); a(f'v_mov_b32 v{vLg}, {LOG2E:#x}')
        a(f'v_cvt_pk_bf16_f32 v{vM}, 0, v{vM}'); a(f'v_mul_f32 v{vM}, v{vC}, v{vM}'); a(f'v_cvt_pk_bf16_f32 v{vM}, 0, v{vM}')
    else:
        a(f'v_mov_b32 v{vLg}, {f2u(28**-0.5*1.4426950408889634):#x}')
    a(f'v_mul_f32 v{vM}, v{vLg}, v{vM}')
    order = [1,2,3,4,5,6,7,8,0]
    for t in vreads(order[0]): a(t)
    first = True
    for oi, r in enumerate(order):
        bufr = r if r else 9
        if r != 0:
            b = sreg(r)
            for hs in range(2):
                js = range(8*hs, 8*hs+8)
                if OPT['s_mimic']:
                    for j in js: a(f'v_cvt_pk_bf16_f32 v{b+j}, 0, v{b+j}')
                    for j in js: a(f'v_mul_f32 v{b+j}, v{vC}, v{b+j}')
                    for j in js: a(f'v_cvt_pk_bf16_f32 v{b+j}, 0, v{b+j}')
                for j in js: a(f'v_fma_f32 v{b+j}, v{b+j}, v{vLg}, -v{vM}')
                for j in js: a(f'v_exp_f32 v{b+j}, v{b+j}')
            if r == 8:
                tmp = 232
                for j in range(16): a(f'v_cndmask_b32 v{tmp+j}, v{b+j}, 0, s[{sM+2*j}:{sM+2*j+1}]')
                for j in range(16): a(f'v_cndmask_b32 v{b+j}, 0, v{b+j}, s[{sM+2*j}:{sM+2*j+1}]')
                for j in range(8): a(f'v_cvt_pk_bf16_f32 v{vP0+j}, v{tmp+2*j}, v{tmp+2*j+1}')
            for j in range(8): a(f'v_cvt_pk_bf16_f32 v{b+j}, v{b+2*j}, v{b+2*j+1}')
            P = b
        else: P = vP0
        if oi + 1 < 9:
            nr = order[oi + 1]
            for t in vreads(nr):
                if nr == 0: t = t
                a(t.replace('@', ''))if nr != 0 else None
            if nr == 0:
                for ks in range(2):
                    for q in range(2): a(f'ds_read_b64_tr_b16 {vr(vVF+8+4*ks+2*q,2)}, v{(vV0,vV1)[q]} offset:{ks*256}')
            a('s_waitcnt lgkmcnt(4)')
        else: a('s_waitcnt lgkmcnt(0)')
        vb = vVF + 8 * (bufr & 1)
        for ks in range(2):
            a(f'v_mfma_f32_32x32x16_bf16 {vr(vO,16)}, {vr(vb+4*ks,4)}, {vr(P+4*ks,4)}, ' + ('0' if first else vr(vO,16)))
            a(f'v_mfma_f32_32x32x16_bf16 {vr(vLs,16)}, {vr(vOnes,4)}, {vr(P+4*ks,4)}, ' + ('0' if first else vr(vLs,16)))
            first = False
    a(f'v_rcp_f32 v{vM}, v{vLs}')
    for j in range(16): a(f'v_mul_f32 v{vO+j}, v{vM}, v{vO+j}')
    for j in range(8): a(f'v_cvt_pk_bf16_f32 v{vO+j}, v{vO+2*j}, v{vO+2*j+1}')
    a(f'v_cmp_gt_u32 vcc, 32, v{vL}')
    a(f'v_cndmask_b32 v{vO+6}, 0, v{vO+6}, vcc'); a(f'v_cndmask_b32 v{vO+7}, 0, v{vO+7}, vcc')
    a(f's_lshl_b32 s16, s{sTQ}, 4'); a(f's_add_u32 s16, s16, s{sHD}'); a('s_lshl_b32 s16, s16, 11'); a(f's_add_u32 s16, s16, {OF}')
    for s in range(2): a(f'buffer_store_dwordx4 {vr(vO+4*s,4)}, v{vL16}, {S}, s16 offen offset:{1024*s}')
    a.label('L_k2_end'); a('s_endpgm')
    return dict(name=K, grid=256, block=256, lds=73728, vgpr=248, sgpr=80)

def gen_k3(a, OPT):
    K = 'k3_kernel'
    a.raw(f'.globl {K}'); a.raw('.p2align 8'); a.raw(f'.type {K},@function'); a.label(K)
    a('s_cmp_ge_u32 s2, 224'); a('s_cbranch_scc1 L_k3_end')
    a('s_load_dwordx2 s[4:5], s[0:1], 0')
    a('s_load_dwordx2 s[6:7], s[0:1], 16')
    a('s_load_dwordx4 s[40:43], s[0:1], 40')
    a('s_load_dwordx2 s[10:11], s[0:1], 64')
    sW, sTB, sCB, sQ = 12, 13, 14, 15
    a(f'v_readfirstlane_b32 s{sW}, v0'); a(f's_lshr_b32 s{sW}, s{sW}, 6')
    a('s_and_b32 s3, s2, 7'); a('s_lshr_b32 s16, s2, 3')
    a(f's_lshl_b32 s{sTB}, s3, 2'); a('s_and_b32 s17, s16, 3'); a(f's_add_u32 s{sTB}, s{sTB}, s17'); a(f's_lshr_b32 s{sCB}, s16, 2')
    a(f's_and_b32 s{sQ}, s{sW}, 3')
    vL, vL16, vWo, vT0, vT1 = 1, 2, 3, 4, 5
    a(f'v_and_b32 v{vL}, 63, v0'); a(f'v_lshlrev_b32 v{vL16}, 4, v{vL}')
    a(f'v_lshrrev_b32 v6, 3, v{vL}'); a(f'v_mul_u32_u24 v{vWo}, 896, v6')
    a(f'v_bfe_u32 v6, v{vL}, 4, 1'); a('v_lshlrev_b32 v6, 2, v6'); a(f'v_and_b32 v7, 7, v{vL}'); a('v_xor_b32 v6, v6, v7')
    a(f'v_lshl_add_u32 v{vWo}, v6, 4, v{vWo}'); a(f's_lshl_b32 s16, s{sCB}, 7'); a(f'v_add_u32 v{vWo}, s16, v{vWo}')
    a(f'v_lshrrev_b32 v6, 5, v{vL}'); a(f'v_bfe_u32 v7, v{vL}, 2, 2'); a('v_lshl_add_u32 v6, v6, 2, v7'); a('v_lshlrev_b32 v6, 7, v6')
    a(f'v_bfe_u32 v7, v{vL}, 3, 1'); a('v_lshl_add_u32 v6, v7, 6, v6')
    a(f'v_bfe_u32 v7, v{vL}, 4, 1'); a('v_lshl_add_u32 v6, v7, 5, v6')
    a(f'v_and_b32 v7, 3, v{vL}'); a('v_lshl_add_u32 v6, v7, 3, v6')
    SX, SWT, SWS, SO = 20, 24, 28, 44
    a('s_waitcnt lgkmcnt(0)')
    srd(a, SWS, 10, WS_USED)
    S = f's[{SWS}:{SWS+3}]'; SW = f's[{SWT}:{SWT+3}]'
    a(f's_cmp_lt_u32 s{sW}, 4'); a('s_cbranch_scc1 L_k3_A')
    srd(a, SWT, 40, 1792 * 896)
    sM0, sWoff, sH0, sH1 = 34, 35, 36, 37
    a(f's_lshl_b32 s{sM0}, s{sQ}, 14')
    a(f'v_add_u32 v{vT0}, s{sM0}, v6'); a(f'v_xor_b32 v{vT1}, 64, v{vT0}')
    a(f's_mul_i32 s{sWoff}, s{sQ}, {448*896}')
    a(f's_mul_i32 s{sH0}, s{sTB}, 224'); a(f's_mul_i32 s16, s{sQ}, 28'); a(f's_add_u32 s{sH0}, s{sH0}, s16'); a(f's_lshl_b32 s{sH0}, s{sH0}, 10')
    a(f's_add_u32 s{sH0}, s{sH0}, {HF}'); a(f's_add_u32 s{sH1}, s{sH0}, {112*1024}')
    R = 8
    vH = 8
    vWF = 72
    vAcc = 96
    def loads(n):
        o = []
        for q in range(2):
            o += [f's_add_u32 m0, s{sM0}, {(n % R)*2048 + q*1024}', 's_nop 0',
                  f'buffer_load_dwordx4 v{vWo}, {SW}, s{sWoff} offen lds', f's_add_u32 s{sWoff}, s{sWoff}, {8*896}']
        for tt in range(2):
            o.append(f'buffer_load_dwordx4 {vr(vH+8*(n%R)+4*tt,4)}, v{vL16}, {S}, s{(sH0,sH1)[tt]} offen offset:{(n&3)*1024}')
        if n & 3 == 3:
            o += [f's_add_u32 s{sH0}, s{sH0}, 4096', f's_add_u32 s{sH1}, s{sH1}, 4096']
        return o
    def reads(n): return [f'ds_read_b64_tr_b16 {vr(vWF+8*(n&1)+4*ct+2*q,2)}, v{(vT0,vT1)[ct]} offset:{(n%R)*2048 + q*1024}' for ct in range(2) for q in range(2)]
    for n in range(R):
        for t in loads(n): a(t)
    a('s_barrier')
    a(f's_waitcnt vmcnt({4*(R-1)})')
    for t in reads(0): a(t)
    for n in range(28):
        last = min(27, n + R - 1)
        if n + 1 < 28:
            a(f's_waitcnt vmcnt({4*(last-(n+1))})')
            for t in reads(n + 1): a(t)
            a('s_waitcnt lgkmcnt(4)')
        else: a('s_waitcnt lgkmcnt(0)')
        for tt in range(2):
            for ct in range(2):
                ac = vr(vAcc + 16*(ct + 2*tt), 16)
                a(f'v_mfma_f32_32x32x16_bf16 {ac}, {vr(vWF+8*(n&1)+4*ct,4)}, {vr(vH+8*(n%R)+4*tt,4)}, ' + ('0' if n == 0 else ac))
        if n + R < 28:
            for t in loads(n + R): a(t)
    a(f'v_add_u32 v6, s{sM0}, v{vL16}')
    for g in range(16): a(f'ds_write_b128 v6, {vr(vAcc+4*g,4)} offset:{g*1024}')
    a('s_waitcnt lgkmcnt(0)'); a('s_barrier'); a('s_endpgm')
    a.label('L_k3_A')
    srd(a, SWT, 6, 448 * 896); srd(a, SX, 4, XBYTES); srd(a, SO, 42, XBYTES)
    WOB = 65536
    a(f's_mul_i32 s{sM0}, s{sQ}, {15*1024}'); a(f's_add_u32 s{sM0}, s{sM0}, {WOB}'); a(f's_mul_i32 s{sWoff}, s{sQ}, {15*8*896}')
    for i in range(15):
        a(f's_add_u32 m0, s{sM0}, {i*1024}'); a('s_nop 0')
        a(f'buffer_load_dwordx4 v{vWo}, {SW}, s{sWoff} offen lds'); a(f's_add_u32 s{sWoff}, s{sWoff}, {8*896}')
    sCT, sTT = 38, 39
    a(f's_and_b32 s{sCT}, s{sW}, 1'); a(f's_lshr_b32 s{sTT}, s{sW}, 1')
    a(f's_lshl_b32 s16, s{sTB}, 1'); a(f's_add_u32 s16, s16, s{sTT}'); a('s_lshl_b32 s17, s16, 15'); a(f's_add_u32 s17, s17, {OF}')
    vOf = 64
    for n in range(32):
        a(f'buffer_load_dwordx4 {vr(vOf+4*n,4)}, v{vL16}, {S}, s17 offen offset:{(n&3)*1024}')
        if n & 3 == 3: a('s_add_u32 s17, s17, 4096')
    vXo = 7
    a('s_lshl_b32 s16, s16, 5'); a(f'v_and_b32 v8, 31, v{vL}'); a('v_add_u32 v8, s16, v8'); a(f'v_mul_u32_u24 v{vXo}, 896, v8')
    a(f'v_lshrrev_b32 v8, 5, v{vL}'); a(f'v_lshl_add_u32 v{vXo}, v8, 3, v{vXo}')
    a(f's_lshl_b32 s16, s{sCB}, 7'); a(f's_lshl_b32 s17, s{sCT}, 6'); a('s_add_u32 s16, s16, s17'); a(f'v_add_u32 v{vXo}, s16, v{vXo}')
    vX = 8
    for g in range(4): a(f'buffer_load_dwordx2 {vr(vX+2*g,2)}, v{vXo}, s[{SX}:{SX+3}], 0 offen offset:{16*g}')
    a(f'v_xor_b32 v{vT0}, s17, v6'); a(f'v_add_u32 v{vT0}, {WOB}, v{vT0}')
    a('s_waitcnt vmcnt(36)'); a('s_barrier')
    vWA = 16
    vSa = 32
    def areads(n): return [f'ds_read_b64_tr_b16 {vr(vWA+4*(n&1)+2*q,2)}, v{vT0} offset:{(28*(n>>1) + 16*(n&1) + 8*q)*128}' for q in range(2)]
    for t in areads(0): a(t)
    for n in range(32):
        if n + 1 < 32:
            for t in areads(n + 1): a(t)
            a(f's_waitcnt vmcnt({4 + 31 - n}) lgkmcnt(2)')
        else: a('s_waitcnt vmcnt(0) lgkmcnt(0)')
        a(f'v_mfma_f32_32x32x16_bf16 {vr(vSa,16)}, {vr(vWA+4*(n&1),4)}, {vr(vOf+4*n,4)}, ' + ('0' if n == 0 else vr(vSa,16)))
    a('s_barrier')
    a(f's_lshl_b32 s16, s{sW}, 12'); a(f'v_add_u32 v6, s16, v{vL16}')
    vF = 64
    for kq in range(4):
        for g in range(4): a(f'ds_read_b128 {vr(vF+16*kq+4*g,4)}, v6 offset:{kq*16384 + g*1024}')
        if kq == 2: a('s_waitcnt lgkmcnt(4)')
    for j in range(16): a(f'v_add_f32 v{vF+j}, v{vF+j}, v{vF+16+j}')
    a('s_waitcnt lgkmcnt(0)')
    for j in range(16): a(f'v_add_f32 v{vF+32+j}, v{vF+32+j}, v{vF+48+j}')
    for j in range(16): a(f'v_add_f32 v{vF+j}, v{vF+j}, v{vF+32+j}')
    rnd = OPT['out_round']
    a(f's_mov_b32 s18, {LOG2E ^ 0x80000000:#x}')
    t = vF + 16
    if rnd:
        for j in range(16): a(f'v_cvt_pk_bf16_f32 v{vF+j}, 0, v{vF+j}')
    for j in range(16): a(f'v_mul_f32 v{t+j}, s18, v{vF+j}')
    for j in range(16): a(f'v_exp_f32 v{t+j}, v{t+j}')
    for j in range(16): a(f'v_add_f32 v{t+j}, 1.0, v{t+j}')
    for j in range(16): a(f'v_rcp_f32 v{t+j}, v{t+j}')
    for j in range(16): a(f'v_mul_f32 v{vF+j}, v{t+j}, v{vF+j}')
    if rnd:
        for j in range(16): a(f'v_cvt_pk_bf16_f32 v{vF+j}, 0, v{vF+j}')
        for j in range(16): a(f'v_cvt_pk_bf16_f32 v{vSa+j}, 0, v{vSa+j}')
    for j in range(16): a(f'v_mul_f32 v{vF+j}, v{vSa+j}, v{vF+j}')
    if rnd:
        for j in range(16): a(f'v_cvt_pk_bf16_f32 v{vF+j}, 0, v{vF+j}')
    for j in range(8):
        a(f'v_lshlrev_b32 v{t+2*j}, 16, v{vX+j}'); a(f'v_and_b32 v{t+2*j+1}, 0xffff0000, v{vX+j}')
    for j in range(16): a(f'v_add_f32 v{vF+j}, v{t+j}, v{vF+j}')
    for j in range(8): a(f'v_cvt_pk_bf16_f32 v{vX+j}, v{vF+2*j}, v{vF+2*j+1}')
    for g in range(4): a(f'buffer_store_dwordx2 {vr(vX+2*g,2)}, v{vXo}, s[{SO}:{SO+3}], 0 offen offset:{16*g}')
    a.label('L_k3_end'); a('s_endpgm')
    return dict(name=K, grid=224, block=512, lds=65536 + 61440, vgpr=192, sgpr=48)

def more(a, OPT):
    return [gen_k2(a, OPT), gen_k3(a, OPT)]
```

```python
import sys
from asmlib import *

NAME = 'recurrent_scan__sliding_block__dense_activation_silu__prompt'
OPT = dict(ln_mimic=1, s_mimic=1, h_round=1, out_round=1)
for a in sys.argv[2:]:
    k, v = a.split('='); OPT[k] = int(v)

QKVF = 0
HF = 0x600000
OF = 0xE00000
WS_USED = 0x1000000
XBYTES = 2048 * 448 * 2
LOG2E = 0x3fb8aa3b
import struct
def f2u(x): return struct.unpack('<I', struct.pack('<f', x))[0]

def srd(a, d, ptr, size):
    a(f's_mov_b32 s{d}, s{ptr}')
    a(f's_and_b32 s{d+1}, s{ptr+1}, 0xffff')
    a(f's_mov_b32 s{d+2}, {size}')
    a(f's_mov_b32 s{d+3}, 0x20000')

def gen_k1(a):
    K = 'k1_kernel'
    a.raw(f'.globl {K}'); a.raw('.p2align 8'); a.raw(f'.type {K},@function'); a.label(K)
    a('s_cmp_ge_u32 s2, 224'); a('s_cbranch_scc1 L_k1_end')
    a('s_load_dwordx4 s[4:7], s[0:1], 0')
    a('s_load_dwordx2 s[8:9], s[0:1], 32')
    a('s_load_dwordx2 s[10:11], s[0:1], 64')
    sW, sRB, sJ = 12, 13, 14
    a(f'v_readfirstlane_b32 s{sW}, v0'); a(f's_lshr_b32 s{sW}, s{sW}, 6')
    a('s_and_b32 s3, s2, 7'); a('s_lshr_b32 s15, s2, 3')
    a(f's_lshr_b32 s{sRB}, s3, 1'); a(f's_lshl_b32 s{sRB}, s{sRB}, 2'); a('s_and_b32 s16, s15, 3'); a(f's_add_u32 s{sRB}, s{sRB}, s16')
    a(f's_and_b32 s{sJ}, s3, 1'); a(f's_mul_i32 s{sJ}, s{sJ}, 7'); a('s_lshr_b32 s16, s15, 2'); a(f's_add_u32 s{sJ}, s{sJ}, s16')
    vL = 1
    a(f'v_and_b32 v{vL}, 63, v0')
    vXo = 2
    a(f's_lshl_b32 s16, s{sRB}, 7'); a(f's_lshl_b32 s17, s{sW}, 4'); a('s_add_u32 s16, s16, s17')
    a(f'v_lshrrev_b32 v3, 2, v{vL}'); a('v_add_u32 v3, s16, v3'); a(f'v_mul_u32_u24 v{vXo}, 896, v3')
    a(f'v_and_b32 v4, 3, v{vL}'); a(f'v_lshl_add_u32 v{vXo}, v4, 4, v{vXo}')
    SX, SWT, SWS = 20, 24, 28
    a('s_waitcnt lgkmcnt(0)')
    srd(a, SX, 4, XBYTES)
    XR = 8
    for i in range(14):
        a(f'buffer_load_dwordx4 {vr(XR+4*i,4)}, v{vXo}, s[{SX}:{SX+3}], 0 offen offset:{64*i}')
    sLine, sRH, sStride, sOff, sM0 = 32, 33, 34, 35, 36
    a(f's_and_b32 s{sLine}, s{sW}, 3'); a(f's_lshr_b32 s{sRH}, s{sW}, 2')
    a(f's_cmp_lt_u32 s{sLine}, 2')
    a(f's_cselect_b32 s{SWT}, s6, s8'); a(f's_cselect_b32 s{SWT+1}, s7, s9')
    a(f's_mov_b32 s17, {448*1344*2}'); a(f's_cselect_b32 s{SWT+2}, s17, {448*1792*2}')
    a(f's_movk_i32 s17, 2688'); a(f's_cselect_b32 s{sStride}, s17, 3584')
    a(f's_mul_i32 s16, s{sJ}, 192'); a(f's_lshl_b32 s17, s{sJ}, 8')
    a(f's_and_b32 s16, s16, 0xffffff80'); a('s_sub_u32 s17, s17, 256')
    a(f's_cmp_lt_u32 s{sLine}, 2'); a('s_cselect_b32 s16, s16, s17')
    a(f's_lshl_b32 s17, s{sLine}, 7'); a('s_add_u32 s16, s16, s17')
    a(f's_and_b32 s{SWT+1}, s{SWT+1}, 0xffff'); a(f's_mov_b32 s{SWT+3}, 0x20000')
    vWo = 5
    a(f'v_lshrrev_b32 v3, 3, v{vL}'); a(f's_lshl_b32 s17, s{sRH}, 4'); a('v_add_u32 v3, s17, v3')
    a(f'v_mul_lo_u32 v{vWo}, v3, s{sStride}')
    a(f'v_lshrrev_b32 v3, 4, v{vL}'); a('v_and_b32 v3, 1, v3'); a('v_lshlrev_b32 v3, 2, v3')
    a(f'v_and_b32 v4, 7, v{vL}'); a('v_xor_b32 v3, v3, v4'); a(f'v_lshl_add_u32 v{vWo}, v3, 4, v{vWo}')
    a(f'v_add_u32 v{vWo}, s16, v{vWo}')
    a(f's_lshl_b32 s{sM0}, s{sLine}, 12'); a(f's_lshl_b32 s17, s{sRH}, 11'); a(f's_add_u32 s{sM0}, s{sM0}, s17')
    sS8, sS24 = 37, 38
    a(f's_lshl_b32 s{sS8}, s{sStride}, 3'); a(f's_mul_i32 s{sS24}, s{sStride}, 24')
    a(f's_mov_b32 s{sOff}, 0')
    NSLOT = 8
    def dma(c):
        o = []
        for q in range(2):
            o.append(f's_add_u32 m0, s{sM0}, {(c % NSLOT) * 16384 + q * 1024}')
            o.append('s_nop 0')
            o.append(f'buffer_load_dwordx4 v{vWo}, s[{SWT}:{SWT+3}], s{sOff} offen lds')
            o.append(f's_add_u32 s{sOff}, s{sOff}, s{sS8 if q == 0 else sS24}')
        return o
    for c in range(NSLOT):
        for t in dma(c): a(t)
    srd(a, SWS, 10, WS_USED)
    XB = NSLOT * 16384; XSL = 8704
    vXw, vXr = 6, 7
    a(f's_lshr_b32 s16, s{sW}, 1'); a('s_mul_i32 s16, s16, 2176'); a(f's_and_b32 s17, s{sW}, 1'); a('s_lshl_b32 s17, s17, 8')
    a('s_add_u32 s16, s16, s17'); a(f's_add_u32 s16, s16, {XB}')
    a(f'v_and_b32 v3, 3, v{vL}'); a(f'v_mul_u32_u24 v{vXw}, 544, v3'); a(f'v_lshrrev_b32 v3, 2, v{vL}')
    a(f'v_lshl_add_u32 v{vXw}, v3, 4, v{vXw}'); a(f'v_add_u32 v{vXw}, s16, v{vXw}')
    a(f's_mul_i32 s16, s{sLine}, 2176'); a(f's_add_u32 s16, s16, {XB}')
    a(f'v_lshrrev_b32 v3, 5, v{vL}'); a(f'v_mul_u32_u24 v{vXr}, 544, v3'); a(f'v_and_b32 v3, 31, v{vL}')
    a(f'v_lshl_add_u32 v{vXr}, v3, 4, v{vXr}'); a(f'v_add_u32 v{vXr}, s16, v{vXr}')
    vT = 64
    a(f'v_lshrrev_b32 v3, 5, v{vL}'); a('v_lshlrev_b32 v3, 3, v3')
    a(f'v_bfe_u32 v4, v{vL}, 2, 2'); a('v_add_u32 v3, v3, v4'); a('v_lshlrev_b32 v3, 7, v3')
    a(f'v_bfe_u32 v4, v{vL}, 3, 1'); a('v_lshl_add_u32 v3, v4, 6, v3')
    a(f'v_bfe_u32 v4, v{vL}, 4, 1'); a('v_lshl_add_u32 v3, v4, 5, v3')
    a(f'v_and_b32 v4, 3, v{vL}'); a('v_lshl_add_u32 v3, v4, 3, v3')
    a(f's_and_b32 s16, s{sJ}, 1'); a(f's_cmp_eq_u32 s{sRH}, 0'); a('s_cselect_b32 s16, s16, 4')
    for t in range(4):
        a(f's_add_u32 s17, s16, {t}'); a('s_and_b32 s18, s17, 1'); a('s_lshl_b32 s18, s18, 6')
        a('s_lshr_b32 s17, s17, 1'); a('s_lshl_b32 s17, s17, 12')
        a(f'v_xor_b32 v{vT+t}, s18, v3'); a(f'v_add_u32 v{vT+t}, s17, v{vT+t}')
        a(f'v_add_u32 v{vT+4+t}, 0x10000, v{vT+t}')
    vS = 72
    vNM, vRI = 76, 77
    for r in range(4): a(f'v_mov_b32 v{vS+r}, 0')
    a('s_mov_b32 s16, 0x3f803f80')
    a('v_mov_b32 v78, s16')
    for i in range(14):
        a(f's_waitcnt vmcnt({2*NSLOT + 13 - i})')
        for d in range(4):
            r = XR + 4 * i + d
            a(f'v_dot2c_f32_bf16 v{vS + (d&1)}, v{r}, v78')
            a(f'v_dot2c_f32_bf16 v{vS + 2 + (d&1)}, v{r}, v{r}')
    a(f'v_add_f32 v{vS}, v{vS}, v{vS+1}'); a(f'v_add_f32 v{vS+2}, v{vS+2}, v{vS+3}')
    for perm in ('[1,0,3,2]', '[2,3,0,1]'):
        a(f'v_add_f32_dpp v{vS}, v{vS}, v{vS} quad_perm:{perm} row_mask:0xf bank_mask:0xf')
        a(f'v_add_f32_dpp v{vS+2}, v{vS+2}, v{vS+2} quad_perm:{perm} row_mask:0xf bank_mask:0xf')
    inv = f2u(1.0 / 448)
    a(f'v_mul_f32 v{vS}, {inv:#x}, v{vS}'); a(f'v_mul_f32 v{vS+2}, {inv:#x}, v{vS+2}')
    a(f'v_fma_f32 v{vS+2}, -v{vS}, v{vS}, v{vS+2}')
    a(f'v_max_f32 v{vS+2}, 0, v{vS+2}')
    if OPT['ln_mimic']:
        a(f'v_cvt_pk_bf16_f32 v{vNM}, 0, -v{vS}')
        a(f'v_cvt_pk_bf16_f32 v{vS+2}, 0, v{vS+2}')
        a(f'v_add_f32 v{vS+2}, {f2u(1e-5):#x}, v{vS+2}')
        a(f'v_cvt_pk_bf16_f32 v{vS+2}, 0, v{vS+2}')
        a(f'v_sqrt_f32 v{vS+2}, v{vS+2}')
        a(f'v_cvt_pk_bf16_f32 v{vS+2}, 0, v{vS+2}')
        a(f'v_rcp_f32 v{vRI}, v{vS+2}')
    else:
        a(f'v_sub_f32 v{vNM}, 0, v{vS}')
        a(f'v_add_f32 v{vS+2}, {f2u(1e-5):#x}, v{vS+2}')
        a(f'v_rsq_f32 v{vRI}, v{vS+2}')
    vLt = 80
    def ln(c):
        o = []
        for d in range(4):
            r = XR + 4 * c + d; t0 = vLt + 2 * d; t1 = t0 + 1
            o.append([f'v_lshlrev_b32 v{t0}, 16, v{r}', f'v_and_b32 v{t1}, 0xffff0000, v{r}',
                      f'v_add_f32 v{t0}, v{vNM}, v{t0}', f'v_add_f32 v{t1}, v{vNM}, v{t1}'] +
                     ([f'v_cvt_pk_bf16_f32 v{t0}, 0, v{t0}', f'v_cvt_pk_bf16_f32 v{t1}, 0, v{t1}'] if OPT['ln_mimic'] else []) +
                     [f'v_mul_f32 v{t0}, v{vRI}, v{t0}', f'v_mul_f32 v{t1}, v{vRI}, v{t1}',
                      f'v_cvt_pk_bf16_f32 v{r}, v{t0}, v{t1}'])
        res = []
        for p in (0, 2):
            for x, y in zip(o[p], o[p + 1]): res += [x, y]
        wr = f'ds_write_b128 v{vXw}, {vr(XR+4*c,4)} offset:{(c&1)*XSL}'
        return res, wr
    for c in (0,):
        r, w = ln(c)
        for t in r: a(t)
        a(w)
    r1, w1 = ln(1)
    h = len(r1) // 2
    for t in r1[:h]: a(t)
    a(f's_waitcnt vmcnt({2*NSLOT-2}) lgkmcnt(0)')
    a('s_barrier')
    a(f's_cmp_eq_u32 s{sRH}, 0'); a('s_cbranch_scc0 L_k1_F')
    vXF = 88
    vWF = 96
    vAcc = 128
    for role, NT in (('A', 3), ('F', 4)):
        if role == 'F': a.label('L_k1_F')
        def reads(n):
            c = n >> 1; s = n & 1; b = n & 1; slot = c % NSLOT
            o = [f'ds_read_b128 {vr(vXF+4*b,4)}, v{vXr} offset:{(c&1)*XSL + s*1088}']
            for t in range(NT):
                for q in range(2):
                    o.append(f'ds_read_b64_tr_b16 {vr(vWF+16*b+4*t+2*q,2)}, v{vT+4*(slot>>2)+t} offset:{(slot&3)*16384 + (16*s+4*q)*128}')
            return o
        def mfmas(n):
            b = n & 1
            return [f'v_mfma_f32_32x32x16_bf16 {vr(vAcc+16*t,16)}, {vr(vWF+16*b+4*t,4)}, {vr(vXF+4*b,4)}, ' + ('0' if n == 0 else vr(vAcc+16*t,16)) for t in range(NT)]
        for t in reads(0): a(t)
        for i in range(14):
            a('s_waitcnt lgkmcnt(0)')
            fill = reads(2*i+1)
            if i + 1 < 14:
                r, w = ln(i + 1); fill += r[len(r)//2:] + [w]
            for t in interleave(mfmas(2*i), fill): a(t)
            if i + 1 < 14:
                last = min(13, i + NSLOT - 1)
                a(f's_waitcnt vmcnt({2*(last-(i+1))}) lgkmcnt(0)')
                a('s_barrier')
                fill = reads(2*i+2)
                if i + NSLOT < 14: fill += dma(i + NSLOT)
                if i + 2 < 14:
                    r, w = ln(i + 2); fill += r[:len(r)//2]
            else:
                a('s_waitcnt lgkmcnt(0)'); fill = []
            for t in interleave(mfmas(2*i+1), fill): a(t)
        a(f's_lshl_b32 s16, s{sRB}, 2'); a(f's_add_u32 s16, s16, s{sLine}')
        if role == 'A':
            a('s_mul_i32 s16, s16, 84'); a(f's_mul_i32 s17, s{sJ}, 6')
        else:
            a('s_mul_i32 s16, s16, 112'); a(f's_lshl_b32 s17, s{sJ}, 3')
        a('s_add_u32 s16, s16, s17'); a('s_lshl_b32 s16, s16, 10')
        a(f's_add_u32 s16, s16, {QKVF if role == "A" else HF}')
        a(f'v_lshlrev_b32 v2, 4, v{vL}')
        if role == 'F': a(f's_mov_b32 s18, {LOG2E ^ 0x80000000:#x}')
        for t in range(NT):
            for s in range(2):
                b = vAcc + 16 * t + 8 * s
                if role == 'F':
                    tmp = 8 + 8 * ((2 * t + s) & 1)
                    if OPT['h_round']:
                        for k in range(8): a(f'v_cvt_pk_bf16_f32 v{b+k}, 0, v{b+k}')
                    for k in range(8): a(f'v_mul_f32 v{tmp+k}, s18, v{b+k}')
                    for k in range(8): a(f'v_exp_f32 v{tmp+k}, v{tmp+k}')
                    for k in range(8): a(f'v_add_f32 v{tmp+k}, 1.0, v{tmp+k}')
                    for k in range(8): a(f'v_rcp_f32 v{tmp+k}, v{tmp+k}')
                    for k in range(8): a(f'v_mul_f32 v{b+k}, v{tmp+k}, v{b+k}')
                o = 24 + 4 * (2 * t + s)
                for k in range(4): a(f'v_cvt_pk_bf16_f32 v{o+k}, v{b+2*k}, v{b+2*k+1}')
                idx = 2 * t + s
                if idx == 4: a('s_add_u32 s16, s16, 4096')
                a(f'buffer_store_dwordx4 {vr(o,4)}, v2, s[{SWS}:{SWS+3}], s16 offen offset:{(idx&3)*1024}')
        a('s_endpgm')
    a.label('L_k1_end'); a('s_endpgm')
    return dict(name=K, grid=224, block=512, lds=XB + 2 * XSL, vgpr=192, sgpr=48)

def finish(a, ks, path):
    a.pad_hazards_fast()
    errs = a.check_waits()
    for e in errs: print('WAITERR', e)
    hdr = ['; generated by gen1.py']
    for k in ks: hdr.append(f'; @launch kernel={k["name"]} grid=({k["grid"]},1,1) block=({k["block"]},1,1) lds={k["lds"]}')
    hdr += ['.amdgcn_target "amdgcn-amd-amdhsa--gfx950"', '.text']
    tail = ['.section .rodata,"a"']
    for k in ks:
        acc = k.get('accum', (k['vgpr'] + 3) // 4 * 4)
        tail += ['.p2align 6', f'.amdhsa_kernel {k["name"]}', f'  .amdhsa_next_free_vgpr {k["vgpr"]}', f'  .amdhsa_next_free_sgpr {k["sgpr"]}',
                 f'  .amdhsa_accum_offset {acc}', '  .amdhsa_group_segment_fixed_size 0', '  .amdhsa_kernarg_size 72',
                 '  .amdhsa_user_sgpr_count 2', '  .amdhsa_user_sgpr_kernarg_segment_ptr 1', '  .amdhsa_system_sgpr_workgroup_id_x 1', '.end_amdhsa_kernel']
    open(path, 'w').write('\n'.join(hdr) + '\n' + a.text() + '\n'.join(tail) + '\n')

if __name__ == '__main__':
    a = Asm()
    ks = [gen_k1(a)]
    try:
        import gen1b
        ks += gen1b.more(a, OPT)
    except ImportError:
        pass
    finish(a, ks, sys.argv[1])
```

```python
import re

def vr(b, n=1):
    return f'v{b}' if n == 1 else f'v[{b}:{b+n-1}]'
def ar(b, n=1):
    return f'a{b}' if n == 1 else f'a[{b}:{b+n-1}]'
def sr(b, n=1):
    return f's{b}' if n == 1 else f's[{b}:{b+n-1}]'

_reg_re = re.compile(r'^(-?)(abs\()?([vas])(\d+|\[(\d+):(\d+)\])\)?$')

def parse_reg(tok):
    tok = tok.strip()
    if tok == 'vcc': return [('s', 106), ('s', 107)]
    if tok == 'vcc_lo': return [('s', 106)]
    if tok == 'vcc_hi': return [('s', 107)]
    if tok == 'exec': return [('s', 126), ('s', 127)]
    if tok == 'exec_lo': return [('s', 126)]
    if tok == 'exec_hi': return [('s', 127)]
    if tok == 'm0': return [('s', 124)]
    tok = tok.replace('|', '')
    m = _reg_re.match(tok)
    if not m: return []
    k = m.group(3)
    if m.group(5) is not None:
        return [(k, i) for i in range(int(m.group(5)), int(m.group(6)) + 1)]
    return [(k, int(m.group(4)))]

TRANS = ('v_exp_f32', 'v_log_f32', 'v_rcp_f32', 'v_rsq_f32', 'v_sqrt_f32', 'v_sin_f32', 'v_cos_f32', 'v_rcp_iflag_f32')

class Ins:
    __slots__ = ('text', 'op', 'ops', 'defs', 'uses', 'kind', 'A', 'B', 'C', 'passes', 'target', 'mods', 'data')
    def __init__(self, text):
        self.text = text
        t = text.split(';')[0].strip()
        parts = t.split(None, 1)
        self.op = parts[0]
        rest = parts[1] if len(parts) > 1 else ''
        ops = []; depth = 0; cur = ''
        for ch in rest:
            if ch in '[(': depth += 1
            if ch in '])': depth -= 1
            if ch == ',' and depth == 0:
                ops.append(cur.strip()); cur = ''
            else: cur += ch
        if cur.strip(): ops.append(cur.strip())
        mods = ''
        if ops:
            sp = ops[-1].split(None, 1)
            if len(sp) > 1 and not self.op.startswith('s_waitcnt'):
                ops[-1] = sp[0]; mods = sp[1]
        self.ops = ops; self.mods = mods
        self.defs = []; self.uses = []; self.A = self.B = self.C = []; self.passes = 0; self.target = None; self.data = []
        op = self.op
        R = [parse_reg(o) for o in ops]
        if op.startswith('v_mfma'):
            self.kind = 'mfma'
            self.defs = R[0]; self.A = R[1]; self.B = R[2]; self.C = R[3]
            self.uses = R[1] + R[2] + R[3]
            self.passes = 8 if '32x32x16' in op else 4 if '16x16x32' in op else None
            assert self.passes, op
        elif op.startswith('v_'):
            self.kind = 'valu'
            base = op.replace('_e32', '').replace('_e64', '').replace('_dpp', '').replace('_sdwa', '')
            if base.startswith('v_cmpx'):
                self.defs = R[0] + [('s', 126), ('s', 127)]; self.uses = sum(R[1:], [])
            elif (base.startswith('v_permlane') and 'swap' in base) or base == 'v_swap_b32':
                self.defs = R[0] + R[1]; self.uses = R[0] + R[1]
            elif base in ('v_add_co_u32', 'v_sub_co_u32', 'v_addc_co_u32', 'v_subb_co_u32', 'v_mad_u64_u32'):
                self.defs = R[0] + R[1]; self.uses = sum(R[2:], [])
            elif base == 'v_nop':
                pass
            else:
                self.defs = R[0]; self.uses = sum(R[1:], [])
                if base in ('v_fmac_f32', 'v_dot2c_f32_bf16', 'v_writelane_b32', 'v_pk_fmac_f16') or '_dpp' in op or 'row_' in mods or 'quad_perm' in mods:
                    self.uses = self.uses + R[0]
        elif op.startswith('ds_'):
            self.kind = 'ds'
            if op.startswith('ds_read') or op.startswith('ds_bpermute') or op.startswith('ds_swizzle') or op.startswith('ds_permute') or '_rtn' in op:
                self.defs = R[0]; self.uses = sum(R[1:], [])
            else:
                self.uses = sum(R, []); self.data = sum(R[1:], [])
        elif op.startswith('buffer_') or op.startswith('global_'):
            self.kind = 'vmem'
            if op in ('buffer_inv', 'buffer_wbl2'):
                pass
            elif op.startswith('buffer_load'):
                if re.search(r'\blds\b', mods):
                    self.uses = sum(R, []) + [('s', 124)]
                else:
                    self.defs = R[0]; self.uses = sum(R[1:], [])
            elif op.startswith('global_load_lds'):
                self.uses = sum(R, []) + [('s', 124)]
            elif op.startswith('global_load'):
                self.defs = R[0]; self.uses = sum(R[1:], [])
            elif op.startswith('buffer_store'):
                self.uses = sum(R, []); self.data = R[0]
            elif op.startswith('global_store'):
                self.uses = sum(R, []); self.data = R[1]
            elif op.startswith('buffer_atomic'):
                self.uses = sum(R, []); self.data = R[0]
                if 'sc0' in mods: self.defs = R[0]
            elif op.startswith('global_atomic'):
                if 'sc0' in mods:
                    self.defs = R[0]; self.uses = sum(R[1:], []); self.data = R[2]
                else:
                    self.uses = sum(R, []); self.data = R[1]
            else: raise ValueError(text)
        elif op.startswith('s_load') or op.startswith('s_buffer_load') or op in ('s_memtime', 's_memrealtime'):
            self.kind = 'smem'; self.defs = R[0]; self.uses = sum(R[1:], [])
        elif op.startswith('s_'):
            self.kind = 'salu'
            if op.startswith('s_cbranch') or op == 's_branch':
                self.kind = 'branch'; self.target = ops[0]
            elif op in ('s_waitcnt', 's_nop', 's_barrier', 's_endpgm', 's_sleep', 's_setprio'):
                pass
            elif op.startswith('s_cmp') or op.startswith('s_bitcmp'):
                self.uses = sum(R, [])
            elif 'saveexec' in op:
                self.defs = R[0] + [('s', 126), ('s', 127)]; self.uses = R[1] + [('s', 126), ('s', 127)]
            else:
                self.defs = R[0]; self.uses = sum(R[1:], [])
                if op in ('s_addk_i32', 's_mulk_i32'): self.uses += R[0]
        else:
            raise ValueError('unknown instr: ' + text)
    def states(self):
        if self.op == 's_nop': return int(self.ops[0], 0) + 1
        return 1

def _ov(a, b):
    return bool(set(a) & set(b))

def required(p, c):
    need = 0
    vg = lambda l: [r for r in l if r[0] in 'va']
    sg = lambda l: [r for r in l if r[0] == 's']
    pb = p.op.replace('_e32', '').replace('_e64', '')
    cb = c.op.replace('_e32', '').replace('_e64', '')
    if p.kind == 'valu':
        pdv = vg(p.defs); pds = sg(p.defs)
        isdot = pb.startswith('v_dot')
        if c.kind == 'mfma' and _ov(pdv, c.uses): need = max(need, 3 if isdot else 2)
        if c.kind == 'mfma' and _ov(pds, [('s', 126), ('s', 127)]): need = max(need, 4)
        if isdot:
            if cb == pb:
                srcs = sum([parse_reg(o) for o in c.ops[1:3]], [])
                if _ov(pdv, srcs): need = max(need, 3)
            elif _ov(pdv, c.uses + c.defs): need = max(need, 3)
        if c.kind == 'valu':
            if any(pb.startswith(t) for t in TRANS) and not any(cb.startswith(t) for t in TRANS) and _ov(pdv, c.uses): need = max(need, 1)
            if cb.startswith('v_permlane') and _ov(pdv, c.uses): need = max(need, 2)
            if ('dpp' in c.op or 'quad_perm' in c.mods or 'row_' in c.mods) and _ov(pdv, c.uses): need = max(need, 2)
            if ('dpp' in c.op or 'quad_perm' in c.mods or 'row_' in c.mods) and _ov(pds, [('s', 126), ('s', 127)]): need = max(need, 5)
            if cb in ('v_readfirstlane_b32', 'v_readlane_b32') and _ov(pdv, c.uses): need = max(need, 1)
            if _ov(pds, sg(c.uses)):
                need = max(need, 4 if cb in ('v_readlane_b32', 'v_writelane_b32') else 2)
            if cb in ('v_cndmask_b32', 'v_addc_co_u32') and _ov(pds, [('s', 106)]) and 'vcc' in c.text: need = max(need, 2)
            if _ov(pds, [('s', 126), ('s', 127)]) and (cb in ('v_readfirstlane_b32', 'v_readlane_b32', 'v_writelane_b32') or cb.startswith('v_permlane')): need = max(need, 4)
            if ('sdwa' in p.op or 'op_sel' in p.mods) and not pb.startswith('v_pk_') and _ov(pdv, c.uses + c.defs): need = max(need, 1)
        if c.kind == 'vmem' and _ov(pds, sg(c.uses)): need = max(need, 5)
        if c.kind in ('salu', 'smem', 'branch') and _ov(pds, sg(c.uses)): need = max(need, 1)
        if c.kind == 'branch' and c.op in ('s_cbranch_vccz', 's_cbranch_vccnz') and _ov(pds, [('s', 106)]): need = max(need, 1)
    if p.kind == 'mfma':
        D = p.defs; n = p.passes
        big = {4: 8, 8: 12}[n]
        if c.kind == 'mfma':
            if _ov(D, c.A + c.B): need = max(need, big)
            if _ov(D, c.C):
                if not (c.C == D and c.passes == n): need = max(need, {4: 6, 8: 10}[n])
            elif _ov(D, c.defs): need = max(need, {4: 6, 8: 10}[n])
        elif c.kind in ('valu', 'vmem', 'ds'):
            if _ov(D, c.uses + c.defs): need = max(need, big)
        if c.kind == 'valu' and _ov(p.C, c.defs): need = max(need, {4: 3, 8: 7}[n])
    if p.kind == 'salu' and _ov(p.defs, [('s', 124)]):
        if c.kind in ('vmem', 'ds') and ('s', 124) in c.uses: need = max(need, 1)
    if p.kind == 'vmem' and p.data and len(p.data) >= 3:
        if _ov(p.data, c.defs): need = max(need, 2 if c.kind in ('valu', 'mfma') else 1)
    return need

class Asm:
    def __init__(self):
        self.items = []
    def __call__(self, text):
        for line in text.split('\n'):
            line = line.strip()
            if not line or line.startswith(';'): continue
            if line.endswith(':'): self.items.append(('label', line[:-1]))
            elif line.startswith('.'): self.items.append(('raw', line))
            else: self.items.append(Ins(line))
    def label(self, n): self.items.append(('label', n))
    def raw(self, t): self.items.append(('raw', t))
    def comment(self, t): self.items.append(('raw', '; ' + t))

    def pad_hazards(self, verbose=False):
        items = self.items
        changed = True; total = 0
        while changed:
            changed = False
            labels = {it[1]: i for i, it in enumerate(items) if isinstance(it, tuple) and it[0] == 'label'}
            branches = {}
            for i, it in enumerate(items):
                if isinstance(it, Ins) and it.kind == 'branch': branches.setdefault(it.target, []).append(i)
            for i, c in enumerate(items):
                if not isinstance(c, Ins): continue
                worst = 0
                stack = [(i - 1, 0)]; seen = set()
                while stack:
                    k, dist = stack.pop()
                    while k >= 0 and dist < 20:
                        if (k, dist) in seen: break
                        seen.add((k, dist))
                        it = items[k]
                        if isinstance(it, tuple):
                            if it[0] == 'label':
                                for b in branches.get(it[1], []): stack.append((b, dist))
                                if it[1].endswith('_kernel'): break
                            k -= 1; continue
                        if it.op in ('s_branch', 's_endpgm', 's_setpc_b64') and not (k in [b for bl in branches.values() for b in bl] and (k, dist) in [(x, y) for x, y in [(k, dist)]] and self._came_by_branch(k, i, items)):
                            if not getattr(self, '_edge', None) == (k, dist):
                                pass
                        need = required(it, c) - dist
                        if need > worst: worst = need
                        dist += it.states()
                        k -= 1
                if worst > 0:
                    items.insert(i, Ins(f's_nop {worst-1}'))
                    total += 1
                    if verbose: print('pad', worst, 'before', c.text)
                    changed = True
                    break_outer = True
                    break
        return total
    def _came_by_branch(self, k, i, items): return True

    def pad_hazards_fast(self, verbose=False):
        for _ in range(4):
            items = self.items
            branches = {}
            for i, it in enumerate(items):
                if isinstance(it, Ins) and it.kind == 'branch': branches.setdefault(it.target, []).append(i)
            ins_at = {}
            extra = {}
            for i, c in enumerate(items):
                if not isinstance(c, Ins): continue
                worst = 0; stack = [(i - 1, 0, False)]; seen = set()
                while stack:
                    k, dist, viabr = stack.pop()
                    while k >= 0 and dist < 14:
                        if (k, dist) in seen: break
                        seen.add((k, dist))
                        it = items[k]
                        if isinstance(it, tuple):
                            if it[0] == 'label':
                                for b in branches.get(it[1], []): stack.append((b, dist, True))
                                if it[1].endswith('_kernel'): break
                            k -= 1; continue
                        if it.op in ('s_branch', 's_endpgm') and not viabr: break
                        viabr = False
                        need = required(it, c) - dist
                        if need > worst: worst = need
                        dist += it.states() + extra.get(k, 0)
                        k -= 1
                if worst > 0:
                    extra[i] = worst
                    if verbose: print('pad', worst, 'before', c.text)
            if not extra: return
            new = []
            for i, it in enumerate(items):
                if i in extra: new.append(Ins(f's_nop {extra[i]-1}'))
                new.append(it)
            self.items = new

    def check_waits(self):
        vm = []; lg = []; errs = []
        for it in self.items:
            if not isinstance(it, Ins):
                continue
            if it.op == 's_waitcnt':
                m = re.search(r'vmcnt\((\d+)\)', it.text)
                if m:
                    n = int(m.group(1)); vm = vm[len(vm) - n:] if n < len(vm) and n > 0 else ([] if n == 0 else vm)
                m = re.search(r'lgkmcnt\((\d+)\)', it.text)
                if m:
                    n = int(m.group(1))
                    if n == 0: lg = []
                    else:
                        if any(x[1] == 'smem' for x in lg): errs.append('counted lgkmcnt with smem outstanding: ' + it.text)
                        lg = lg[len(lg) - n:] if n < len(lg) else lg
                continue
            if it.op in ('s_endpgm', 's_branch'):
                vm = []; lg = []; continue
            touched = set(it.uses + it.defs)
            for d, _k, t in vm + lg:
                if touched & set(d): errs.append(f'{it.text}  touches pending result of  {t}')
            if it.kind == 'vmem' and it.op not in ('buffer_inv', 'buffer_wbl2'):
                vm.append((it.defs, 'vmem', it.text))
                if len(vm) > 63: errs.append('vmcnt overflow at ' + it.text)
            elif it.kind == 'ds': lg.append((it.defs, 'ds', it.text))
            elif it.kind == 'smem': lg.append((it.defs, 'smem', it.text))
        return errs

    def text(self):
        out = []
        for it in self.items:
            if isinstance(it, Ins): out.append('    ' + it.text)
            elif it[0] == 'label': out.append(it[1] + ':')
            else: out.append(it[1])
        return '\n'.join(out) + '\n'

def interleave(main, fill, ratio=None):
    out = []; n = len(main); m = len(fill); j = 0
    for i, x in enumerate(main):
        out.append(x)
        tgt = (i + 1) * m // n
        while j < tgt:
            out.append(fill[j]); j += 1
    out += fill[j:]
    return out


class Stamps:
    def __init__(self, a, on, base=80, n=10):
        self.a=a; self.on=on; self.base=base; self.n=n
    def start(self):
        if not self.on: return
        b=self.base
        for i in range(self.n): self.a(f's_mov_b32 s{b+2*i}, 0')
        self.a(f's_memrealtime s[{b}:{b+1}]'); self.a(f's_memtime s[{b+2}:{b+3}]')
    def mark(self, i):
        if not self.on: return
        b=self.base+2*i
        self.a(f's_memtime s[{b}:{b+1}]')
    def flush(self, srdws, off, sW, tag):
        if not self.on: return
        a=self.a; b=self.base; n=self.n
        a('s_waitcnt vmcnt(0)')
        a(f's_memtime s[{b+2*(n-2)}:{b+2*(n-2)+1}]'); a(f's_memrealtime s[{b+2*(n-1)}:{b+2*(n-1)+1}]')
        a('s_waitcnt lgkmcnt(0)')
        a(f's_lshl_b32 s{b+1}, s2, 4'); a(f's_add_u32 s{b+1}, s{b+1}, s{sW}'); a(f's_lshl_b32 s{b+1}, s{b+1}, 6'); a(f's_add_u32 s{b+1}, s{b+1}, {off}')
        a('s_mov_b64 exec, 1')
        a('v_mov_b32 v0, 0')
        for i in range(n): a(f'v_mov_b32 v{4+i}, s{b+2*i}')
        a(f's_getreg_b32 s{b}, hwreg(HW_REG_XCC_ID)'); a(f'v_mov_b32 v14, s{b}')
        a(f's_getreg_b32 s{b}, hwreg(HW_REG_HW_ID)'); a(f'v_mov_b32 v15, s{b}')
        for i in range(3): a(f'buffer_store_dwordx4 v[{4+4*i}:{7+4*i}], v0, s[{srdws}:{srdws+3}], s{b+1} offen offset:{16*i}')


class Tr:
    def __init__(self, a):
        self.a = a; self.vm = []; self.ds = []
    def reset(self): self.vm = []; self.ds = []
    def _n(self, q, tag):
        idx = [i for i, t in enumerate(q) if t == tag]
        if not idx: return None
        return len(q) - 1 - idx[-1]
    def wait(self, vmtag=None, dstag=None):
        parts = []
        if vmtag is not None:
            n = 0 if vmtag == '*' else self._n(self.vm, vmtag)
            if n is not None and (self.vm or vmtag == '*'):
                assert n <= 63
                parts.append(f'vmcnt({n})'); self.vm = self.vm[len(self.vm) - n:] if n else []
        if dstag is not None:
            n = 0 if dstag == '*' else self._n(self.ds, dstag)
            if n is not None and (self.ds or dstag == '*'):
                n = min(n, 15)
                parts.append(f'lgkmcnt({n})'); self.ds = self.ds[len(self.ds) - n:] if n else []
        if parts: self.a('s_waitcnt ' + ' '.join(parts))
    def emit(self, items):
        if not isinstance(items, list): items = [items]
        for it in items:
            if isinstance(it, str): self.a(it)
            elif isinstance(it, list): self.emit(it)
            elif it[0] == 'vm': self.a(it[2]); self.vm.append(it[1])
            elif it[0] == 'ds': self.a(it[2]); self.ds.append(it[1])
            elif it[0] == 'wvm': self.wait(vmtag=it[1])
            elif it[0] == 'wds': self.wait(dstag=it[1])
            elif it[0] == 'w': self.wait(it[1], it[2])
            elif it[0] == 'call': it[1]()
            else: raise ValueError(it)
    __call__ = emit

def cost(it):
    if isinstance(it, list): return sum(cost(x) for x in it)
    if isinstance(it, tuple):
        return 0 if it[0] == 'call' else 1
    op = it.split()[0]
    if any(op.startswith(t) for t in TRANS): return 2
    return 1

def weave(groups, fill):
    tot = sum(cost(f) for f in fill); n = len(groups); out = []; j = 0; acc = 0
    for i, g in enumerate(groups):
        out += g
        tgt = tot * (i + 1) / n
        while j < len(fill) and acc + cost(fill[j]) / 2 <= tgt:
            out.append(fill[j]); acc += cost(fill[j]); j += 1
    out += fill[j:]
    return out


class Stamps2:
    def __init__(self, a, on, T=None, vreg=15, sp=98):
        self.a = a; self.on = on; self.v = vreg; self.sp = sp; self.T = T; self.names = {}
    def _w(self, i, rt=False):
        a = self.a; sp = self.sp
        a(f's_mem{"real" if rt else ""}time s[{sp}:{sp+1}]'); a('s_waitcnt lgkmcnt(0)'); a(f'v_writelane_b32 v{self.v}, s{sp}, {i}')
        if self.T: self.T.ds = []
    def start(self):
        if not self.on: return
        self.a(f's_memrealtime s[{self.sp-2}:{self.sp-1}]'); self.a(f's_memtime s[{self.sp-4}:{self.sp-3}]')
    def init(self, vreg):
        self.v = vreg
        if not self.on: return
        a = self.a
        a(f'v_mov_b32 v{vreg}, 0'); a(f'v_writelane_b32 v{vreg}, s{self.sp-2}, 0'); a(f'v_writelane_b32 v{vreg}, s{self.sp-4}, 1')
    def mark(self, i, name=None):
        if not self.on: return
        self._w(i)
    def item(self, i, name=None):
        return ('call', lambda: self.mark(i, name))
    def flush(self, srdws, off, sW, vL):
        if not self.on: return
        a = self.a; sp = self.sp
        a('s_mov_b64 exec, -1'); a('s_waitcnt vmcnt(0)'); self._w(62); self._w(63, True)
        a(f's_getreg_b32 s{sp}, hwreg(HW_REG_XCC_ID)'); a(f'v_writelane_b32 v{self.v}, s{sp}, 61')
        a(f's_lshl_b32 s{sp}, s2, 3'); a(f's_add_u32 s{sp}, s{sp}, s{sW}'); a(f's_lshl_b32 s{sp}, s{sp}, 8'); a(f's_add_u32 s{sp}, s{sp}, {off}')
        a(f'v_lshlrev_b32 v0, 2, v{vL}')
        a(f'buffer_store_dword v{self.v}, v0, s[{srdws}:{srdws+3}], s{sp} offen')
```

```python
import sys, struct
from asmlib import *

NAME = 'recurrent_scan__sliding_block__dense_activation_silu__prompt'
OPT = dict(stamp=0, spin=200000, hp=1, rotf=1, rot=1, w1e=1, aq=14, tw=1, hd=0, hm=1)
for x in sys.argv[2:]:
    k, v = x.split('='); OPT[k] = int(v)
def f2u(x): return struct.unpack('<I', struct.pack('<f', x))[0]

QKVF = 0; HF = 0x600000; OF = 0xE00000; FLAGS = 0x1000000; STAMP = 0x1100000; WS_USED = 0x1200000
OFL = FLAGS + 1792 * 128
CSG = FLAGS + 0x80000
sN = 80
XBYTES = 2048 * 448 * 2
LOG2E = 1.4426950408889634
pX, pWQ, pWO, pW1, pW2, pOUT, pDBG = 4, 6, 8, 12, 14, 16, 18
SWS, SA, SB, SC = 20, 24, 28, 32
sI, sRB, sJ, sROT, sHD, sRBA, sTB, sCB = 36, 37, 38, 39, 40, 41, 42, 43
sW = 10; sIDX = 11
t0, t1, t2, t3, t4 = 3, 44, 45, 46, 47
sM = 48
def R4(b): return f's[{b}:{b+3}]'
S = R4(SWS)
def SL(p): return (p & 3) * 32768
W1B = (98304, 0)
def W1P(L, q):
    if L == 0: return 131072 + 8192 * q if q < 3 else 98304 + 8192 * (q - 3)
    return 8192 * q
KB = 60416; VB = 97280; WOB = 60416; SXB = 118272
RG1W = 14336; RG2 = 135168; RG2W = 6656
CS = 161792
STX = CS + 896
SYNC = STX + 1024
cCS0, cL1, cCS1, cAD, cB = 0, 4, 8, 12, 16
LDS_TOTAL = 163840

a = Asm(); T = Tr(a)
st = Stamps2(a, OPT['stamp'], T)
uid = [0]
def lab(p):
    uid[0] += 1; return f'L_{p}_{uid[0]}'
def srd(d, ptr, size):
    a(f's_mov_b32 s{d}, s{ptr}'); a(f's_and_b32 s{d+1}, s{ptr+1}, 0xffff'); a(f's_mov_b32 s{d+2}, {size}'); a(f's_mov_b32 s{d+3}, 0x20000')

def poll(vaddr, soff, nl, imm, vtmp, sleep=1):
    L = lab('poll'); E = lab('polle')
    a(f's_mov_b64 exec, {(1 << nl) - 1}'); a(f's_mov_b32 s{t4}, 0')
    a.label(L)
    a(f'buffer_load_dwordx2 {vr(vtmp,2)}, v{vaddr}, {S}, {soff} offen offset:{imm} sc1')
    a(f's_add_u32 s{t4}, s{t4}, 1')
    a('s_waitcnt vmcnt(0)')
    a(f'v_cmp_ne_u64 vcc, s[{sN}:{sN+1}], {vr(vtmp,2)}')
    a(f's_cbranch_vccz {E}')
    if sleep: a(f's_sleep {sleep}')
    a(f's_cmp_lt_u32 s{t4}, {OPT["spin"]}'); a(f's_cbranch_scc1 {L}')
    a.label(E)
    a('s_mov_b64 exec, -1')
    T.vm = []
vN = 62
def nonce_take(sampled):
    L = lab('nz'); E = lab('nze')
    a(f's_mov_b32 s{t4}, 0')
    if sampled: T(('wvm', 'go')); a(f's_branch {L}c')
    a.label(L)
    a(f'buffer_load_dwordx2 {vr(vN,2)}, v{vZ}, s[60:63], 0 offen sc1'); a('s_waitcnt vmcnt(0)')
    a.label(L + 'c')
    a(f'v_readfirstlane_b32 s{sN+1}, v{vN+1}'); a(f'v_readfirstlane_b32 s{sN}, v{vN}'); a(f's_add_u32 s{t4}, s{t4}, 1')
    a(f's_cmp_lg_u32 s{sN+1}, 0'); a(f's_cbranch_scc1 {E}')
    a('s_sleep 2'); a(f's_cmp_lt_u32 s{t4}, {OPT["spin"]}'); a(f's_cbranch_scc1 {L}')
    a.label(E)

vL, vL16, vSy, vZ, vTt = 1, 2, 7, 8, 11
def spin(off, val):
    L = lab('sp'); E = lab('spe')
    a(f's_mov_b32 s{t4}, 0')
    a.label(L)
    a(f'ds_read_b32 v{vTt}, v{vSy} offset:{off}'); a(f's_add_u32 s{t4}, s{t4}, 1'); a('s_waitcnt lgkmcnt(0)')
    a(f'v_cmp_gt_u32 vcc, {val}, v{vTt}')
    a(f's_cbranch_vccz {E}')
    a(f's_cmp_lt_u32 s{t4}, {OPT["spin"]*8}'); a(f's_cbranch_scc1 {L}')
    a.label(E)
    T.ds = []
def arrive(off):
    a('s_mov_b64 exec, 1'); a(f'v_mov_b32 v{vTt}, 1'); T(('ds', 'arr', f'ds_add_u32 v{vSy}, v{vTt} offset:{off}')); a('s_mov_b64 exec, -1')

def flag_store(imm, soff):
    return ['s_mov_b64 exec, 1', ('vm', 'flag', f'buffer_store_dwordx2 {vr(vN,2)}, v{vZ}, {S}, s{soff} offen offset:{imm} sc1'), 's_mov_b64 exec, -1']

def tr_base(vd, vt, natural):
    a(f'v_lshrrev_b32 v{vd}, 5, v{vL}'); a(f'v_bfe_u32 v{vt}, v{vL}, 2, 2'); a(f'v_lshl_add_u32 v{vd}, v{vd}, {3 if natural else 2}, v{vt}')
    a(f'v_lshlrev_b32 v{vd}, 7, v{vd}')
    a(f'v_bfe_u32 v{vt}, v{vL}, 3, 1'); a(f'v_lshl_add_u32 v{vd}, v{vt}, 6, v{vd}')
    a(f'v_bfe_u32 v{vt}, v{vL}, 4, 1'); a(f'v_lshl_add_u32 v{vd}, v{vt}, 5, v{vd}')
    a(f'v_and_b32 v{vt}, 3, v{vL}'); a(f'v_lshl_add_u32 v{vd}, v{vt}, 3, v{vd}')

def full_pat(vd, vt, vt2, stride):
    a(f'v_lshrrev_b32 v{vt}, 3, v{vL}'); a(f'v_mul_u32_u24 v{vd}, {stride}, v{vt}')
    a(f'v_bfe_u32 v{vt}, v{vL}, 4, 1'); a(f'v_lshlrev_b32 v{vt}, 2, v{vt}'); a(f'v_and_b32 v{vt2}, 7, v{vL}'); a(f'v_xor_b32 v{vt}, v{vt}, v{vt2}')
    a(f'v_lshl_add_u32 v{vd}, v{vt}, 4, v{vd}')

def mfma(d, A, B, first=False): return f'v_mfma_f32_32x32x16_bf16 {vr(d,16)}, {vr(A,4)}, {vr(B,4)}, ' + ('0' if first else vr(d, 16))
def mfma16(d, A, B, first=False): return f'v_mfma_f32_16x16x32_bf16 {vr(d,4)}, {vr(A,4)}, {vr(B,4)}, ' + ('0' if first else vr(d, 4))

def silu_ops(b, tmp, n, sNeg):
    o = []
    for g in range(0, n, 4):
        ks = range(g, g + 4)
        o += [f'v_mul_f32 v{tmp+k}, s{sNeg}, v{b+k}' for k in ks]
        o += [f'v_exp_f32 v{tmp+k}, v{tmp+k}' for k in ks]
        o += [f'v_add_f32 v{tmp+k}, 1.0, v{tmp+k}' for k in ks]
        o += [f'v_rcp_f32 v{tmp+k}, v{tmp+k}' for k in ks]
        o += [f'v_mul_f32 v{b+k}, v{tmp+k}, v{b+k}' for k in ks]
    return o

K = NAME + '_kernel'
a.raw(f'.globl {K}'); a.raw('.p2align 8'); a.raw(f'.type {K},@function'); a.label(K)
a('s_cmp_ge_u32 s2, 256'); a('s_cbranch_scc1 L_end')
a('s_load_dwordx16 s[4:19], s[0:1], 0'); a('s_load_dwordx2 s[20:21], s[0:1], 64')
st.start()
a(f'v_readfirstlane_b32 s{t1}, v0'); a(f'v_and_b32 v{vL}, 63, v0'); a(f'v_lshlrev_b32 v{vL16}, 4, v{vL}')
a(f's_and_b32 s{t0}, s2, 7'); a(f's_lshr_b32 s{t2}, s2, 3')
a(f's_lshr_b32 s{t1}, s{t1}, 6'); a(f's_and_b32 s{sI}, s{t1}, 3')
a(f's_and_b32 s{sHD}, s{t2}, 1'); a(f's_lshl1_add_u32 s{sHD}, s{t0}, s{sHD}'); a(f's_lshr_b32 s{sRBA}, s{t2}, 1')
a(f's_sub_u32 s{t3}, s{t2}, 4'); a(f's_lshr_b32 s{sCB}, s{t3}, 2'); a(f's_and_b32 s{t3}, s{t3}, 3')
a(f's_lshl2_add_u32 s{sTB}, s{t0}, s{t3}')
a(f's_lshr_b32 s{sRB}, s{t0}, 1'); a(f's_lshl2_add_u32 s{sRB}, s{sRB}, s{t3}')
a(f's_and_b32 s{sJ}, s{t0}, 1'); a(f's_mul_i32 s{sJ}, s{sJ}, 7'); a(f's_add_u32 s{sJ}, s{sJ}, s{sCB}')
if OPT['rot']:
    a(f's_lshl1_add_u32 s{sROT}, s{t3}, s{sCB}'); a(f's_sub_u32 s{t3}, s{sROT}, 7'); a(f's_min_u32 s{sROT}, s{sROT}, s{t3}')
else: a(f's_mov_b32 s{sROT}, 0')
vXd, vQd, vWd = 240, 244, 30
a(f's_lshl_b32 s{t0}, s{sRB}, 7'); a(f's_lshl_b32 s{t3}, s{sI}, 5'); a(f's_add_u32 s{t0}, s{t0}, s{t3}')
a(f'v_lshrrev_b32 v9, 3, v{vL}'); a(f'v_add_u32 v10, s{t0}, v9'); a(f'v_mul_u32_u24 v{vXd}, 896, v10')
a(f'v_lshrrev_b32 v10, 4, v{vL}'); a(f'v_and_b32 v11, 7, v{vL}'); a('v_xor_b32 v12, v10, v11'); a(f'v_lshl_add_u32 v{vXd}, v12, 4, v{vXd}')
a(f'v_xor_b32 v{vXd+1}, 64, v{vXd}'); a(f'v_add_u32 v{vXd+2}, {2*6144}, v{vXd}'); a(f'v_add_u32 v{vXd+3}, {3*6144}, v{vXd+1}'); a(f'v_add_u32 v{vXd+1}, 6144, v{vXd+1}')
a('v_and_b32 v10, 1, v10'); a('v_lshlrev_b32 v10, 2, v10'); a('v_xor_b32 v10, v10, v11'); a('v_lshlrev_b32 v10, 4, v10')
a(f's_lshl_b32 s{t3}, s{sI}, 4'); a(f'v_add_u32 v9, s{t3}, v9')
a(f's_mul_i32 s{t0}, s{sJ}, 192'); a(f's_and_b32 s{t0}, s{t0}, 0xffffff80'); a(f's_add_u32 s{t0}, s{t0}, 1024'); a(f'v_mul_u32_u24 v{vQd}, 2688, v9'); a(f'v_add3_u32 v{vQd}, v{vQd}, v10, s{t0}')
a(f'v_add_u32 v{vQd+1}, {128-1024}, v{vQd}'); a(f'v_add_u32 v{vQd+2}, {8*2688-2048}, v{vQd}'); a(f'v_add_u32 v{vQd+3}, {8*2688+128-3072}, v{vQd}')
a(f's_lshl_b32 s{t0}, s{sJ}, 8'); a(f'v_mul_u32_u24 v{vWd}, 3584, v9'); a(f'v_add3_u32 v{vWd}, v{vWd}, v10, s{t0}'); a(f'v_add_u32 v{vWd+1}, {8*3584-1024}, v{vWd}')
sMx, sMw = 48, 49
a(f's_lshl_b32 s{sMx}, s{sI}, 12'); a(f's_lshl_b32 s{sMw}, s{sI}, 11')
for p in range(2):
    a(f's_add_u32 s{50+p}, s{sROT}, {p}'); a(f's_sub_u32 s{t3}, s{50+p}, 7'); a(f's_min_u32 s{50+p}, s{50+p}, s{t3}')
a('s_waitcnt lgkmcnt(0)')
a(f's_mov_b32 s{sW}, s{t1}'); a(f's_mov_b32 s{sIDX}, s{t2}')
a(f's_and_b32 s{SWS+1}, s{SWS+1}, 0xffff'); a(f's_mov_b32 s{SWS+2}, {WS_USED}'); a(f's_mov_b32 s{SWS+3}, 0x20000')
a(f's_cmp_lt_u32 s{sIDX}, 4'); a('s_cbranch_scc1 L_helper')
srd(SA, pX, XBYTES)
a(f's_sub_u32 s{SB}, s{pWQ}, 1024'); a(f's_subb_u32 s{SB+1}, s{pWQ+1}, 0'); a(f's_and_b32 s{SB+1}, s{SB+1}, 0xffff'); a(f's_mov_b32 s{SB+2}, {448*2688 + 1024}'); a(f's_mov_b32 s{SB+3}, 0x20000')
def x_dma(p):
    return [([f's_add_u32 m0, s{sMx}, {SL(p)}', f's_lshl_b32 s{t0}, s{50+p}, 7'] if i == 0 else []) +
            [('vm', f'p{p}', f'buffer_load_dwordx4 v{vXd+i}, {R4(SA)}, s{t0} offen offset:{i*1024} lds')] for i in range(4)]
def wq_dma(p):
    return [([f's_add_u32 m0, s{sMx}, {SL(p) + 16384}', f's_mul_i32 s{t0}, s{50+p}, {64*2688}'] if i == 0 else []) +
            [('vm', f'p{p}', f'buffer_load_dwordx4 v{vQd+i}, {R4(SB)}, s{t0} offen offset:{i*1024} lds')] for i in range(4)]
def w1_dma(L, q):
    return [[f's_add_u32 m0, s{sMw}, {W1P(L, q)}', f's_mul_i32 s{t0}, s{50+q}, {64*3584}',
             ('vm', f'l{L}', f'buffer_load_dwordx4 v{vWd}, {R4(SC)}, s{t0} offen lds')],
            [('vm', f'l{L}', f'buffer_load_dwordx4 v{vWd+1}, {R4(SC)}, s{t0} offen offset:1024 lds')]]
a(f's_cmp_ge_u32 s{sW}, 4'); a('s_cbranch_scc1 L_B')

vXa = 12
vT = 16
vNm, vR = 18, 20
vK1, vIr = 22, 23
vCa = 9
vWF = 32
vSel = 56
vAcc = 64
vCs = 96; vTm = 112; vCs2 = 240; vCs3 = 32
vX = 128
sQo, sHo, sFl = 57, 58, 59

def common_setup(role):
    st.init(60)
    for p in range(2, 7):
        a(f's_add_u32 s{50+p}, s{sROT}, {p}'); a(f's_sub_u32 s{t3}, s{50+p}, 7'); a(f's_min_u32 s{50+p}, s{50+p}, s{t3}')
    srd(SC, pW1, 448 * 3584)
    a(f'v_mov_b32 v{vZ}, 0'); a(f'v_mov_b32 v{vSy}, {SYNC}')
    a(f'v_and_b32 v10, 31, v{vL}'); a(f'v_lshlrev_b32 v{vXa}, 7, v10'); a(f'v_bfe_u32 v10, v{vL}, 1, 3'); a(f'v_lshrrev_b32 v11, 5, v{vL}')
    a('v_xor_b32 v10, v10, v11'); a(f'v_lshl_add_u32 v{vXa}, v10, 4, v{vXa}'); a(f'v_add_u32 v{vXa}, s{sMx}, v{vXa}')
    for s in range(1, 4): a(f'v_xor_b32 v{vXa+s}, {32*s}, v{vXa}')
    a(f'v_lshlrev_b32 v{vCa}, 4, v11'); a(f'v_add_u32 v{vCa}, {CS}, v{vCa}')
    tr_base(24, 10, True)
    a(f'v_lshl_add_u32 v27, v11, 10, v24')
    a(f's_and_b32 s{t0}, s{sJ}, 1')
    for k in range(2):
        if role == 'A': a(f's_add_u32 s{t1}, s{t0}, {k}')
        elif k == 0: a(f's_add_u32 s{t1}, s{t0}, 2')
        else: a(f's_min_u32 s{t1}, s{sI}, 2'); a(f's_add_u32 s{t1}, s{t1}, s{t0}')
        a(f's_and_b32 s{t2}, s{t1}, 1'); a(f's_lshl_b32 s{t2}, s{t2}, 6'); a(f's_lshr_b32 s{t1}, s{t1}, 1'); a(f's_lshl_b32 s{t1}, s{t1}, 10'); a(f's_add_u32 s{t1}, s{t1}, 16384')
        a(f'v_xor_b32 v{vT+k}, s{t2}, v27'); a(f'v_add_u32 v{vT+k}, s{t1}, v{vT+k}')
    a(f'v_and_b32 v10, 15, v{vL}'); a(f'v_bfe_u32 v11, v{vL}, 4, 1'); a('v_cmp_eq_u32 vcc, v10, v11'); a('v_mov_b32 v10, 0x3f803f80')
    for k in range(4): a(f'v_cndmask_b32 v{vSel+k}, 0, v10, vcc')
    r = 0 if role == 'A' else 1
    a(f's_lshl2_add_u32 s{t0}, s{sRB}, s{sI}')
    a(f's_mul_i32 s{sQo}, s{t0}, 84'); a(f's_mul_i32 s{t1}, s{sJ}, 6'); a(f's_add_u32 s{sQo}, s{sQo}, s{t1}'); a(f's_add_u32 s{sQo}, s{sQo}, {4*r}'); a(f's_lshl_b32 s{sQo}, s{sQo}, 10')
    a(f's_mul_i32 s{sHo}, s{t0}, 112'); a(f's_lshl3_add_u32 s{sHo}, s{sJ}, s{sHo}'); a(f's_lshl_b32 s{sHo}, s{sHo}, 10'); a(f's_add_u32 s{sHo}, s{sHo}, {HF + 2048*(1-r)}')
    a(f's_mul_i32 s{sFl}, s{t0}, 14'); a(f's_add_u32 s{sFl}, s{sFl}, s{sJ}'); a(f's_lshl_b32 s{sFl}, s{sFl}, 8'); a(f's_add_u32 s{sFl}, s{sFl}, {FLAGS + 128*r}')

sOK = 19
def cs_loads(role, L):
    hf = 1 if role == 'A' else 0
    a(f's_lshl_b32 s{t0}, s{sJ}, 10'); a(f's_add_u32 s{t0}, s{t0}, {CSG}'); a(f'v_lshrrev_b32 v10, 5, v{vL}'); a('v_lshlrev_b32 v10, 4, v10')
    return [f'buffer_load_dwordx4 {vr((vCs2, vCs)[L]+4*g,4)}, v10, {S}, s{t0} offen offset:{L*512 + hf*128 + g*32} sc1' for g in range(4)]
def cs_try(role):
    E = lab('cst')
    T(('wvm', 'cf')); a(f'v_cmp_ne_u64 vcc, s[{sN}:{sN+1}], v[28:29]'); a(f's_mov_b32 s{sOK}, vcc_lo'); a(f's_cbranch_vccnz {E}')
    T(cs_loads(role, 0))
    a.label(E)
def cs_late(role):
    E = lab('csl')
    a(f's_cmp_eq_u32 s{sOK}, 0'); a(f's_cbranch_scc1 {E}')
    a(f's_lshl_b32 s{t1}, s{sJ}, 10'); a(f's_add_u32 s{t1}, s{t1}, {CSG}')
    keep = list(T.vm)
    poll(25, f's{t1}', 2, 256, 28)
    T(cs_loads(role, 0)); a('s_waitcnt vmcnt(0)')
    T.vm = keep
    a.label(E)
    for t in cs_loads(role, 1): T(('vm', 'cs1', t))
def touch(role, k):
    if not OPT['tw']: return
    if k == 0:
        srd(SA, pW2, 1792 * 896); srd(SB, pWO, 448 * 896)
        a(f'v_min_u32 v3, 27, v{vL}'); a('v_lshlrev_b32 v3, 7, v3'); a(f'v_min_u32 v4, 13, v{vL}'); a('v_lshlrev_b32 v4, 7, v4')
    a(f's_sub_u32 s{t0}, s{sIDX}, 4'); a(f's_lshl3_add_u32 s{t0}, s{t0}, s{sW}'); a(f's_mul_i32 s{t1}, s{t0}, {56*128}')
    T(('vm', 'pf', f'buffer_load_dword v56, v3, {R4(SA)}, s{t1} offen offset:{k*28*128}') if k == 0 else ('vm', 'pf', f'buffer_load_dword v58, v3, {R4(SA)}, s{t1} offen offset:{k*28*128}'))
    if k == 1:
        a(f's_mul_i32 s{t1}, s{t0}, {14*128}')
        T(('vm', 'pf', f'buffer_load_dword v59, v4, {R4(SB)}, s{t1} offen'))
def p1a(role):
    A_ = role == 'A'
    vS = vTm
    def xreads(p): return [('ds', f'x{p}', f'ds_read_b128 {vr(vX+16*p+4*s,4)}, v{vXa+s} offset:{SL(p) & 0xffff}') for s in range(4)]
    def wreads(n):
        p = n >> 2; s = n & 3; b = n & 1
        return [('ds', f'w{n}', f'ds_read_b64_tr_b16 {vr(vWF+8*b+4*t+2*q,2)}, v{vT+t} offset:{(SL(p) & 0xffff) + s*4096 + q*512}') for t in range(2) for q in range(2)]
    def hop(p):
        d = (SL(p) & ~0xffff) - (SL(p - 1) & ~0xffff)
        if d == 0: return []
        op = 'v_add_u32' if d > 0 else 'v_subrev_u32'
        return [f'{op} v{v}, {abs(d)}, v{v}' for v in (vXa, vXa+1, vXa+2, vXa+3, vT, vT+1)]
    if not A_:
        for r in range(4): a(f'v_mov_b32 v{vS+r}, 0')
        a(f'v_mov_b32 v{vS+4}, 0x3f803f80')
    plan = {}
    for p in range(5): plan[p] = x_dma(p + 2) if A_ else wq_dma(p + 2)
    if A_:
        plan[5] = w1_dma(0, 0) + w1_dma(0, 2)
        plan[6] = w1_dma(0, 4) + w1_dma(0, 6)
    else:
        plan[5] = w1_dma(0, 1) + w1_dma(0, 3)
        plan[6] = w1_dma(0, 5)
    T(('w', 'p0', '*')); st.mark(3); a('s_barrier'); st.mark(4)
    T(xreads(0)[:1] + wreads(0) + xreads(0)[1:])
    for n in range(28):
        p = n >> 2; s = n & 3; b = n & 1
        ms = [[mfma(vAcc, vWF+8*b, vX+4*n, n == 0)], [mfma(vAcc+16, vWF+8*b+4, vX+4*n, n == 0) if A_ else mfma16(vAcc+16, vWF+8*b+4, vSel, n == 0)]]
        fill = []
        if s == 3 and p < 6:
            T(('w', f'p{p+1}', '*'))
            if p in (1, 4): st.mark(5 + p)
            a('s_barrier')
            if p in (1, 4): st.mark(6 + p)
            T(hop(p + 1))
            fill = xreads(p + 1)[:1] + wreads(n + 1) + xreads(p + 1)[1:]
        else:
            T(('wds', f'w{n}' if s != 1 else '*'))
            if n < 27: fill = wreads(n + 1)
        if s < 3 or p == 6:
            u = plan[p]
            k = len(u)
            lo, hi = (s * k + 2) // 3 if s < 3 else k, ((s + 1) * k + 2) // 3 if s < 3 else k
            for x in u[lo:hi]: fill += x
        T(weave(ms, fill))
        if not A_ and s == 1:
            for d in range(16):
                r = vX + 16*p + d
                a(f'v_dot2c_f32_bf16 v{vS + (d&1)}, v{r}, v{vS+4}'); a(f'v_dot2c_f32_bf16 v{vS + 2 + (d&1)}, v{r}, v{r}')
        if n == 14: T(('vm', 'go', f'buffer_load_dwordx2 {vr(vN,2)}, v{vZ}, s[60:63], 0 offen sc1'))
        if n == 22:
            a(f's_lshl_b32 s{t1}, s{sJ}, 10'); a(f's_add_u32 s{t1}, s{t1}, {CSG}'); a(f'v_and_b32 v25, 1, v{vL}'); a('v_lshlrev_b32 v25, 9, v25')
            T(('vm', 'cf', f'buffer_load_dwordx2 v[28:29], v25, {S}, s{t1} offen offset:256 sc1'))
        if not A_ and n == 26:
            a(f'v_add_f32 v{vS}, v{vS}, v{vS+1}'); a(f'v_add_f32 v{vS+2}, v{vS+2}, v{vS+3}')
            a(f'v_mov_b32 v{vS+1}, v{vS}'); a(f'v_mov_b32 v{vS+3}, v{vS+2}')
            a(f'v_permlane32_swap_b32 v{vS}, v{vS+1}'); a(f'v_permlane32_swap_b32 v{vS+2}, v{vS+3}')
            a(f'v_add_f32 v{vS}, v{vS}, v{vS+1}'); a(f'v_add_f32 v{vS+2}, v{vS+2}, v{vS+3}')
            a(f'v_mul_f32 v{vNm}, {f2u(-1.0/448):#x}, v{vS}'); a(f'v_mul_f32 v{vS+2}, {f2u(1.0/448):#x}, v{vS+2}')
            a(f'v_fma_f32 v{vS+2}, -v{vNm}, v{vNm}, v{vS+2}'); a(f'v_max_f32 v{vS+2}, 0, v{vS+2}')
            a(f'v_add_f32 v{vNm+1}, {f2u(1e-5):#x}, v{vS+2}')
            a(f'v_and_b32 v10, 31, v{vL}'); a(f's_lshl_b32 s{t0}, s{sI}, 8'); a(f's_add_u32 s{t0}, s{t0}, {STX}'); a(f'v_lshl_add_u32 v10, v10, 3, s{t0}')
            T(('ds', 'st', f'ds_write_b64 v10, {vr(vNm,2)}'))
    if not A_:
        a(f's_min_u32 s{t0}, s{sI}, 2'); a(f's_lshl_b32 s{t0}, s{t0}, 7'); a(f's_add_u32 s{t0}, s{t0}, {CS}')
        a(f'v_and_b32 v10, 1, v{vL}'); a('v_lshlrev_b32 v10, 6, v10'); a(f'v_and_b32 v11, 48, v{vL}'); a(f'v_add3_u32 v10, v10, v11, s{t0}')
        a('s_mov_b32 exec_lo, 0x00030003'); a('s_mov_b32 exec_hi, 0x00030003')
        T(('ds', 'st', f'ds_write_b128 v10, {vr(vAcc+16,4)}'))
        a('s_mov_b64 exec, -1')
    nonce_take(True)
    cs_try(role)
    if A_: a('s_setprio 3')
    T(('wds', '*')); st.mark(11); a('s_barrier'); st.mark(12)
    if A_:
        a(f'v_and_b32 v10, 31, v{vL}'); a(f's_lshl_b32 s{t0}, s{sI}, 8'); a(f's_add_u32 s{t0}, s{t0}, {STX}'); a(f'v_lshl_add_u32 v10, v10, 3, s{t0}')
        T(('ds', 'st', f'ds_read_b64 {vr(vNm,2)}, v10'))
    tiles = (0, 1) if A_ else (2,)
    for k, t in enumerate(tiles):
        for g in range(4): T(('ds', f'cs{k}', f'ds_read_b128 {vr(vCs+16*k+4*g,4)}, v{vCa} offset:{t*128 + g*32}'))
    if A_: T(('wds', 'st'))
    a(f'v_rsq_f32 v{vR}, v{vNm+1}'); a(f'v_sqrt_f32 v{vIr}, v{vNm+1}'); a(f'v_mov_b32 v{vNm+1}, v{vNm}')
    a(f'v_mul_f32 v{vK1}, {f2u(-LOG2E):#x}, v{vR}')
    for k, t in enumerate(tiles):
        a(f's_mul_i32 s{t0}, s{sJ}, 3'); a(f's_add_u32 s{t0}, s{t0}, {t}'); a(f's_cmp_lt_u32 s{t0}, 14'); a(f's_cselect_b32 s{t0}, {f2u(28**-0.5*LOG2E):#x}, 1.0')
        a(f'v_mul_f32 v26, s{t0}, v{vR}'); a(f'v_mul_f32 v27, s{t0}, v{vR}')
        T(('wds', f'cs{k}'))
        b = vAcc + 16*k
        for j in range(0, 16, 2): a(f'v_pk_fma_f32 {vr(b+j,2)}, {vr(vCs+16*k+j,2)}, {vr(vNm,2)}, {vr(b+j,2)}')
        for j in range(0, 16, 2): a(f'v_pk_mul_f32 {vr(b+j,2)}, {vr(b+j,2)}, v[26:27]')
        for s in range(2):
            for j in range(4): a(f'v_cvt_pk_bf16_f32 v{b+4*s+j}, v{b+8*s+2*j}, v{b+8*s+2*j+1}')
            T(('vm', 'q', f'buffer_store_dwordx4 {vr(b+4*s,4)}, v{vL16}, {S}, s{sQo} offen offset:{k*2048 + s*1024} sc1'))
    st.mark(13)

NR = 6; PD = 4
def h_tile(L, hf, acc, at=-1, extra=None):
    def rd(n): return [('ds', f'u{n}', f'ds_read_b64_tr_b16 {vr(vWF+4*(n%NR)+2*q,2)}, v{vT+L} offset:{W1P(L, n>>2) - W1B[L] + (16*(n&3)+4*q)*128}') for q in range(2)]
    for n in range(PD): T(rd(n))
    for n in range(28):
        if n + PD < 28: T(rd(n + PD))
        if n & 1 == 0: T(('wds', f'u{n+1}'))
        a(mfma(acc, vWF + 4*(n % NR), vX + 4*n, n == 0))
        if n == at: T(extra)
def h_epi(acc, k, vCs, mid=None):
    for g in range(0, 16, 4):
        ks = range(g, g + 4)
        for j in ks: a(f'v_fma_f32 v{acc+j}, v{vCs+j}, v{vNm}, v{acc+j}')
        for j in ks: a(f'v_mul_f32 v{vTm+j}, v{vK1}, v{acc+j}')
        for j in ks: a(f'v_exp_f32 v{vTm+j}, v{vTm+j}')
        for j in ks: a(f'v_fma_f32 v{vTm+j}, v{vTm+j}, v{vIr}, v{vIr}')
        for j in ks: a(f'v_rcp_f32 v{vTm+j}, v{vTm+j}')
        for j in ks: a(f'v_mul_f32 v{acc+j}, v{vTm+j}, v{acc+j}')
        if g == 4 and mid: T(mid)
        if g & 4:
            s = g >> 3
            for j in range(4): a(f'v_cvt_pk_bf16_f32 v{acc+4*s+j}, v{acc+8*s+2*j}, v{acc+8*s+2*j+1}')
            T(('vm', f'h{k}', f'buffer_store_dwordx4 {vr(acc+4*s,4)}, v{vL16}, {S}, s{sHo} offen offset:{s*1024} sc1'))
    if k == 0: a(f's_add_u32 s{sHo}, s{sHo}, 4096')

for u in x_dma(0) + wq_dma(0): T(u)
st.mark(2) if False else None
common_setup('A')
srd(60, pDBG, 256)
a(f'v_and_b32 v10, 7, v{vL}'); a(f'v_lshl_add_u32 v10, v10, 2, v{vSy}'); a(f'ds_write_b32 v10, v{vZ}')
p1a('A')
a('s_setprio 0')
T(('wvm', 'l0')); arrive(cCS0)
a(f'v_add_u32 v{vWd}, 128, v{vWd}'); a(f'v_add_u32 v{vWd+1}, 128, v{vWd+1}')
a(f'v_xor_b32 v{vT+1}, 64, v24'); a(f'v_add_u32 v{vT}, {W1B[0]}, v{vT+1}')
for q in range(4): T(w1_dma(1, q))
st.mark(14)
T([('wvm', 'q')] + flag_store(0, sFl))
st.mark(15)
for q in range(4, 7): T(w1_dma(1, q))
touch('A', 0)
spin(cCS0, 8)
st.mark(16)
h_tile(0, 1, vAcc, 13, [('wvm', 'l1'), ('call', lambda: arrive(cL1))])
st.mark(20)
arrive(cCS1)
cs_late('A')
h_epi(vAcc, 0, vCs2)
touch('A', 1)
spin(cL1, 4)
st.mark(21)
h_tile(1, 1, vAcc + 16)
arrive(cAD)
st.mark(22)
T(('wvm', 'cs1'))
h_epi(vAcc + 16, 1, vCs)
st.mark(23)
srd(SA, pW2, 1792 * 896)
vWo, vT0, vT1, vU0, vU1, vFa, vL2 = 3, 4, 5, 6, 9, 10, 12
sR1, sR2, sWb, sH0, sRF = 48, 49, 50, 51, 52
full_pat(vWo, 13, 14, 896); a(f's_lshl_b32 s{t0}, s{sCB}, 7'); a(f'v_add_u32 v{vWo}, s{t0}, v{vWo}')
a(f's_mul_i32 s{sR1}, s{sI}, {RG1W}'); a(f's_mul_i32 s{sR2}, s{sI}, {RG2W}'); a(f's_add_u32 s{sR2}, s{sR2}, {RG2}')
tr_base(13, 14, False)
a(f'v_add_u32 v{vT0}, s{sR1}, v13'); a(f'v_xor_b32 v{vT1}, 64, v{vT0}'); a(f'v_add_u32 v{vU0}, s{sR2}, v13'); a(f'v_xor_b32 v{vU1}, 64, v{vU0}')
a(f's_mul_i32 s{sWb}, s{sI}, {448*896}')
a(f's_mul_i32 s{sH0}, s{sTB}, 224'); a(f's_mul_i32 s{t0}, s{sI}, 28'); a(f's_add_u32 s{sH0}, s{sH0}, s{t0}'); a(f's_lshl_b32 s{sH0}, s{sH0}, 10')
a(f's_add_u32 s{sH0}, s{sH0}, {HF}')
if OPT['rotf']:
    a(f's_and_b32 s{t0}, s{sTB}, 3'); a(f's_mul_i32 s{t0}, s{t0}, 7'); a(f's_lshl2_add_u32 s{sRF}, s{sCB}, s{t0}'); a(f's_sub_u32 s{t0}, s{sRF}, 28'); a(f's_min_u32 s{sRF}, s{sRF}, s{t0}')
else: a(f's_mov_b32 s{sRF}, 0')
a(f's_mul_i32 s{t0}, s{sI}, 7'); a(f's_lshr_b32 s{t0}, s{t0}, 1')
a(f'v_bfe_u32 v13, v{vL}, 1, 2'); a(f'v_add_u32 v13, s{t0}, v13')
a(f'v_bfe_u32 v{vFa}, v{vL}, 3, 1'); a(f's_lshl_b32 s{t0}, s{sTB}, 1'); a(f'v_add_u32 v{vFa}, s{t0}, v{vFa}'); a(f'v_mul_u32_u24 v{vFa}, 14, v{vFa}')
a(f'v_add_lshl_u32 v{vFa}, v{vFa}, v13, 1'); a(f'v_and_b32 v13, 1, v{vL}'); a(f'v_add_lshl_u32 v{vFa}, v{vFa}, v13, 7')
a(f'v_add_u32 v{vL2}, {112*1024}, v{vL16}')
fAcc = 64; vHr = 128; RH = 8; vSB = 16; NS = 10; NRES = 11
def wreg(k): return 192 + 8*k if k < 8 else 32 + 8*(k - 8)
slot_of = {}
def rot_step(n, dst): return [f's_add_u32 s{dst}, s{sRF}, {n}', f's_sub_u32 s{t3}, s{dst}, 28', f's_min_u32 s{dst}, s{dst}, s{t3}']
def wdma(n, slot):
    slot_of[n] = slot
    sb, off = (sR1, slot*2048) if slot < 7 else (sR2, (slot - 7)*2048)
    return rot_step(n, t1) + [f's_mul_i32 s{t1}, s{t1}, {16*896}', f's_add_u32 m0, s{sb}, {off}', f's_add_u32 s{t1}, s{t1}, s{sWb}',
            ('vm', f'W{n}', f'buffer_load_dwordx4 v{vWo}, {R4(SA)}, s{t1} offen lds'),
            f's_add_u32 m0, s{sb}, {off + 1024}', f's_add_u32 s{t1}, s{t1}, {8*896}',
            ('vm', f'W{n}', f'buffer_load_dwordx4 v{vWo}, {R4(SA)}, s{t1} offen lds')]
def wread(n, dst):
    slot = slot_of[n]
    vs, off = ((vT0, vT1), slot*2048) if slot < 7 else ((vU0, vU1), (slot - 7)*2048)
    return [('ds', f'R{n}', f'ds_read_b64_tr_b16 {vr(dst+4*ct+2*q,2)}, v{vs[ct]} offset:{off + q*1024}') for ct in range(2) for q in range(2)]
lorder = list(range(NS, NS + NRES)) + list(range(0, NS))
spin(cAD, 4); spin(cB, 4)
for i in range(4): T(wdma(lorder[i], i))
T([('wvm', 'h1')] + flag_store(8, sFl))
st.mark(24)
for i in range(4, NS): T(wdma(lorder[i], i))
for i in range(NRES):
    n = lorder[i]
    T([('wvm', f'W{n}')] + wread(n, wreg(n - NS)))
    if i > 0:
        m = lorder[i - 1]
        T([('wds', f'R{m}')] + wdma(lorder[i - 1 + NS], slot_of[m]))
T([('wds', '*')] + wdma(lorder[NRES - 1 + NS], slot_of[lorder[NRES - 1]]))
st.mark(25)
a(f's_mov_b32 s{t0}, {FLAGS}')
poll(vFa, f's{t0}', 16, 8, 14)
st.mark(26)
def hload(n):
    return rot_step(n, t2) + [f's_lshl_b32 s{t2}, s{t2}, 10', f's_add_u32 s{t2}, s{t2}, s{sH0}'] + \
        [('vm', f'H{n}', f'buffer_load_dwordx4 {vr(vHr+8*(n%RH)+4*tt,4)}, v{(vL16,vL2)[tt]}, {S}, s{t2} offen sc1') for tt in range(2)]
for n in range(RH): T(hload(n))
def wsrc(n): return wreg(n - NS) if NS <= n < NS + NRES else vSB + 8*(n & 1)
T(wread(0, wsrc(0)))
for n in range(28):
    nx = n + 1
    if nx < 28 and not (NS <= nx < NS + NRES):
        T([('wvm', f'W{nx}')] + wread(nx, wsrc(nx)))
    T(('w', f'H{n}', f'R{n}'))
    if n in (0, 7, 14, 21): st.mark(27 + n // 7)
    for tt in range(2):
        for ct in range(2): a(mfma(fAcc + 16*(ct + 2*tt), wsrc(n) + 4*ct, vHr + 8*(n % RH) + 4*tt, n == 0))
    if n + RH < 28: T(hload(n + RH))
    if n < 28 - NS - NRES: T(wdma(NS + NRES + n, slot_of[n]))
st.mark(31)
a(f'v_add_u32 v13, s{sR1}, v{vL16}'); a(f'v_add_u32 v14, s{sR2}, v{vL16}')
for g in range(16):
    T(('ds', 'p', f'ds_write_b128 v{13 if g < 12 else 14}, {vr(fAcc+4*g,4)} offset:{(g if g < 12 else g - 12)*1024}'))
T(('wds', '*'))
st.mark(32)
a('s_barrier')
st.flush(SWS, STAMP, sW, vL)
a('s_endpgm')

T.reset()
a.label('L_helper')
srd(60, pDBG, 256); srd(SA, pW1, 448 * 3584)
a(f'v_mov_b32 v{vZ}, 0')
a(f's_or_b32 s{t0}, s2, s{sW}'); a('s_cbranch_scc1 L_nononce')
a(f's_memrealtime s[{sN}:{sN+1}]'); a('s_waitcnt lgkmcnt(0)'); a(f's_or_b32 s{sN+1}, s{sN+1}, 0x80000000')
a(f'v_mov_b32 v{vN}, s{sN}'); a(f'v_mov_b32 v{vN+1}, s{sN+1}')
a('s_mov_b64 exec, 1'); a(f'buffer_store_dwordx2 {vr(vN,2)}, v{vZ}, s[60:63], 0 offen sc1'); a('s_mov_b64 exec, -1')
a.label('L_nononce')
if OPT['hd']: a(f's_sleep {OPT["hd"]}')
a(f's_min_u32 s{t2}, s2, 27'); a(f's_mul_i32 s{t0}, s{sW}, {56*3584}'); a(f's_lshl_b32 s{t1}, s{t2}, 7'); a(f's_add_u32 s{t0}, s{t0}, s{t1}')
a(f'v_lshrrev_b32 v9, 3, v{vL}'); a('v_mul_u32_u24 v9, 3584, v9'); a(f'v_and_b32 v10, 7, v{vL}'); a('v_lshl_add_u32 v9, v10, 4, v9')
for i in range(7):
    T(('vm', f'c{i}', f'buffer_load_dwordx4 {vr(64+4*i,4)}, v9, {R4(SA)}, s{t0} offen')); a(f's_add_u32 s{t0}, s{t0}, {8*3584}')
st.init(60)
a('s_getpc_b64 s[28:29]'); a.label('L_pc')
a(f's_sub_u32 s28, s28, L_pc-{K}'); a('s_subb_u32 s29, s29, 0')
a(f's_lshl3_add_u32 s{t3}, s{sIDX}, s{sW}')
a(f's_lshl_b32 s{t0}, s{t3}, 11'); a(f'v_and_b32 v4, 15, v{vL}'); a('v_lshlrev_b32 v4, 7, v4'); a(f'v_add_u32 v4, s{t0}, v4')
a(f'v_min_u32 v4, L_end-{K}, v4'); T(('vm', 'pc', 'global_load_dword v3, v4, s[28:29]'))
a(f'v_mov_b32 v{vSy}, {SYNC}'); a(f'ds_write_b32 v{vSy}, v{vZ} offset:{cB}')
for i in range(7):
    T(('wvm', f'c{i}'))
    d0 = 16 if i == 0 else 24
    for d in range(4):
        a(f'v_lshlrev_b32 v{d0+2*d}, 16, v{64+4*i+d}'); a(f'v_and_b32 v{d0+1+2*d}, 0xffff0000, v{64+4*i+d}')
    if i:
        for d in range(4): a(f'v_pk_add_f32 {vr(16+2*d,2)}, {vr(16+2*d,2)}, {vr(24+2*d,2)}')
a(f's_lshl_b32 s{t0}, s{sW}, 11'); a(f'v_lshlrev_b32 v12, 5, v{vL}'); a(f'v_add_u32 v12, s{t0}, v12')
a('ds_write_b128 v12, v[16:19]'); a('ds_write_b128 v12, v[20:23] offset:16')
a('s_waitcnt lgkmcnt(0)'); a('s_barrier')
st.mark(2)
a(f's_cmp_ge_u32 s{sW}, 4'); a('s_cbranch_scc1 L_helperB')
a(f's_cmp_lg_u32 s{sW}, 0'); a('s_cbranch_scc1 L_hcs_done'); a('s_cmp_ge_u32 s2, 28'); a('s_cbranch_scc1 L_hcs_done')
a(f'v_lshlrev_b32 v12, 2, v{vL}')
for g in range(4):
    for k in range(8): a(f'ds_read2st64_b32 {vr(64+16*g+2*k,2)}, v12 offset0:{16*g+2*k} offset1:{16*g+2*k+1}')
    a('s_waitcnt lgkmcnt(0)')
for w in (32, 16, 8, 4, 2):
    for k in range(0, w, 2): a(f'v_pk_add_f32 {vr(64+k,2)}, {vr(64+k,2)}, {vr(64+w+k,2)}')
a('v_add_f32 v64, v64, v65')
a(f's_lshl_b32 s{t0}, s2, 9'); a(f's_add_u32 s48, s{t0}, {CSG}')
a(f'buffer_store_dword v64, v12, {S}, s48 offen sc1')
nonce_take(False)
T(flag_store(256, 48))
st.mark(3)
a.label('L_hcs_done')
if OPT['hm']:
    srd(SA, pW2, 1792 * 896); srd(SB, pWO, 448 * 896)
    a(f's_lshl2_add_u32 s{t3}, s2, s{sI}'); a(f's_mul_i32 s{t0}, s{t3}, {98*128}')
    a(f'v_min_u32 v4, 48, v{vL}'); a('v_lshlrev_b32 v4, 7, v4')
    a(f'buffer_load_dword v16, v4, {R4(SA)}, s{t0} offen'); a(f's_add_u32 s{t0}, s{t0}, {49*128}'); a(f'buffer_load_dword v17, v4, {R4(SA)}, s{t0} offen')
    a(f's_mul_i32 s{t0}, s{t3}, {25*128}'); a(f'v_min_u32 v4, 24, v{vL}'); a('v_lshlrev_b32 v4, 7, v4')
    a(f'buffer_load_dword v18, v4, {R4(SB)}, s{t0} offen')
st.flush(SWS, STAMP, sW, vL)
a('s_endpgm')
a.label('L_helperB')
a('s_sleep 48')
nonce_take(False)
a('s_branch L_att')

T.reset()
a.label('L_B')
for u in x_dma(1) + wq_dma(1): T(u)
a('s_setprio 2')
common_setup('B')
srd(60, pDBG, 256)
p1a('B')
a(f'v_add_u32 v{vT}, {W1B[0]}, v24'); a(f'v_mov_b32 v{vT+1}, v24')
T(('wvm', 'l0')); arrive(cCS0); spin(cCS0, 8)
st.mark(15)
h_tile(0, 0, vAcc + 16)
st.mark(16)
T([('wvm', 'q')] + flag_store(0, sFl))
cs_late('B')
touch('B', 0)
h_epi(vAcc + 16, 0, vCs2)
spin(cL1, 4)
st.mark(17)
touch('B', 1)
h_tile(1, 0, vAcc)
st.mark(18)
T(('wvm', 'cs1'))
h_epi(vAcc, 1, vCs)
spin(cCS1, 4)
st.mark(19)
a.label('L_att')
arrive(cB)
a('s_setprio 3')
sST0, sG0, sTQ = 6, 12, 13
a(f's_mul_i32 s{t0}, s{sHD}, 7'); a(f's_lshr_b32 s{sST0}, s{t0}, 2'); a(f's_and_b32 s{sG0}, s{t0}, 3')
a(f's_lshl2_add_u32 s{sTQ}, s{sRBA}, s{sI}')
vVe, vVo, vKa, vV0, vV1, vFl = 3, 4, 5, 6, 9, 10
a(f's_mul_i32 s{t0}, s{sI}, 3'); a(f's_lshl2_add_u32 s{t0}, s{sRBA}, s{t0}'); a(f's_sub_u32 s7, s{t0}, 8')
a(f'v_lshrrev_b32 v20, 2, v{vL}'); a('v_add_u32 v20, s7, v20'); a('v_max_i32 v20, 0, v20')
a(f'v_bfe_u32 v21, v{vL}, 1, 1'); a('v_mul_u32_u24 v21, 28, v21'); a('v_add_u32 v21, 28, v21')
a(f'v_cmp_le_u32 vcc, 12, v{vL}'); a(f'v_mov_b32 v22, s{sTQ}')
a('v_cndmask_b32 v20, v20, v22, vcc'); a(f'v_cndmask_b32 v21, v21, v{vZ}, vcc')
a(f'v_and_b32 v22, 1, v{vL}'); a('v_lshl_add_u32 v21, v22, 1, v21'); a(f'v_add_u32 v21, s{sST0}, v21')
a('v_lshrrev_b32 v21, 1, v21'); a('v_min_u32 v21, 41, v21')
a('v_mul_u32_u24 v22, 43, v21'); a('v_lshrrev_b32 v22, 7, v22')
a('v_mul_u32_u24 v23, 3, v22'); a('v_sub_u32 v23, v21, v23'); a('v_lshrrev_b32 v23, 1, v23')
a('v_mul_u32_u24 v20, 14, v20'); a('v_add_lshl_u32 v20, v20, v22, 1'); a(f'v_add_lshl_u32 v{vFl}, v20, v23, 7')
assert all((x * 43) >> 7 == x // 3 for x in range(42))
a(f'v_lshrrev_b32 v12, 5, v{vL}'); a('v_lshlrev_b32 v12, 6, v12'); a(f'v_xor_b32 v{vVe}, v12, v{vL16}'); a(f'v_xor_b32 v{vVo}, 128, v{vVe}')
st.mark(20)
a(f's_mov_b32 s{t0}, {FLAGS}')
poll(vFl, f's{t0}', 14, 0, 12)
st.mark(21)
a(f's_cmp_lt_u32 s{sIDX}, 4'); a('s_cbranch_scc1 L_nohf')
T(flag_store(8, sFl))
a.label('L_nohf')
vQ = 12
a(f's_mul_i32 s{t0}, s{sTQ}, 84'); a(f's_add_u32 s{t0}, s{t0}, s{sST0}'); a(f's_lshl_b32 s{t0}, s{t0}, 10')
for s in range(3): T(('vm', 'Q', f'buffer_load_dwordx4 {vr(vQ+4*s,4)}, v{vL16}, {S}, s{t0} offen offset:{1024*s} sc1'))
def kv_dma(which):
    a(f's_mul_i32 s{t2}, s{sI}, {3*3072}')
    for t in range(3):
        a(f's_add_i32 s{t0}, s7, {t}'); a(f's_max_i32 s{t0}, s{t0}, 0'); a(f's_mul_i32 s{t0}, s{t0}, 84'); a(f's_add_u32 s{t0}, s{t0}, s{sST0}')
        a(f's_add_u32 m0, s{t2}, {(KB, VB)[which] + t*3072}')
        a(f's_add_u32 s{t0}, s{t0}, {28*(which+1)}'); a(f's_lshl_b32 s{t0}, s{t0}, 10')
        for s in range(3):
            v = vL16 if which == 0 else (vVo if s & 1 else vVe)
            T(('vm', 'KV'[which], f'buffer_load_dwordx4 v{v}, {S}, s{t0} offen offset:{1024*s} sc1 lds'))
kv_dma(0)
st.mark(22)
a(f's_mul_i32 s{t0}, s{sI}, 3072'); a(f's_add_u32 s{t1}, s{t0}, {KB}'); a(f'v_add_u32 v{vKa}, s{t1}, v{vL16}')
a(f'v_bfe_u32 v30, v{vL}, 4, 1'); a(f'v_and_b32 v31, 3, v{vL}'); a('v_lshl_add_u32 v30, v30, 2, v31'); a(f'v_add_u32 v30, s{sG0}, v30')
a('v_lshrrev_b32 v31, 2, v30'); a('v_and_b32 v32, 1, v30'); a('v_bfe_u32 v33, v30, 1, 1')
a(f'v_lshrrev_b32 v34, 5, v{vL}'); a(f'v_bfe_u32 v35, v{vL}, 2, 2'); a('v_lshl_add_u32 v34, v34, 2, v35')
a('v_and_b32 v35, 1, v31'); a('v_lshl_add_u32 v35, v35, 1, v32'); a('v_lshlrev_b32 v35, 2, v35'); a('v_xor_b32 v34, v34, v35')
a(f'v_lshlrev_b32 v{vV0}, 4, v34'); a(f'v_lshl_add_u32 v{vV0}, v33, 3, v{vV0}'); a(f'v_lshl_add_u32 v{vV0}, v32, 9, v{vV0}')
a(f'v_lshl_add_u32 v{vV0}, v31, 10, v{vV0}'); a(f'v_xor_b32 v{vV1}, 128, v{vV0}')
a(f's_add_u32 s{t0}, s{t0}, {VB}'); a(f'v_add_u32 v{vV0}, s{t0}, v{vV0}'); a(f'v_add_u32 v{vV1}, s{t0}, v{vV1}')
for j in range(16):
    c = 8*(j >> 2) + (j & 3)
    a(f's_mov_b32 s{sM+2*j}, {(0xffffffff << c) & 0xffffffff:#x}'); a(f's_mov_b32 s{sM+2*j+1}, {(0xffffffff << (c+4)) & 0xffffffff:#x}')
spin(cB, 4)
kv_dma(1)
srd(SB, pX, XBYTES)
sCT, sTT, sTo = 14, 15, 18
a(f's_and_b32 s{sCT}, s{sI}, 1'); a(f's_lshr_b32 s{sTT}, s{sI}, 1'); a(f's_lshl1_add_u32 s{sTo}, s{sTB}, s{sTT}'); a(f's_and_b32 s{sTo}, s{sTo}, 63')
vXo2 = 57; vXv = 248
a(f's_lshl_b32 s{t0}, s{sTo}, 5'); a(f'v_and_b32 v24, 31, v{vL}'); a(f'v_add_u32 v24, s{t0}, v24'); a(f'v_mul_u32_u24 v{vXo2}, 896, v24')
a(f'v_lshrrev_b32 v24, 5, v{vL}'); a(f'v_lshl_add_u32 v{vXo2}, v24, 3, v{vXo2}')
a(f's_and_b32 s{t0}, s{sCB}, 7'); a(f's_lshl_b32 s{t0}, s{t0}, 7'); a(f's_lshl_b32 s{t1}, s{sCT}, 6'); a(f's_add_u32 s{t0}, s{t0}, s{t1}'); a(f'v_add_u32 v{vXo2}, s{t0}, v{vXo2}')
for g in range(4): T(('vm', 'x', f'buffer_load_dwordx2 {vr(vXv+2*g,2)}, v{vXo2}, {R4(SB)}, 0 offen offset:{16*g}'))
a(f'v_subrev_u32 v24, s{sG0}, v24')
T(('wvm', 'Q'))
for s in range(3):
    for ap in range(2):
        a(f'v_add_u32 v25, {4*s+2*ap}, v24'); a('v_cmp_gt_u32 vcc, 7, v25')
        for k in range(2):
            r = vQ + 4*s + 2*ap + k
            a(f'v_cndmask_b32 v{r}, 0, v{r}, vcc')
vOnes = 24
for k in range(4): a(f'v_mov_b32 v{vOnes+k}, 0x3f803f80')
T(('wvm', 'K')); st.mark(23); arrive(cB); spin(cB, 8)
st.mark(24)
vKF = 28; vM = 52
vSb = 64; vO = 192; vLs = 208; vP0 = 224; vTp = 232
def sreg(r): return vO if r == 0 else vSb + 16 * (r - 1)
sorder = [8, 0, 1, 2, 3, 4, 5, 6, 7]
def kreads(i): return [('ds', f'k{i}', f'ds_read_b128 {vr(vKF+12*(i&1)+4*s,4)}, v{vKa} offset:{sorder[i]*3072 + s*1024}') for s in range(3)]
T(kreads(0))
for i in range(9):
    r = sorder[i]
    if i + 1 < 9: T(kreads(i + 1))
    T(('wds', f'k{i}'))
    for s in range(3): a(mfma(sreg(r), vKF + 12*(i & 1) + 4*s, vQ + 4*s, s == 0))
T(('wvm', 'V')); arrive(cB)
a(f's_cmp_ge_u32 s{sTQ}, 8'); a('s_cbranch_scc1 L_valid')
a('s_nop 15')
NEG = f2u(-1e30)
for r in range(8):
    a(f's_cmp_ge_u32 s{sTQ}, {8-r}'); a('s_cbranch_scc1 L_valid')
    for j in range(16): a(f'v_mov_b32 v{sreg(r)+j}, {NEG:#x}')
a.label('L_valid')
st.mark(25)
vVF = 28
porder = [1, 2, 3, 4, 5, 6, 7, 8, 0]
def vreads(i): return [('ds', f'v{i}', f'ds_read_b64_tr_b16 {vr(vVF+8*(i&1)+4*ks+2*q,2)}, v{(vV0,vV1)[q]} offset:{porder[i]*3072 + ks*256}') for ks in range(2) for q in range(2)]
m8 = sreg(8)
for j in range(16): a(f'v_cndmask_b32 v{m8+j}, v{vO+j}, v{m8+j}, s[{sM+2*j}:{sM+2*j+1}]')
regs = list(range(m8, m8 + 16)) + list(range(vSb, vSb + 112))
for c in range(4): a(f'v_max3_f32 v{vM+c}, v{regs[c]}, v{regs[4+c]}, v{regs[8+c]}')
k = 12
while k < 128:
    for c in range(4):
        if k + 4 + c < 128: a(f'v_max3_f32 v{vM+c}, v{vM+c}, v{regs[k+c]}, v{regs[k+4+c]}')
        else: a(f'v_max_f32 v{vM+c}, v{vM+c}, v{regs[k+c]}')
    k += 8
a(f'v_max3_f32 v{vM}, v{vM}, v{vM+1}, v{vM+2}'); a(f'v_max_f32 v{vM}, v{vM}, v{vM+3}')
a(f'v_mov_b32 v{vM+1}, v{vM}')
a(f'v_permlane32_swap_b32 v{vM}, v{vM+1}'); a(f'v_max_f32 v{vM}, v{vM}, v{vM+1}')
def softmax(r):
    b = sreg(r); o = []
    for g in range(0, 16, 4):
        o += [f'v_sub_f32 v{b+j}, v{b+j}, v{vM}' for j in range(g, g + 4)]
        o += [f'v_exp_f32 v{b+j}, v{b+j}' for j in range(g, g + 4)]
    if r == 8:
        o += [f'v_cndmask_b32 v{vTp+j}, v{b+j}, 0, s[{sM+2*j}:{sM+2*j+1}]' for j in range(16)]
        o += [f'v_cndmask_b32 v{b+j}, 0, v{b+j}, s[{sM+2*j}:{sM+2*j+1}]' for j in range(16)]
        o += [f'v_cvt_pk_bf16_f32 v{vP0+j}, v{vTp+2*j}, v{vTp+2*j+1}' for j in range(8)]
    o += [f'v_cvt_pk_bf16_f32 v{b+j}, v{b+2*j}, v{b+2*j+1}' for j in range(8)]
    return o
def pv(i):
    r = porder[i]; P = vP0 if r == 0 else sreg(r); vb = vVF + 8*(i & 1)
    g = []
    for ks in range(2):
        g.append([mfma(vO, vb + 4*ks, P + 4*ks, i == 0 and ks == 0)])
        g.append([mfma(vLs, vOnes, P + 4*ks, i == 0 and ks == 0)])
    g[0] = [('wds', f'v{i}')] + g[0]
    return g
spin(cB, 12)
st.mark(26)
T(vreads(0)); T(softmax(porder[0]))
for i in range(9):
    if i + 1 < 9: T(vreads(i + 1))
    fill = softmax(porder[i + 1]) if i + 1 < 8 else []
    T(weave(pv(i), fill))
st.mark(27)
arrive(cB)
a(f'v_rcp_f32 v{vM}, v{vLs}')
for j in range(16): a(f'v_mul_f32 v{vO+j}, v{vM}, v{vO+j}')
for j in range(8): a(f'v_cvt_pk_bf16_f32 v{vO+j}, v{vO+2*j}, v{vO+2*j+1}')
a(f'v_cmp_gt_u32 vcc, 32, v{vL}')
a(f'v_cndmask_b32 v{vO+6}, 0, v{vO+6}, vcc'); a(f'v_cndmask_b32 v{vO+7}, 0, v{vO+7}, vcc')
a(f's_lshl4_add_u32 s{t0}, s{sTQ}, s{sHD}'); a(f's_lshl_b32 s{t1}, s{t0}, 11'); a(f's_add_u32 s{t1}, s{t1}, {OF}')
for s in range(2): T(('vm', 'o', f'buffer_store_dwordx4 {vr(vO+4*s,4)}, v{vL16}, {S}, s{t1} offen offset:{1024*s} sc1'))
st.mark(28)
a(f's_lshl_b32 s{t0}, s{t0}, 7'); a(f's_add_u32 s48, s{t0}, {OFL}')
a(f's_cmp_lt_u32 s{sIDX}, 4'); a('s_cbranch_scc0 L_cont')
keep = list(T.vm)
T([('wvm', 'o')] + flag_store(0, 48))
st.flush(SWS, STAMP, sW, vL)
a('s_endpgm')
a.label('L_cont')
T.vm = keep
srd(SA, pWO, 448 * 896); srd(SC, pOUT, XBYTES)
vWo = 3
full_pat(vWo, 12, 13, 896); a(f's_lshl_b32 s{t0}, s{sCB}, 7'); a(f'v_add_u32 v{vWo}, s{t0}, v{vWo}')
spin(cB, 16)
a(f's_lshl_b32 s{t2}, s{sI}, 10'); a(f's_mul_i32 s{t1}, s{sI}, {8*896}')
for i in range(15):
    a(f's_add_u32 m0, s{t2}, {WOB + 4096*i}'); a(f's_add_u32 s{t0}, s{t1}, {i*32*896}')
    T(('vm', 'wo', f'buffer_load_dwordx4 v{vWo}, {R4(SA)}, s{t0} offen lds'))
    if i == 5:
        T([('wvm', 'o')] + flag_store(0, 48)); st.mark(29)
vTa, vTb = 5, 6
tr_base(vTa, 12, False); a(f's_mul_i32 s{t0}, s{sCT}, {224*128}'); a(f's_add_u32 s{t0}, s{t0}, {WOB}')
a(f'v_add_u32 v{vTa}, s{t0}, v{vTa}'); a(f'v_xor_b32 v{vTb}, 64, v{vTa}')
a(f'v_lshlrev_b32 v10, 7, v{vL}')
st.mark(30)
T(('wvm', '*')); arrive(cB)
st.mark(31)
a(f's_lshl1_add_u32 s{t1}, s{sTo}, s{sCT}'); a(f's_lshl_b32 s{t0}, s{t1}, 10'); a(f's_add_u32 s{t0}, s{t0}, {OFL}')
poll(10, f's{t0}', 8, 0, 12)
st.mark(32)
vOf = 64
a(f's_lshl_b32 s{t0}, s{t1}, 14'); a(f's_add_u32 s{t0}, s{t0}, {OF}')
for n in range(16):
    T(('vm', f'o{n}', f'buffer_load_dwordx4 {vr(vOf+4*n,4)}, v{vL16}, {S}, s{t0} offen offset:{(n&3)*1024} sc1'))
    if n & 3 == 3: a(f's_add_u32 s{t0}, s{t0}, 4096')
spin(cB, 20)
st.mark(33)
vWA = 128; NA = 4; vSa = 16
def areads(n):
    return [('ds', f'a{n}', f'ds_read_b64_tr_b16 {vr(vWA+8*(n%NA)+4*ct+2*q,2)}, v{(vTa,vTb)[ct]} offset:{(28*(n>>1) + 16*(n&1) + 8*q)*128}') for ct in range(2) for q in range(2)]
for n in range(3): T(areads(n))
for n in range(16):
    if n + 3 < 16: T(areads(n + 3))
    T(('w', f'o{n}', f'a{n}'))
    for ct in range(2): a(mfma(vSa + 16*ct, vWA + 8*(n % NA) + 4*ct, vOf + 4*n, n == 0))
st.mark(34)
a(f's_cmp_eq_u32 s{sCT}, 0'); a('s_cbranch_scc1 L_noswap')
for j in range(16): a(f'v_swap_b32 v{vSa+j}, v{vSa+16+j}')
a.label('L_noswap')
a(f's_xor_b32 s{t0}, s{sI}, 1'); a(f's_lshl_b32 s{t0}, s{t0}, 12'); a(f's_add_u32 s{t0}, s{t0}, {SXB}'); a(f'v_add_u32 v12, s{t0}, v{vL16}')
for g in range(4): T(('ds', 'sx', f'ds_write_b128 v12, {vr(vSa+16+4*g,4)} offset:{g*1024}'))
a(f's_lshl_b32 s{t0}, s{sI}, 12'); a(f's_add_u32 s{t1}, s{t0}, {SXB}'); a(f'v_add_u32 v12, s{t1}, v{vL16}')
a(f's_cmp_lt_u32 s{sI}, 3'); a(f's_movk_i32 s{t2}, {RG1W}'); a(f's_cselect_b32 s{t2}, s{t2}, {RG2W}'); a(f's_cselect_b32 s{t0}, s{t0}, {RG2}')
for kq in range(4):
    a(f'v_add_u32 v{48+kq}, s{t0}, v{vL16}'); a(f's_add_u32 s{t0}, s{t0}, s{t2}')
a(f's_mov_b32 s52, {f2u(-LOG2E):#x}')
tt_ = 64
for j in range(8):
    a(f'v_lshlrev_b32 v{tt_+16+2*j}, 16, v{vXv+j}'); a(f'v_and_b32 v{tt_+16+2*j+1}, 0xffff0000, v{vXv+j}')
T(('wds', '*'))
st.mark(35)
a('s_barrier')
st.mark(36)
vF = 160
for kq in range(4):
    for g in range(4): T(('ds', f'f{kq}', f'ds_read_b128 {vr(vF+16*kq+4*g,4)}, v{48+kq} offset:{g*1024}'))
    if kq == 2: T(('wds', 'f1'))
for g in range(4): T(('ds', 'sr', f'ds_read_b128 {vr(vSa+16+4*g,4)}, v12 offset:{g*1024}'))
for j in range(0, 16, 2): a(f'v_pk_add_f32 {vr(vF+j,2)}, {vr(vF+j,2)}, {vr(vF+16+j,2)}')
T(('wds', 'f3'))
for j in range(0, 16, 2): a(f'v_pk_add_f32 {vr(vF+32+j,2)}, {vr(vF+32+j,2)}, {vr(vF+48+j,2)}')
for j in range(0, 16, 2): a(f'v_pk_add_f32 {vr(vF+j,2)}, {vr(vF+j,2)}, {vr(vF+32+j,2)}')
T(silu_ops(vF, tt_, 16, 52))
T(('wds', '*'))
for j in range(0, 16, 2): a(f'v_pk_add_f32 {vr(vSa+j,2)}, {vr(vSa+j,2)}, {vr(vSa+16+j,2)}')
for j in range(0, 16, 2): a(f'v_pk_fma_f32 {vr(vF+j,2)}, {vr(vSa+j,2)}, {vr(vF+j,2)}, {vr(tt_+16+j,2)}')
for j in range(8): a(f'v_cvt_pk_bf16_f32 v{vXv+j}, v{vF+2*j}, v{vF+2*j+1}')
st.mark(37)
for g in range(4): a(f'buffer_store_dwordx2 {vr(vXv+2*g,2)}, v{vXo2}, {R4(SC)}, 0 offen offset:{16*g}')
st.flush(SWS, STAMP, sW, vL)
a.label('L_end'); a('s_endpgm')

a.pad_hazards_fast()
for e in a.check_waits(): print('WAITERR', e)
hdr = ['; generated by gen7.py (hand-written generator): single persistent kernel',
       f'; @launch grid=(256,1,1) block=(512,1,1) lds={LDS_TOTAL}', '.amdgcn_target "amdgcn-amd-amdhsa--gfx950"', '.text']
tail = ['.section .rodata,"a"', '.p2align 6', f'.amdhsa_kernel {K}', '  .amdhsa_next_free_vgpr 256', '  .amdhsa_next_free_sgpr 102',
        '  .amdhsa_accum_offset 256', '  .amdhsa_group_segment_fixed_size 0', '  .amdhsa_kernarg_size 72',
        '  .amdhsa_user_sgpr_count 2', '  .amdhsa_user_sgpr_kernarg_segment_ptr 1', '  .amdhsa_system_sgpr_workgroup_id_x 1', '.end_amdhsa_kernel']
open(sys.argv[1], 'w').write('\n'.join(hdr) + '\n' + a.text() + '\n'.join(tail) + '\n')
```

```python
import sys
sys.path.insert(0,'gen')
from asmlib import *
src,dst,mode=sys.argv[1:4]
K='recurrent_scan__sliding_block__dense_activation_silu__prompt_kernel'
a=Asm()
a.raw('.globl amp_kernel'); a.raw('.p2align 8'); a.raw('.type amp_kernel,@function'); a.label('amp_kernel')
a('s_cmp_ge_u32 s2, 1'); a('s_cbranch_scc1 L_amp_end')
a('s_load_dwordx2 s[20:21], s[0:1], 64'); a('s_waitcnt lgkmcnt(0)')
a('s_and_b32 s21, s21, 0xffff'); a('s_mov_b32 s22, 0x1200000'); a('s_mov_b32 s23, 0x20000')
ST=0x1100000
if mode in('span','skew'):
    a('v_lshlrev_b32 v1, 8, v0'); a('v_mov_b32 v2, -1'); a('v_mov_b32 v3, 0'); a(f's_mov_b32 s4, {ST}')
    for i in range(32):
        a(f'buffer_load_dword v4, v1, s[20:23], s4 offen'); a(f'buffer_load_dword v5, v1, s[20:23], s4 offen offset:{252 if mode=="span" else 0}')
        a('s_waitcnt vmcnt(0)'); a('v_min_u32 v2, v2, v4'); a('v_max_u32 v3, v3, v5'); a('s_add_u32 s4, s4, 16384')
    a('s_mov_b32 s5, -1'); a('s_mov_b32 s6, 0')
    for l in range(64):
        a(f'v_readlane_b32 s7, v2, {l}'); a(f'v_readlane_b32 s8, v3, {l}'); a('s_min_u32 s5, s5, s7'); a('s_max_u32 s6, s6, s8')
    a('s_sub_u32 s9, s6, s5'); a('s_lshl_b32 s9, s9, 2')
elif mode=='mark':
    mk=int(sys.argv[4]); role=int(sys.argv[5])
    a('v_mul_u32_u24 v1, 3, v0'); a('v_add_u32 v1, 64, v1'); a('v_lshlrev_b32 v1, 11, v1'); a(f's_mov_b32 s4, {ST + role*4*256}')
    a(f'buffer_load_dword v4, v1, s[20:23], s4 offen offset:4'); a(f'buffer_load_dword v5, v1, s[20:23], s4 offen offset:{4*mk}')
    a('s_waitcnt vmcnt(0)'); a('v_sub_u32 v2, v5, v4'); a('s_mov_b32 s9, 0')
    for l in range(64):
        a(f'v_readlane_b32 s7, v2, {l}'); a('s_add_u32 s9, s9, s7')
    a('s_lshr_b32 s9, s9, 9')
else:
    a('s_mov_b32 s9, 0')
a('s_min_u32 s9, s9, 100000')
a('s_memrealtime s[10:11]'); a('s_waitcnt lgkmcnt(0)')
a.label('L_amp_l'); a('s_memrealtime s[12:13]'); a('s_waitcnt lgkmcnt(0)'); a('s_sub_u32 s12, s12, s10'); a('s_cmp_lt_u32 s12, s9'); a('s_cbranch_scc1 L_amp_l')
a.label('L_amp_end'); a('s_endpgm')
a.pad_hazards_fast()
s=open(src).read().split('\n')
body='\n'.join(l for l in s if '@launch' not in l)
desc='.p2align 6\n.amdhsa_kernel amp_kernel\n  .amdhsa_next_free_vgpr 32\n  .amdhsa_next_free_sgpr 48\n  .amdhsa_accum_offset 32\n  .amdhsa_group_segment_fixed_size 0\n  .amdhsa_kernarg_size 72\n  .amdhsa_user_sgpr_count 2\n  .amdhsa_user_sgpr_kernarg_segment_ptr 1\n  .amdhsa_system_sgpr_workgroup_id_x 1\n.end_amdhsa_kernel\n'
b=body.replace('.section .rodata,"a"',a.text()+'.section .rodata,"a"\n'+desc,1)
h,rest=b.split('\n',1)
open(dst,'w').write(h+f'\n; @launch kernel={K} grid=(256,1,1) block=(512,1,1) lds=163840\n; @launch kernel=amp_kernel grid=(1,1,1) block=(64,1,1) lds=0\n'+rest)
```

```python
import re

def vr(b, n=1):
    return f'v{b}' if n == 1 else f'v[{b}:{b+n-1}]'
def ar(b, n=1):
    return f'a{b}' if n == 1 else f'a[{b}:{b+n-1}]'
def sr(b, n=1):
    return f's{b}' if n == 1 else f's[{b}:{b+n-1}]'

_reg_re = re.compile(r'^(-?)(abs\()?([vas])(\d+|\[(\d+):(\d+)\])\)?$')

def parse_reg(tok):
    tok = tok.strip()
    if tok == 'vcc': return [('s', 106), ('s', 107)]
    if tok == 'vcc_lo': return [('s', 106)]
    if tok == 'vcc_hi': return [('s', 107)]
    if tok == 'exec': return [('s', 126), ('s', 127)]
    if tok == 'exec_lo': return [('s', 126)]
    if tok == 'exec_hi': return [('s', 127)]
    if tok == 'm0': return [('s', 124)]
    tok = tok.replace('|', '')
    m = _reg_re.match(tok)
    if not m: return []
    k = m.group(3)
    if m.group(5) is not None:
        return [(k, i) for i in range(int(m.group(5)), int(m.group(6)) + 1)]
    return [(k, int(m.group(4)))]

TRANS = ('v_exp_f32', 'v_log_f32', 'v_rcp_f32', 'v_rsq_f32', 'v_sqrt_f32', 'v_sin_f32', 'v_cos_f32', 'v_rcp_iflag_f32')

class Ins:
    __slots__ = ('text', 'op', 'ops', 'defs', 'uses', 'kind', 'A', 'B', 'C', 'passes', 'target', 'mods', 'data')
    def __init__(self, text):
        self.text = text
        t = text.split(';')[0].strip()
        parts = t.split(None, 1)
        self.op = parts[0]
        rest = parts[1] if len(parts) > 1 else ''
        ops = []; depth = 0; cur = ''
        for ch in rest:
            if ch in '[(': depth += 1
            if ch in '])': depth -= 1
            if ch == ',' and depth == 0:
                ops.append(cur.strip()); cur = ''
            else: cur += ch
        if cur.strip(): ops.append(cur.strip())
        mods = ''
        if ops:
            sp = ops[-1].split(None, 1)
            if len(sp) > 1 and not self.op.startswith('s_waitcnt'):
                ops[-1] = sp[0]; mods = sp[1]
        self.ops = ops; self.mods = mods
        self.defs = []; self.uses = []; self.A = self.B = self.C = []; self.passes = 0; self.target = None; self.data = []
        op = self.op
        R = [parse_reg(o) for o in ops]
        if op.startswith('v_mfma'):
            self.kind = 'mfma'
            self.defs = R[0]; self.A = R[1]; self.B = R[2]; self.C = R[3]
            self.uses = R[1] + R[2] + R[3]
            self.passes = 8 if '32x32x16' in op else 4 if '16x16x32' in op else None
            assert self.passes, op
        elif op.startswith('v_'):
            self.kind = 'valu'
            base = op.replace('_e32', '').replace('_e64', '').replace('_dpp', '').replace('_sdwa', '')
            if base.startswith('v_cmpx'):
                self.defs = R[0] + [('s', 126), ('s', 127)]; self.uses = sum(R[1:], [])
            elif (base.startswith('v_permlane') and 'swap' in base) or base == 'v_swap_b32':
                self.defs = R[0] + R[1]; self.uses = R[0] + R[1]
            elif base in ('v_add_co_u32', 'v_sub_co_u32', 'v_addc_co_u32', 'v_subb_co_u32', 'v_mad_u64_u32'):
                self.defs = R[0] + R[1]; self.uses = sum(R[2:], [])
            elif base == 'v_nop':
                pass
            else:
                self.defs = R[0]; self.uses = sum(R[1:], [])
                if base in ('v_fmac_f32', 'v_dot2c_f32_bf16', 'v_writelane_b32', 'v_pk_fmac_f16') or '_dpp' in op or 'row_' in mods or 'quad_perm' in mods:
                    self.uses = self.uses + R[0]
        elif op.startswith('ds_'):
            self.kind = 'ds'
            if op.startswith('ds_read') or op.startswith('ds_bpermute') or op.startswith('ds_swizzle') or op.startswith('ds_permute') or '_rtn' in op:
                self.defs = R[0]; self.uses = sum(R[1:], [])
            else:
                self.uses = sum(R, []); self.data = sum(R[1:], [])
        elif op.startswith('buffer_') or op.startswith('global_'):
            self.kind = 'vmem'
            if op in ('buffer_inv', 'buffer_wbl2'):
                pass
            elif op.startswith('buffer_load'):
                if re.search(r'\blds\b', mods):
                    self.uses = sum(R, []) + [('s', 124)]
                else:
                    self.defs = R[0]; self.uses = sum(R[1:], [])
            elif op.startswith('global_load_lds'):
                self.uses = sum(R, []) + [('s', 124)]
            elif op.startswith('global_load'):
                self.defs = R[0]; self.uses = sum(R[1:], [])
            elif op.startswith('buffer_store'):
                self.uses = sum(R, []); self.data = R[0]
            elif op.startswith('global_store'):
                self.uses = sum(R, []); self.data = R[1]
            elif op.startswith('buffer_atomic'):
                self.uses = sum(R, []); self.data = R[0]
                if 'sc0' in mods: self.defs = R[0]
            elif op.startswith('global_atomic'):
                if 'sc0' in mods:
                    self.defs = R[0]; self.uses = sum(R[1:], []); self.data = R[2]
                else:
                    self.uses = sum(R, []); self.data = R[1]
            else: raise ValueError(text)
        elif op.startswith('s_load') or op.startswith('s_buffer_load') or op in ('s_memtime', 's_memrealtime'):
            self.kind = 'smem'; self.defs = R[0]; self.uses = sum(R[1:], [])
        elif op.startswith('s_'):
            self.kind = 'salu'
            if op.startswith('s_cbranch') or op == 's_branch':
                self.kind = 'branch'; self.target = ops[0]
            elif op in ('s_waitcnt', 's_nop', 's_barrier', 's_endpgm', 's_sleep', 's_setprio'):
                pass
            elif op.startswith('s_cmp') or op.startswith('s_bitcmp'):
                self.uses = sum(R, [])
            elif 'saveexec' in op:
                self.defs = R[0] + [('s', 126), ('s', 127)]; self.uses = R[1] + [('s', 126), ('s', 127)]
            else:
                self.defs = R[0]; self.uses = sum(R[1:], [])
                if op in ('s_addk_i32', 's_mulk_i32'): self.uses += R[0]
        else:
            raise ValueError('unknown instr: ' + text)
    def states(self):
        if self.op == 's_nop': return int(self.ops[0], 0) + 1
        return 1

def _ov(a, b):
    return bool(set(a) & set(b))

def required(p, c):
    need = 0
    vg = lambda l: [r for r in l if r[0] in 'va']
    sg = lambda l: [r for r in l if r[0] == 's']
    pb = p.op.replace('_e32', '').replace('_e64', '')
    cb = c.op.replace('_e32', '').replace('_e64', '')
    if p.kind == 'valu':
        pdv = vg(p.defs); pds = sg(p.defs)
        isdot = pb.startswith('v_dot')
        if c.kind == 'mfma' and _ov(pdv, c.uses): need = max(need, 3 if isdot else 2)
        if c.kind == 'mfma' and _ov(pds, [('s', 126), ('s', 127)]): need = max(need, 4)
        if isdot:
            if cb == pb:
                srcs = sum([parse_reg(o) for o in c.ops[1:3]], [])
                if _ov(pdv, srcs): need = max(need, 3)
            elif _ov(pdv, c.uses + c.defs): need = max(need, 3)
        if c.kind == 'valu':
            if any(pb.startswith(t) for t in TRANS) and not any(cb.startswith(t) for t in TRANS) and _ov(pdv, c.uses): need = max(need, 1)
            if cb.startswith('v_permlane') and _ov(pdv, c.uses): need = max(need, 2)
            if ('dpp' in c.op or 'quad_perm' in c.mods or 'row_' in c.mods) and _ov(pdv, c.uses): need = max(need, 2)
            if ('dpp' in c.op or 'quad_perm' in c.mods or 'row_' in c.mods) and _ov(pds, [('s', 126), ('s', 127)]): need = max(need, 5)
            if cb in ('v_readfirstlane_b32', 'v_readlane_b32') and _ov(pdv, c.uses): need = max(need, 1)
            if _ov(pds, sg(c.uses)):
                need = max(need, 4 if cb in ('v_readlane_b32', 'v_writelane_b32') else 2)
            if cb in ('v_cndmask_b32', 'v_addc_co_u32') and _ov(pds, [('s', 106)]) and 'vcc' in c.text: need = max(need, 2)
            if _ov(pds, [('s', 126), ('s', 127)]) and (cb in ('v_readfirstlane_b32', 'v_readlane_b32', 'v_writelane_b32') or cb.startswith('v_permlane')): need = max(need, 4)
            if ('sdwa' in p.op or 'op_sel' in p.mods) and not pb.startswith('v_pk_') and _ov(pdv, c.uses + c.defs): need = max(need, 1)
        if c.kind == 'vmem' and _ov(pds, sg(c.uses)): need = max(need, 5)
        if c.kind in ('salu', 'smem', 'branch') and _ov(pds, sg(c.uses)): need = max(need, 1)
        if c.kind == 'branch' and c.op in ('s_cbranch_vccz', 's_cbranch_vccnz') and _ov(pds, [('s', 106)]): need = max(need, 1)
    if p.kind == 'mfma':
        D = p.defs; n = p.passes
        big = {4: 8, 8: 12}[n]
        if c.kind == 'mfma':
            if _ov(D, c.A + c.B): need = max(need, big)
            if _ov(D, c.C):
                if not (c.C == D and c.passes == n): need = max(need, {4: 6, 8: 10}[n])
            elif _ov(D, c.defs): need = max(need, {4: 6, 8: 10}[n])
        elif c.kind in ('valu', 'vmem', 'ds'):
            if _ov(D, c.uses + c.defs): need = max(need, big)
        if c.kind == 'valu' and _ov(p.C, c.defs): need = max(need, {4: 3, 8: 7}[n])
    if p.kind == 'salu' and _ov(p.defs, [('s', 124)]):
        if c.kind in ('vmem', 'ds') and ('s', 124) in c.uses: need = max(need, 1)
    if p.kind == 'vmem' and p.data and len(p.data) >= 3:
        if _ov(p.data, c.defs): need = max(need, 2 if c.kind in ('valu', 'mfma') else 1)
    return need

class Asm:
    def __init__(self):
        self.items = []
    def __call__(self, text):
        for line in text.split('\n'):
            line = line.strip()
            if not line or line.startswith(';'): continue
            if line.endswith(':'): self.items.append(('label', line[:-1]))
            elif line.startswith('.'): self.items.append(('raw', line))
            else: self.items.append(Ins(line))
    def label(self, n): self.items.append(('label', n))
    def raw(self, t): self.items.append(('raw', t))
    def comment(self, t): self.items.append(('raw', '; ' + t))

    def pad_hazards(self, verbose=False):
        items = self.items
        changed = True; total = 0
        while changed:
            changed = False
            labels = {it[1]: i for i, it in enumerate(items) if isinstance(it, tuple) and it[0] == 'label'}
            branches = {}
            for i, it in enumerate(items):
                if isinstance(it, Ins) and it.kind == 'branch': branches.setdefault(it.target, []).append(i)
            for i, c in enumerate(items):
                if not isinstance(c, Ins): continue
                worst = 0
                stack = [(i - 1, 0)]; seen = set()
                while stack:
                    k, dist = stack.pop()
                    while k >= 0 and dist < 20:
                        if (k, dist) in seen: break
                        seen.add((k, dist))
                        it = items[k]
                        if isinstance(it, tuple):
                            if it[0] == 'label':
                                for b in branches.get(it[1], []): stack.append((b, dist))
                                if it[1].endswith('_kernel'): break
                            k -= 1; continue
                        if it.op in ('s_branch', 's_endpgm', 's_setpc_b64') and not (k in [b for bl in branches.values() for b in bl] and (k, dist) in [(x, y) for x, y in [(k, dist)]] and self._came_by_branch(k, i, items)):
                            if not getattr(self, '_edge', None) == (k, dist):
                                pass
                        need = required(it, c) - dist
                        if need > worst: worst = need
                        dist += it.states()
                        k -= 1
                if worst > 0:
                    items.insert(i, Ins(f's_nop {worst-1}'))
                    total += 1
                    if verbose: print('pad', worst, 'before', c.text)
                    changed = True
                    break_outer = True
                    break
        return total
    def _came_by_branch(self, k, i, items): return True

    def pad_hazards_fast(self, verbose=False):
        for _ in range(4):
            items = self.items
            branches = {}
            for i, it in enumerate(items):
                if isinstance(it, Ins) and it.kind == 'branch': branches.setdefault(it.target, []).append(i)
            ins_at = {}
            extra = {}
            for i, c in enumerate(items):
                if not isinstance(c, Ins): continue
                worst = 0; stack = [(i - 1, 0, False)]; seen = set()
                while stack:
                    k, dist, viabr = stack.pop()
                    while k >= 0 and dist < 14:
                        if (k, dist) in seen: break
                        seen.add((k, dist))
                        it = items[k]
                        if isinstance(it, tuple):
                            if it[0] == 'label':
                                for b in branches.get(it[1], []): stack.append((b, dist, True))
                                if it[1].endswith('_kernel'): break
                            k -= 1; continue
                        if it.op in ('s_branch', 's_endpgm') and not viabr: break
                        viabr = False
                        need = required(it, c) - dist
                        if need > worst: worst = need
                        dist += it.states() + extra.get(k, 0)
                        k -= 1
                if worst > 0:
                    extra[i] = worst
                    if verbose: print('pad', worst, 'before', c.text)
            if not extra: return
            new = []
            for i, it in enumerate(items):
                if i in extra: new.append(Ins(f's_nop {extra[i]-1}'))
                new.append(it)
            self.items = new

    def check_waits(self):
        vm = []; lg = []; errs = []
        for it in self.items:
            if not isinstance(it, Ins):
                continue
            if it.op == 's_waitcnt':
                m = re.search(r'vmcnt\((\d+)\)', it.text)
                if m:
                    n = int(m.group(1)); vm = vm[len(vm) - n:] if n < len(vm) and n > 0 else ([] if n == 0 else vm)
                m = re.search(r'lgkmcnt\((\d+)\)', it.text)
                if m:
                    n = int(m.group(1))
                    if n == 0: lg = []
                    else:
                        if any(x[1] == 'smem' for x in lg): errs.append('counted lgkmcnt with smem outstanding: ' + it.text)
                        lg = lg[len(lg) - n:] if n < len(lg) else lg
                continue
            if it.op in ('s_endpgm', 's_branch'):
                vm = []; lg = []; continue
            touched = set(it.uses + it.defs)
            for d, _k, t in vm + lg:
                if touched & set(d): errs.append(f'{it.text}  touches pending result of  {t}')
            if it.kind == 'vmem' and it.op not in ('buffer_inv', 'buffer_wbl2'):
                vm.append((it.defs, 'vmem', it.text))
                if len(vm) > 63: errs.append('vmcnt overflow at ' + it.text)
            elif it.kind == 'ds': lg.append((it.defs, 'ds', it.text))
            elif it.kind == 'smem': lg.append((it.defs, 'smem', it.text))
        return errs

    def text(self):
        out = []
        for it in self.items:
            if isinstance(it, Ins): out.append('    ' + it.text)
            elif it[0] == 'label': out.append(it[1] + ':')
            else: out.append(it[1])
        return '\n'.join(out) + '\n'

def interleave(main, fill, ratio=None):
    out = []; n = len(main); m = len(fill); j = 0
    for i, x in enumerate(main):
        out.append(x)
        tgt = (i + 1) * m // n
        while j < tgt:
            out.append(fill[j]); j += 1
    out += fill[j:]
    return out


class Stamps:
    def __init__(self, a, on, base=80, n=10):
        self.a=a; self.on=on; self.base=base; self.n=n
    def start(self):
        if not self.on: return
        b=self.base
        for i in range(self.n): self.a(f's_mov_b32 s{b+2*i}, 0')
        self.a(f's_memrealtime s[{b}:{b+1}]'); self.a(f's_memtime s[{b+2}:{b+3}]')
    def mark(self, i):
        if not self.on: return
        b=self.base+2*i
        self.a(f's_memtime s[{b}:{b+1}]')
    def flush(self, srdws, off, sW, tag):
        if not self.on: return
        a=self.a; b=self.base; n=self.n
        a('s_waitcnt vmcnt(0)')
        a(f's_memtime s[{b+2*(n-2)}:{b+2*(n-2)+1}]'); a(f's_memrealtime s[{b+2*(n-1)}:{b+2*(n-1)+1}]')
        a('s_waitcnt lgkmcnt(0)')
        a(f's_lshl_b32 s{b+1}, s2, 4'); a(f's_add_u32 s{b+1}, s{b+1}, s{sW}'); a(f's_lshl_b32 s{b+1}, s{b+1}, 6'); a(f's_add_u32 s{b+1}, s{b+1}, {off}')
        a('s_mov_b64 exec, 1')
        a('v_mov_b32 v0, 0')
        for i in range(n): a(f'v_mov_b32 v{4+i}, s{b+2*i}')
        a(f's_getreg_b32 s{b}, hwreg(HW_REG_XCC_ID)'); a(f'v_mov_b32 v14, s{b}')
        a(f's_getreg_b32 s{b}, hwreg(HW_REG_HW_ID)'); a(f'v_mov_b32 v15, s{b}')
        for i in range(3): a(f'buffer_store_dwordx4 v[{4+4*i}:{7+4*i}], v0, s[{srdws}:{srdws+3}], s{b+1} offen offset:{16*i}')


class Tr:
    def __init__(self, a):
        self.a = a; self.vm = []; self.ds = []
    def reset(self): self.vm = []; self.ds = []
    def _n(self, q, tag):
        idx = [i for i, t in enumerate(q) if t == tag]
        if not idx: return None
        return len(q) - 1 - idx[-1]
    def wait(self, vmtag=None, dstag=None):
        parts = []
        if vmtag is not None:
            n = 0 if vmtag == '*' else self._n(self.vm, vmtag)
            if n is not None and (self.vm or vmtag == '*'):
                assert n <= 63
                parts.append(f'vmcnt({n})'); self.vm = self.vm[len(self.vm) - n:] if n else []
        if dstag is not None:
            n = 0 if dstag == '*' else self._n(self.ds, dstag)
            if n is not None and (self.ds or dstag == '*'):
                n = min(n, 15)
                parts.append(f'lgkmcnt({n})'); self.ds = self.ds[len(self.ds) - n:] if n else []
        if parts: self.a('s_waitcnt ' + ' '.join(parts))
    def emit(self, items):
        if not isinstance(items, list): items = [items]
        for it in items:
            if isinstance(it, str): self.a(it)
            elif isinstance(it, list): self.emit(it)
            elif it[0] == 'vm': self.a(it[2]); self.vm.append(it[1])
            elif it[0] == 'ds': self.a(it[2]); self.ds.append(it[1])
            elif it[0] == 'wvm': self.wait(vmtag=it[1])
            elif it[0] == 'wds': self.wait(dstag=it[1])
            elif it[0] == 'w': self.wait(it[1], it[2])
            elif it[0] == 'call': it[1]()
            else: raise ValueError(it)
    __call__ = emit

def cost(it):
    if isinstance(it, list): return sum(cost(x) for x in it)
    if isinstance(it, tuple):
        return 0 if it[0] == 'call' else 1
    op = it.split()[0]
    if any(op.startswith(t) for t in TRANS): return 2
    return 1

def weave(groups, fill):
    tot = sum(cost(f) for f in fill); n = len(groups); out = []; j = 0; acc = 0
    for i, g in enumerate(groups):
        out += g
        tgt = tot * (i + 1) / n
        while j < len(fill) and acc + cost(fill[j]) / 2 <= tgt:
            out.append(fill[j]); acc += cost(fill[j]); j += 1
    out += fill[j:]
    return out


class Stamps2:
    def __init__(self, a, on, T=None, vreg=15, sp=98):
        self.a = a; self.on = on; self.v = vreg; self.sp = sp; self.T = T; self.names = {}
    def _w(self, i, rt=False):
        a = self.a; sp = self.sp
        a(f's_mem{"real" if rt else ""}time s[{sp}:{sp+1}]'); a('s_waitcnt lgkmcnt(0)'); a(f'v_writelane_b32 v{self.v}, s{sp}, {i}')
        if self.T: self.T.ds = []
    def start(self):
        if not self.on: return
        self.a(f's_memrealtime s[{self.sp-2}:{self.sp-1}]'); self.a(f's_memtime s[{self.sp-4}:{self.sp-3}]')
    def init(self, vreg):
        self.v = vreg
        if not self.on: return
        a = self.a
        a(f'v_mov_b32 v{vreg}, 0'); a(f'v_writelane_b32 v{vreg}, s{self.sp-2}, 0'); a(f'v_writelane_b32 v{vreg}, s{self.sp-4}, 1')
    RT = {4: 50, 12: 51, 20: 52, 24: 53, 28: 54, 32: 55}
    def mark(self, i, name=None):
        if not self.on or self.on == 3: return
        self._w(i)
        if self.on >= 2 and i in self.RT: self._w(self.RT[i], True)
    def item(self, i, name=None):
        return ('call', lambda: self.mark(i, name))
    def flush(self, srdws, off, sW, vL):
        if not self.on: return
        a = self.a; sp = self.sp
        a('s_mov_b64 exec, -1'); a('s_waitcnt vmcnt(0)'); self._w(62); self._w(63, True)
        a(f's_getreg_b32 s{sp}, hwreg(HW_REG_XCC_ID)'); a(f'v_writelane_b32 v{self.v}, s{sp}, 61')
        a(f's_lshl_b32 s{sp}, s2, 3'); a(f's_add_u32 s{sp}, s{sp}, s{sW}'); a(f's_lshl_b32 s{sp}, s{sp}, 8'); a(f's_add_u32 s{sp}, s{sp}, {off}')
        a(f'v_lshlrev_b32 v0, 2, v{vL}')
        a(f'buffer_store_dword v{self.v}, v0, s[{srdws}:{srdws+3}], s{sp} offen')
```

```python
import sys, struct
from asmlib import *

NAME = 'recurrent_scan__sliding_block__dense_activation_silu__prompt'
OPT = dict(stamp=0, spin=200000, hp=1, rotf=1, rot=1, w1e=1, aq=14, tw=0, hd=0, hm=1, hw=0, hh=0, hs=0, early=5, ap=3, ew=2, smp=27, nres=8, bp2=2, ap2=1, of=5, hwo=1, n1=12, sp=2, f0=27, cfs=25, w2w=0, ve=1, mid=1, so=1, xe=1, ro=1, rc=0, rt=3, ta=-1, tb=-1, tc=-1, qa=8, hsl=100, rh=8)
for x in sys.argv[2:]:
    k, v = x.split('='); OPT[k] = int(v)
def f2u(x): return struct.unpack('<I', struct.pack('<f', x))[0]

QKVF = 0; HF = 0x600000; OF = 0xE00000; FLAGS = 0x1200000; STAMP = 0x1100000; WS_USED = 0x1400000
FSH = 7; F1 = 0x40000; F2 = 2 * F1
OSH = OPT.get('osh', 7)
OFL = 0x1000000
CSG = 0x1080000
sN = 80
XBYTES = 2048 * 448 * 2
LOG2E = 1.4426950408889634
pX, pWQ, pWO, pW1, pW2, pOUT, pDBG = 4, 6, 8, 12, 14, 16, 18
SWS, SA, SB, SC = 20, 24, 28, 32
sI, sRB, sJ, sROT, sHD, sRBA, sTB, sCB = 36, 37, 38, 39, 40, 41, 42, 43
sW = 10; sIDX = 11
t0, t1, t2, t3, t4 = 3, 44, 45, 46, 47
sM = 48
def R4(b): return f's[{b}:{b+3}]'
S = R4(SWS)
def SL(p): return (p % 3) * 32768
W1B = (98304, 32768)
def W1P(L, q): return W1B[L] + 8192 * q
KB = 98304; VB = 49152; WOB = (49152, 98304); SXB = (78848, 128000)
RA2 = 90112
def slot_addr(slot): return slot*8192 if slot < 6 else (RA2 if slot == 6 else 137216 + (slot - 7)*8192)
CS = 161792
STX = CS + 896
SYNC = STX + 1024
cCS0, cL1, cCS1, cAD, cB = 0, 4, 8, 12, 16
LDS_TOTAL = 163840

a = Asm(); T = Tr(a)
st = Stamps2(a, OPT['stamp'], T)
uid = [0]
def lab(p):
    uid[0] += 1; return f'L_{p}_{uid[0]}'
def srd(d, ptr, size):
    a(f's_mov_b32 s{d}, s{ptr}'); a(f's_and_b32 s{d+1}, s{ptr+1}, 0xffff'); a(f's_mov_b32 s{d+2}, {size}'); a(f's_mov_b32 s{d+3}, 0x20000')

def poll(vaddr, soff, nl, imm, vtmp, sleep=1):
    L = lab('poll'); E = lab('polle')
    a(f's_mov_b64 exec, {(1 << nl) - 1}'); a(f's_mov_b32 s{t4}, 0')
    a.label(L)
    a(f'buffer_load_dwordx2 {vr(vtmp,2)}, v{vaddr}, {S}, {soff} offen offset:{imm} sc1')
    a(f's_add_u32 s{t4}, s{t4}, 1')
    a('s_waitcnt vmcnt(0)')
    a(f'v_cmp_ne_u64 vcc, s[{sN}:{sN+1}], {vr(vtmp,2)}')
    a(f's_cbranch_vccz {E}')
    if sleep: a(f's_sleep {sleep}')
    a(f's_cmp_lt_u32 s{t4}, {OPT["spin"]}'); a(f's_cbranch_scc1 {L}')
    a.label(E)
    a('s_mov_b64 exec, -1')
    T.vm = []
vN = 62
def nonce_take(sampled):
    L = lab('nz'); E = lab('nze')
    a(f's_mov_b32 s{t4}, 0')
    if sampled: T(('wvm', 'go')); a(f's_branch {L}c')
    a.label(L)
    a(f'buffer_load_dwordx2 {vr(vN,2)}, v{vZ}, s[60:63], 0 offen sc1'); a('s_waitcnt vmcnt(0)')
    a.label(L + 'c')
    a(f'v_readfirstlane_b32 s{sN+1}, v{vN+1}'); a(f'v_readfirstlane_b32 s{sN}, v{vN}'); a(f's_add_u32 s{t4}, s{t4}, 1')
    a(f's_cmp_lg_u32 s{sN+1}, 0'); a(f's_cbranch_scc1 {E}')
    a('s_sleep 2'); a(f's_cmp_lt_u32 s{t4}, {OPT["spin"]}'); a(f's_cbranch_scc1 {L}')
    a.label(E)

vL, vL16, vSy, vZ, vTt = 1, 2, 7, 8, 11
def spin(off, val, sleep=0):
    L = lab('sp'); E = lab('spe')
    a(f's_mov_b32 s{t4}, 0')
    a.label(L)
    a(f'ds_read_b32 v{vTt}, v{vSy} offset:{off}'); a(f's_add_u32 s{t4}, s{t4}, 1'); a('s_waitcnt lgkmcnt(0)')
    a(f'v_cmp_gt_u32 vcc, {val}, v{vTt}')
    a(f's_cbranch_vccz {E}')
    if sleep: a(f's_sleep {sleep}')
    a(f's_cmp_lt_u32 s{t4}, {OPT["spin"]*8}'); a(f's_cbranch_scc1 {L}')
    a.label(E)
    T.ds = []
def arrive(off):
    a('s_mov_b64 exec, 1'); a(f'v_mov_b32 v{vTt}, 1'); T(('ds', 'arr', f'ds_add_u32 v{vSy}, v{vTt} offset:{off}')); a('s_mov_b64 exec, -1')

def flag_store(imm, soff):
    o = [f'v_lshlrev_b32 v{vTt}, 3, v{vL}']
    if imm >= 4096:
        o.append(f'v_add_u32 v{vTt}, {imm}, v{vTt}'); imm = 0
    return o + [f's_mov_b64 exec, {0xffff if OPT.get("ff", 1) else 1}', ('vm', 'flag', f'buffer_store_dwordx2 {vr(vN,2)}, v{vTt}, {S}, s{soff} offen offset:{imm} sc1'), 's_mov_b64 exec, -1']

def tr_base(vd, vt, natural):
    a(f'v_lshrrev_b32 v{vd}, 5, v{vL}'); a(f'v_bfe_u32 v{vt}, v{vL}, 2, 2'); a(f'v_lshl_add_u32 v{vd}, v{vd}, {3 if natural else 2}, v{vt}')
    a(f'v_lshlrev_b32 v{vd}, 7, v{vd}')
    a(f'v_bfe_u32 v{vt}, v{vL}, 3, 1'); a(f'v_lshl_add_u32 v{vd}, v{vt}, 6, v{vd}')
    a(f'v_bfe_u32 v{vt}, v{vL}, 4, 1'); a(f'v_lshl_add_u32 v{vd}, v{vt}, 5, v{vd}')
    a(f'v_and_b32 v{vt}, 3, v{vL}'); a(f'v_lshl_add_u32 v{vd}, v{vt}, 3, v{vd}')

def full_pat(vd, vt, vt2, stride):
    a(f'v_lshrrev_b32 v{vt}, 3, v{vL}'); a(f'v_mul_u32_u24 v{vd}, {stride}, v{vt}')
    a(f'v_bfe_u32 v{vt}, v{vL}, 4, 1'); a(f'v_lshlrev_b32 v{vt}, 2, v{vt}'); a(f'v_and_b32 v{vt2}, 7, v{vL}'); a(f'v_xor_b32 v{vt}, v{vt}, v{vt2}')
    a(f'v_lshl_add_u32 v{vd}, v{vt}, 4, v{vd}')

def mfma(d, A, B, first=False): return f'v_mfma_f32_32x32x16_bf16 {vr(d,16)}, {vr(A,4)}, {vr(B,4)}, ' + ('0' if first else vr(d, 16))
def mfma16(d, A, B, first=False): return f'v_mfma_f32_16x16x32_bf16 {vr(d,4)}, {vr(A,4)}, {vr(B,4)}, ' + ('0' if first else vr(d, 4))

def silu_ops(b, tmp, n, sNeg):
    o = []
    for g in range(0, n, 4):
        ks = range(g, g + 4)
        o += [f'v_mul_f32 v{tmp+k}, s{sNeg}, v{b+k}' for k in ks]
        o += [f'v_exp_f32 v{tmp+k}, v{tmp+k}' for k in ks]
        o += [f'v_add_f32 v{tmp+k}, 1.0, v{tmp+k}' for k in ks]
        o += [f'v_rcp_f32 v{tmp+k}, v{tmp+k}' for k in ks]
        o += [f'v_mul_f32 v{b+k}, v{tmp+k}, v{b+k}' for k in ks]
    return o

K = NAME + '_kernel'
a.raw(f'.globl {K}'); a.raw('.p2align 8'); a.raw(f'.type {K},@function'); a.label(K)
a('s_cmp_ge_u32 s2, 256'); a('s_cbranch_scc1 L_end')
a('s_load_dwordx16 s[4:19], s[0:1], 0'); a('s_load_dwordx2 s[20:21], s[0:1], 64')
st.start()
a(f'v_readfirstlane_b32 s{t1}, v0'); a(f'v_and_b32 v{vL}, 63, v0'); a(f'v_lshlrev_b32 v{vL16}, 4, v{vL}')
a(f's_and_b32 s{t0}, s2, 7'); a(f's_lshr_b32 s{t2}, s2, 3')
a(f's_lshr_b32 s{t1}, s{t1}, 6'); a(f's_and_b32 s{sI}, s{t1}, 3')
a(f's_and_b32 s{sHD}, s{t2}, 1'); a(f's_lshl1_add_u32 s{sHD}, s{t0}, s{sHD}'); a(f's_lshr_b32 s{sRBA}, s{t2}, 1')
a(f's_sub_u32 s{t3}, s{t2}, 4'); a(f's_lshr_b32 s{sCB}, s{t3}, 2'); a(f's_and_b32 s{t3}, s{t3}, 3')
a(f's_lshl2_add_u32 s{sTB}, s{t0}, s{t3}')
a(f's_lshr_b32 s{sRB}, s{t0}, 1'); a(f's_lshl2_add_u32 s{sRB}, s{sRB}, s{t3}')
a(f's_and_b32 s{sJ}, s{t0}, 1'); a(f's_mul_i32 s{sJ}, s{sJ}, 7'); a(f's_add_u32 s{sJ}, s{sJ}, s{sCB}')
if OPT['rot']:
    a(f's_lshl1_add_u32 s{sROT}, s{t3}, s{sCB}'); a(f's_sub_u32 s{t3}, s{sROT}, 7'); a(f's_min_u32 s{sROT}, s{sROT}, s{t3}')
else: a(f's_mov_b32 s{sROT}, 0')
vXd, vQd, vWd = 240, 244, 30
a(f's_lshl_b32 s{t0}, s{sRB}, 7'); a(f's_lshl_b32 s{t3}, s{sI}, 5'); a(f's_add_u32 s{t0}, s{t0}, s{t3}')
a(f'v_lshrrev_b32 v9, 3, v{vL}'); a(f'v_add_u32 v10, s{t0}, v9'); a(f'v_mul_u32_u24 v{vXd}, 896, v10')
a(f'v_lshrrev_b32 v10, 4, v{vL}'); a(f'v_and_b32 v11, 7, v{vL}'); a('v_xor_b32 v12, v10, v11'); a(f'v_lshl_add_u32 v{vXd}, v12, 4, v{vXd}')
a(f'v_xor_b32 v{vXd+1}, 64, v{vXd}'); a(f'v_add_u32 v{vXd+2}, {2*6144}, v{vXd}'); a(f'v_add_u32 v{vXd+3}, {3*6144}, v{vXd+1}'); a(f'v_add_u32 v{vXd+1}, 6144, v{vXd+1}')
a('v_and_b32 v10, 1, v10'); a('v_lshlrev_b32 v10, 2, v10'); a('v_xor_b32 v10, v10, v11'); a('v_lshlrev_b32 v10, 4, v10')
a(f's_lshl_b32 s{t3}, s{sI}, 4'); a(f'v_add_u32 v9, s{t3}, v9')
a(f's_mul_i32 s{t0}, s{sJ}, 192'); a(f's_and_b32 s{t0}, s{t0}, 0xffffff80'); a(f's_add_u32 s{t0}, s{t0}, 1024'); a(f'v_mul_u32_u24 v{vQd}, 2688, v9'); a(f'v_add3_u32 v{vQd}, v{vQd}, v10, s{t0}')
a(f'v_add_u32 v{vQd+1}, {128-1024}, v{vQd}'); a(f'v_add_u32 v{vQd+2}, {8*2688-2048}, v{vQd}'); a(f'v_add_u32 v{vQd+3}, {8*2688+128-3072}, v{vQd}')
a(f's_lshl_b32 s{t0}, s{sJ}, 8'); a(f'v_mul_u32_u24 v{vWd}, 3584, v9'); a(f'v_add3_u32 v{vWd}, v{vWd}, v10, s{t0}'); a(f'v_add_u32 v{vWd+1}, {8*3584-1024}, v{vWd}')
sMx, sMw = 48, 49
a(f's_lshl_b32 s{sMx}, s{sI}, 12'); a(f's_lshl_b32 s{sMw}, s{sI}, 11')
for p in range(2):
    a(f's_add_u32 s{50+p}, s{sROT}, {p}'); a(f's_sub_u32 s{t3}, s{50+p}, 7'); a(f's_min_u32 s{50+p}, s{50+p}, s{t3}')
a('s_waitcnt lgkmcnt(0)')
a(f's_mov_b32 s{sW}, s{t1}'); a(f's_mov_b32 s{sIDX}, s{t2}')
a(f's_and_b32 s{SWS+1}, s{SWS+1}, 0xffff'); a(f's_mov_b32 s{SWS+2}, {WS_USED}'); a(f's_mov_b32 s{SWS+3}, 0x20000')
a(f's_cmp_lt_u32 s{sIDX}, 4'); a('s_cbranch_scc1 L_helper')
srd(SA, pX, XBYTES)
a(f's_sub_u32 s{SB}, s{pWQ}, 1024'); a(f's_subb_u32 s{SB+1}, s{pWQ+1}, 0'); a(f's_and_b32 s{SB+1}, s{SB+1}, 0xffff'); a(f's_mov_b32 s{SB+2}, {448*2688 + 1024}'); a(f's_mov_b32 s{SB+3}, 0x20000')
def x_dma(p):
    return [([f's_add_u32 m0, s{sMx}, {SL(p)}', f's_lshl_b32 s{t0}, s{50+p}, 7'] if i == 0 else []) +
            [('vm', f'p{p}', f'buffer_load_dwordx4 v{vXd+i}, {R4(SA)}, s{t0} offen offset:{i*1024} lds')] for i in range(4)]
def wq_dma(p):
    return [([f's_add_u32 m0, s{sMx}, {SL(p) + 16384}', f's_mul_i32 s{t0}, s{50+p}, {64*2688}'] if i == 0 else []) +
            [('vm', f'p{p}', f'buffer_load_dwordx4 v{vQd+i}, {R4(SB)}, s{t0} offen offset:{i*1024} lds')] for i in range(4)]
def w1_dma(L, q):
    return [[f's_add_u32 m0, s{sMw}, {W1P(L, q)}', f's_mul_i32 s{t0}, s{50+q}, {64*3584}'] + ([f's_add_u32 s{t0}, s{t0}, 128'] if L else []) +
            [('vm', f'l{L}', f'buffer_load_dwordx4 v{vWd}, {R4(SC)}, s{t0} offen lds')],
            [('vm', f'l{L}', f'buffer_load_dwordx4 v{vWd+1}, {R4(SC)}, s{t0} offen offset:1024 lds')]]
a(f's_cmp_ge_u32 s{sW}, 4'); a('s_cbranch_scc1 L_B')

vXa = 12
vT = 16
vNm, vR = 18, 20
vK1, vIr = 22, 23
vCa = 9
vWF = 32
vSel = 56
vAcc = 64
vCs = 96; vTm = 112; vCs2 = 240; vCs3 = 32
vX = 128
sQo, sHo, sFl = 57, 58, 59

def common_setup(role):
    st.init(60)
    for p in range(2, 7):
        a(f's_add_u32 s{50+p}, s{sROT}, {p}'); a(f's_sub_u32 s{t3}, s{50+p}, 7'); a(f's_min_u32 s{50+p}, s{50+p}, s{t3}')
    srd(SC, pW1, 448 * 3584)
    a(f'v_mov_b32 v{vZ}, 0'); a(f'v_mov_b32 v{vSy}, {SYNC}')
    a(f'v_and_b32 v10, 31, v{vL}'); a(f'v_lshlrev_b32 v{vXa}, 7, v10'); a(f'v_bfe_u32 v10, v{vL}, 1, 3'); a(f'v_lshrrev_b32 v11, 5, v{vL}')
    a('v_xor_b32 v10, v10, v11'); a(f'v_lshl_add_u32 v{vXa}, v10, 4, v{vXa}'); a(f'v_add_u32 v{vXa}, s{sMx}, v{vXa}')
    for s in range(1, 4): a(f'v_xor_b32 v{vXa+s}, {32*s}, v{vXa}')
    a(f'v_lshlrev_b32 v{vCa}, 4, v11'); a(f'v_add_u32 v{vCa}, {CS}, v{vCa}')
    tr_base(24, 10, True)
    a(f'v_lshl_add_u32 v27, v11, 10, v24')
    a(f's_and_b32 s{t0}, s{sJ}, 1')
    for k in range(2):
        if role == 'A': a(f's_add_u32 s{t1}, s{t0}, {k}')
        elif k == 0: a(f's_add_u32 s{t1}, s{t0}, 2')
        else: a(f's_min_u32 s{t1}, s{sI}, 2'); a(f's_add_u32 s{t1}, s{t1}, s{t0}')
        a(f's_and_b32 s{t2}, s{t1}, 1'); a(f's_lshl_b32 s{t2}, s{t2}, 6'); a(f's_lshr_b32 s{t1}, s{t1}, 1'); a(f's_lshl_b32 s{t1}, s{t1}, 10'); a(f's_add_u32 s{t1}, s{t1}, 16384')
        a(f'v_xor_b32 v{vT+k}, s{t2}, v27'); a(f'v_add_u32 v{vT+k}, s{t1}, v{vT+k}')
    a(f'v_and_b32 v10, 15, v{vL}'); a(f'v_bfe_u32 v11, v{vL}, 4, 1'); a('v_cmp_eq_u32 vcc, v10, v11'); a('v_mov_b32 v10, 0x3f803f80')
    for k in range(4 if role == 'B' else 0): a(f'v_cndmask_b32 v{vSel+k}, 0, v10, vcc')
    r = 0 if role == 'A' else 1
    a(f's_lshl2_add_u32 s{t0}, s{sRB}, s{sI}')
    a(f's_mul_i32 s{sQo}, s{t0}, 84'); a(f's_mul_i32 s{t1}, s{sJ}, 6'); a(f's_add_u32 s{sQo}, s{sQo}, s{t1}'); a(f's_add_u32 s{sQo}, s{sQo}, {4*r}'); a(f's_lshl_b32 s{sQo}, s{sQo}, 10')
    a(f's_mul_i32 s{sHo}, s{t0}, 112'); a(f's_lshl3_add_u32 s{sHo}, s{sJ}, s{sHo}'); a(f's_lshl_b32 s{sHo}, s{sHo}, 10'); a(f's_add_u32 s{sHo}, s{sHo}, {HF + 2048*(1-r)}')
    a(f's_mul_i32 s{sFl}, s{t0}, 14'); a(f's_add_u32 s{sFl}, s{sFl}, s{sJ}'); a(f's_lshl_b32 s{sFl}, s{sFl}, {FSH+1}'); a(f's_add_u32 s{sFl}, s{sFl}, {FLAGS + (r << FSH)}')

sOK = 19
def cs_loads(role, L):
    hf = 1 if role == 'A' else 0
    a(f's_lshl_b32 s{t0}, s{sJ}, 10'); a(f's_add_u32 s{t0}, s{t0}, {CSG}'); a(f'v_lshrrev_b32 v10, 5, v{vL}'); a('v_lshlrev_b32 v10, 4, v10')
    return [f'buffer_load_dwordx4 {vr((vCs2, vCs)[L]+4*g,4)}, v10, {S}, s{t0} offen offset:{L*512 + hf*128 + g*32} sc1' for g in range(4)]
def cs_try(role):
    E = lab('cst')
    T(('wvm', 'cf')); a(f'v_cmp_ne_u64 vcc, s[{sN}:{sN+1}], v[28:29]'); a(f's_mov_b32 s{sOK}, vcc_lo'); a(f's_cbranch_vccnz {E}')
    T(cs_loads(role, 0))
    a.label(E)
def cs_late(role):
    E = lab('csl')
    a(f's_cmp_eq_u32 s{sOK}, 0'); a(f's_cbranch_scc1 {E}')
    a(f's_lshl_b32 s{t1}, s{sJ}, 10'); a(f's_add_u32 s{t1}, s{t1}, {CSG}')
    keep = list(T.vm)
    poll(25, f's{t1}', 2, 256, 28)
    T(cs_loads(role, 0)); a('s_waitcnt vmcnt(0)')
    T.vm = keep
    a.label(E)
    for t in cs_loads(role, 1): T(('vm', 'cs1', t))
def touch(k):
    n = 28 if k < 2 else 14
    a(f's_sub_u32 s{t1}, s{sIDX}, 4'); a(f's_lshl3_add_u32 s{t1}, s{t1}, s{sW}'); a(f's_mul_i32 s{t1}, s{t1}, {56 if k < 2 else 14}')
    if k == 1: a(f's_add_u32 s{t1}, s{t1}, 28')
    a(f'v_min_u32 v61, {n-1}, v{vL}'); a(f'v_add_lshl_u32 v61, v61, s{t1}, 7')
    p = pW2 if k < 2 else pWO
    T(('vm', 'pf', f'global_load_dword v{252+k}, v61, s[{p}:{p+1}]'))
def p1a(role):
    A_ = role == 'A'
    vS = vTm
    def xreads(p): return [('ds', f'x{p}', f'ds_read_b128 {vr(vX+16*p+4*s,4)}, v{vXa+s} offset:{SL(p) & 0xffff}') for s in range(4)]
    def wreads(n):
        p = n >> 2; s = n & 3; b = n & 1
        return [('ds', f'w{n}', f'ds_read_b64_tr_b16 {vr(vWF+8*b+4*t+2*q,2)}, v{vT+t} offset:{(SL(p) & 0xffff) + s*4096 + q*512}') for t in range(2) for q in range(2)]
    def hop(p):
        d = (SL(p) & ~0xffff) - (SL(p - 1) & ~0xffff)
        if d == 0: return []
        op = 'v_add_u32' if d > 0 else 'v_subrev_u32'
        return [f'{op} v{v}, {abs(d)}, v{v}' for v in (vXa, vXa+1, vXa+2, vXa+3, vT, vT+1)]
    if not A_:
        for r in range(4): a(f'v_mov_b32 v{vS+r}, 0')
        a(f'v_mov_b32 v{vS+4}, 0x3f803f80')
    plan = {}
    for p in range(5): plan[p] = x_dma(p + 2) if A_ else wq_dma(p + 2)
    if A_:
        for p, q in ((1, 0), (2, 2), (3, 4), (4, 6)): plan[p] += w1_dma(0, q)
        plan[5] = w1_dma(1, 0) + w1_dma(1, 2)
        plan[6] = w1_dma(1, 4) + w1_dma(1, 6)
    else:
        for p, q in ((2, 1), (3, 3), (4, 5)): plan[p] += w1_dma(0, q)
        plan[5] = w1_dma(1, 1) + w1_dma(1, 3)
        plan[6] = w1_dma(1, 5)
    T(('w', 'p0', '*')); st.mark(3); a('s_barrier'); st.mark(4)
    T(xreads(0)[:1] + wreads(0) + xreads(0)[1:])
    for n in range(28):
        p = n >> 2; s = n & 3; b = n & 1
        ms = [[mfma(vAcc, vWF+8*b, vX+4*n, n == 0)], [mfma(vAcc+16, vWF+8*b+4, vX+4*n, n == 0) if A_ else mfma16(vAcc+16, vWF+8*b+4, vSel, n == 0)]]
        fill = []
        if s == 3 and p < 6:
            T(('w', f'p{p+1}', '*'))
            if p in (1, 4): st.mark(5 + p)
            a('s_barrier')
            if p in (1, 4): st.mark(6 + p)
            T(hop(p + 1))
            fill = xreads(p + 1)[:1] + wreads(n + 1) + xreads(p + 1)[1:]
        else:
            T(('wds', f'w{n}' if s != 1 else '*'))
            if n < 27: fill = wreads(n + 1)
        if s < 3 or p == 6:
            u = plan[p]
            k = len(u)
            lo, hi = (s * k + 2) // 3 if s < 3 else k, ((s + 1) * k + 2) // 3 if s < 3 else k
            for x in u[lo:hi]: fill += x
        T(weave(ms, fill))
        if not A_ and s == 1:
            for d in range(16):
                r = vX + 16*p + d
                a(f'v_dot2c_f32_bf16 v{vS + (d&1)}, v{r}, v{vS+4}'); a(f'v_dot2c_f32_bf16 v{vS + 2 + (d&1)}, v{r}, v{r}')
        for k, key in enumerate(('ta', 'tb', 'tc')):
            if n == OPT[key]: touch(k)
        if n == 26 and A_ and OPT['xe']: final_setup()
        if n == OPT.get('gon', 14): T(('vm', 'go', f'buffer_load_dwordx2 {vr(vN,2)}, v{vZ}, s[60:63], 0 offen sc1'))
        if n == OPT['cfs']:
            a(f's_lshl_b32 s{t1}, s{sJ}, 10'); a(f's_add_u32 s{t1}, s{t1}, {CSG}'); a(f'v_and_b32 v25, 1, v{vL}'); a('v_lshlrev_b32 v25, 9, v25')
            T(('vm', 'cf', f'buffer_load_dwordx2 v[28:29], v25, {S}, s{t1} offen offset:256 sc1'))
        if not A_ and n == 26:
            a(f'v_add_f32 v{vS}, v{vS}, v{vS+1}'); a(f'v_add_f32 v{vS+2}, v{vS+2}, v{vS+3}')
            a(f'v_mov_b32 v{vS+1}, v{vS}'); a(f'v_mov_b32 v{vS+3}, v{vS+2}')
            a(f'v_permlane32_swap_b32 v{vS}, v{vS+1}'); a(f'v_permlane32_swap_b32 v{vS+2}, v{vS+3}')
            a(f'v_add_f32 v{vS}, v{vS}, v{vS+1}'); a(f'v_add_f32 v{vS+2}, v{vS+2}, v{vS+3}')
            a(f'v_mul_f32 v{vNm}, {f2u(-1.0/448):#x}, v{vS}'); a(f'v_mul_f32 v{vS+2}, {f2u(1.0/448):#x}, v{vS+2}')
            a(f'v_fma_f32 v{vS+2}, -v{vNm}, v{vNm}, v{vS+2}'); a(f'v_max_f32 v{vS+2}, 0, v{vS+2}')
            a(f'v_add_f32 v{vNm+1}, {f2u(1e-5):#x}, v{vS+2}')
            a(f'v_and_b32 v10, 31, v{vL}'); a(f's_lshl_b32 s{t0}, s{sI}, 8'); a(f's_add_u32 s{t0}, s{t0}, {STX}'); a(f'v_lshl_add_u32 v10, v10, 3, s{t0}')
            T(('ds', 'st', f'ds_write_b64 v10, {vr(vNm,2)}'))
    if not A_:
        a(f's_min_u32 s{t0}, s{sI}, 2'); a(f's_lshl_b32 s{t0}, s{t0}, 7'); a(f's_add_u32 s{t0}, s{t0}, {CS}')
        a(f'v_and_b32 v10, 1, v{vL}'); a('v_lshlrev_b32 v10, 6, v10'); a(f'v_and_b32 v11, 48, v{vL}'); a(f'v_add3_u32 v10, v10, v11, s{t0}')
        a('s_mov_b32 exec_lo, 0x00030003'); a('s_mov_b32 exec_hi, 0x00030003')
        T(('ds', 'st', f'ds_write_b128 v10, {vr(vAcc+16,4)}'))
        a('s_mov_b64 exec, -1')
    T(('wvm', 'l0'))
    nonce_take(True)
    cs_try(role)
    if A_: a('s_setprio 3')
    T(('wds', '*')); st.mark(11); a('s_barrier'); st.mark(12)
    if A_ and OPT['ew'] == 0: a_early()
    if A_:
        a(f'v_and_b32 v10, 31, v{vL}'); a(f's_lshl_b32 s{t0}, s{sI}, 8'); a(f's_add_u32 s{t0}, s{t0}, {STX}'); a(f'v_lshl_add_u32 v10, v10, 3, s{t0}')
        T(('ds', 'st', f'ds_read_b64 {vr(vNm,2)}, v10'))
    tiles = (0, 1) if A_ else (2,)
    for k, t in enumerate(tiles):
        for g in range(4): T(('ds', f'cs{k}', f'ds_read_b128 {vr(vCs+16*k+4*g,4)}, v{vCa} offset:{t*128 + g*32}'))
    if A_: T(('wds', 'st'))
    a(f'v_rsq_f32 v{vR}, v{vNm+1}'); a(f'v_sqrt_f32 v{vIr}, v{vNm+1}'); a(f'v_mov_b32 v{vNm+1}, v{vNm}')
    a(f'v_mul_f32 v{vK1}, {f2u(-LOG2E):#x}, v{vR}')
    for k, t in enumerate(tiles):
        a(f's_mul_i32 s{t0}, s{sJ}, 3'); a(f's_add_u32 s{t0}, s{t0}, {t}'); a(f's_cmp_lt_u32 s{t0}, 14'); a(f's_cselect_b32 s{t0}, {f2u(28**-0.5*LOG2E):#x}, 1.0')
        a(f'v_mul_f32 v26, s{t0}, v{vR}'); a(f'v_mul_f32 v27, s{t0}, v{vR}')
        T(('wds', f'cs{k}'))
        b = vAcc + 16*k
        for j in range(0, 16, 2): a(f'v_pk_fma_f32 {vr(b+j,2)}, {vr(vCs+16*k+j,2)}, {vr(vNm,2)}, {vr(b+j,2)}')
        for j in range(0, 16, 2): a(f'v_pk_mul_f32 {vr(b+j,2)}, {vr(b+j,2)}, v[26:27]')
        for s in range(2):
            for j in range(4): a(f'v_cvt_pk_bf16_f32 v{b+4*s+j}, v{b+8*s+2*j}, v{b+8*s+2*j+1}')
            T(('vm', 'q', f'buffer_store_dwordx4 {vr(b+4*s,4)}, v{vL16}, {S}, s{sQo} offen offset:{k*2048 + s*1024} sc1'))
    st.mark(13)

NR = 6; PD = 4
def h_tile(L, hf, acc, ex={}):
    def rd(n): return [('ds', f'u{n}', f'ds_read_b64_tr_b16 {vr(vWF+4*(n%NR)+2*q,2)}, v{vT+L} offset:{W1P(L, n>>2) - W1B[L] + (16*(n&3)+4*q)*128}') for q in range(2)]
    for n in range(PD): T(rd(n))
    for n in range(28):
        if n + PD < 28: T(rd(n + PD))
        if n & 1 == 0: T(('wds', f'u{n+1}'))
        a(mfma(acc, vWF + 4*(n % NR), vX + 4*n, n == 0))
        if n in ex: T(ex[n])
def h_epi(acc, k, vCs, mid=None):
    for g in range(0, 16, 4):
        ks = range(g, g + 4)
        for j in ks: a(f'v_fma_f32 v{acc+j}, v{vCs+j}, v{vNm}, v{acc+j}')
        for j in ks: a(f'v_mul_f32 v{vTm+j}, v{vK1}, v{acc+j}')
        for j in ks: a(f'v_exp_f32 v{vTm+j}, v{vTm+j}')
        for j in ks: a(f'v_fma_f32 v{vTm+j}, v{vTm+j}, v{vIr}, v{vIr}')
        for j in ks: a(f'v_rcp_f32 v{vTm+j}, v{vTm+j}')
        for j in ks: a(f'v_mul_f32 v{acc+j}, v{vTm+j}, v{acc+j}')
        if g == 4 and mid: T(mid)
        if g & 4:
            s = g >> 3
            for j in range(4): a(f'v_cvt_pk_bf16_f32 v{acc+4*s+j}, v{acc+8*s+2*j}, v{acc+8*s+2*j+1}')
            T(('vm', f'h{k}', f'buffer_store_dwordx4 {vr(acc+4*s,4)}, v{vL16}, {S}, s{sHo} offen offset:{s*1024} sc1'))
    if k == 0: a(f's_add_u32 s{sHo}, s{sHo}, 4096')

sST0, sG0, sTQ, sT7, sCT, sTT, sTo, sKI, sFl2 = 82, 83, 84, 85, 86, 87, 88, 89, 90
vFl = 5; vQ = 32
def att_setup():
    a(f's_mul_i32 s{t0}, s{sHD}, 7'); a(f's_lshr_b32 s{sST0}, s{t0}, 2'); a(f's_and_b32 s{sG0}, s{t0}, 3')
    a(f's_lshl2_add_u32 s{sTQ}, s{sRBA}, s{sI}')
    a(f's_mul_i32 s{t0}, s{sI}, 3'); a(f's_lshl2_add_u32 s{t0}, s{sRBA}, s{t0}'); a(f's_sub_u32 s{sT7}, s{t0}, 8')
    a(f's_and_b32 s{sCT}, s{sI}, 1'); a(f's_lshr_b32 s{sTT}, s{sI}, 1'); a(f's_lshl1_add_u32 s{sTo}, s{sTB}, s{sTT}')
    a(f'v_min_u32 v10, 13, v{vL}')
    a(f'v_lshrrev_b32 v26, 2, v10'); a(f'v_add_u32 v26, s{sT7}, v26'); a('v_max_i32 v26, 0, v26')
    a(f'v_bfe_u32 v27, v10, 1, 1'); a('v_mul_u32_u24 v27, 28, v27'); a('v_add_u32 v27, 28, v27')
    a(f'v_cmp_le_u32 vcc, 12, v10'); a(f'v_mov_b32 v28, s{sTQ}')
    a('v_cndmask_b32 v26, v26, v28, vcc'); a(f'v_cndmask_b32 v27, v27, v{vZ}, vcc')
    a(f'v_and_b32 v28, 1, v10'); a('v_lshl_add_u32 v27, v28, 1, v27'); a(f'v_add_u32 v27, s{sST0}, v27')
    a('v_lshrrev_b32 v27, 1, v27'); a('v_min_u32 v27, 41, v27')
    a('v_mul_u32_u24 v28, 43, v27'); a('v_lshrrev_b32 v28, 7, v28')
    a('v_mul_u32_u24 v29, 3, v28'); a('v_sub_u32 v29, v27, v29'); a('v_lshrrev_b32 v29, 1, v29')
    a('v_mul_u32_u24 v26, 14, v26'); a('v_add_lshl_u32 v26, v26, v28, 1'); a(f'v_add_lshl_u32 v{vFl}, v26, v29, {FSH}')
    a(f'v_add_u32 v{vFl}, {FLAGS}, v{vFl}')
    assert all((x * 43) >> 7 == x // 3 for x in range(42))
SBUF = 49152
vXo2 = 61; vXv = 56
def final_setup():
    a(f's_lshl3_add_u32 s{t0}, s{sTB}, s{sW}'); a(f's_lshl_b32 s{t0}, s{t0}, 3'); a(f'v_lshrrev_b32 v10, 3, v{vL}'); a(f'v_add_u32 v10, s{t0}, v10')
    a(f'v_mul_u32_u24 v{vXo2}, 896, v10'); a(f'v_and_b32 v10, 7, v{vL}'); a(f'v_lshl_add_u32 v{vXo2}, v10, 4, v{vXo2}')
    a(f's_lshl_b32 s{t0}, s{sCB}, 7'); a(f'v_add_u32 v{vXo2}, s{t0}, v{vXo2}')
    T(('vm', 'x', f'global_load_dwordx4 {vr(vXv,4)}, v{vXo2}, s[{pX}:{pX+1}]'))
def xaddr(vd):
    a(f'v_lshrrev_b32 v10, 5, v{vL}'); a(f'v_and_b32 v11, 7, v{vL}'); a('v_xor_b32 v10, v10, v11'); a(f'v_lshlrev_b32 v{vd}, 8, v11'); a(f'v_lshl_add_u32 v{vd}, v10, 4, v{vd}')
def final_stage():
    vA0, vA1, vB0, vB1 = 12, 13, 14, 15
    srd(SC, pOUT, XBYTES)
    a(f'v_lshrrev_b32 v10, 3, v{vL}'); a(f'v_and_b32 v11, 7, v{vL}'); a('v_lshlrev_b32 v11, 1, v11'); a('v_xor_b32 v11, v11, v10')
    a('v_lshlrev_b32 v10, 8, v10'); a('v_lshl_add_u32 v10, v11, 4, v10')
    a(f's_lshl_b32 s{t0}, s{sW}, 13'); a(f's_cmp_eq_u32 s{sW}, 6'); a(f's_cselect_b32 s{t0}, {slot_addr(6)}, s{t0}'); a(f's_cmp_eq_u32 s{sW}, 7'); a(f's_cselect_b32 s{t0}, {slot_addr(7)}, s{t0}')
    a(f'v_add_u32 v{vA0}, s{t0}, v10'); a(f'v_xor_b32 v{vA1}, 16, v{vA0}')
    a(f's_lshl_b32 s{t0}, s{sW}, 11'); a(f's_add_u32 s{t0}, s{t0}, {SBUF}'); a(f'v_add_u32 v{vB0}, s{t0}, v10'); a(f'v_xor_b32 v{vB1}, 16, v{vB0}')
    a(f's_mov_b32 s52, {f2u(-LOG2E):#x}')
    T(('wvm', 'x'))
    vXu = 200
    for j in range(4): a(f'v_lshlrev_b32 v{vXu+2*j}, 16, v{vXv+j}'); a(f'v_and_b32 v{vXu+2*j+1}, 0xffff0000, v{vXv+j}')
    T(('wds', '*'))
    st.mark(35)
    a('s_barrier')
    st.mark(36)
    vF = 144; vS_ = 176
    for kq in range(4):
        for e in range(2): T(('ds', f'f{kq}', f'ds_read_b128 {vr(vF+8*kq+4*e,4)}, v{vA0+e} offset:{kq*2048}'))
    for kh in range(2):
        for e in range(2): T(('ds', 's', f'ds_read_b128 {vr(vS_+8*kh+4*e,4)}, v{vB0+e} offset:{kh*16384}'))
    T(('wds', 'f1'))
    for j in range(0, 8, 2): a(f'v_pk_add_f32 {vr(vF+j,2)}, {vr(vF+j,2)}, {vr(vF+8+j,2)}')
    T(('wds', 'f3'))
    for j in range(0, 8, 2): a(f'v_pk_add_f32 {vr(vF+16+j,2)}, {vr(vF+16+j,2)}, {vr(vF+24+j,2)}')
    for j in range(0, 8, 2): a(f'v_pk_add_f32 {vr(vF+j,2)}, {vr(vF+j,2)}, {vr(vF+16+j,2)}')
    T(silu_ops(vF, 192, 8, 52))
    T(('wds', '*'))
    for j in range(0, 8, 2): a(f'v_pk_add_f32 {vr(vS_+j,2)}, {vr(vS_+j,2)}, {vr(vS_+8+j,2)}')
    for j in range(0, 8, 2): a(f'v_pk_fma_f32 {vr(vF+j,2)}, {vr(vS_+j,2)}, {vr(vF+j,2)}, {vr(vXu+j,2)}')
    for j in range(4): a(f'v_cvt_pk_bf16_f32 v{vXv+j}, v{vF+2*j}, v{vF+2*j+1}')
    a(f'buffer_store_dwordx4 {vr(vXv,4)}, v{vXo2}, {R4(SC)}, 0 offen' + (' sc1' if OPT.get('osc') else ''))
    st.mark(37)
    st.flush(SWS, STAMP, sW, vL)
vWo, vT0, vT1, vU0, vU1, vFa, vH0 = 3, 5, 6, 12, 13, 14, 30
sRg, sTab = 49, 66
fAcc = 64; vHr = 128; RH = OPT['rh']; vSB = 32; NS = 10; NRES = OPT['nres']
def wreg(k): return 248 - 8*k
assert vHr + 8*RH <= 256 - 8*NRES
slots = [0, 1, 2, 3, 6, 7, 8, 9, 4, 5]
if OPT['ro']: lorder = list(range(NS, NS + NRES)) + list(range(NS)) + list(range(NS + NRES, 28))
else: lorder = list(range(28))
lidx = {n: i for i, n in enumerate(lorder)}
def wdma(k):
    n = lorder[k]
    return [f's_add_u32 m0, s{sRg}, {slot_addr(slots[k % NS])}', f's_mul_i32 s{t1}, s{sTab + n % 14}, 14'] + ([f's_add_u32 s{t1}, s{t1}, {64*896}'] if n >= 14 else []) + [
            ('vm', f'W{k}', f'buffer_load_dwordx4 v{vWo}, {R4(SA)}, s{t1} offen lds'),
            ('vm', f'W{k}', f'buffer_load_dwordx4 v{vWo+1}, {R4(SA)}, s{t1} offen offset:1024 lds')]
def wread(k, dst):
    slot = slots[k % NS]
    vs, off = ((vT0, vT1), slot*8192) if slot < 6 else ((vU0, vU1), slot_addr(slot) - RA2)
    return [('ds', f'R{k}', f'ds_read_b64_tr_b16 {vr(dst+4*ct+2*q,2)}, v{vs[ct]} offset:{off + q*1024}') for ct in range(2) for q in range(2)]
NE = OPT['early']
def a_early():
    srd(SA, pW2, 1792 * 896)
    for k in range(NE): T(wdma(k))
for u in x_dma(0) + wq_dma(0): T(u)
common_setup('A')
full_pat(vWo, 10, 11, 896); a(f's_lshl_b32 s{t0}, s{sCB}, 7'); a(f'v_add_u32 v{vWo}, s{t0}, v{vWo}'); a(f'v_add_u32 v{vWo+1}, {8*896-1024}, v{vWo}')
a(f's_mul_i32 s{t0}, s{sI}, {14*1024}')
a(f's_mul_i32 s{t3}, s{sCB}, {OPT["rc"]*1024}'); a(f's_and_b32 s{t1}, s{sTB}, 3'); a(f's_mul_i32 s{t1}, s{t1}, {OPT["rt"]*1024}'); a(f's_add_u32 s{t3}, s{t3}, s{t1}')
a(f's_sub_u32 s{t1}, s{t3}, {14*1024}'); a(f's_min_u32 s{t3}, s{t3}, s{t1}')
for n in range(14):
    a(f's_add_u32 s{t1}, s{t0}, s{t3}'); a(f's_and_b32 s{t2}, s{t1}, 0xfffff000'); a(f's_add_u32 s{sTab+n}, s{t1}, s{t2}')
    if n < 13: a(f's_add_u32 s{t3}, s{t3}, 1024'); a(f's_cmp_eq_u32 s{t3}, {14*1024}'); a(f's_cselect_b32 s{t3}, 0, s{t3}')
srd(60, pDBG, 256)
a(f'v_and_b32 v10, 7, v{vL}'); a(f'v_lshl_add_u32 v10, v10, 2, v{vSy}'); a(f'ds_write_b32 v10, v{vZ}')
p1a('A')
a('s_setprio 0')
a(f'v_xor_b32 v24, 64, v24'); a(f'v_add_u32 v{vT}, {W1B[0]}, v24'); a(f'v_add_u32 v{vT+1}, {W1B[1]}, v24')
T(('wvm', 'l1')); arrive(cL1)
if OPT['ew'] == 1: a_early()
if OPT['ew'] == 2: srd(SA, pW2, 1792 * 896)
tr_base(10, 11, False); a(f'v_add_u32 v{vT0}, s{sRg}, v10')
a(f'v_xor_b32 v{vT1}, 64, v{vT0}'); a(f'v_add_u32 v{vU0}, {RA2}, v{vT0}'); a(f'v_xor_b32 v{vU1}, 64, v{vU0}')
a(f's_mul_i32 s{t0}, s{sTB}, {224*1024 if not OPT.get("fake") else 0}'); a(f's_add_u32 s{t0}, s{t0}, {HF}'); a(f'v_add_u32 v{vH0}, s{t0}, v{vL16}'); a(f'v_add_u32 v{vH0+1}, {112*1024}, v{vH0}')
a(f's_mul_i32 s{t0}, s{sI}, 7'); a(f's_lshr_b32 s{t0}, s{t0}, 1')
a(f'v_bfe_u32 v10, v{vL}, 1, 2'); a(f'v_add_u32 v10, s{t0}, v10')
a(f'v_bfe_u32 v{vFa}, v{vL}, 3, 1'); a(f's_lshl_b32 s{t0}, s{sTB}, 1'); a(f'v_add_u32 v{vFa}, s{t0}, v{vFa}'); a(f'v_mul_u32_u24 v{vFa}, 14, v{vFa}')
a(f'v_add_lshl_u32 v{vFa}, v{vFa}, v10, 1'); a(f'v_and_b32 v10, 1, v{vL}'); a(f'v_add_lshl_u32 v{vFa}, v{vFa}, v10, {FSH}'); a(f'v_add_u32 v{vFa}, {FLAGS + F1}, v{vFa}')
ex = {}
if OPT['ew'] == 1:
    final_setup()
    st.mark(14)
    T([('wvm', 'q')] + flag_store(0, sFl))
if OPT['ew'] == 2:
    ex[OPT['qa']] = [('wvm', 'q')] + flag_store(0, sFl)
    for k in range(NE):
        w = wdma(k); ex[OPT['qa'] + 2 + 3*k] = w[:-1]; ex[OPT['qa'] + 3 + 3*k] = w[-1:]
st.mark(16)
h_tile(0, 1, vAcc, ex)
st.mark(20)
arrive(cCS1)
if not OPT['ew']: T([('wvm', 'q')] + flag_store(0, sFl))
cs_late('A')
h_epi(vAcc, 0, vCs2)
spin(cL1, 8)
ex = {OPT['f0']: [('wvm', 'h0')] + flag_store(F1, sFl)}
if NE == 5:
    spin(cCS1, 8)
    for k in range(5, 8):
        w = wdma(k)
        if OPT['w2w']: ex[OPT['w2w'] + 3*(k-5)] = w[:-1]; ex[OPT['w2w'] + 1 + 3*(k-5)] = w[-1:]
        else: T(w)
    NE = 8
st.mark(21)
h_tile(1, 1, vAcc + 16, ex)
arrive(cAD)
a(f's_setprio {OPT["ap"]}')
st.mark(22)
h_epi(vAcc + 16, 1, vCs)
a(f's_setprio {OPT["ap2"]}')
st.mark(23)
spin(cAD, 8)
st.mark(40)
for k in range(NE, NS): T(wdma(k))
st.mark(41)
for k in range(NRES):
    T([('wvm', f'W{k}')] + wread(k, wreg(k)))
T(('wds', '*'))
st.mark(42)
def sample(off): return ([f'v_add_u32 v{vFa}, {F1}, v{vFa}'] if off == F2 else []) + [('vm', 'hf', f'buffer_load_dwordx2 v[28:29], v{vFa}, {S}, 0 offen sc1')]
if OPT['ew'] != 1 and not OPT['xe']: final_setup()
for k in range(NRES):
    if k == OPT['sp']:
        st.mark(43); T([('wvm', 'h1')]); st.mark(44); T(flag_store(F2, sFl)); T(sample(F1)); st.mark(45)
    T(wdma(k + NS))
    if k == 4: st.mark(46)
def check(off):
    E = lab('hok')
    T(('wvm', 'hf')); a(f'v_cmp_ne_u64 vcc, s[{sN}:{sN+1}], v[28:29]'); a(f's_cbranch_vccz {E}')
    keep = list(T.vm)
    poll(vFa, '0', 16, 0, 28)
    T.vm = keep
    a.label(E)
if OPT['sp'] >= NRES:
    T(sample(F1)); T([('wvm', 'h1')] + flag_store(F2, sFl))
st.mark(24)
check(F1)
st.mark(26)
def hload(n):
    o = [f'v_add_u32 v{vH0}, 4096, v{vH0}', f'v_add_u32 v{vH0+1}, 4096, v{vH0+1}'] if n == 14 else []
    return o + [('vm', f'H{n}', f'buffer_load_dwordx4 {vr(vHr+8*(n%RH)+4*tt,4)}, v{vH0+tt}, {S}, s{sTab + n % 14} offen' + ('' if OPT.get('nosc') else ' sc1')) for tt in range(2)]
LA = RH - 1
for n in range(LA): T(hload(n))
def wsrc(n): return wreg(lidx[n]) if lidx[n] < NRES else vSB + 8*(n & 1)
if lidx[0] >= NRES: T([('wvm', f'W{lidx[0]}')] + wread(lidx[0], wsrc(0)))
for n in range(28):
    nx = n + 1
    if n + LA == 14: check(F2); st.mark(25)
    T(('w', f'H{n}', f'R{lidx[n]}'))
    if n in (0, 7, 14, 21): st.mark(27 + n // 7)
    rd = wread(lidx[nx], wsrc(nx)) if nx < 28 and lidx[nx] >= NRES else []
    if rd: T(('wvm', f'W{lidx[nx]}'))
    vm = []
    if n + LA < 28:
        h = hload(n + LA); vm += [h[:-1], h[-1:]]
    if lidx[n] >= NRES and lidx[n] + NS < 28:
        w = wdma(lidx[n] + NS); vm += [w[:-1], w[-1:]]
    if n + LA == 14 - OPT.get('sd', 3): vm.append([sample(F2)])
    ms = [mfma(fAcc + 16*(ct + 2*tt), wsrc(n) + 4*ct, vHr + 8*(n % RH) + 4*tt, n == 0) for tt in range(2) for ct in range(2)]
    for i in range(4):
        a(ms[i])
        T(rd[2*i:2*i+2])
        lo, hi = (i * len(vm) + 3) // 4, ((i + 1) * len(vm) + 3) // 4
        for u in vm[lo:hi]: T(u)
    if n == OPT['n1']: arrive(cCS0)
    if n == 24:
        xaddr(16); a(f'v_add_u32 v16, s{sRg}, v16'); a(f'v_bfe_u32 v10, v{vL}, 3, 2')
        a(f'v_mov_b32 v11, {slot_addr(7)}'); a(f'v_mov_b32 v20, {slot_addr(6)}'); a('v_cmp_eq_u32 vcc, 2, v10'); a('v_cndmask_b32 v11, v11, v20, vcc')
        a('v_lshlrev_b32 v21, 13, v10'); a('v_add_u32 v20, 32768, v21'); a('v_cmp_gt_u32 vcc, 2, v10'); a('v_cndmask_b32 v11, v11, v20, vcc')
        a('v_add_u32 v20, v11, v16'); a('v_add_u32 v16, v21, v16')
        for q in range(1, 4): a(f'v_xor_b32 v{16+q}, {32*q}, v16'); a(f'v_xor_b32 v{20+q}, {32*q}, v20')
st.mark(31)
for tt in range(2):
    for ct in range(2):
        for q in range(4): T(('ds', 'p', f'ds_write_b128 v{16+4*tt+q}, {vr(fAcc+16*(ct+2*tt)+4*q,4)} offset:{ct*128}'))
final_stage()
a('s_endpgm')

T.reset()
a.label('L_helper')
srd(60, pDBG, 256); srd(SA, pW1, 448 * 3584)
a(f'v_mov_b32 v{vZ}, 0')
a(f's_or_b32 s{t0}, s2, s{sW}'); a('s_cbranch_scc1 L_nononce')
a(f's_memrealtime s[{sN}:{sN+1}]'); a('s_waitcnt lgkmcnt(0)'); a(f's_or_b32 s{sN+1}, s{sN+1}, 0x80000000')
a(f'v_mov_b32 v{vN}, s{sN}'); a(f'v_mov_b32 v{vN+1}, s{sN+1}')
a('s_mov_b64 exec, 1'); a(f'buffer_store_dwordx2 {vr(vN,2)}, v{vZ}, s[60:63], 0 offen sc1'); a('s_mov_b64 exec, -1')
a.label('L_nononce')
a('s_getpc_b64 s[28:29]'); a.label('L_pc')
a(f's_sub_u32 s28, s28, L_pc-{K}'); a('s_subb_u32 s29, s29, 0')
a(f's_lshl3_add_u32 s{t3}, s{sIDX}, s{sW}')
a(f's_lshl_b32 s{t0}, s{t3}, 11'); a(f'v_and_b32 v4, 15, v{vL}'); a('v_lshlrev_b32 v4, 7, v4'); a(f'v_add_u32 v4, s{t0}, v4')
a(f'v_min_u32 v4, L_end-{K}, v4'); T(('vm', 'pc', 'global_load_dword v3, v4, s[28:29]'))
if OPT['hd']: a(f's_sleep {OPT["hd"]}')
a(f's_min_u32 s{t2}, s2, 27'); a(f's_mul_i32 s{t0}, s{sW}, {56*3584}'); a(f's_lshl_b32 s{t1}, s{t2}, 7'); a(f's_add_u32 s{t0}, s{t0}, s{t1}')
a(f'v_lshrrev_b32 v9, 3, v{vL}'); a('v_mul_u32_u24 v9, 3584, v9'); a(f'v_and_b32 v10, 7, v{vL}'); a('v_lshl_add_u32 v9, v10, 4, v9')
for i in range(7):
    T(('vm', f'c{i}', f'buffer_load_dwordx4 {vr(64+4*i,4)}, v9, {R4(SA)}, s{t0} offen')); a(f's_add_u32 s{t0}, s{t0}, {8*3584}')
st.init(60)
a(f'v_mov_b32 v{vSy}, {SYNC}'); a(f'ds_write_b32 v{vSy}, v{vZ} offset:{cB}'); a('v_mov_b32 v5, 8'); a(f'ds_write_b32 v{vSy}, v5 offset:{cAD}')
for i in range(7):
    T(('wvm', f'c{i}'))
    if i == 2: T(('vm', 'go', f'buffer_load_dwordx2 {vr(vN,2)}, v{vZ}, s[60:63], 0 offen sc1'))
    d0 = 16 if i == 0 else 24
    for d in range(4):
        a(f'v_lshlrev_b32 v{d0+2*d}, 16, v{64+4*i+d}'); a(f'v_and_b32 v{d0+1+2*d}, 0xffff0000, v{64+4*i+d}')
    if i:
        for d in range(4): a(f'v_pk_add_f32 {vr(16+2*d,2)}, {vr(16+2*d,2)}, {vr(24+2*d,2)}')
a(f's_lshl_b32 s{t0}, s{sW}, 11'); a(f'v_lshlrev_b32 v12, 5, v{vL}'); a(f'v_add_u32 v12, s{t0}, v12')
a('ds_write_b128 v12, v[16:19]'); a('ds_write_b128 v12, v[20:23] offset:16')
a('s_waitcnt lgkmcnt(0)'); a('s_barrier')
st.mark(2)
nonce_take(True)
a(f's_cmp_lg_u32 s{sW}, 0'); a('s_cbranch_scc1 L_hcs_done'); a('s_cmp_ge_u32 s2, 28'); a('s_cbranch_scc1 L_hcs_done')
a('s_setprio 3')
a(f'v_lshlrev_b32 v12, 2, v{vL}')
for g in range(4):
    for k in range(8): a(f'ds_read2st64_b32 {vr(64+16*g+2*k,2)}, v12 offset0:{16*g+2*k} offset1:{16*g+2*k+1}')
    a('s_waitcnt lgkmcnt(0)')
for w in (32, 16, 8, 4, 2):
    for k in range(0, w, 2): a(f'v_pk_add_f32 {vr(64+k,2)}, {vr(64+k,2)}, {vr(64+w+k,2)}')
a('v_add_f32 v64, v64, v65')
a(f's_lshl_b32 s{t0}, s2, 9'); a(f's_add_u32 s48, s{t0}, {CSG}')
a(f'buffer_store_dword v64, v12, {S}, s48 offen sc1'); a('s_waitcnt vmcnt(0)')
T(flag_store(256, 48))
a('s_setprio 0')
st.mark(3)
a.label('L_hcs_done')
a('s_barrier')
if OPT['hm']:
    a(f's_cmp_lt_u32 s{sW}, 4'); a('s_cbranch_scc1 L_nohm')
    srd(SC, pW2, 1792 * 896); srd(SB, pWO, 448 * 896)
    a(f's_lshl2_add_u32 s{t3}, s2, s{sI}'); a(f's_mul_i32 s{t0}, s{t3}, {98*128}')
    a(f'v_min_u32 v4, 48, v{vL}'); a('v_lshlrev_b32 v4, 7, v4')
    a(f'buffer_load_dword v40, v4, {R4(SC)}, s{t0} offen'); a(f's_add_u32 s{t0}, s{t0}, {49*128}'); a(f'buffer_load_dword v41, v4, {R4(SC)}, s{t0} offen')
    a(f's_mul_i32 s{t0}, s{t3}, {25*128}'); a(f'v_min_u32 v4, 24, v{vL}'); a('v_lshlrev_b32 v4, 7, v4')
    a(f'buffer_load_dword v42, v4, {R4(SB)}, s{t0} offen')
    a.label('L_nohm')
a(f's_cmp_ge_u32 s{sW}, 4'); a('s_cbranch_scc1 L_helperB')
a(f's_lshl2_add_u32 s{t3}, s{sIDX}, s{sI}')
if OPT['hw']:
    srd(SA, pW2, 1792 * 896)
    a(f'v_min_u32 v4, 55, v{vL}'); a('v_lshlrev_b32 v4, 7, v4'); a(f'v_add_u32 v5, {56*128}, v4')
    for k in range(7):
        a(f's_add_u32 s{t0}, s{sIDX}, {4*k}'); a(f's_cmp_ge_u32 s{t0}, 14'); a(f's_cselect_b32 s{t1}, 14, 0'); a(f's_cselect_b32 s{t2}, 4, 0'); a(f's_sub_u32 s{t0}, s{t0}, s{t1}')
        a(f's_mul_i32 s{t1}, s{sI}, 14'); a(f's_add_u32 s{t0}, s{t0}, s{t1}'); a(f's_and_b32 s{t1}, s{t0}, 0xfc'); a(f's_add_u32 s{t0}, s{t0}, s{t1}'); a(f's_add_u32 s{t0}, s{t0}, s{t2}')
        a(f's_mul_i32 s{t0}, s{t0}, {16*896}')
        a(f'buffer_load_dword v{20+2*k}, v4, {R4(SA)}, s{t0} offen'); a(f'buffer_load_dword v{21+2*k}, v5, {R4(SA)}, s{t0} offen')
st.mark(4)
if OPT['hh']:
    a(f's_and_b32 s{t0}, s2, 7'); a(f's_lshr_b32 s{t1}, s{t3}, 1'); a(f's_lshl3_add_u32 s{t0}, s{t0}, s{t1}')
    a(f's_and_b32 s{t1}, s{t3}, 1'); a(f's_mul_i32 s{t1}, s{t1}, 7'); a(f's_mul_i32 s{t0}, s{t0}, 14'); a(f's_add_u32 s{t2}, s{t0}, s{t1}')
    a(f's_lshl_b32 s48, s{t2}, {FSH+1}'); a(f's_add_u32 s48, s48, {FLAGS}'); a(f'v_lshlrev_b32 v4, {FSH}, v{vL}')
    a(f's_lshl_b32 s49, s{t2}, 13'); a(f's_add_u32 s49, s49, {HF}')
    a(f'v_and_b32 v5, 31, v{vL}'); a('v_lshlrev_b32 v5, 7, v5'); a(f'v_lshrrev_b32 v6, 5, v{vL}'); a('v_lshl_add_u32 v6, v6, 15, v5')
    for ph in range(2):
        a(f's_add_u32 s48, s48, {F1}'); poll(4, 's48', 14, 0, 12, sleep=6)
        st.mark(5 + ph)
        for k in range(4):
            a(f's_add_u32 s{t0}, s49, {k*8192 + ph*4096}')
            a(f'buffer_load_dword v{40+4*ph+k}, v{6 if k < 3 else 5}, {S}, s{t0} offen sc1')
        if ph == 0 and OPT['hwo']:
            srd(SB, pWO, 448 * 896)
            a(f'v_min_u32 v9, 48, v{vL}'); a('v_lshlrev_b32 v9, 7, v9'); a(f's_mul_i32 s{t0}, s{t3}, {196*128}')
            for i in range(4):
                a(f'buffer_load_dword v{50+i}, v9, {R4(SB)}, s{t0} offen'); a(f's_add_u32 s{t0}, s{t0}, {49*128}')
st.flush(SWS, STAMP, sW, vL)
a('s_endpgm')
a.label('L_helperB')
if OPT['hs']:
    srd(SA, pWO, 448 * 896)
    a(f's_lshl2_add_u32 s{t3}, s{sIDX}, s{sI}'); a(f's_mul_i32 s{t0}, s{t3}, {196*128}'); a(f's_mov_b32 s{t1}, 14')
    a('s_sleep 20')
    a.label('L_hsl')
    for k in range(14): a(f's_buffer_load_dword s{64+k}, {R4(SA)}, s{t0} offset:{128*k}')
    a(f's_add_u32 s{t0}, s{t0}, {14*128}'); a(f's_sub_u32 s{t1}, s{t1}, 1'); a('s_waitcnt lgkmcnt(0)'); a(f's_cmp_lg_u32 s{t1}, 0'); a('s_cbranch_scc1 L_hsl')
else: a(f's_sleep {OPT["hsl"]}')
att_setup()
a(f's_mov_b32 s{sKI}, 0')
a('s_branch L_att')

T.reset()
a.label('L_B')
for u in x_dma(1) + wq_dma(1): T(u)
a('s_setprio 2')
common_setup('B')
srd(60, pDBG, 256)
att_setup()
p1a('B')
a(f'v_add_u32 v{vT}, {W1B[0]}, v24'); a(f'v_add_u32 v{vT+1}, {W1B[1]}, v24')
h_tile(0, 0, vAcc + 16)
arrive(cCS1)
T(('wvm', 'l1')); arrive(cL1)
st.mark(16)
T([('wvm', 'q')] + flag_store(0, sFl))
cs_late('B')
h_epi(vAcc + 16, 0, vCs2)
spin(cL1, 8)
st.mark(17)
vVe, vVo, vKa, vV0, vV1 = 3, 4, 5, 6, 9
def kv_units(which):
    u = []
    for t in range(3):
        pre = ([f's_mul_i32 s{t2}, s{sI}, {3*3072}'] if t == 0 else []) + [f's_add_i32 s{t0}, s{sT7}, {t}', f's_max_i32 s{t0}, s{t0}, 0', f's_mul_i32 s{t0}, s{t0}, 84', f's_add_u32 s{t0}, s{t0}, s{sST0}',
               f's_add_u32 m0, s{t2}, {(KB, VB)[which] + t*3072}', f's_add_u32 s{t0}, s{t0}, {28*(which+1)}', f's_lshl_b32 s{t0}, s{t0}, 10']
        for s in range(3):
            v = vL16 if which == 0 else (vVo if s & 1 else vVe)
            u.append((pre if s == 0 else []) + [('vm', 'KV'[which], f'buffer_load_dwordx4 v{v}, {S}, s{t0} offen offset:{1024*s} sc1 lds')])
    return u
def kv_dma(which):
    for u in kv_units(which): T(u)
def qk_issue():
    keep = list(T.vm)
    a(f's_mul_i32 s{t0}, s{sTQ}, 84'); a(f's_add_u32 s{t0}, s{t0}, s{sST0}'); a(f's_lshl_b32 s{t0}, s{t0}, 10')
    for s in range(3): a(f'buffer_load_dwordx4 {vr(vQ+4*s,4)}, v{vL16}, {S}, s{t0} offen offset:{1024*s} sc1')
    kv_dma(0)
    T.vm = keep
h_tile(1, 0, vAcc, {OPT['smp']: [('vm', 'qf', f'buffer_load_dwordx2 v[28:29], v{vFl}, {S}, 0 offen sc1')]})
arrive(cAD)
spin(cCS1, 8)
st.mark(18)
def early_qk():
    T([('wvm', 'qf')] + flag_store(F1, sFl)); a(f'v_cmp_ne_u64 vcc, s[{sN}:{sN+1}], v[28:29]'); a(f's_mov_b32 s{sKI}, 0'); a('s_cbranch_vccnz L_noearly')
    qk_issue(); a(f's_mov_b32 s{sKI}, 1')
    a.label('L_noearly')
    st.mark(19)
if OPT['mid']:
    T(('wvm', 'cs1'))
    h_epi(vAcc, 1, vCs, mid=[('call', early_qk)])
else:
    early_qk()
    h_epi(vAcc, 1, vCs)
a.label('L_att')
a('s_setprio 2')
a(f's_mov_b32 s{sFl2}, s{sFl}')
st.mark(20)
a(f's_cmp_lg_u32 s{sKI}, 0'); a('s_cbranch_scc1 L_kdone')
poll(vFl, '0', 14, 0, 28)
st.mark(21)
a(f's_cmp_lt_u32 s{sIDX}, 4'); a('s_cbranch_scc1 L_nohf0')
T(flag_store(F2, sFl2))
a.label('L_nohf0')
qk_issue()
a.label('L_kdone')
st.mark(22)
a(f'v_lshrrev_b32 v12, 5, v{vL}'); a('v_lshlrev_b32 v13, 6, v12'); a(f'v_xor_b32 v{vVe}, v13, v{vL16}'); a(f'v_xor_b32 v{vVo}, 128, v{vVe}')
if OPT['ve'] == 1:
    spin(cAD, 8); T.vm = ['K']; kv_dma(1); st.mark(40)
a(f's_mul_i32 s{t0}, s{sI}, 3072'); a(f's_add_u32 s{t1}, s{t0}, {KB}'); a(f'v_add_u32 v{vKa}, s{t1}, v{vL16}')
a(f'v_bfe_u32 v14, v{vL}, 4, 1'); a(f'v_and_b32 v15, 3, v{vL}'); a('v_lshl_add_u32 v14, v14, 2, v15'); a(f'v_add_u32 v14, s{sG0}, v14')
a('v_lshrrev_b32 v15, 2, v14'); a('v_and_b32 v16, 1, v14'); a('v_bfe_u32 v17, v14, 1, 1')
a(f'v_bfe_u32 v19, v{vL}, 2, 2'); a('v_lshl_add_u32 v18, v12, 2, v19')
a('v_and_b32 v19, 1, v15'); a('v_lshl_add_u32 v19, v19, 1, v16'); a('v_lshlrev_b32 v19, 2, v19'); a('v_xor_b32 v18, v18, v19')
a(f'v_lshlrev_b32 v{vV0}, 4, v18'); a(f'v_lshl_add_u32 v{vV0}, v17, 3, v{vV0}'); a(f'v_lshl_add_u32 v{vV0}, v16, 9, v{vV0}')
a(f'v_lshl_add_u32 v{vV0}, v15, 10, v{vV0}'); a(f'v_xor_b32 v{vV1}, 128, v{vV0}')
a(f's_add_u32 s{t0}, s{t0}, {VB}'); a(f'v_add_u32 v{vV0}, s{t0}, v{vV0}'); a(f'v_add_u32 v{vV1}, s{t0}, v{vV1}')
for j in range(16):
    c = 8*(j >> 2) + (j & 3)
    a(f's_mov_b32 s{sM+2*j}, {(0xffffffff << c) & 0xffffffff:#x}'); a(f's_mov_b32 s{sM+2*j+1}, {(0xffffffff << (c+4)) & 0xffffffff:#x}')
def msk(j): return f's[{sM+2*j}:{sM+2*j+1}]'
vOnes = 24; vBm = 28; vMk = 240
vSb = 64; vO = 192; vLs = 208; vP0 = 224; vP8 = 232; vM = 224
a('v_mov_b32 v14, 0xffff'); a('v_mov_b32 v15, 0xffff0000')
for j in range(8):
    a(f'v_cndmask_b32 v{vMk+j}, 0, v14, {msk(2*j)}'); a(f'v_cndmask_b32 v16, 0, v15, {msk(2*j+1)}'); a(f'v_or_b32 v{vMk+j}, v{vMk+j}, v16')
for k in range(4): a(f'v_mov_b32 v{vOnes+k}, 0x3f803f80')
for k in range(1, 4): a(f'v_mov_b32 v{vBm+k}, 0')
a(f'v_subrev_u32 v12, s{sG0}, v12')
if OPT['ve'] != 1: spin(cAD, 8)
T(('wvm', 'K' if OPT['ve'] == 1 else '*')); st.mark(23); arrive(cB)
a(f's_cmp_eq_u32 s{sKI}, 0'); a('s_cbranch_scc1 L_nohf')
keep = list(T.vm); T(flag_store(F2, sFl2)); T.vm = keep
a.label('L_nohf')
if not OPT['ve']: kv_dma(1); st.mark(40)
for s in range(3):
    for ap in range(2):
        a(f'v_add_u32 v13, {4*s+2*ap}, v12'); a('v_cmp_gt_u32 vcc, 7, v13')
        for k in range(2):
            r = vQ + 4*s + 2*ap + k
            a(f'v_cndmask_b32 v{r}, 0, v{r}, vcc')
spin(cB, 4)
st.mark(24)
vKF = (44, 12)
def sreg(r): return vO if r == 0 else vSb + 16 * (r - 1)
m8 = sreg(8)
sorder = [8, 0, 1, 2, 3, 4, 5, 6, 7]
def kreads(i): return [('ds', f'k{i}', f'ds_read_b128 {vr(vKF[i&1]+4*s,4)}, v{vKa} offset:{sorder[i]*3072 + s*1024}') for s in range(3)]
def maxops(b, first=False):
    o = []
    for h in range(2):
        for c in range(4):
            if first and h == 0: o.append(f'v_max_f32 v{vM+c}, v{b+c}, v{b+4+c}')
            else: o.append(f'v_max3_f32 v{vM+c}, v{vM+c}, v{b+8*h+c}, v{b+8*h+4+c}')
    return o
merge = [f'v_cndmask_b32 v{m8+j}, v{vO+j}, v{m8+j}, {msk(j)}' for j in range(16)]
fills = {3: merge[:12], 4: merge[12:] + maxops(m8, True), 5: maxops(sreg(1)) + maxops(sreg(2))[:4], 6: maxops(sreg(2))[4:] + maxops(sreg(3)),
         7: maxops(sreg(4)), 8: maxops(sreg(5))}
vun = kv_units(1) if OPT['ve'] == 2 else []
T(kreads(0))
for i in range(9):
    r = sorder[i]
    T(('wds', f'k{i}'))
    T(weave([[mfma(sreg(r), vKF[i & 1] + 4*s, vQ + 4*s, s == 0)] for s in range(3)], (kreads(i + 1) if i + 1 < 9 else []) + vun[3*i:3*i+3] + fills.get(i, [])))
T(maxops(sreg(6)))
st.mark(41); T(('wvm', 'V')); st.mark(42); arrive(cB)
T(maxops(sreg(7)))
a(f's_cmp_ge_u32 s{sTQ}, 8'); a('s_cbranch_scc1 L_valid')
NEG = f2u(-1e30)
a(f'v_mov_b32 v12, {NEG:#x}')
for j in range(16): a(f'v_cndmask_b32 v{m8+j}, v12, v{m8+j}, {msk(j)}')
for r in range(1, 8):
    a(f's_cmp_ge_u32 s{sTQ}, {8-r}'); a('s_cbranch_scc1 L_remax')
    for j in range(16): a(f'v_mov_b32 v{sreg(r)+j}, v12')
a.label('L_remax')
T(maxops(m8, True))
for r in range(1, 8): T(maxops(sreg(r)))
a.label('L_valid')
a(f'v_max3_f32 v{vM}, v{vM}, v{vM+1}, v{vM+2}'); a(f'v_max_f32 v{vM}, v{vM}, v{vM+3}')
a(f'v_mov_b32 v{vM+1}, v{vM}'); a(f'v_cmp_gt_u32 vcc, 32, v{vL}')
a(f'v_permlane32_swap_b32 v{vM}, v{vM+1}'); a(f'v_max_f32 v{vM}, v{vM}, v{vM+1}')
a(f'v_cvt_pk_bf16_f32 v{vM+1}, 0, v{vM}'); a(f'v_sub_f32 v{vM+1}, v{vM+1}, v{vM}'); a(f'v_cvt_pk_bf16_f32 v{vM+1}, -v{vM}, v{vM+1}')
a(f'v_cndmask_b32 v{vBm}, 0, v{vM+1}, vcc')
st.mark(25)
vVF = (44, 12)
porder = [1, 2, 3, 4, 5, 6, 7, 8, 0]
def vreads(i): return [('ds', f'v{i}', f'ds_read_b64_tr_b16 {vr(vVF[i&1]+4*ks+2*q,2)}, v{(vV0,vV1)[q]} offset:{porder[i]*3072 + ks*256}') for ks in range(2) for q in range(2)]
def sub(i): return mfma(sreg(porder[i]), vOnes, vBm)
def softmax(i):
    r = porder[i]; b = sreg(r); o = []
    for g in range(0, 16, 4):
        o += [f'v_exp_f32 v{b+j}, v{b+j}' for j in range(g, g + 4)]
        if g: o += [f'v_cvt_pk_bf16_f32 v{b+j}, v{b+2*j}, v{b+2*j+1}' for j in range(g//2 - 2, g//2)]
    o += [f'v_cvt_pk_bf16_f32 v{b+j}, v{b+2*j}, v{b+2*j+1}' for j in (6, 7)]
    if r == 8:
        o += [f'v_and_b32 v{vP8+j}, v{vMk+j}, v{b+j}' for j in range(8)]
        o += [f'v_bfi_b32 v{vP0+j}, v{vMk+j}, 0, v{b+j}' for j in range(8)]
    return o
def pv(i):
    r = porder[i]; P = vP0 if r == 0 else (vP8 if r == 8 else sreg(r)); vb = vVF[i & 1]
    g = []
    for ks in range(2):
        g.append([mfma(vO, vb + 4*ks, P + 4*ks, i == 0 and ks == 0)])
        if r: g.append([mfma(vLs, vOnes, sreg(r) + 4*ks, i == 0 and ks == 0)])
    g[0] = [('wds', f'v{i}')] + g[0]
    return g
a(sub(0)); a(sub(1))
spin(cB, 8)
st.mark(26)
T(vreads(0)); T(weave([[sub(2)]], softmax(0)))
for i in range(9):
    fill = (vreads(i + 1) if i + 1 < 9 else []) + (softmax(i + 1) if i + 1 < 8 else [])
    T(weave(pv(i) + ([[sub(i + 3)]] if i + 3 < 8 else []), fill))
st.mark(27)
arrive(cB)
a(f's_lshl4_add_u32 s{t0}, s{sTQ}, s{sHD}'); a(f's_lshl_b32 s{t1}, s{t0}, 11'); a(f's_add_u32 s{t1}, s{t1}, {OF}')
a(f's_lshl_b32 s{t0}, s{t0}, {OSH}'); a(f's_add_u32 s48, s{t0}, {OFL}')
a(f'v_rcp_f32 v12, v{vLs}'); a(f'v_cmp_gt_u32 vcc, 32, v{vL}')
for s in range(2):
    for j in range(8*s, 8*s + 8): a(f'v_mul_f32 v{vO+j}, v12, v{vO+j}')
    for j in range(4*s, 4*s + 4): a(f'v_cvt_pk_bf16_f32 v{vO+j}, v{vO+2*j}, v{vO+2*j+1}')
    if s: a(f'v_cndmask_b32 v{vO+6}, 0, v{vO+6}, vcc'); a(f'v_cndmask_b32 v{vO+7}, 0, v{vO+7}, vcc')
    T(('vm', 'o', f'buffer_store_dwordx4 {vr(vO+4*s,4)}, v{vL16}, {S}, s{t1} offen offset:{1024*s} sc1'))
st.mark(28)
a(f's_cmp_lt_u32 s{sIDX}, 4'); a('s_cbranch_scc0 L_cont')
keep = list(T.vm)
T([('wvm', 'o')] + flag_store(0, 48))
st.flush(SWS, STAMP, sW, vL)
a('s_endpgm')
a.label('L_cont')
T.vm = keep
srd(SA, pWO, 448 * 896)
vWo = 3
full_pat(vWo, 12, 13, 896); a(f's_lshl_b32 s{t0}, s{sCB}, 7'); a(f'v_add_u32 v{vWo}, s{t0}, v{vWo}')
spin(cB, 12)
if OPT['of'] < 0:
    T([('wvm', 'o')] + flag_store(0, 48)); st.mark(29)
a(f's_setprio {OPT["bp2"]}')
a(f's_mul_i32 s{t2}, s{sTT}, {WOB[1]-WOB[0]}'); a(f's_lshl_b32 s{t0}, s{sCT}, 10'); a(f's_add_u32 s{t2}, s{t2}, s{t0}')
a(f's_mul_i32 s{t1}, s{sTT}, {224*896}'); a(f's_mul_i32 s{t0}, s{sCT}, {8*896}'); a(f's_add_u32 s{t1}, s{t1}, s{t0}')
for i in range(15):
    if i == 14:
        a(f's_lshl_b32 s{t0}, s{sCT}, 11'); a(f's_sub_u32 s{t2}, s{t2}, s{t0}'); a(f's_mul_i32 s{t0}, s{sCT}, {16*896}'); a(f's_sub_u32 s{t1}, s{t1}, s{t0}')
    a(f's_add_u32 m0, s{t2}, {WOB[0] + 2048*i}'); a(f's_add_u32 s{t0}, s{t1}, {i*16*896}')
    T(('vm', 'wo', f'buffer_load_dwordx4 v{vWo}, {R4(SA)}, s{t0} offen lds'))
    if i == OPT['of']:
        T([('wvm', 'o')] + flag_store(0, 48)); st.mark(29)
final_setup()
vTa, vTb = 5, 6
tr_base(vTa, 12, False); a(f's_mul_i32 s{t0}, s{sCT}, {WOB[1]-WOB[0]}'); a(f's_add_u32 s{t0}, s{t0}, {WOB[0]}')
a(f'v_add_u32 v{vTa}, s{t0}, v{vTa}'); a(f'v_xor_b32 v{vTb}, 64, v{vTa}')
a(f'v_and_b32 v4, 7, v{vL}'); a(f'v_lshlrev_b32 v4, {OSH}, v4')
a(f's_lshl1_add_u32 s49, s{sTo}, s{sCT}'); a(f's_lshl_b32 s50, s49, {OSH+3}'); a(f's_add_u32 s50, s50, {OFL}')
st.mark(30)
T(('wvm', 'wo')); arrive(cB)
if OPT['n1'] < 0: T(('vm', 'of', f'buffer_load_dwordx2 v[12:13], v4, {S}, s50 offen sc1'))
spin(cB, 16)
st.mark(31)
if OPT['n1'] >= 0 and OPT['so']:
    spin(cCS0, 4, sleep=2); st.mark(38)
    T(('vm', 'of', f'buffer_load_dwordx2 v[12:13], v4, {S}, s50 offen sc1'))
vWA = 128; vOf = 64; vSa = 16
for n in range(16):
    for ct in range(2):
        for q in range(2):
            T(('ds', f'a{n}', f'ds_read_b64_tr_b16 {vr(vWA+8*n+4*ct+2*q,2)}, v{(vTa,vTb)[ct]} offset:{(28*(n>>1) + 16*(n&1) + 8*q)*128}'))
T(('wds', '*')); arrive(cB)
xaddr(48); a(f'v_bfe_u32 v10, v{vL}, 3, 2'); a('v_lshl_add_u32 v48, v10, 11, v48')
a(f's_lshl_b32 s{t0}, s{sCT}, 14'); a(f's_lshl_b32 s{t1}, s{sTT}, 13'); a(f's_add_u32 s{t0}, s{t0}, s{t1}'); a(f's_add_u32 s{t0}, s{t0}, {SBUF}'); a(f'v_add_u32 v48, s{t0}, v48')
for q in range(1, 4): a(f'v_xor_b32 v{48+q}, {32*q}, v48')
spin(cB, 20)
if OPT['n1'] >= 0 and not OPT['so']:
    spin(cCS0, 4, sleep=2); st.mark(38)
    T(('vm', 'of', f'buffer_load_dwordx2 v[12:13], v4, {S}, s50 offen sc1'))
T(('wvm', 'of')); a(f'v_cmp_ne_u64 vcc, s[{sN}:{sN+1}], v[12:13]'); a('s_cbranch_vccz L_ook')
poll(4, 's50', 8, 0, 12)
a.label('L_ook')
a('s_setprio 2')
st.mark(32)
a(f's_lshl_b32 s{t0}, s49, 14'); a(f's_add_u32 s{t0}, s{t0}, {OF}')
def oload(n):
    return [('vm', f'o{n}', f'buffer_load_dwordx4 {vr(vOf+4*n,4)}, v{vL16}, {S}, s{t0} offen offset:{(n&3)*1024} sc1')] + ([f's_add_u32 s{t0}, s{t0}, 4096'] if n & 3 == 3 else [])
OD = OPT.get('od', 10)
for n in range(OD): T(oload(n))
st.mark(33)
for n in range(16):
    T(('wvm', f'o{n}'))
    for ct in range(2):
        a(mfma(vSa + 16*ct, vWA + 8*n + 4*ct, vOf + 4*n, n == 0))
        if ct == 0 and n + OD < 16: T(oload(n + OD))
st.mark(34)
for ct in range(2):
    for q in range(4): T(('ds', 'sx', f'ds_write_b128 v{48+q}, {vr(vSa+16*ct+4*q,4)} offset:{ct*128}'))
final_stage()
a.label('L_end'); a('s_endpgm')

a.pad_hazards_fast()
for e in a.check_waits(): print('WAITERR', e)
hdr = ['; generated by gen19.py (hand-written generator): single persistent kernel',
       f'; @launch grid=(256,1,1) block=(512,1,1) lds={LDS_TOTAL}', '.amdgcn_target "amdgcn-amd-amdhsa--gfx950"', '.text']
tail = ['.section .rodata,"a"', '.p2align 6', f'.amdhsa_kernel {K}', '  .amdhsa_next_free_vgpr 256', '  .amdhsa_next_free_sgpr 102',
        '  .amdhsa_accum_offset 256', '  .amdhsa_group_segment_fixed_size 0', '  .amdhsa_kernarg_size 72',
        '  .amdhsa_user_sgpr_count 2', '  .amdhsa_user_sgpr_kernarg_segment_ptr 1', '  .amdhsa_system_sgpr_workgroup_id_x 1', '.end_amdhsa_kernel']
open(sys.argv[1], 'w').write('\n'.join(hdr) + '\n' + a.text() + '\n'.join(tail) + '\n')
```

```python
import sys, struct
from asmlib import *

NAME = 'recurrent_scan__sliding_block__dense_activation_silu__prompt'
OPT = dict(stamp=0, spin=200000, hp=1, rotf=1, rot=1, w1e=1, aq=14, tw=0, hd=20, hm=1, hw=0, hh=0, hs=0, early=5, ap=3, ew=2, smp=27, nres=8, bp2=2, ap2=1, of=5, hwo=1, n1=12, sp=2, f0=27, cfs=24, pl=2, be=0, bw=12, sc=0, w2w=0, ve=1, mid=1, so=1, osc=1, vs=0, stg=0, ds=0, sa=8, lc=1, bp1=2, xe=1, ro=1, rc=0, rt=3, ta=-1, tb=-1, tc=-1, qa=8, hsl=100, rh=8)
for x in sys.argv[2:]:
    k, v = x.split('='); OPT[k] = int(v)
def f2u(x): return struct.unpack('<I', struct.pack('<f', x))[0]

QKVF = 0; HF = 0x600000; OF = 0xE00000; FLAGS = 0x1200000; STAMP = 0x1100000; WS_USED = 0x1400000
FSH = 7; F1 = 0x40000; F2 = 2 * F1
OSH = OPT.get('osh', 7)
OFL = 0x1000000
CSG = 0x1080000
sN = 80
XBYTES = 2048 * 448 * 2
LOG2E = 1.4426950408889634
pX, pWQ, pWO, pW1, pW2, pOUT, pDBG = 4, 6, 8, 12, 14, 16, 18
SWS, SA, SB, SC = 20, 24, 28, 32
sI, sRB, sJ, sROT, sHD, sRBA, sTB, sCB = 36, 37, 38, 39, 40, 41, 42, 43
sW = 10; sIDX = 11
t0, t1, t2, t3, t4 = 3, 44, 45, 46, 47
sM = 48
def R4(b): return f's[{b}:{b+3}]'
S = R4(SWS)
def SL(p): return (p % 3) * 32768
W1B = (98304, 32768)
def W1P(L, q): return W1B[L] + 8192 * q
KB = 98304; VB = 49152; WOB = (49152, 98304); SXB = (78848, 128000)
RA2 = 90112
def slot_addr(slot): return slot*8192 if slot < 6 else (RA2 if slot == 6 else 137216 + (slot - 7)*8192)
CS = 161792
STX = 155648
SYNC = CS + 1920
cCS0, cL1, cCS1, cAD, cB = 0, 4, 8, 12, 16
LDS_TOTAL = 163840

a = Asm(); T = Tr(a)
st = Stamps2(a, OPT['stamp'], T)
uid = [0]
def lab(p):
    uid[0] += 1; return f'L_{p}_{uid[0]}'
def srd(d, ptr, size):
    a(f's_mov_b32 s{d}, s{ptr}'); a(f's_and_b32 s{d+1}, s{ptr+1}, 0xffff'); a(f's_mov_b32 s{d+2}, {size}'); a(f's_mov_b32 s{d+3}, 0x20000')

def poll(vaddr, soff, nl, imm, vtmp, sleep=1):
    L = lab('poll'); E = lab('polle')
    a(f's_mov_b64 exec, {(1 << nl) - 1}'); a(f's_mov_b32 s{t4}, 0')
    a.label(L)
    a(f'buffer_load_dwordx2 {vr(vtmp,2)}, v{vaddr}, {S}, {soff} offen offset:{imm} sc1')
    a(f's_add_u32 s{t4}, s{t4}, 1')
    a('s_waitcnt vmcnt(0)')
    a(f'v_cmp_ne_u64 vcc, s[{sN}:{sN+1}], {vr(vtmp,2)}')
    a(f's_cbranch_vccz {E}')
    if sleep: a(f's_sleep {sleep}')
    a(f's_cmp_lt_u32 s{t4}, {OPT["spin"]}'); a(f's_cbranch_scc1 {L}')
    a.label(E)
    a('s_mov_b64 exec, -1')
    T.vm = []
vN = 62
def nonce_take(sampled):
    L = lab('nz'); E = lab('nze')
    a(f's_mov_b32 s{t4}, 0')
    if sampled: T(('wvm', 'go')); a(f's_branch {L}c')
    a.label(L)
    a(f'buffer_load_dwordx2 {vr(vN,2)}, v{vZ}, s[60:63], 0 offen sc1'); a('s_waitcnt vmcnt(0)')
    a.label(L + 'c')
    a(f'v_readfirstlane_b32 s{sN+1}, v{vN+1}'); a(f'v_readfirstlane_b32 s{sN}, v{vN}'); a(f's_add_u32 s{t4}, s{t4}, 1')
    a(f's_cmp_lg_u32 s{sN+1}, 0'); a(f's_cbranch_scc1 {E}')
    a('s_sleep 2'); a(f's_cmp_lt_u32 s{t4}, {OPT["spin"]}'); a(f's_cbranch_scc1 {L}')
    a.label(E)

vL, vL16, vSy, vZ, vTt = 1, 2, 7, 8, 11
def spin(off, val, sleep=0):
    L = lab('sp'); E = lab('spe')
    a(f's_mov_b32 s{t4}, 0')
    a.label(L)
    a(f'ds_read_b32 v{vTt}, v{vSy} offset:{off}'); a(f's_add_u32 s{t4}, s{t4}, 1'); a('s_waitcnt lgkmcnt(0)')
    a(f'v_cmp_gt_u32 vcc, {val}, v{vTt}')
    a(f's_cbranch_vccz {E}')
    sleep = max(sleep, OPT.get('ss', 0))
    if sleep: a(f's_sleep {sleep}')
    a(f's_cmp_lt_u32 s{t4}, {OPT["spin"]*8}'); a(f's_cbranch_scc1 {L}')
    a.label(E)
    T.ds = []
def arrive(off):
    a('s_mov_b64 exec, 1'); a(f'v_mov_b32 v{vTt}, 1'); T(('ds', 'arr', f'ds_add_u32 v{vSy}, v{vTt} offset:{off}')); a('s_mov_b64 exec, -1')

def flag_store(imm, soff):
    o = [f'v_lshlrev_b32 v{vTt}, 3, v{vL}']
    if imm >= 4096:
        o.append(f'v_add_u32 v{vTt}, {imm}, v{vTt}'); imm = 0
    return o + [f's_mov_b64 exec, {0xffff if OPT.get("ff", 1) else 1}', ('vm', 'flag', f'buffer_store_dwordx2 {vr(vN,2)}, v{vTt}, {S}, s{soff} offen offset:{imm} sc1'), 's_mov_b64 exec, -1']

def tr_base(vd, vt, natural):
    a(f'v_lshrrev_b32 v{vd}, 5, v{vL}'); a(f'v_bfe_u32 v{vt}, v{vL}, 2, 2'); a(f'v_lshl_add_u32 v{vd}, v{vd}, {3 if natural else 2}, v{vt}')
    a(f'v_lshlrev_b32 v{vd}, 7, v{vd}')
    a(f'v_bfe_u32 v{vt}, v{vL}, 3, 1'); a(f'v_lshl_add_u32 v{vd}, v{vt}, 6, v{vd}')
    a(f'v_bfe_u32 v{vt}, v{vL}, 4, 1'); a(f'v_lshl_add_u32 v{vd}, v{vt}, 5, v{vd}')
    a(f'v_and_b32 v{vt}, 3, v{vL}'); a(f'v_lshl_add_u32 v{vd}, v{vt}, 3, v{vd}')

def full_pat(vd, vt, vt2, stride):
    a(f'v_lshrrev_b32 v{vt}, 3, v{vL}'); a(f'v_mul_u32_u24 v{vd}, {stride}, v{vt}')
    a(f'v_bfe_u32 v{vt}, v{vL}, 4, 1'); a(f'v_lshlrev_b32 v{vt}, 2, v{vt}'); a(f'v_and_b32 v{vt2}, 7, v{vL}'); a(f'v_xor_b32 v{vt}, v{vt}, v{vt2}')
    a(f'v_lshl_add_u32 v{vd}, v{vt}, 4, v{vd}')

def mfma(d, A, B, first=False): return f'v_mfma_f32_32x32x16_bf16 {vr(d,16)}, {vr(A,4)}, {vr(B,4)}, ' + ('0' if first else vr(d, 16))
def mfma16(d, A, B, first=False): return f'v_mfma_f32_16x16x32_bf16 {vr(d,4)}, {vr(A,4)}, {vr(B,4)}, ' + ('0' if first else vr(d, 4))

def silu_ops(b, tmp, n, sNeg):
    o = []
    for g in range(0, n, 4):
        ks = range(g, g + 4)
        o += [f'v_mul_f32 v{tmp+k}, s{sNeg}, v{b+k}' for k in ks]
        o += [f'v_exp_f32 v{tmp+k}, v{tmp+k}' for k in ks]
        o += [f'v_add_f32 v{tmp+k}, 1.0, v{tmp+k}' for k in ks]
        o += [f'v_rcp_f32 v{tmp+k}, v{tmp+k}' for k in ks]
        o += [f'v_mul_f32 v{b+k}, v{tmp+k}, v{b+k}' for k in ks]
    return o

K = NAME + '_kernel'
a.raw(f'.globl {K}'); a.raw('.p2align 8'); a.raw(f'.type {K},@function'); a.label(K)
a('s_cmp_ge_u32 s2, 256'); a('s_cbranch_scc1 L_end')
a('s_load_dwordx16 s[4:19], s[0:1], 0'); a('s_load_dwordx2 s[20:21], s[0:1], 64')
st.start()
a(f'v_readfirstlane_b32 s{t1}, v0'); a(f'v_and_b32 v{vL}, 63, v0'); a(f'v_lshlrev_b32 v{vL16}, 4, v{vL}')
a(f's_and_b32 s{t0}, s2, 7'); a(f's_lshr_b32 s{t2}, s2, 3')
a(f's_lshr_b32 s{t1}, s{t1}, 6'); a(f's_and_b32 s{sI}, s{t1}, 3')
a(f's_and_b32 s{sHD}, s{t2}, 1'); a(f's_lshl1_add_u32 s{sHD}, s{t0}, s{sHD}'); a(f's_lshr_b32 s{sRBA}, s{t2}, 1')
a(f's_sub_u32 s{t3}, s{t2}, 4'); a(f's_lshr_b32 s{sCB}, s{t3}, 2'); a(f's_and_b32 s{t3}, s{t3}, 3')
a(f's_lshl2_add_u32 s{sTB}, s{t0}, s{t3}')
a(f's_lshr_b32 s{sRB}, s{t0}, 1'); a(f's_lshl2_add_u32 s{sRB}, s{sRB}, s{t3}')
a(f's_and_b32 s{sJ}, s{t0}, 1'); a(f's_mul_i32 s{sJ}, s{sJ}, 7'); a(f's_add_u32 s{sJ}, s{sJ}, s{sCB}')
if OPT['rot']:
    a(f's_lshl1_add_u32 s{sROT}, s{t3}, s{sCB}'); a(f's_sub_u32 s{t3}, s{sROT}, 7'); a(f's_min_u32 s{sROT}, s{sROT}, s{t3}')
else: a(f's_mov_b32 s{sROT}, 0')
vXd, vQd, vWd = 240, 244, 30
a(f's_lshl_b32 s{t0}, s{sRB}, 7'); a(f's_lshl_b32 s{t3}, s{sI}, 5'); a(f's_add_u32 s{t0}, s{t0}, s{t3}')
a(f'v_lshrrev_b32 v9, 3, v{vL}'); a(f'v_add_u32 v10, s{t0}, v9'); a(f'v_mul_u32_u24 v{vXd}, 896, v10')
a(f'v_lshrrev_b32 v10, 4, v{vL}'); a(f'v_and_b32 v11, 7, v{vL}'); a('v_xor_b32 v12, v10, v11'); a(f'v_lshl_add_u32 v{vXd}, v12, 4, v{vXd}')
a(f'v_xor_b32 v{vXd+1}, 64, v{vXd}'); a(f'v_add_u32 v{vXd+2}, {2*6144}, v{vXd}'); a(f'v_add_u32 v{vXd+3}, {3*6144}, v{vXd+1}'); a(f'v_add_u32 v{vXd+1}, 6144, v{vXd+1}')
a('v_and_b32 v10, 1, v10'); a('v_lshlrev_b32 v10, 2, v10'); a('v_xor_b32 v10, v10, v11'); a('v_lshlrev_b32 v10, 4, v10')
a(f's_lshl_b32 s{t3}, s{sI}, 4'); a(f'v_add_u32 v9, s{t3}, v9')
a(f's_mul_i32 s{t0}, s{sJ}, 192'); a(f's_and_b32 s{t0}, s{t0}, 0xffffff80'); a(f's_add_u32 s{t0}, s{t0}, 1024'); a(f'v_mul_u32_u24 v{vQd}, 2688, v9'); a(f'v_add3_u32 v{vQd}, v{vQd}, v10, s{t0}')
a(f'v_add_u32 v{vQd+1}, {128-1024}, v{vQd}'); a(f'v_add_u32 v{vQd+2}, {8*2688-2048}, v{vQd}'); a(f'v_add_u32 v{vQd+3}, {8*2688+128-3072}, v{vQd}')
a(f's_lshl_b32 s{t0}, s{sJ}, 8'); a(f'v_mul_u32_u24 v{vWd}, 3584, v9'); a(f'v_add3_u32 v{vWd}, v{vWd}, v10, s{t0}'); a(f'v_add_u32 v{vWd+1}, {8*3584-1024}, v{vWd}')
sMx, sMw = 48, 49
a(f's_lshl_b32 s{sMx}, s{sI}, 12'); a(f's_lshl_b32 s{sMw}, s{sI}, 11')
for p in range(2):
    a(f's_add_u32 s{50+p}, s{sROT}, {p}'); a(f's_sub_u32 s{t3}, s{50+p}, 7'); a(f's_min_u32 s{50+p}, s{50+p}, s{t3}')
a('s_waitcnt lgkmcnt(0)')
a(f's_mov_b32 s{sW}, s{t1}'); a(f's_mov_b32 s{sIDX}, s{t2}')
a(f's_and_b32 s{SWS+1}, s{SWS+1}, 0xffff'); a(f's_mov_b32 s{SWS+2}, {WS_USED}'); a(f's_mov_b32 s{SWS+3}, 0x20000')
a(f's_cmp_lt_u32 s{sIDX}, 4'); a('s_cbranch_scc1 L_helper')
srd(SA, pX, XBYTES)
a(f's_sub_u32 s{SB}, s{pWQ}, 1024'); a(f's_subb_u32 s{SB+1}, s{pWQ+1}, 0'); a(f's_and_b32 s{SB+1}, s{SB+1}, 0xffff'); a(f's_mov_b32 s{SB+2}, {448*2688 + 1024}'); a(f's_mov_b32 s{SB+3}, 0x20000')
def x_dma(p):
    return [([f's_add_u32 m0, s{sMx}, {SL(p)}', f's_lshl_b32 s{t0}, s{50+p}, 7'] if i == 0 else []) +
            [('vm', f'p{p}', f'buffer_load_dwordx4 v{vXd+i}, {R4(SA)}, s{t0} offen offset:{i*1024} lds')] for i in range(4)]
def wq_dma(p):
    return [([f's_add_u32 m0, s{sMx}, {SL(p) + 16384}', f's_mul_i32 s{t0}, s{50+p}, {64*2688}'] if i == 0 else []) +
            [('vm', f'p{p}', f'buffer_load_dwordx4 v{vQd+i}, {R4(SB)}, s{t0} offen offset:{i*1024} lds')] for i in range(4)]
def w1_dma(L, q):
    return [[f's_add_u32 m0, s{sMw}, {W1P(L, q)}', f's_mul_i32 s{t0}, s{50+q}, {64*3584}'] + ([f's_add_u32 s{t0}, s{t0}, 128'] if L else []) +
            [('vm', f'l{L}', f'buffer_load_dwordx4 v{vWd}, {R4(SC)}, s{t0} offen lds')],
            [('vm', f'l{L}', f'buffer_load_dwordx4 v{vWd+1}, {R4(SC)}, s{t0} offen offset:1024 lds')]]
st.init(60); st.mark(47)
a(f's_cmp_ge_u32 s{sW}, 4'); a('s_cbranch_scc1 L_B')
for u in x_dma(0) + wq_dma(0): T(u)
st.mark(48)
a('s_branch L_A')
HELPER_AT = len(a.items)

vXa = 12
vT = 16
vNm, vR = 18, 20
vK1, vIr = 22, 23
vCa = 9
vWF = 32
vSel = 56
vAcc = 64
vCs = 96; vTm = 112; vCs2 = 240; vCs3 = 32
vX = 128
sQo, sHo, sFl = 57, 58, 59

def common_setup(role):
    for p in range(2, 7):
        a(f's_add_u32 s{50+p}, s{sROT}, {p}'); a(f's_sub_u32 s{t3}, s{50+p}, 7'); a(f's_min_u32 s{50+p}, s{50+p}, s{t3}')
    srd(SC, pW1, 448 * 3584)
    a(f'v_mov_b32 v{vZ}, 0'); a(f'v_mov_b32 v{vSy}, {SYNC}')
    a(f'v_and_b32 v10, 31, v{vL}'); a(f'v_lshlrev_b32 v{vXa}, 7, v10'); a(f'v_bfe_u32 v10, v{vL}, 1, 3'); a(f'v_lshrrev_b32 v11, 5, v{vL}')
    a('v_xor_b32 v10, v10, v11'); a(f'v_lshl_add_u32 v{vXa}, v10, 4, v{vXa}'); a(f'v_add_u32 v{vXa}, s{sMx}, v{vXa}')
    for s in range(1, 4): a(f'v_xor_b32 v{vXa+s}, {32*s}, v{vXa}')
    a(f'v_lshlrev_b32 v{vCa}, 4, v11'); a(f'v_add_u32 v{vCa}, {CS}, v{vCa}')
    tr_base(24, 10, True)
    a(f'v_lshl_add_u32 v27, v11, 10, v24')
    a(f's_and_b32 s{t0}, s{sJ}, 1')
    for k in range(2):
        if role == 'A': a(f's_add_u32 s{t1}, s{t0}, {k}')
        elif k == 0: a(f's_add_u32 s{t1}, s{t0}, 2')
        else: a(f's_min_u32 s{t1}, s{sI}, 2'); a(f's_add_u32 s{t1}, s{t1}, s{t0}')
        a(f's_and_b32 s{t2}, s{t1}, 1'); a(f's_lshl_b32 s{t2}, s{t2}, 6'); a(f's_lshr_b32 s{t1}, s{t1}, 1'); a(f's_lshl_b32 s{t1}, s{t1}, 10'); a(f's_add_u32 s{t1}, s{t1}, 16384')
        a(f'v_xor_b32 v{vT+k}, s{t2}, v27'); a(f'v_add_u32 v{vT+k}, s{t1}, v{vT+k}')
    a(f'v_and_b32 v10, 15, v{vL}'); a(f'v_bfe_u32 v11, v{vL}, 4, 1'); a('v_cmp_eq_u32 vcc, v10, v11'); a('v_mov_b32 v10, 0x3f803f80')
    for k in range(4 if role == 'B' else 0): a(f'v_cndmask_b32 v{vSel+k}, 0, v10, vcc')
    r = 0 if role == 'A' else 1
    a(f's_lshl2_add_u32 s{t0}, s{sRB}, s{sI}')
    a(f's_mul_i32 s{sQo}, s{t0}, 84'); a(f's_mul_i32 s{t1}, s{sJ}, 6'); a(f's_add_u32 s{sQo}, s{sQo}, s{t1}'); a(f's_add_u32 s{sQo}, s{sQo}, {4*r}'); a(f's_lshl_b32 s{sQo}, s{sQo}, 10')
    a(f's_mul_i32 s{sHo}, s{t0}, 112'); a(f's_lshl3_add_u32 s{sHo}, s{sJ}, s{sHo}'); a(f's_lshl_b32 s{sHo}, s{sHo}, 10'); a(f's_add_u32 s{sHo}, s{sHo}, {HF + 2048*(1-r)}')
    a(f's_mul_i32 s{sFl}, s{t0}, 14'); a(f's_add_u32 s{sFl}, s{sFl}, s{sJ}'); a(f's_lshl_b32 s{sFl}, s{sFl}, {FSH+1}'); a(f's_add_u32 s{sFl}, s{sFl}, {FLAGS + (r << FSH)}')

sOK = 19
def cs_load(role):
    hf = 1 if role == 'A' else 0
    a(f's_lshl_b32 s{t0}, s{sJ}, 10'); a(f's_add_u32 s{t0}, s{t0}, {CSG + hf*128}'); a(f's_mov_b32 m0, {CS + 384 + hf*256}')
    a(f'v_lshrrev_b32 v10, 5, v{vL}'); a('v_lshlrev_b32 v10, 7, v10'); a(f'v_and_b32 v11, 31, v{vL}'); a('v_add_lshl_u32 v10, v10, v11, 2')
    a(f'buffer_load_dword v10, {S}, s{t0} offen sc1 lds')
def cs_try(role):
    E = lab('cst')
    T(('wvm', 'cf')); a(f'v_cmp_ne_u64 vcc, s[{sN}:{sN+1}], v[28:29]'); a(f's_mov_b32 s{sOK}, vcc_lo'); a(f's_cbranch_vccnz {E}')
    cs_load(role)
    a.label(E)
def cs_late(role):
    E = lab('csl')
    a(f's_cmp_eq_u32 s{sOK}, 0'); a(f's_cbranch_scc1 {E}')
    a(f's_lshl_b32 s{t1}, s{sJ}, 10'); a(f's_add_u32 s{t1}, s{t1}, {CSG}')
    keep = list(T.vm)
    poll(25, f's{t1}', 2, 256, 28)
    cs_load(role); a('s_waitcnt vmcnt(0)')
    T.vm = keep
    a.label(E)
    hf = 1 if role == 'A' else 0
    for L in range(2):
        for g in range(4): T(('ds', f'hc{L}', f'ds_read_b128 {vr((vCs2, vCs)[L]+4*g,4)}, v{vCa} offset:{384 + hf*256 + L*128 + g*32}'))
    T(('wds', 'hc0'))
def touch(k):
    n = 28 if k < 2 else 14
    a(f's_sub_u32 s{t1}, s{sIDX}, 4'); a(f's_lshl3_add_u32 s{t1}, s{t1}, s{sW}'); a(f's_mul_i32 s{t1}, s{t1}, {56 if k < 2 else 14}')
    if k == 1: a(f's_add_u32 s{t1}, s{t1}, 28')
    a(f'v_min_u32 v61, {n-1}, v{vL}'); a(f'v_add_lshl_u32 v61, v61, s{t1}, 7')
    p = pW2 if k < 2 else pWO
    T(('vm', 'pf', f'global_load_dword v{252+k}, v61, s[{p}:{p+1}]'))
def p1a(role):
    A_ = role == 'A'
    vS = vTm
    def xreads(p): return [('ds', f'x{p}', f'ds_read_b128 {vr(vX+16*p+4*s,4)}, v{vXa+s} offset:{SL(p) & 0xffff}') for s in range(4)]
    def wreads(n):
        p = n >> 2; s = n & 3; b = n % 3
        return [('ds', f'w{n}', f'ds_read_b64_tr_b16 {vr(vWF+8*b+4*t+2*q,2)}, v{vT+t} offset:{(SL(p) & 0xffff) + s*4096 + q*512}') for t in range(2) for q in range(2)]
    def hop(p):
        d = (SL(p) & ~0xffff) - (SL(p - 1) & ~0xffff)
        if d == 0: return []
        op = 'v_add_u32' if d > 0 else 'v_subrev_u32'
        return [f'{op} v{v}, {abs(d)}, v{v}' for v in (vXa, vXa+1, vXa+2, vXa+3, vT, vT+1)]
    VS = OPT['vs']
    if VS or not A_:
        for r in range(4): a(f'v_mov_b32 v{vS+r}, 0')
        a(f'v_mov_b32 v{vS+4}, 0x3f803f80')
    def stats(p):
        ds = range(0, OPT['sa']) if A_ else range(OPT['sa'], 16)
        o = []
        for i, d in enumerate(ds):
            r = vX + 16*p + d; t = vS + 6 + 2*(i & 3)
            o.append([f'v_lshlrev_b32 v{t}, 16, v{r}', f'v_and_b32 v{t+1}, 0xffff0000, v{r}', f'v_add_f32 v{vS}, v{vS}, v{t}', f'v_add_f32 v{vS+1}, v{vS+1}, v{t+1}',
                      f'v_fmac_f32 v{vS+2}, v{t}, v{t}', f'v_fmac_f32 v{vS+3}, v{t+1}, v{t+1}'])
        res = []
        for i in range(0, len(o), 2):
            g = o[i:i+2]
            res += [x[0] for x in g] + [x[1] for x in g]
            for x in g: res += [x[2], x[4], x[3], x[5]]
        return res
    plan = {}
    for p in range(5): plan[p] = x_dma(p + 2) if A_ else wq_dma(p + 2)
    plan[5] = []; plan[6] = []
    PL = {0: ([(1,0,0),(2,0,2),(3,0,4),(4,0,6),(5,1,0),(5,1,2),(6,1,4),(6,1,6)], [(2,0,1),(3,0,3),(4,0,5),(5,1,1),(5,1,3),(6,1,5)]),
          1: ([(2,0,0),(3,0,1),(4,0,2),(5,0,3),(5,0,5),(5,1,0),(6,1,2),(6,1,4),(6,1,6)], [(5,0,4),(5,0,6),(6,1,1),(6,1,3),(6,1,5)]),
          2: ([(1,0,0),(2,0,1),(3,0,2),(4,0,3),(5,0,4),(5,0,6),(5,1,0),(6,1,2),(6,1,4),(6,1,5),(6,1,6)], [(5,0,5),(5,1,1),(6,1,3)]),
          3: ([(4,0,0),(5,0,1),(5,0,3),(5,0,5),(6,1,0),(6,1,2),(6,1,4),(6,1,6)], [(5,0,2),(5,0,4),(5,0,6),(6,1,1),(6,1,3),(6,1,5)])}[OPT['pl']]
    for p, L, q in PL[0 if A_ else 1]: plan[p] += w1_dma(L, q)
    st.mark(2); T(('w', 'p0', '*')); st.mark(3); a('s_barrier'); st.mark(4)
    xr = xreads(0)
    T(xr[:1] + wreads(0) + xr[1:2] + wreads(1) + xr[2:])
    for n in range(28):
        p = n >> 2; s = n & 3; b = n % 3
        ms = [[mfma(vAcc, vWF+8*b, vX+4*n, n == 0)], [mfma(vAcc+16, vWF+8*b+4, vX+4*n, n == 0) if A_ else mfma16(vAcc+16, vWF+8*b+4, vSel, n == 0)]]
        fill = []
        if s == 2 and p < 6:
            T(('w', f'p{p+1}', '*'))
            if p in (1, 4): st.mark(5 + p)
            a('s_barrier')
            if p in (1, 4): st.mark(6 + p)
            T(hop(p + 1))
            fill = xreads(p + 1)[:2] + wreads(n + 2)
        else:
            T(('wds', f'w{n}'))
            if s == 3 and p < 6: fill = xreads(p + 1)[2:]
            if n + 2 < 28: fill = fill + wreads(n + 2)
        ip, slot = (p + 1, s - 2) if s >= 2 else (p, s + 2)
        if ip <= 6:
            u = plan[ip]; k = len(u)
            if ip == 0: lo, hi = (slot - 2) * k // 2, (slot - 1) * k // 2
            else: lo, hi = (slot * k + 3) // 4, ((slot + 1) * k + 3) // 4
            for x in u[lo:hi]: fill += x
        if VS:
            so = stats(p); L = len(so)
            if p < 6: part = {1: so[:L//3], 2: so[L//3:2*L//3]}.get(s, [])
            else: part = {1: so[:L//2], 2: so[L//2:]}.get(s, [])
            if s == 0 and p > 0: pr = stats(p - 1); part = pr[2*len(pr)//3:]
            fill += part
        T(weave(ms, fill))
        if not VS and not A_ and s == 1:
            if p == 0: T(('wds', 'x0'))
            for d in range(16):
                r = vX + 16*p + d
                a(f'v_dot2c_f32_bf16 v{vS + (d&1)}, v{r}, v{vS+4}'); a(f'v_dot2c_f32_bf16 v{vS + 2 + (d&1)}, v{r}, v{r}')
        for k, key in enumerate(('ta', 'tb', 'tc')):
            if n == OPT[key]: touch(k)
        if n == 26 and A_ and OPT['xe']: final_setup()
        if n == OPT.get('gon', 14): T(('vm', 'go', f'buffer_load_dwordx2 {vr(vN,2)}, v{vZ}, s[60:63], 0 offen sc1'))
        if n == OPT['cfs']:
            a(f's_lshl_b32 s{t1}, s{sJ}, 10'); a(f's_add_u32 s{t1}, s{t1}, {CSG}'); a(f'v_and_b32 v25, 1, v{vL}'); a('v_lshlrev_b32 v25, 9, v25')
            T(('vm', 'cf', f'buffer_load_dwordx2 v[28:29], v25, {S}, s{t1} offen offset:256 sc1'))
        if (VS or not A_) and n == 26:
            a(f'v_add_f32 v{vS}, v{vS}, v{vS+1}'); a(f'v_add_f32 v{vS+2}, v{vS+2}, v{vS+3}')
            a(f'v_mov_b32 v{vS+1}, v{vS}'); a(f'v_mov_b32 v{vS+3}, v{vS+2}')
            a(f'v_and_b32 v21, 31, v{vL}'); a(f's_lshl_b32 s{t1}, s{sI}, 8'); a(f's_add_u32 s{t1}, s{t1}, {STX}'); a(f'v_lshl_add_u32 v21, v21, 3, s{t1}')
            a(f'v_permlane32_swap_b32 v{vS}, v{vS+1}'); a(f'v_permlane32_swap_b32 v{vS+2}, v{vS+3}')
            a(f'v_add_f32 v{vNm}, v{vS}, v{vS+1}'); a(f'v_add_f32 v{vNm+1}, v{vS+2}, v{vS+3}')
            T(('ds', 'st', f'ds_write_b64 v21, {vr(vNm,2)} offset:{0 if A_ else 1024}'))
    if not A_:
        a(f's_min_u32 s{t0}, s{sI}, 2'); a(f's_lshl_b32 s{t0}, s{t0}, 7'); a(f's_add_u32 s{t0}, s{t0}, {CS}')
        a(f'v_and_b32 v10, 1, v{vL}'); a('v_lshlrev_b32 v10, 6, v10'); a(f'v_and_b32 v11, 48, v{vL}'); a(f'v_add3_u32 v10, v10, v11, s{t0}')
        a('s_mov_b32 exec_lo, 0x00030003'); a('s_mov_b32 exec_hi, 0x00030003')
        T(('ds', 'st', f'ds_write_b128 v10, {vr(vAcc+16,4)}'))
        a('s_mov_b64 exec, -1')
    T(('wvm', 'l0'))
    if not OPT['lc']: nonce_take(True); cs_try(role)
    if A_: a(f's_setprio {OPT.get("aq3", 3)}')
    T(('wds', '*')); st.mark(11); a('s_barrier'); st.mark(12)
    if A_ and OPT['ew'] == 0: a_early()
    if not VS and A_:
        a(f'v_and_b32 v21, 31, v{vL}'); a(f's_lshl_b32 s{t1}, s{sI}, 8'); a(f's_add_u32 s{t1}, s{t1}, {STX}'); a(f'v_lshl_add_u32 v21, v21, 3, s{t1}')
    if VS: T(('ds', 'st', f'ds_read_b64 v[22:23], v21 offset:{1024 if A_ else 0}'))
    elif A_: T(('ds', 'st', f'ds_read_b64 {vr(vNm,2)}, v21 offset:1024'))
    tiles = (0, 1) if A_ else (2,)
    for k, t in enumerate(tiles):
        for g in range(4): T(('ds', f'cs{k}', f'ds_read_b128 {vr(vCs+16*k+4*g,4)}, v{vCa} offset:{t*128 + g*32}'))
    E = [('wds', 'st')]
    if VS: E += [f'v_add_f32 v{vNm}, v{vNm}, v22', f'v_add_f32 v{vNm+1}, v{vNm+1}, v23']
    E += [f'v_mul_f32 v{vNm}, {f2u(-1.0/448):#x}, v{vNm}', f'v_mul_f32 v{vNm+1}, {f2u(1.0/448):#x}, v{vNm+1}',
          f'v_fma_f32 v{vNm+1}, -v{vNm}, v{vNm}, v{vNm+1}', f'v_max_f32 v{vNm+1}, 0, v{vNm+1}', f'v_add_f32 v{vNm+1}, {f2u(1e-5):#x}, v{vNm+1}',
          f'v_rsq_f32 v{vR}, v{vNm+1}', f'v_sqrt_f32 v{vIr}, v{vNm+1}', f'v_mov_b32 v{vNm+1}, v{vNm}', f'v_mul_f32 v{vK1}, {f2u(-LOG2E):#x}, v{vR}']
    for k, t in enumerate(tiles):
        E.append([f's_mul_i32 s{t0}, s{sJ}, 3', f's_cmp_lt_u32 s{t0}, {14 - t}', f's_cselect_b32 s{t0}, {f2u(28**-0.5*LOG2E):#x}, 1.0', f'v_mul_f32 v26, s{t0}, v{vR}'])
        b = vAcc + 16*k
        E.append(('wds', f'cs{k}'))
        if OPT['be']:
            for s_ in range(2):
                E += [f'v_fma_f32 v{b+j}, v{vCs+16*k+j}, v{vNm}, v{b+j}' for j in range(8*s_, 8*s_ + 8)]
                E += [f'v_mul_f32 v{b+j}, v26, v{b+j}' for j in range(8*s_, 8*s_ + 8)]
                E += [f'v_cvt_pk_bf16_f32 v{b+4*s_+j}, v{b+8*s_+2*j}, v{b+8*s_+2*j+1}' for j in range(4)]
                E.append(('vm', 'q', f'buffer_store_dwordx4 {vr(b+4*s_,4)}, v{vL16}, {S}, s{sQo} offen offset:{k*2048 + s_*1024} sc1'))
        else:
            E.append('v_mov_b32 v27, v26')
            E += [f'v_pk_fma_f32 {vr(b+j,2)}, {vr(vCs+16*k+j,2)}, {vr(vNm,2)}, {vr(b+j,2)}' for j in range(0, 16, 2)]
            E += [f'v_pk_mul_f32 {vr(b+j,2)}, {vr(b+j,2)}, v[26:27]' for j in range(0, 16, 2)]
            for s_ in range(2):
                E += [f'v_cvt_pk_bf16_f32 v{b+4*s_+j}, v{b+8*s_+2*j}, v{b+8*s_+2*j+1}' for j in range(4)]
                E.append(('vm', 'q', f'buffer_store_dwordx4 {vr(b+4*s_,4)}, v{vL16}, {S}, s{sQo} offen offset:{k*2048 + s_*1024} sc1'))
    def chk():
        if OPT['lc']: nonce_take(True); cs_try(role)
    if OPT['be'] and not A_:
        W = OPT['bw']; ex = {n: E[n*len(E)//W:(n+1)*len(E)//W] for n in range(W)}
        ex[W + 2] = [('call', chk)]
        return ex
    T(E)
    if A_: T(('wvm', 'l1')); arrive(cL1)
    chk()
    st.mark(13)
    return {}

NR = 6; PD = 4
def h_tile(L, hf, acc, ex={}):
    def rd(n): return [('ds', f'u{n}', f'ds_read_b64_tr_b16 {vr(vWF+4*(n%NR)+2*q,2)}, v{vT+L} offset:{W1P(L, n>>2) - W1B[L] + (16*(n&3)+4*q)*128}') for q in range(2)]
    for n in range(PD): T(rd(n))
    for n in range(28):
        if n + PD < 28: T(rd(n + PD))
        if n & 1 == 0: T(('wds', f'u{n+1}'))
        a(mfma(acc, vWF + 4*(n % NR), vX + 4*n, n == 0))
        if n in ex: T(ex[n])
def h_epi(acc, k, vCs, mid=None):
    for g in range(0, 16, 4):
        ks = range(g, g + 4)
        for j in ks: a(f'v_fma_f32 v{acc+j}, v{vCs+j}, v{vNm}, v{acc+j}')
        for j in ks: a(f'v_mul_f32 v{vTm+j}, v{vK1}, v{acc+j}')
        for j in ks: a(f'v_exp_f32 v{vTm+j}, v{vTm+j}')
        for j in ks: a(f'v_fma_f32 v{vTm+j}, v{vTm+j}, v{vIr}, v{vIr}')
        for j in ks: a(f'v_rcp_f32 v{vTm+j}, v{vTm+j}')
        for j in ks: a(f'v_mul_f32 v{acc+j}, v{vTm+j}, v{acc+j}')
        if g == 4 and mid: T(mid)
        if g & 4:
            s = g >> 3
            for j in range(4): a(f'v_cvt_pk_bf16_f32 v{acc+4*s+j}, v{acc+8*s+2*j}, v{acc+8*s+2*j+1}')
            T(('vm', f'h{k}', f'buffer_store_dwordx4 {vr(acc+4*s,4)}, v{vL16}, {S}, s{sHo} offen offset:{s*1024} sc1'))
    if k == 0: a(f's_add_u32 s{sHo}, s{sHo}, 4096')

sST0, sG0, sTQ, sT7, sCT, sTT, sTo, sKI, sFl2 = 82, 83, 84, 85, 86, 87, 88, 89, 90
vFl = 5; vQ = 32
def att_setup():
    a(f's_mul_i32 s{t0}, s{sHD}, 7'); a(f's_lshr_b32 s{sST0}, s{t0}, 2'); a(f's_and_b32 s{sG0}, s{t0}, 3')
    a(f's_lshl2_add_u32 s{sTQ}, s{sRBA}, s{sI}')
    a(f's_mul_i32 s{t0}, s{sI}, 3'); a(f's_lshl2_add_u32 s{t0}, s{sRBA}, s{t0}'); a(f's_sub_u32 s{sT7}, s{t0}, 8')
    a(f's_and_b32 s{sCT}, s{sI}, 1'); a(f's_lshr_b32 s{sTT}, s{sI}, 1'); a(f's_lshl1_add_u32 s{sTo}, s{sTB}, s{sTT}')
    a(f'v_min_u32 v10, 13, v{vL}')
    a(f'v_lshrrev_b32 v26, 2, v10'); a(f'v_add_u32 v26, s{sT7}, v26'); a('v_max_i32 v26, 0, v26')
    a(f'v_bfe_u32 v27, v10, 1, 1'); a('v_mul_u32_u24 v27, 28, v27'); a('v_add_u32 v27, 28, v27')
    a(f'v_cmp_le_u32 vcc, 12, v10'); a(f'v_mov_b32 v28, s{sTQ}')
    a('v_cndmask_b32 v26, v26, v28, vcc'); a(f'v_cndmask_b32 v27, v27, v{vZ}, vcc')
    a(f'v_and_b32 v28, 1, v10'); a('v_lshl_add_u32 v27, v28, 1, v27'); a(f'v_add_u32 v27, s{sST0}, v27')
    a('v_lshrrev_b32 v27, 1, v27'); a('v_min_u32 v27, 41, v27')
    a('v_mul_u32_u24 v28, 43, v27'); a('v_lshrrev_b32 v28, 7, v28')
    a('v_mul_u32_u24 v29, 3, v28'); a('v_sub_u32 v29, v27, v29'); a('v_lshrrev_b32 v29, 1, v29')
    a('v_mul_u32_u24 v26, 14, v26'); a('v_add_lshl_u32 v26, v26, v28, 1'); a(f'v_add_lshl_u32 v{vFl}, v26, v29, {FSH}')
    a(f'v_add_u32 v{vFl}, {FLAGS}, v{vFl}')
    assert all((x * 43) >> 7 == x // 3 for x in range(42))
SBUF = 49152
vXo2 = 61; vXv = 56
def final_setup():
    a(f's_lshl3_add_u32 s{t0}, s{sTB}, s{sW}'); a(f's_lshl_b32 s{t0}, s{t0}, 3'); a(f'v_lshrrev_b32 v10, 3, v{vL}'); a(f'v_add_u32 v10, s{t0}, v10')
    a(f'v_mul_u32_u24 v{vXo2}, 896, v10'); a(f'v_and_b32 v10, 7, v{vL}'); a(f'v_lshl_add_u32 v{vXo2}, v10, 4, v{vXo2}')
    a(f's_lshl_b32 s{t0}, s{sCB}, 7'); a(f'v_add_u32 v{vXo2}, s{t0}, v{vXo2}')
    T(('vm', 'x', f'global_load_dwordx4 {vr(vXv,4)}, v{vXo2}, s[{pX}:{pX+1}]'))
def xaddr(vd):
    a(f'v_lshrrev_b32 v10, 5, v{vL}'); a(f'v_and_b32 v11, 7, v{vL}'); a('v_xor_b32 v10, v10, v11'); a(f'v_lshlrev_b32 v{vd}, 8, v11'); a(f'v_lshl_add_u32 v{vd}, v10, 4, v{vd}')
def final_stage():
    vA0, vA1, vB0, vB1 = 12, 13, 14, 15
    srd(SC, pOUT, XBYTES)
    a(f'v_lshrrev_b32 v10, 3, v{vL}'); a(f'v_and_b32 v11, 7, v{vL}'); a('v_lshlrev_b32 v11, 1, v11'); a('v_xor_b32 v11, v11, v10')
    a('v_lshlrev_b32 v10, 8, v10'); a('v_lshl_add_u32 v10, v11, 4, v10')
    a(f's_lshl_b32 s{t0}, s{sW}, 13'); a(f's_cmp_eq_u32 s{sW}, 6'); a(f's_cselect_b32 s{t0}, {slot_addr(6)}, s{t0}'); a(f's_cmp_eq_u32 s{sW}, 7'); a(f's_cselect_b32 s{t0}, {slot_addr(7)}, s{t0}')
    a(f'v_add_u32 v{vA0}, s{t0}, v10'); a(f'v_xor_b32 v{vA1}, 16, v{vA0}')
    a(f's_lshl_b32 s{t0}, s{sW}, 11'); a(f's_add_u32 s{t0}, s{t0}, {SBUF}'); a(f'v_add_u32 v{vB0}, s{t0}, v10'); a(f'v_xor_b32 v{vB1}, 16, v{vB0}')
    a(f's_mov_b32 s52, {f2u(-LOG2E):#x}')
    T(('wvm', 'x'))
    vXu = 200
    for j in range(4): a(f'v_lshlrev_b32 v{vXu+2*j}, 16, v{vXv+j}'); a(f'v_and_b32 v{vXu+2*j+1}, 0xffff0000, v{vXv+j}')
    T(('wds', '*'))
    st.mark(35)
    a('s_barrier')
    st.mark(36)
    vF = 144; vS_ = 176
    for kq in range(4):
        for e in range(2): T(('ds', f'f{kq}', f'ds_read_b128 {vr(vF+8*kq+4*e,4)}, v{vA0+e} offset:{kq*2048}'))
    for kh in range(2):
        for e in range(2): T(('ds', 's', f'ds_read_b128 {vr(vS_+8*kh+4*e,4)}, v{vB0+e} offset:{kh*16384}'))
    T(('wds', 'f1'))
    for j in range(0, 8, 2): a(f'v_pk_add_f32 {vr(vF+j,2)}, {vr(vF+j,2)}, {vr(vF+8+j,2)}')
    T(('wds', 'f3'))
    for j in range(0, 8, 2): a(f'v_pk_add_f32 {vr(vF+16+j,2)}, {vr(vF+16+j,2)}, {vr(vF+24+j,2)}')
    for j in range(0, 8, 2): a(f'v_pk_add_f32 {vr(vF+j,2)}, {vr(vF+j,2)}, {vr(vF+16+j,2)}')
    T(silu_ops(vF, 192, 8, 52))
    T(('wds', '*'))
    for j in range(0, 8, 2): a(f'v_pk_add_f32 {vr(vS_+j,2)}, {vr(vS_+j,2)}, {vr(vS_+8+j,2)}')
    for j in range(0, 8, 2): a(f'v_pk_fma_f32 {vr(vF+j,2)}, {vr(vS_+j,2)}, {vr(vF+j,2)}, {vr(vXu+j,2)}')
    for j in range(4): a(f'v_cvt_pk_bf16_f32 v{vXv+j}, v{vF+2*j}, v{vF+2*j+1}')
    a(f'buffer_store_dwordx4 {vr(vXv,4)}, v{vXo2}, {R4(SC)}, 0 offen' + (' sc1' if OPT.get('osc') else ''))
    st.mark(37)
    st.flush(SWS, STAMP, sW, vL)
vWo, vT0, vT1, vU0, vU1, vFa, vH0 = 3, 5, 6, 12, 13, 14, 30
sRg, sTab = 49, 66
fAcc = 64; vHr = 128; RH = OPT['rh']; vSB = 32; NS = 10; NRES = OPT['nres']
def wreg(k): return 248 - 8*k
assert vHr + 8*RH <= 256 - 8*NRES
slots = [0, 1, 2, 3, 6, 7, 8, 9, 4, 5]
if OPT['ro']: lorder = list(range(NS, NS + NRES)) + list(range(NS)) + list(range(NS + NRES, 28))
else: lorder = list(range(28))
lidx = {n: i for i, n in enumerate(lorder)}
def wdma(k):
    n = lorder[k]
    return [f's_add_u32 m0, s{sRg}, {slot_addr(slots[k % NS])}', f's_mul_i32 s{t1}, s{sTab + n % 14}, 14'] + ([f's_add_u32 s{t1}, s{t1}, {64*896}'] if n >= 14 else []) + [
            ('vm', f'W{k}', f'buffer_load_dwordx4 v{vWo}, {R4(SA)}, s{t1} offen lds'),
            ('vm', f'W{k}', f'buffer_load_dwordx4 v{vWo+1}, {R4(SA)}, s{t1} offen offset:1024 lds')]
def wread(k, dst):
    slot = slots[k % NS]
    vs, off = ((vT0, vT1), slot*8192) if slot < 6 else ((vU0, vU1), slot_addr(slot) - RA2)
    return [('ds', f'R{k}', f'ds_read_b64_tr_b16 {vr(dst+4*ct+2*q,2)}, v{vs[ct]} offset:{off + q*1024}') for ct in range(2) for q in range(2)]
NE = OPT['early']
def a_early():
    srd(SA, pW2, 1792 * 896)
    for k in range(NE): T(wdma(k))
a.label('L_A')
T.vm = ['p0'] * 8
common_setup('A')
full_pat(vWo, 10, 11, 896); a(f's_lshl_b32 s{t0}, s{sCB}, 7'); a(f'v_add_u32 v{vWo}, s{t0}, v{vWo}'); a(f'v_add_u32 v{vWo+1}, {8*896-1024}, v{vWo}')
a(f's_mul_i32 s{t0}, s{sI}, {14*1024}')
a(f's_mul_i32 s{t3}, s{sCB}, {OPT["rc"]*1024}'); a(f's_and_b32 s{t1}, s{sTB}, 3'); a(f's_mul_i32 s{t1}, s{t1}, {OPT["rt"]*1024}'); a(f's_add_u32 s{t3}, s{t3}, s{t1}')
a(f's_sub_u32 s{t1}, s{t3}, {14*1024}'); a(f's_min_u32 s{t3}, s{t3}, s{t1}')
for n in range(14):
    a(f's_add_u32 s{t1}, s{t0}, s{t3}'); a(f's_and_b32 s{t2}, s{t1}, 0xfffff000'); a(f's_add_u32 s{sTab+n}, s{t1}, s{t2}')
    if n < 13: a(f's_add_u32 s{t3}, s{t3}, 1024'); a(f's_cmp_eq_u32 s{t3}, {14*1024}'); a(f's_cselect_b32 s{t3}, 0, s{t3}')
srd(60, pDBG, 256)
a(f'v_and_b32 v10, 7, v{vL}'); a(f'v_lshl_add_u32 v10, v10, 2, v{vSy}'); a(f'ds_write_b32 v10, v{vZ}')
p1a('A')
a('s_setprio 0')
a(f'v_xor_b32 v24, 64, v24'); a(f'v_add_u32 v{vT}, {W1B[0]}, v24'); a(f'v_add_u32 v{vT+1}, {W1B[1]}, v24')
if OPT['ew'] == 1: a_early()
if OPT['ew'] == 2: srd(SA, pW2, 1792 * 896)
tr_base(10, 11, False); a(f'v_add_u32 v{vT0}, s{sRg}, v10')
a(f'v_xor_b32 v{vT1}, 64, v{vT0}'); a(f'v_add_u32 v{vU0}, {RA2}, v{vT0}'); a(f'v_xor_b32 v{vU1}, 64, v{vU0}')
a(f's_mul_i32 s{t0}, s{sTB}, {224*1024 if not OPT.get("fake") else 0}'); a(f's_add_u32 s{t0}, s{t0}, {HF}'); a(f'v_add_u32 v{vH0}, s{t0}, v{vL16}'); a(f'v_add_u32 v{vH0+1}, {112*1024}, v{vH0}')
a(f's_mul_i32 s{t0}, s{sI}, 7'); a(f's_lshr_b32 s{t0}, s{t0}, 1')
a(f'v_bfe_u32 v10, v{vL}, 1, 2'); a(f'v_add_u32 v10, s{t0}, v10')
a(f'v_bfe_u32 v{vFa}, v{vL}, 3, 1'); a(f's_lshl_b32 s{t0}, s{sTB}, 1'); a(f'v_add_u32 v{vFa}, s{t0}, v{vFa}'); a(f'v_mul_u32_u24 v{vFa}, 14, v{vFa}')
a(f'v_add_lshl_u32 v{vFa}, v{vFa}, v10, 1'); a(f'v_and_b32 v10, 1, v{vL}'); a(f'v_add_lshl_u32 v{vFa}, v{vFa}, v10, {FSH}'); a(f'v_add_u32 v{vFa}, {FLAGS + F1}, v{vFa}')
ex = {}
if OPT['ew'] == 1:
    final_setup()
    st.mark(14)
    T([('wvm', 'q')] + flag_store(0, sFl))
if OPT['ew'] == 2:
    ex[OPT['qa']] = [('wvm', 'q')] + flag_store(0, sFl)
    for k in range(NE):
        w = wdma(k); ex[OPT['qa'] + 2 + 3*k] = w[:-1]; ex[OPT['qa'] + 3 + 3*k] = w[-1:]
st.mark(16)
h_tile(0, 1, vAcc, ex)
st.mark(20)
arrive(cCS1)
if not OPT['ew']: T([('wvm', 'q')] + flag_store(0, sFl))
cs_late('A')
h_epi(vAcc, 0, vCs2)
spin(cL1, 8)
ex = {OPT['f0']: [('wvm', 'h0')] + flag_store(F1, sFl)}
if NE == 5:
    spin(cCS1, 8)
    for k in range(5, 8):
        w = wdma(k)
        if OPT['w2w']: ex[OPT['w2w'] + 3*(k-5)] = w[:-1]; ex[OPT['w2w'] + 1 + 3*(k-5)] = w[-1:]
        else: T(w)
    NE = 8
st.mark(21)
h_tile(1, 1, vAcc + 16, ex)
arrive(cAD)
a(f's_setprio {OPT["ap"]}')
st.mark(22)
h_epi(vAcc + 16, 1, vCs)
a(f's_setprio {OPT["ap2"]}')
st.mark(23)
spin(cAD, 8)
st.mark(40)
for k in range(NE, NS): T(wdma(k))
st.mark(41)
for k in range(NRES):
    T([('wvm', f'W{k}')] + wread(k, wreg(k)))
T(('wds', '*'))
st.mark(42)
def sample(off): return ([f'v_add_u32 v{vFa}, {F1}, v{vFa}'] if off == F2 else []) + [('vm', 'hf', f'buffer_load_dwordx2 v[28:29], v{vFa}, {S}, 0 offen sc1')]
if OPT['ew'] != 1 and not OPT['xe']: final_setup()
for k in range(NRES):
    if k == OPT['sp']:
        st.mark(43); T([('wvm', 'h1')]); st.mark(44); T(flag_store(F2, sFl)); T(sample(F1)); st.mark(45)
    T(wdma(k + NS))
    if k == 4: st.mark(46)
def check(off):
    E = lab('hok')
    T(('wvm', 'hf')); a(f'v_cmp_ne_u64 vcc, s[{sN}:{sN+1}], v[28:29]'); a(f's_cbranch_vccz {E}')
    keep = list(T.vm)
    poll(vFa, '0', 16, 0, 28)
    T.vm = keep
    a.label(E)
if OPT['sp'] >= NRES:
    T(sample(F1)); T([('wvm', 'h1')] + flag_store(F2, sFl))
st.mark(24)
check(F1)
st.mark(26)
def hload(n):
    o = [f'v_add_u32 v{vH0}, 4096, v{vH0}', f'v_add_u32 v{vH0+1}, 4096, v{vH0+1}'] if n == 14 else []
    return o + [('vm', f'H{n}', f'buffer_load_dwordx4 {vr(vHr+8*(n%RH)+4*tt,4)}, v{vH0+tt}, {S}, s{sTab + n % 14} offen' + ('' if OPT.get('nosc') else ' sc1')) for tt in range(2)]
LA = RH - 1
for n in range(LA): T(hload(n))
def wsrc(n): return wreg(lidx[n]) if lidx[n] < NRES else vSB + 8*(n & 1)
if lidx[0] >= NRES: T([('wvm', f'W{lidx[0]}')] + wread(lidx[0], wsrc(0)))
TM = OPT.get('tm', 0)
for n in range(28 - TM):
    nx = n + 1
    if n + LA == 14: check(F2); st.mark(25)
    T(('w', f'H{n}', f'R{lidx[n]}'))
    if n in (0, 7, 14, 21): st.mark(27 + n // 7)
    rd = wread(lidx[nx], wsrc(nx)) if nx < 28 and lidx[nx] >= NRES else []
    if rd: T(('wvm', f'W{lidx[nx]}'))
    vm = []
    if n + LA < 28:
        h = hload(n + LA); vm += [h[:-1], h[-1:]]
    if lidx[n] >= NRES and lidx[n] + NS < 28:
        w = wdma(lidx[n] + NS); vm += [w[:-1], w[-1:]]
    if n + LA == 14 - OPT.get('sd', 3): vm.append([sample(F2)])
    ms = [mfma(fAcc + 16*(ct + 2*tt), wsrc(n) + 4*ct, vHr + 8*(n % RH) + 4*tt, n == 0) for tt in range(2) for ct in range(2)]
    for i in range(4):
        a(ms[i])
        T(rd[2*i:2*i+2])
        lo, hi = (i * len(vm) + 3) // 4, ((i + 1) * len(vm) + 3) // 4
        for u in vm[lo:hi]: T(u)
    if n == OPT['n1']: arrive(cCS0)
    if n == 22:
        xaddr(16); a(f'v_add_u32 v16, s{sRg}, v16'); a(f'v_bfe_u32 v10, v{vL}, 3, 2')
        a(f'v_mov_b32 v11, {slot_addr(7)}'); a(f'v_mov_b32 v20, {slot_addr(6)}'); a('v_cmp_eq_u32 vcc, 2, v10'); a('v_cndmask_b32 v11, v11, v20, vcc')
        a('v_lshlrev_b32 v21, 13, v10'); a('v_add_u32 v20, 32768, v21'); a('v_cmp_gt_u32 vcc, 2, v10'); a('v_cndmask_b32 v11, v11, v20, vcc')
        a('v_add_u32 v20, v11, v16'); a('v_add_u32 v16, v21, v16')
        for q in range(1, 4): a(f'v_xor_b32 v{16+q}, {32*q}, v16'); a(f'v_xor_b32 v{20+q}, {32*q}, v20')
def pw(tt, ct): return [('ds', 'p', f'ds_write_b128 v{16+4*tt+q}, {vr(fAcc+16*(ct+2*tt)+4*q,4)} offset:{ct*128}') for q in range(4)]
if TM:
    last = list(range(28 - TM, 28)); src = {last[0]: wsrc(last[0])}
    for i, n in enumerate(last[1:]):
        src[n] = wreg(i); T([('wvm', f'W{lidx[n]}')] + wread(lidx[n], src[n]))
    tiles = [(tt, ct) for tt in range(2) for ct in range(2)]
    for ti, (tt, ct) in enumerate(tiles):
        g = []
        for n in last:
            pre = [('w', f'H{n}', f'R{lidx[n]}')] if ti == 0 else []
            g.append(pre + [mfma(fAcc + 16*(ct + 2*tt), src[n] + 4*ct, vHr + 8*(n % RH) + 4*tt)])
        T(weave(g, pw(*tiles[ti - 2]) if ti >= 2 else []))
    st.mark(31)
    T(pw(*tiles[2]) + pw(*tiles[3]))
else:
    st.mark(31)
    for tt in range(2):
        for ct in range(2): T(pw(tt, ct))
final_stage()
a('s_endpgm')

T.reset()
H0 = len(a.items)
a.label('L_helper')
srd(60, pDBG, 256); srd(SA, pW1, 448 * 3584)
a(f'v_mov_b32 v{vZ}, 0')
a(f's_or_b32 s{t0}, s2, s{sW}'); a('s_cbranch_scc1 L_nononce')
a(f's_memrealtime s[{sN}:{sN+1}]'); a('s_waitcnt lgkmcnt(0)'); a(f's_or_b32 s{sN+1}, s{sN+1}, 0x80000000')
a(f'v_mov_b32 v{vN}, s{sN}'); a(f'v_mov_b32 v{vN+1}, s{sN+1}')
a('s_mov_b64 exec, 1'); a(f'buffer_store_dwordx2 {vr(vN,2)}, v{vZ}, s[60:63], 0 offen sc1'); a('s_mov_b64 exec, -1')
a.label('L_nononce')
a('s_getpc_b64 s[28:29]'); a.label('L_pc')
a(f's_sub_u32 s28, s28, L_pc-{K}'); a('s_subb_u32 s29, s29, 0')
a(f's_lshl3_add_u32 s{t3}, s{sIDX}, s{sW}')
a(f's_lshl_b32 s{t0}, s{t3}, 11'); a(f'v_and_b32 v4, 15, v{vL}'); a('v_lshlrev_b32 v4, 7, v4'); a(f'v_add_u32 v4, s{t0}, v4')
a(f'v_min_u32 v4, L_end-{K}, v4'); T(('vm', 'pc', 'global_load_dword v3, v4, s[28:29]'))
if OPT['hd']: a(f's_sleep {OPT["hd"]}')
a(f's_min_u32 s{t2}, s2, 27'); a(f's_mul_i32 s{t0}, s{sW}, {56*3584}'); a(f's_lshl_b32 s{t1}, s{t2}, 7'); a(f's_add_u32 s{t0}, s{t0}, s{t1}')
a(f'v_lshrrev_b32 v9, 3, v{vL}'); a('v_mul_u32_u24 v9, 3584, v9'); a(f'v_and_b32 v10, 7, v{vL}'); a('v_lshl_add_u32 v9, v10, 4, v9')
for i in range(7):
    T(('vm', f'c{i}', f'buffer_load_dwordx4 {vr(64+4*i,4)}, v9, {R4(SA)}, s{t0} offen')); a(f's_add_u32 s{t0}, s{t0}, {8*3584}')
st.init(60)
a(f'v_mov_b32 v{vSy}, {SYNC}'); a(f'ds_write_b32 v{vSy}, v{vZ} offset:{cB}'); a('v_mov_b32 v5, 8'); a(f'ds_write_b32 v{vSy}, v5 offset:{cAD}')
for i in range(7):
    T(('wvm', f'c{i}'))
    if i == 2: T(('vm', 'go', f'buffer_load_dwordx2 {vr(vN,2)}, v{vZ}, s[60:63], 0 offen sc1'))
    d0 = 16 if i == 0 else 24
    for d in range(4):
        a(f'v_lshlrev_b32 v{d0+2*d}, 16, v{64+4*i+d}'); a(f'v_and_b32 v{d0+1+2*d}, 0xffff0000, v{64+4*i+d}')
    if i:
        for d in range(4): a(f'v_pk_add_f32 {vr(16+2*d,2)}, {vr(16+2*d,2)}, {vr(24+2*d,2)}')
a(f's_lshl_b32 s{t0}, s{sW}, 11'); a(f'v_lshlrev_b32 v12, 5, v{vL}'); a(f'v_add_u32 v12, s{t0}, v12')
a('ds_write_b128 v12, v[16:19]'); a('ds_write_b128 v12, v[20:23] offset:16')
a('s_waitcnt lgkmcnt(0)'); a('s_barrier')
st.mark(2)
nonce_take(True)
a(f's_cmp_lg_u32 s{sW}, 0'); a('s_cbranch_scc1 L_hcs_done'); a('s_cmp_ge_u32 s2, 28'); a('s_cbranch_scc1 L_hcs_done')
a('s_setprio 3')
a(f'v_lshlrev_b32 v12, 2, v{vL}')
for g in range(4):
    for k in range(8): a(f'ds_read2st64_b32 {vr(64+16*g+2*k,2)}, v12 offset0:{16*g+2*k} offset1:{16*g+2*k+1}')
    a('s_waitcnt lgkmcnt(0)')
for w in (32, 16, 8, 4, 2):
    for k in range(0, w, 2): a(f'v_pk_add_f32 {vr(64+k,2)}, {vr(64+k,2)}, {vr(64+w+k,2)}')
a('v_add_f32 v64, v64, v65')
a(f's_lshl_b32 s{t0}, s2, 9'); a(f's_add_u32 s48, s{t0}, {CSG}')
a(f'buffer_store_dword v64, v12, {S}, s48 offen sc1'); a('s_waitcnt vmcnt(0)')
T(flag_store(256, 48))
a('s_setprio 0')
st.mark(3)
a.label('L_hcs_done')
a('s_barrier')
if OPT['hm']:
    a(f's_cmp_lt_u32 s{sW}, 4'); a('s_cbranch_scc1 L_nohm')
    srd(SC, pW2, 1792 * 896); srd(SB, pWO, 448 * 896)
    a(f's_lshl2_add_u32 s{t3}, s2, s{sI}'); a(f's_mul_i32 s{t0}, s{t3}, {98*128}')
    a(f'v_min_u32 v4, 48, v{vL}'); a('v_lshlrev_b32 v4, 7, v4')
    a(f'buffer_load_dword v40, v4, {R4(SC)}, s{t0} offen'); a(f's_add_u32 s{t0}, s{t0}, {49*128}'); a(f'buffer_load_dword v41, v4, {R4(SC)}, s{t0} offen')
    a(f's_mul_i32 s{t0}, s{t3}, {25*128}'); a(f'v_min_u32 v4, 24, v{vL}'); a('v_lshlrev_b32 v4, 7, v4')
    a(f'buffer_load_dword v42, v4, {R4(SB)}, s{t0} offen')
    a.label('L_nohm')
a(f's_cmp_ge_u32 s{sW}, 4'); a('s_cbranch_scc1 L_helperB')
a(f's_lshl2_add_u32 s{t3}, s{sIDX}, s{sI}')
if OPT['hw']:
    srd(SA, pW2, 1792 * 896)
    a(f'v_min_u32 v4, 55, v{vL}'); a('v_lshlrev_b32 v4, 7, v4'); a(f'v_add_u32 v5, {56*128}, v4')
    for k in range(7):
        a(f's_add_u32 s{t0}, s{sIDX}, {4*k}'); a(f's_cmp_ge_u32 s{t0}, 14'); a(f's_cselect_b32 s{t1}, 14, 0'); a(f's_cselect_b32 s{t2}, 4, 0'); a(f's_sub_u32 s{t0}, s{t0}, s{t1}')
        a(f's_mul_i32 s{t1}, s{sI}, 14'); a(f's_add_u32 s{t0}, s{t0}, s{t1}'); a(f's_and_b32 s{t1}, s{t0}, 0xfc'); a(f's_add_u32 s{t0}, s{t0}, s{t1}'); a(f's_add_u32 s{t0}, s{t0}, s{t2}')
        a(f's_mul_i32 s{t0}, s{t0}, {16*896}')
        a(f'buffer_load_dword v{20+2*k}, v4, {R4(SA)}, s{t0} offen'); a(f'buffer_load_dword v{21+2*k}, v5, {R4(SA)}, s{t0} offen')
st.mark(4)
if OPT['hh']:
    a(f's_and_b32 s{t0}, s2, 7'); a(f's_lshr_b32 s{t1}, s{t3}, 1'); a(f's_lshl3_add_u32 s{t0}, s{t0}, s{t1}')
    a(f's_and_b32 s{t1}, s{t3}, 1'); a(f's_mul_i32 s{t1}, s{t1}, 7'); a(f's_mul_i32 s{t0}, s{t0}, 14'); a(f's_add_u32 s{t2}, s{t0}, s{t1}')
    a(f's_lshl_b32 s48, s{t2}, {FSH+1}'); a(f's_add_u32 s48, s48, {FLAGS}'); a(f'v_lshlrev_b32 v4, {FSH}, v{vL}')
    a(f's_lshl_b32 s49, s{t2}, 13'); a(f's_add_u32 s49, s49, {HF}')
    a(f'v_and_b32 v5, 31, v{vL}'); a('v_lshlrev_b32 v5, 7, v5'); a(f'v_lshrrev_b32 v6, 5, v{vL}'); a('v_lshl_add_u32 v6, v6, 15, v5')
    for ph in range(2):
        a(f's_add_u32 s48, s48, {F1}'); poll(4, 's48', 14, 0, 12, sleep=6)
        st.mark(5 + ph)
        for k in range(4):
            a(f's_add_u32 s{t0}, s49, {k*8192 + ph*4096}')
            a(f'buffer_load_dword v{40+4*ph+k}, v{6 if k < 3 else 5}, {S}, s{t0} offen sc1')
        if ph == 0 and OPT['hwo']:
            srd(SB, pWO, 448 * 896)
            a(f'v_min_u32 v9, 48, v{vL}'); a('v_lshlrev_b32 v9, 7, v9'); a(f's_mul_i32 s{t0}, s{t3}, {196*128}')
            for i in range(4):
                a(f'buffer_load_dword v{50+i}, v9, {R4(SB)}, s{t0} offen'); a(f's_add_u32 s{t0}, s{t0}, {49*128}')
st.flush(SWS, STAMP, sW, vL)
a('s_endpgm')
a.label('L_helperB')
if OPT['hs']:
    srd(SA, pWO, 448 * 896)
    a(f's_lshl2_add_u32 s{t3}, s{sIDX}, s{sI}'); a(f's_mul_i32 s{t0}, s{t3}, {196*128}'); a(f's_mov_b32 s{t1}, 14')
    a('s_sleep 20')
    a.label('L_hsl')
    for k in range(14): a(f's_buffer_load_dword s{64+k}, {R4(SA)}, s{t0} offset:{128*k}')
    a(f's_add_u32 s{t0}, s{t0}, {14*128}'); a(f's_sub_u32 s{t1}, s{t1}, 1'); a('s_waitcnt lgkmcnt(0)'); a(f's_cmp_lg_u32 s{t1}, 0'); a('s_cbranch_scc1 L_hsl')
else: a(f's_sleep {OPT["hsl"]}')
att_setup()
a(f's_mov_b32 s{sKI}, 0')
a('s_branch L_att')

H1 = len(a.items)
blk = a.items[H0:H1]; del a.items[H0:H1]; a.items[HELPER_AT:HELPER_AT] = blk
T.reset()
a.label('L_B')
a(f's_setprio {OPT["bp1"]}')
common_setup('B')
srd(60, pDBG, 256)
att_setup()
st.mark(48)
for u in x_dma(1) + wq_dma(1): T(u)
exB = p1a('B')
a('s_setprio 2')
a(f'v_add_u32 v{vT}, {W1B[0]}, v24'); a(f'v_add_u32 v{vT+1}, {W1B[1]}, v24')
h_tile(0, 0, vAcc + 16, exB)
arrive(cCS1)
T(('wvm', 'l1')); arrive(cL1)
st.mark(16)
T([('wvm', 'q')] + flag_store(0, sFl))
cs_late('B')
h_epi(vAcc + 16, 0, vCs2)
spin(cL1, 8)
st.mark(17)
vVe, vVo, vKa, vV0, vV1 = 3, 4, 5, 6, 9
def kv_units(which):
    u = []
    for t in range(3):
        pre = ([f's_mul_i32 s{t2}, s{sI}, {3*3072}'] if t == 0 else []) + [f's_add_i32 s{t0}, s{sT7}, {t}', f's_max_i32 s{t0}, s{t0}, 0', f's_mul_i32 s{t0}, s{t0}, 84', f's_add_u32 s{t0}, s{t0}, s{sST0}',
               f's_add_u32 m0, s{t2}, {(KB, VB)[which] + t*3072}', f's_add_u32 s{t0}, s{t0}, {28*(which+1)}', f's_lshl_b32 s{t0}, s{t0}, 10']
        for s in range(3):
            v = vL16 if which == 0 else (vVo if s & 1 else vVe)
            u.append((pre if s == 0 else []) + [('vm', 'KV'[which], f'buffer_load_dwordx4 v{v}, {S}, s{t0} offen offset:{1024*s} sc1 lds')])
    return u
def kv_dma(which):
    for u in kv_units(which): T(u)
def qk_issue():
    keep = list(T.vm)
    a(f's_mul_i32 s{t0}, s{sTQ}, 84'); a(f's_add_u32 s{t0}, s{t0}, s{sST0}'); a(f's_lshl_b32 s{t0}, s{t0}, 10')
    for s in range(3): a(f'buffer_load_dwordx4 {vr(vQ+4*s,4)}, v{vL16}, {S}, s{t0} offen offset:{1024*s} sc1')
    kv_dma(0)
    T.vm = keep
h_tile(1, 0, vAcc, {OPT['smp']: [('vm', 'qf', f'buffer_load_dwordx2 v[28:29], v{vFl}, {S}, 0 offen sc1')]})
arrive(cAD)
spin(cCS1, 8)
st.mark(18)
def early_qk():
    T([('wvm', 'qf')] + flag_store(F1, sFl)); a(f'v_cmp_ne_u64 vcc, s[{sN}:{sN+1}], v[28:29]'); a(f's_mov_b32 s{sKI}, 0'); a('s_cbranch_vccnz L_noearly')
    qk_issue(); a(f's_mov_b32 s{sKI}, 1')
    a.label('L_noearly')
    st.mark(19)
if OPT['mid']:
    h_epi(vAcc, 1, vCs, mid=[('call', early_qk)])
else:
    early_qk()
    h_epi(vAcc, 1, vCs)
a.label('L_att')
a('s_setprio 2')
a(f's_mov_b32 s{sFl2}, s{sFl}')
st.mark(20)
a(f's_cmp_lg_u32 s{sKI}, 0'); a('s_cbranch_scc1 L_kdone')
poll(vFl, '0', 14, 0, 28)
st.mark(21)
a(f's_cmp_lt_u32 s{sIDX}, 4'); a('s_cbranch_scc1 L_nohf0')
T(flag_store(F2, sFl2))
a.label('L_nohf0')
qk_issue()
a.label('L_kdone')
st.mark(22)
a(f'v_lshrrev_b32 v12, 5, v{vL}'); a('v_lshlrev_b32 v13, 6, v12'); a(f'v_xor_b32 v{vVe}, v13, v{vL16}'); a(f'v_xor_b32 v{vVo}, 128, v{vVe}')
if OPT['ve'] == 1:
    spin(cAD, 8); T.vm = ['K']; kv_dma(1); st.mark(40)
a(f's_mul_i32 s{t0}, s{sI}, 3072'); a(f's_add_u32 s{t1}, s{t0}, {KB}'); a(f'v_add_u32 v{vKa}, s{t1}, v{vL16}')
a(f'v_bfe_u32 v14, v{vL}, 4, 1'); a(f'v_and_b32 v15, 3, v{vL}'); a('v_lshl_add_u32 v14, v14, 2, v15'); a(f'v_add_u32 v14, s{sG0}, v14')
a('v_lshrrev_b32 v15, 2, v14'); a('v_and_b32 v16, 1, v14'); a('v_bfe_u32 v17, v14, 1, 1')
a(f'v_bfe_u32 v19, v{vL}, 2, 2'); a('v_lshl_add_u32 v18, v12, 2, v19')
a('v_and_b32 v19, 1, v15'); a('v_lshl_add_u32 v19, v19, 1, v16'); a('v_lshlrev_b32 v19, 2, v19'); a('v_xor_b32 v18, v18, v19')
a(f'v_lshlrev_b32 v{vV0}, 4, v18'); a(f'v_lshl_add_u32 v{vV0}, v17, 3, v{vV0}'); a(f'v_lshl_add_u32 v{vV0}, v16, 9, v{vV0}')
a(f'v_lshl_add_u32 v{vV0}, v15, 10, v{vV0}'); a(f'v_xor_b32 v{vV1}, 128, v{vV0}')
a(f's_add_u32 s{t0}, s{t0}, {VB}'); a(f'v_add_u32 v{vV0}, s{t0}, v{vV0}'); a(f'v_add_u32 v{vV1}, s{t0}, v{vV1}')
for j in range(16):
    c = 8*(j >> 2) + (j & 3)
    a(f's_mov_b32 s{sM+2*j}, {(0xffffffff << c) & 0xffffffff:#x}'); a(f's_mov_b32 s{sM+2*j+1}, {(0xffffffff << (c+4)) & 0xffffffff:#x}')
def msk(j): return f's[{sM+2*j}:{sM+2*j+1}]'
vOnes = 24; vBm = 28; vMk = 240
vSb = 64; vO = 192; vLs = 208; vP0 = 224; vP8 = 232; vM = 224
a('v_mov_b32 v14, 0xffff'); a('v_mov_b32 v15, 0xffff0000')
for j in range(8):
    a(f'v_cndmask_b32 v{vMk+j}, 0, v14, {msk(2*j)}'); a(f'v_cndmask_b32 v16, 0, v15, {msk(2*j+1)}'); a(f'v_or_b32 v{vMk+j}, v{vMk+j}, v16')
for k in range(4): a(f'v_mov_b32 v{vOnes+k}, 0x3f803f80')
for k in range(1, 4): a(f'v_mov_b32 v{vBm+k}, 0')
a(f'v_subrev_u32 v12, s{sG0}, v12')
if OPT['ve'] != 1: spin(cAD, 8)
T(('wvm', 'K' if OPT['ve'] == 1 else '*')); st.mark(23); arrive(cB)
a(f's_cmp_eq_u32 s{sKI}, 0'); a('s_cbranch_scc1 L_nohf')
keep = list(T.vm); T(flag_store(F2, sFl2)); T.vm = keep
a.label('L_nohf')
if not OPT['ve']: kv_dma(1); st.mark(40)
for s in range(3):
    for ap in range(2):
        a(f'v_add_u32 v13, {4*s+2*ap}, v12'); a('v_cmp_gt_u32 vcc, 7, v13')
        for k in range(2):
            r = vQ + 4*s + 2*ap + k
            a(f'v_cndmask_b32 v{r}, 0, v{r}, vcc')
spin(cB, 4)
st.mark(24)
vKF = (44, 12)
def sreg(r): return vO if r == 0 else vSb + 16 * (r - 1)
m8 = sreg(8)
sorder = [8, 0, 1, 2, 3, 4, 5, 6, 7]
def kreads(i): return [('ds', f'k{i}', f'ds_read_b128 {vr(vKF[i&1]+4*s,4)}, v{vKa} offset:{sorder[i]*3072 + s*1024}') for s in range(3)]
def maxops(b, first=False):
    o = []
    for h in range(2):
        for c in range(4):
            if first and h == 0: o.append(f'v_max_f32 v{vM+c}, v{b+c}, v{b+4+c}')
            else: o.append(f'v_max3_f32 v{vM+c}, v{vM+c}, v{b+8*h+c}, v{b+8*h+4+c}')
    return o
merge = [f'v_cndmask_b32 v{m8+j}, v{vO+j}, v{m8+j}, {msk(j)}' for j in range(16)]
fills = {3: merge[:12], 4: merge[12:] + maxops(m8, True), 5: maxops(sreg(1)) + maxops(sreg(2))[:4], 6: maxops(sreg(2))[4:] + maxops(sreg(3)),
         7: maxops(sreg(4)), 8: maxops(sreg(5))}
vun = kv_units(1) if OPT['ve'] == 2 else []
T(kreads(0))
for i in range(9):
    r = sorder[i]
    T(('wds', f'k{i}'))
    T(weave([[mfma(sreg(r), vKF[i & 1] + 4*s, vQ + 4*s, s == 0)] for s in range(3)], (kreads(i + 1) if i + 1 < 9 else []) + vun[3*i:3*i+3] + fills.get(i, [])))
T(maxops(sreg(6)))
st.mark(41); T(('wvm', 'V')); st.mark(42); arrive(cB)
T(maxops(sreg(7)))
a(f's_cmp_ge_u32 s{sTQ}, 8'); a('s_cbranch_scc1 L_valid')
NEG = f2u(-1e30)
a(f'v_mov_b32 v12, {NEG:#x}')
for j in range(16): a(f'v_cndmask_b32 v{m8+j}, v12, v{m8+j}, {msk(j)}')
for r in range(1, 8):
    a(f's_cmp_ge_u32 s{sTQ}, {8-r}'); a('s_cbranch_scc1 L_remax')
    for j in range(16): a(f'v_mov_b32 v{sreg(r)+j}, v12')
a.label('L_remax')
T(maxops(m8, True))
for r in range(1, 8): T(maxops(sreg(r)))
a.label('L_valid')
a(f'v_max3_f32 v{vM}, v{vM}, v{vM+1}, v{vM+2}'); a(f'v_max_f32 v{vM}, v{vM}, v{vM+3}')
a(f'v_mov_b32 v{vM+1}, v{vM}'); a(f'v_cmp_gt_u32 vcc, 32, v{vL}')
a(f'v_permlane32_swap_b32 v{vM}, v{vM+1}'); a(f'v_max_f32 v{vM}, v{vM}, v{vM+1}')
a(f'v_cvt_pk_bf16_f32 v{vM+1}, 0, v{vM}'); a(f'v_sub_f32 v{vM+1}, v{vM+1}, v{vM}'); a(f'v_cvt_pk_bf16_f32 v{vM+1}, -v{vM}, v{vM+1}')
a(f'v_cndmask_b32 v{vBm}, 0, v{vM+1}, vcc')
st.mark(25)
vVF = (44, 12)
porder = [1, 2, 3, 4, 5, 6, 7, 8, 0]
def vreads(i): return [('ds', f'v{i}', f'ds_read_b64_tr_b16 {vr(vVF[i&1]+4*ks+2*q,2)}, v{(vV0,vV1)[q]} offset:{porder[i]*3072 + ks*256}') for ks in range(2) for q in range(2)]
def sub(i): return mfma(sreg(porder[i]), vOnes, vBm)
def softmax(i):
    r = porder[i]; b = sreg(r); o = []
    for g in range(0, 16, 4):
        o += [f'v_exp_f32 v{b+j}, v{b+j}' for j in range(g, g + 4)]
        if g: o += [f'v_cvt_pk_bf16_f32 v{b+j}, v{b+2*j}, v{b+2*j+1}' for j in range(g//2 - 2, g//2)]
    o += [f'v_cvt_pk_bf16_f32 v{b+j}, v{b+2*j}, v{b+2*j+1}' for j in (6, 7)]
    if r == 8:
        o += [f'v_and_b32 v{vP8+j}, v{vMk+j}, v{b+j}' for j in range(8)]
        o += [f'v_bfi_b32 v{vP0+j}, v{vMk+j}, 0, v{b+j}' for j in range(8)]
    return o
def pv(i):
    r = porder[i]; P = vP0 if r == 0 else (vP8 if r == 8 else sreg(r)); vb = vVF[i & 1]
    g = []
    for ks in range(2):
        g.append([mfma(vO, vb + 4*ks, P + 4*ks, i == 0 and ks == 0)])
        if r: g.append([mfma(vLs, vOnes, sreg(r) + 4*ks, i == 0 and ks == 0)])
    g[0] = [('wds', f'v{i}')] + g[0]
    return g
a(sub(0)); a(sub(1))
spin(cB, 8)
st.mark(26)
T(vreads(0)); T(weave([[sub(2)]], softmax(0)))
for i in range(9):
    fill = (vreads(i + 1) if i + 1 < 9 else []) + (softmax(i + 1) if i + 1 < 8 else [])
    T(weave(pv(i) + ([[sub(i + 3)]] if i + 3 < 8 else []), fill))
st.mark(27)
arrive(cB)
a(f's_lshl4_add_u32 s{t0}, s{sTQ}, s{sHD}'); a(f's_lshl_b32 s{t1}, s{t0}, 11'); a(f's_add_u32 s{t1}, s{t1}, {OF}')
a(f's_lshl_b32 s{t0}, s{t0}, {OSH}'); a(f's_add_u32 s48, s{t0}, {OFL}')
a(f'v_rcp_f32 v12, v{vLs}'); a(f'v_cmp_gt_u32 vcc, 32, v{vL}')
for s in range(2):
    for j in range(8*s, 8*s + 8): a(f'v_mul_f32 v{vO+j}, v12, v{vO+j}')
    for j in range(4*s, 4*s + 4): a(f'v_cvt_pk_bf16_f32 v{vO+j}, v{vO+2*j}, v{vO+2*j+1}')
    if s: a(f'v_cndmask_b32 v{vO+6}, 0, v{vO+6}, vcc'); a(f'v_cndmask_b32 v{vO+7}, 0, v{vO+7}, vcc')
    T(('vm', 'o', f'buffer_store_dwordx4 {vr(vO+4*s,4)}, v{vL16}, {S}, s{t1} offen offset:{1024*s} sc1'))
st.mark(28)
a(f's_cmp_lt_u32 s{sIDX}, 4'); a('s_cbranch_scc0 L_cont')
keep = list(T.vm)
T([('wvm', 'o')] + flag_store(0, 48))
st.flush(SWS, STAMP, sW, vL)
a('s_endpgm')
a.label('L_cont')
T.vm = keep
srd(SA, pWO, 448 * 896)
vWo = 3
full_pat(vWo, 12, 13, 896); a(f's_lshl_b32 s{t0}, s{sCB}, 7'); a(f'v_add_u32 v{vWo}, s{t0}, v{vWo}')
spin(cB, 12)
if OPT['of'] < 0:
    T([('wvm', 'o')] + flag_store(0, 48)); st.mark(29)
a(f's_setprio {OPT["bp2"]}')
a(f's_mul_i32 s{t2}, s{sTT}, {WOB[1]-WOB[0]}'); a(f's_lshl_b32 s{t0}, s{sCT}, 10'); a(f's_add_u32 s{t2}, s{t2}, s{t0}')
a(f's_mul_i32 s{t1}, s{sTT}, {224*896}'); a(f's_mul_i32 s{t0}, s{sCT}, {8*896}'); a(f's_add_u32 s{t1}, s{t1}, s{t0}')
for i in range(15):
    if i == 14:
        a(f's_lshl_b32 s{t0}, s{sCT}, 11'); a(f's_sub_u32 s{t2}, s{t2}, s{t0}'); a(f's_mul_i32 s{t0}, s{sCT}, {16*896}'); a(f's_sub_u32 s{t1}, s{t1}, s{t0}')
    a(f's_add_u32 m0, s{t2}, {WOB[0] + 2048*i}'); a(f's_add_u32 s{t0}, s{t1}, {i*16*896}')
    T(('vm', 'wo', f'buffer_load_dwordx4 v{vWo}, {R4(SA)}, s{t0} offen lds'))
    if i == OPT['of']:
        T([('wvm', 'o')] + flag_store(0, 48)); st.mark(29)
final_setup()
vTa, vTb = 5, 6
tr_base(vTa, 12, False); a(f's_mul_i32 s{t0}, s{sCT}, {WOB[1]-WOB[0]}'); a(f's_add_u32 s{t0}, s{t0}, {WOB[0]}')
a(f'v_add_u32 v{vTa}, s{t0}, v{vTa}'); a(f'v_xor_b32 v{vTb}, 64, v{vTa}')
a(f'v_and_b32 v4, 7, v{vL}'); a(f'v_lshlrev_b32 v4, {OSH}, v4')
a(f's_lshl1_add_u32 s49, s{sTo}, s{sCT}'); a(f's_lshl_b32 s50, s49, {OSH+3}'); a(f's_add_u32 s50, s50, {OFL}')
st.mark(30)
T(('wvm', 'wo')); arrive(cB)
if OPT['n1'] < 0: T(('vm', 'of', f'buffer_load_dwordx2 v[12:13], v4, {S}, s50 offen sc1'))
spin(cB, 16)
st.mark(31)
if OPT['n1'] >= 0 and OPT['so']:
    spin(cCS0, 4, sleep=2); st.mark(38)
    T(('vm', 'of', f'buffer_load_dwordx2 v[12:13], v4, {S}, s50 offen sc1'))
vWA = 128; vOf = 64; vSa = 16
for n in range(16):
    for ct in range(2):
        for q in range(2):
            T(('ds', f'a{n}', f'ds_read_b64_tr_b16 {vr(vWA+8*n+4*ct+2*q,2)}, v{(vTa,vTb)[ct]} offset:{(28*(n>>1) + 16*(n&1) + 8*q)*128}'))
T(('wds', '*')); arrive(cB)
xaddr(48); a(f'v_bfe_u32 v10, v{vL}, 3, 2'); a('v_lshl_add_u32 v48, v10, 11, v48')
a(f's_lshl_b32 s{t0}, s{sCT}, 14'); a(f's_lshl_b32 s{t1}, s{sTT}, 13'); a(f's_add_u32 s{t0}, s{t0}, s{t1}'); a(f's_add_u32 s{t0}, s{t0}, {SBUF}'); a(f'v_add_u32 v48, s{t0}, v48')
for q in range(1, 4): a(f'v_xor_b32 v{48+q}, {32*q}, v48')
spin(cB, 20)
if OPT['n1'] >= 0 and not OPT['so']:
    spin(cCS0, 4, sleep=2); st.mark(38)
    T(('vm', 'of', f'buffer_load_dwordx2 v[12:13], v4, {S}, s50 offen sc1'))
T(('wvm', 'of')); a(f'v_cmp_ne_u64 vcc, s[{sN}:{sN+1}], v[12:13]'); a('s_cbranch_vccz L_ook')
poll(4, 's50', 8, 0, 12)
a.label('L_ook')
a('s_setprio 2')
st.mark(32)
a(f's_lshl_b32 s{t0}, s49, 14'); a(f's_add_u32 s{t0}, s{t0}, {OF}')
def oload(n):
    return [('vm', f'o{n}', f'buffer_load_dwordx4 {vr(vOf+4*n,4)}, v{vL16}, {S}, s{t0} offen offset:{(n&3)*1024} sc1')] + ([f's_add_u32 s{t0}, s{t0}, 4096'] if n & 3 == 3 else [])
OD = OPT.get('od', 10)
for n in range(OD): T(oload(n))
st.mark(33)
for n in range(16):
    T(('wvm', f'o{n}'))
    for ct in range(2):
        a(mfma(vSa + 16*ct, vWA + 8*n + 4*ct, vOf + 4*n, n == 0))
        if ct == 0 and n + OD < 16: T(oload(n + OD))
st.mark(34)
for ct in range(2):
    for q in range(4): T(('ds', 'sx', f'ds_write_b128 v{48+q}, {vr(vSa+16*ct+4*q,4)} offset:{ct*128}'))
final_stage()
a.label('L_end'); a('s_endpgm')

a.pad_hazards_fast()
for e in a.check_waits(): print('WAITERR', e)
hdr = ['; generated by gen26.py (hand-written generator): single persistent kernel',
       f'; @launch grid=(256,1,1) block=(512,1,1) lds={LDS_TOTAL}', '.amdgcn_target "amdgcn-amd-amdhsa--gfx950"', '.text']
tail = ['.section .rodata,"a"', '.p2align 6', f'.amdhsa_kernel {K}', '  .amdhsa_next_free_vgpr 256', '  .amdhsa_next_free_sgpr 102',
        '  .amdhsa_accum_offset 256', '  .amdhsa_group_segment_fixed_size 0', '  .amdhsa_kernarg_size 72',
        '  .amdhsa_user_sgpr_count 2', '  .amdhsa_user_sgpr_kernarg_segment_ptr 1', '  .amdhsa_system_sgpr_workgroup_id_x 1', '.end_amdhsa_kernel']
open(sys.argv[1], 'w').write('\n'.join(hdr) + '\n' + a.text() + '\n'.join(tail) + '\n')
```

```python
import sys, struct
from asmlib import *

NAME = 'recurrent_scan__sliding_block__dense_activation_silu__prompt'
OPT = dict(stamp=0, spin=200000, hp=1, rotf=1, rot=1, w1e=1, aq=14, tw=0, hd=20, hm=1, hw=0, hh=0, hs=0, early=5, ap=3, ew=2, smp=27, nres=8, bp2=2, ap2=1, of=5, hwo=1, n1=12, sp=2, f0=27, cfs=24, pl=2, be=0, bw=12, sc=0, w2w=0, ve=1, mid=1, so=1, osc=1, vs=0, stg=0, ds=0, sa=8, lc=1, bp1=2, xe=1, ro=1, rc=0, rt=3, ta=-1, tb=-1, tc=-1, qa=8, hsl=100, rh=8)
for x in sys.argv[2:]:
    k, v = x.split('='); OPT[k] = int(v)
def f2u(x): return struct.unpack('<I', struct.pack('<f', x))[0]

QKVF = 0; HF = 0x600000; OF = 0xE00000; FLAGS = 0x1200000; STAMP = 0x1100000; WS_USED = 0x1400000
FSH = 7; F1 = 0x40000; F2 = 2 * F1
OSH = OPT.get('osh', 7)
OFL = 0x1000000
CSG = 0x1080000
sN = 80
XBYTES = 2048 * 448 * 2
LOG2E = 1.4426950408889634
pX, pWQ, pWO, pW1, pW2, pOUT, pDBG = 4, 6, 8, 12, 14, 16, 18
SWS, SA, SB, SC = 20, 24, 28, 32
sI, sRB, sJ, sROT, sHD, sRBA, sTB, sCB = 36, 37, 38, 39, 40, 41, 42, 43
sW = 10; sIDX = 11
t0, t1, t2, t3, t4 = 3, 44, 45, 46, 47
sM = 48
def R4(b): return f's[{b}:{b+3}]'
S = R4(SWS)
def SL(p): return (p % 3) * 32768
W1B = (98304, 32768)
def W1P(L, q): return W1B[L] + 8192 * q
KB = 98304; VB = 49152; WOB = (49152, 98304); SXB = (78848, 128000)
RA2 = 90112
def slot_addr(slot): return slot*8192 if slot < 6 else (RA2 if slot == 6 else 137216 + (slot - 7)*8192)
CS = 161792
STX = 155648
SYNC = CS + 1920
cCS0, cL1, cCS1, cAD, cB = 0, 4, 8, 12, 16
LDS_TOTAL = 163840

a = Asm(); T = Tr(a)
st = Stamps2(a, OPT['stamp'], T)
uid = [0]
def lab(p):
    uid[0] += 1; return f'L_{p}_{uid[0]}'
def srd(d, ptr, size):
    a(f's_mov_b32 s{d}, s{ptr}'); a(f's_and_b32 s{d+1}, s{ptr+1}, 0xffff'); a(f's_mov_b32 s{d+2}, {size}'); a(f's_mov_b32 s{d+3}, 0x20000')

def poll(vaddr, soff, nl, imm, vtmp, sleep=1):
    L = lab('poll'); E = lab('polle')
    a(f's_mov_b64 exec, {(1 << nl) - 1}'); a(f's_mov_b32 s{t4}, 0')
    a.label(L)
    a(f'buffer_load_dwordx2 {vr(vtmp,2)}, v{vaddr}, {S}, {soff} offen offset:{imm} sc1')
    a(f's_add_u32 s{t4}, s{t4}, 1')
    a('s_waitcnt vmcnt(0)')
    a(f'v_cmp_ne_u64 vcc, s[{sN}:{sN+1}], {vr(vtmp,2)}')
    a(f's_cbranch_vccz {E}')
    if sleep: a(f's_sleep {sleep}')
    a(f's_cmp_lt_u32 s{t4}, {OPT["spin"]}'); a(f's_cbranch_scc1 {L}')
    a.label(E)
    a('s_mov_b64 exec, -1')
    T.vm = []
vN = 62
def nonce_take(sampled):
    L = lab('nz'); E = lab('nze')
    a(f's_mov_b32 s{t4}, 0')
    if sampled: T(('wvm', 'go')); a(f's_branch {L}c')
    a.label(L)
    a(f'buffer_load_dwordx2 {vr(vN,2)}, v{vZ}, s[60:63], 0 offen sc1'); a('s_waitcnt vmcnt(0)')
    a.label(L + 'c')
    a(f'v_readfirstlane_b32 s{sN+1}, v{vN+1}'); a(f'v_readfirstlane_b32 s{sN}, v{vN}'); a(f's_add_u32 s{t4}, s{t4}, 1')
    a(f's_cmp_lg_u32 s{sN+1}, 0'); a(f's_cbranch_scc1 {E}')
    a('s_sleep 2'); a(f's_cmp_lt_u32 s{t4}, {OPT["spin"]}'); a(f's_cbranch_scc1 {L}')
    a.label(E)

vL, vL16, vSy, vZ, vTt = 1, 2, 7, 8, 11
def spin(off, val, sleep=0):
    L = lab('sp'); E = lab('spe')
    a(f's_mov_b32 s{t4}, 0')
    a.label(L)
    a(f'ds_read_b32 v{vTt}, v{vSy} offset:{off}'); a(f's_add_u32 s{t4}, s{t4}, 1'); a('s_waitcnt lgkmcnt(0)')
    a(f'v_cmp_gt_u32 vcc, {val}, v{vTt}')
    a(f's_cbranch_vccz {E}')
    sleep = max(sleep, OPT.get('ss', 0))
    if sleep: a(f's_sleep {sleep}')
    a(f's_cmp_lt_u32 s{t4}, {OPT["spin"]*8}'); a(f's_cbranch_scc1 {L}')
    a.label(E)
    T.ds = []
def arrive(off):
    a('s_mov_b64 exec, 1'); a(f'v_mov_b32 v{vTt}, 1'); T(('ds', 'arr', f'ds_add_u32 v{vSy}, v{vTt} offset:{off}')); a('s_mov_b64 exec, -1')

def flag_store(imm, soff):
    o = [f'v_lshlrev_b32 v{vTt}, 3, v{vL}']
    if imm >= 4096:
        o.append(f'v_add_u32 v{vTt}, {imm}, v{vTt}'); imm = 0
    return o + [f's_mov_b64 exec, {0xffff if OPT.get("ff", 1) else 1}', ('vm', 'flag', f'buffer_store_dwordx2 {vr(vN,2)}, v{vTt}, {S}, s{soff} offen offset:{imm} sc1'), 's_mov_b64 exec, -1']

def tr_base(vd, vt, natural):
    a(f'v_lshrrev_b32 v{vd}, 5, v{vL}'); a(f'v_bfe_u32 v{vt}, v{vL}, 2, 2'); a(f'v_lshl_add_u32 v{vd}, v{vd}, {3 if natural else 2}, v{vt}')
    a(f'v_lshlrev_b32 v{vd}, 7, v{vd}')
    a(f'v_bfe_u32 v{vt}, v{vL}, 3, 1'); a(f'v_lshl_add_u32 v{vd}, v{vt}, 6, v{vd}')
    a(f'v_bfe_u32 v{vt}, v{vL}, 4, 1'); a(f'v_lshl_add_u32 v{vd}, v{vt}, 5, v{vd}')
    a(f'v_and_b32 v{vt}, 3, v{vL}'); a(f'v_lshl_add_u32 v{vd}, v{vt}, 3, v{vd}')

def full_pat(vd, vt, vt2, stride):
    a(f'v_lshrrev_b32 v{vt}, 3, v{vL}'); a(f'v_mul_u32_u24 v{vd}, {stride}, v{vt}')
    a(f'v_bfe_u32 v{vt}, v{vL}, 4, 1'); a(f'v_lshlrev_b32 v{vt}, 2, v{vt}'); a(f'v_and_b32 v{vt2}, 7, v{vL}'); a(f'v_xor_b32 v{vt}, v{vt}, v{vt2}')
    a(f'v_lshl_add_u32 v{vd}, v{vt}, 4, v{vd}')

def mfma(d, A, B, first=False): return f'v_mfma_f32_32x32x16_bf16 {vr(d,16)}, {vr(A,4)}, {vr(B,4)}, ' + ('0' if first else vr(d, 16))
def mfma16(d, A, B, first=False): return f'v_mfma_f32_16x16x32_bf16 {vr(d,4)}, {vr(A,4)}, {vr(B,4)}, ' + ('0' if first else vr(d, 4))

def silu_ops(b, tmp, n, sNeg):
    o = []
    for g in range(0, n, 4):
        ks = range(g, g + 4)
        o += [f'v_mul_f32 v{tmp+k}, s{sNeg}, v{b+k}' for k in ks]
        o += [f'v_exp_f32 v{tmp+k}, v{tmp+k}' for k in ks]
        o += [f'v_add_f32 v{tmp+k}, 1.0, v{tmp+k}' for k in ks]
        o += [f'v_rcp_f32 v{tmp+k}, v{tmp+k}' for k in ks]
        o += [f'v_mul_f32 v{b+k}, v{tmp+k}, v{b+k}' for k in ks]
    return o

K = NAME + '_kernel'
a.raw(f'.globl {K}'); a.raw('.p2align 8'); a.raw(f'.type {K},@function'); a.label(K)
a('s_cmp_ge_u32 s2, 256'); a('s_cbranch_scc1 L_end')
a('s_load_dwordx16 s[4:19], s[0:1], 0'); a('s_load_dwordx2 s[20:21], s[0:1], 64')
st.start()
a(f'v_readfirstlane_b32 s{t1}, v0'); a(f'v_and_b32 v{vL}, 63, v0'); a(f'v_lshlrev_b32 v{vL16}, 4, v{vL}')
a(f's_and_b32 s{t0}, s2, 7'); a(f's_lshr_b32 s{t2}, s2, 3')
a(f's_lshr_b32 s{t1}, s{t1}, 6'); a(f's_and_b32 s{sI}, s{t1}, 3')
a(f's_and_b32 s{sHD}, s{t2}, 1'); a(f's_lshl1_add_u32 s{sHD}, s{t0}, s{sHD}'); a(f's_lshr_b32 s{sRBA}, s{t2}, 1')
a(f's_sub_u32 s{t3}, s{t2}, 4'); a(f's_lshr_b32 s{sCB}, s{t3}, 2'); a(f's_and_b32 s{t3}, s{t3}, 3')
a(f's_lshl2_add_u32 s{sTB}, s{t0}, s{t3}')
a(f's_lshr_b32 s{sRB}, s{t0}, 1'); a(f's_lshl2_add_u32 s{sRB}, s{sRB}, s{t3}')
a(f's_and_b32 s{sJ}, s{t0}, 1'); a(f's_mul_i32 s{sJ}, s{sJ}, 7'); a(f's_add_u32 s{sJ}, s{sJ}, s{sCB}')
if OPT['rot']:
    a(f's_lshl1_add_u32 s{sROT}, s{t3}, s{sCB}'); a(f's_sub_u32 s{t3}, s{sROT}, 7'); a(f's_min_u32 s{sROT}, s{sROT}, s{t3}')
else: a(f's_mov_b32 s{sROT}, 0')
vXd, vQd, vWd = 240, 244, 30
a(f's_lshl_b32 s{t0}, s{sRB}, 7'); a(f's_lshl_b32 s{t3}, s{sI}, 5'); a(f's_add_u32 s{t0}, s{t0}, s{t3}')
a(f'v_lshrrev_b32 v9, 3, v{vL}'); a(f'v_add_u32 v10, s{t0}, v9'); a(f'v_mul_u32_u24 v{vXd}, 896, v10')
a(f'v_lshrrev_b32 v10, 4, v{vL}'); a(f'v_and_b32 v11, 7, v{vL}'); a('v_xor_b32 v12, v10, v11'); a(f'v_lshl_add_u32 v{vXd}, v12, 4, v{vXd}')
a(f'v_xor_b32 v{vXd+1}, 64, v{vXd}'); a(f'v_add_u32 v{vXd+2}, {2*6144}, v{vXd}'); a(f'v_add_u32 v{vXd+3}, {3*6144}, v{vXd+1}'); a(f'v_add_u32 v{vXd+1}, 6144, v{vXd+1}')
a('v_and_b32 v10, 1, v10'); a('v_lshlrev_b32 v10, 2, v10'); a('v_xor_b32 v10, v10, v11'); a('v_lshlrev_b32 v10, 4, v10')
a(f's_lshl_b32 s{t3}, s{sI}, 4'); a(f'v_add_u32 v9, s{t3}, v9')
a(f's_mul_i32 s{t0}, s{sJ}, 192'); a(f's_and_b32 s{t0}, s{t0}, 0xffffff80'); a(f's_add_u32 s{t0}, s{t0}, 1024'); a(f'v_mul_u32_u24 v{vQd}, 2688, v9'); a(f'v_add3_u32 v{vQd}, v{vQd}, v10, s{t0}')
a(f'v_add_u32 v{vQd+1}, {128-1024}, v{vQd}'); a(f'v_add_u32 v{vQd+2}, {8*2688-2048}, v{vQd}'); a(f'v_add_u32 v{vQd+3}, {8*2688+128-3072}, v{vQd}')
a(f's_lshl_b32 s{t0}, s{sJ}, 8'); a(f'v_mul_u32_u24 v{vWd}, 3584, v9'); a(f'v_add3_u32 v{vWd}, v{vWd}, v10, s{t0}'); a(f'v_add_u32 v{vWd+1}, {8*3584-1024}, v{vWd}')
sMx, sMw = 48, 49
a(f's_lshl_b32 s{sMx}, s{sI}, 12'); a(f's_lshl_b32 s{sMw}, s{sI}, 11')
for p in range(2):
    a(f's_add_u32 s{50+p}, s{sROT}, {p}'); a(f's_sub_u32 s{t3}, s{50+p}, 7'); a(f's_min_u32 s{50+p}, s{50+p}, s{t3}')
a('s_waitcnt lgkmcnt(0)')
a(f's_mov_b32 s{sW}, s{t1}'); a(f's_mov_b32 s{sIDX}, s{t2}')
a(f's_and_b32 s{SWS+1}, s{SWS+1}, 0xffff'); a(f's_mov_b32 s{SWS+2}, {WS_USED}'); a(f's_mov_b32 s{SWS+3}, 0x20000')
a(f's_cmp_lt_u32 s{sIDX}, 4'); a('s_cbranch_scc1 L_helper')
srd(SA, pX, XBYTES)
a(f's_sub_u32 s{SB}, s{pWQ}, 1024'); a(f's_subb_u32 s{SB+1}, s{pWQ+1}, 0'); a(f's_and_b32 s{SB+1}, s{SB+1}, 0xffff'); a(f's_mov_b32 s{SB+2}, {448*2688 + 1024}'); a(f's_mov_b32 s{SB+3}, 0x20000')
def x_dma(p):
    return [([f's_add_u32 m0, s{sMx}, {SL(p)}', f's_lshl_b32 s{t0}, s{50+p}, 7'] if i == 0 else []) +
            [('vm', f'p{p}', f'buffer_load_dwordx4 v{vXd+i}, {R4(SA)}, s{t0} offen offset:{i*1024} lds')] for i in range(4)]
def wq_dma(p):
    return [([f's_add_u32 m0, s{sMx}, {SL(p) + 16384}', f's_mul_i32 s{t0}, s{50+p}, {64*2688}'] if i == 0 else []) +
            [('vm', f'p{p}', f'buffer_load_dwordx4 v{vQd+i}, {R4(SB)}, s{t0} offen offset:{i*1024} lds')] for i in range(4)]
def w1_dma(L, q):
    return [[f's_add_u32 m0, s{sMw}, {W1P(L, q)}', f's_mul_i32 s{t0}, s{50+q}, {64*3584}'] + ([f's_add_u32 s{t0}, s{t0}, 128'] if L else []) +
            [('vm', f'l{L}', f'buffer_load_dwordx4 v{vWd}, {R4(SC)}, s{t0} offen lds')],
            [('vm', f'l{L}', f'buffer_load_dwordx4 v{vWd+1}, {R4(SC)}, s{t0} offen offset:1024 lds')]]
st.init(60); st.mark(47)
a(f's_cmp_ge_u32 s{sW}, 4'); a('s_cbranch_scc1 L_B')
for u in x_dma(0) + wq_dma(0): T(u)
st.mark(48)
a('s_branch L_A')
HELPER_AT = len(a.items)

vXa = 12
vT = 16
vNm, vR = 18, 20
vK1, vIr = 22, 23
vCa = 9
vWF = 32
vSel = 56
vAcc = 64
vCs = 96; vTm = 112; vCs2 = 240; vCs3 = 32
vX = 128
sQo, sHo, sFl = 57, 58, 59

def common_setup(role):
    for p in range(2, 7):
        a(f's_add_u32 s{50+p}, s{sROT}, {p}'); a(f's_sub_u32 s{t3}, s{50+p}, 7'); a(f's_min_u32 s{50+p}, s{50+p}, s{t3}')
    srd(SC, pW1, 448 * 3584)
    a(f'v_mov_b32 v{vZ}, 0'); a(f'v_mov_b32 v{vSy}, {SYNC}')
    a(f'v_and_b32 v10, 31, v{vL}'); a(f'v_lshlrev_b32 v{vXa}, 7, v10'); a(f'v_bfe_u32 v10, v{vL}, 1, 3'); a(f'v_lshrrev_b32 v11, 5, v{vL}')
    a('v_xor_b32 v10, v10, v11'); a(f'v_lshl_add_u32 v{vXa}, v10, 4, v{vXa}'); a(f'v_add_u32 v{vXa}, s{sMx}, v{vXa}')
    for s in range(1, 4): a(f'v_xor_b32 v{vXa+s}, {32*s}, v{vXa}')
    a(f'v_lshlrev_b32 v{vCa}, 4, v11'); a(f'v_add_u32 v{vCa}, {CS}, v{vCa}')
    tr_base(24, 10, True)
    a(f'v_lshl_add_u32 v27, v11, 10, v24')
    a(f's_and_b32 s{t0}, s{sJ}, 1')
    for k in range(2):
        if role == 'A': a(f's_add_u32 s{t1}, s{t0}, {k}')
        elif k == 0: a(f's_add_u32 s{t1}, s{t0}, 2')
        else: a(f's_min_u32 s{t1}, s{sI}, 2'); a(f's_add_u32 s{t1}, s{t1}, s{t0}')
        a(f's_and_b32 s{t2}, s{t1}, 1'); a(f's_lshl_b32 s{t2}, s{t2}, 6'); a(f's_lshr_b32 s{t1}, s{t1}, 1'); a(f's_lshl_b32 s{t1}, s{t1}, 10'); a(f's_add_u32 s{t1}, s{t1}, 16384')
        a(f'v_xor_b32 v{vT+k}, s{t2}, v27'); a(f'v_add_u32 v{vT+k}, s{t1}, v{vT+k}')
    a(f'v_and_b32 v10, 15, v{vL}'); a(f'v_bfe_u32 v11, v{vL}, 4, 1'); a('v_cmp_eq_u32 vcc, v10, v11'); a('v_mov_b32 v10, 0x3f803f80')
    for k in range(4 if role == 'B' else 0): a(f'v_cndmask_b32 v{vSel+k}, 0, v10, vcc')
    r = 0 if role == 'A' else 1
    a(f's_lshl2_add_u32 s{t0}, s{sRB}, s{sI}')
    a(f's_mul_i32 s{sQo}, s{t0}, 84'); a(f's_mul_i32 s{t1}, s{sJ}, 6'); a(f's_add_u32 s{sQo}, s{sQo}, s{t1}'); a(f's_add_u32 s{sQo}, s{sQo}, {4*r}'); a(f's_lshl_b32 s{sQo}, s{sQo}, 10')
    a(f's_mul_i32 s{sHo}, s{t0}, 112'); a(f's_lshl3_add_u32 s{sHo}, s{sJ}, s{sHo}'); a(f's_lshl_b32 s{sHo}, s{sHo}, 10'); a(f's_add_u32 s{sHo}, s{sHo}, {HF + 2048*(1-r)}')
    a(f's_mul_i32 s{sFl}, s{t0}, 14'); a(f's_add_u32 s{sFl}, s{sFl}, s{sJ}'); a(f's_lshl_b32 s{sFl}, s{sFl}, {FSH+1}'); a(f's_add_u32 s{sFl}, s{sFl}, {FLAGS + (r << FSH)}')

sOK = 19
def cs_load(role):
    hf = 1 if role == 'A' else 0
    a(f's_lshl_b32 s{t0}, s{sJ}, 10'); a(f's_add_u32 s{t0}, s{t0}, {CSG + hf*128}'); a(f's_mov_b32 m0, {CS + 384 + hf*256}')
    a(f'v_lshrrev_b32 v10, 5, v{vL}'); a('v_lshlrev_b32 v10, 7, v10'); a(f'v_and_b32 v11, 31, v{vL}'); a('v_add_lshl_u32 v10, v10, v11, 2')
    a(f'buffer_load_dword v10, {S}, s{t0} offen sc1 lds')
def cs_try(role):
    E = lab('cst')
    T(('wvm', 'cf')); a(f'v_cmp_ne_u64 vcc, s[{sN}:{sN+1}], v[28:29]'); a(f's_mov_b32 s{sOK}, vcc_lo'); a(f's_cbranch_vccnz {E}')
    cs_load(role)
    a.label(E)
def cs_late(role):
    E = lab('csl')
    a(f's_cmp_eq_u32 s{sOK}, 0'); a(f's_cbranch_scc1 {E}')
    a(f's_lshl_b32 s{t1}, s{sJ}, 10'); a(f's_add_u32 s{t1}, s{t1}, {CSG}')
    keep = list(T.vm)
    poll(25, f's{t1}', 2, 256, 28)
    cs_load(role); a('s_waitcnt vmcnt(0)')
    T.vm = keep
    a.label(E)
    hf = 1 if role == 'A' else 0
    for L in range(2):
        for g in range(4): T(('ds', f'hc{L}', f'ds_read_b128 {vr((vCs2, vCs)[L]+4*g,4)}, v{vCa} offset:{384 + hf*256 + L*128 + g*32}'))
    T(('wds', 'hc0'))
def touch(k):
    n = 28 if k < 2 else 14
    a(f's_sub_u32 s{t1}, s{sIDX}, 4'); a(f's_lshl3_add_u32 s{t1}, s{t1}, s{sW}'); a(f's_mul_i32 s{t1}, s{t1}, {56 if k < 2 else 14}')
    if k == 1: a(f's_add_u32 s{t1}, s{t1}, 28')
    a(f'v_min_u32 v61, {n-1}, v{vL}'); a(f'v_add_lshl_u32 v61, v61, s{t1}, 7')
    p = pW2 if k < 2 else pWO
    T(('vm', 'pf', f'global_load_dword v{252+k}, v61, s[{p}:{p+1}]'))
def p1a(role):
    A_ = role == 'A'
    vS = vTm
    def xreads(p): return [('ds', f'x{p}', f'ds_read_b128 {vr(vX+16*p+4*s,4)}, v{vXa+s} offset:{SL(p) & 0xffff}') for s in range(4)]
    def wreads(n):
        p = n >> 2; s = n & 3; b = n % 3
        return [('ds', f'w{n}', f'ds_read_b64_tr_b16 {vr(vWF+8*b+4*t+2*q,2)}, v{vT+t} offset:{(SL(p) & 0xffff) + s*4096 + q*512}') for t in range(2) for q in range(2)]
    def hop(p):
        d = (SL(p) & ~0xffff) - (SL(p - 1) & ~0xffff)
        if d == 0: return []
        op = 'v_add_u32' if d > 0 else 'v_subrev_u32'
        return [f'{op} v{v}, {abs(d)}, v{v}' for v in (vXa, vXa+1, vXa+2, vXa+3, vT, vT+1)]
    VS = OPT['vs']
    if VS or not A_:
        for r in range(4): a(f'v_mov_b32 v{vS+r}, 0')
        a(f'v_mov_b32 v{vS+4}, 0x3f803f80')
    def stats(p):
        ds = range(0, OPT['sa']) if A_ else range(OPT['sa'], 16)
        o = []
        for i, d in enumerate(ds):
            r = vX + 16*p + d; t = vS + 6 + 2*(i & 3)
            o.append([f'v_lshlrev_b32 v{t}, 16, v{r}', f'v_and_b32 v{t+1}, 0xffff0000, v{r}', f'v_add_f32 v{vS}, v{vS}, v{t}', f'v_add_f32 v{vS+1}, v{vS+1}, v{t+1}',
                      f'v_fmac_f32 v{vS+2}, v{t}, v{t}', f'v_fmac_f32 v{vS+3}, v{t+1}, v{t+1}'])
        res = []
        for i in range(0, len(o), 2):
            g = o[i:i+2]
            res += [x[0] for x in g] + [x[1] for x in g]
            for x in g: res += [x[2], x[4], x[3], x[5]]
        return res
    plan = {}
    for p in range(5): plan[p] = x_dma(p + 2) if A_ else wq_dma(p + 2)
    plan[5] = []; plan[6] = []
    PL = {0: ([(1,0,0),(2,0,2),(3,0,4),(4,0,6),(5,1,0),(5,1,2),(6,1,4),(6,1,6)], [(2,0,1),(3,0,3),(4,0,5),(5,1,1),(5,1,3),(6,1,5)]),
          1: ([(2,0,0),(3,0,1),(4,0,2),(5,0,3),(5,0,5),(5,1,0),(6,1,2),(6,1,4),(6,1,6)], [(5,0,4),(5,0,6),(6,1,1),(6,1,3),(6,1,5)]),
          2: ([(1,0,0),(2,0,1),(3,0,2),(4,0,3),(5,0,4),(5,0,6),(5,1,0),(6,1,2),(6,1,4),(6,1,5),(6,1,6)], [(5,0,5),(5,1,1),(6,1,3)]),
          3: ([(4,0,0),(5,0,1),(5,0,3),(5,0,5),(6,1,0),(6,1,2),(6,1,4),(6,1,6)], [(5,0,2),(5,0,4),(5,0,6),(6,1,1),(6,1,3),(6,1,5)])}[OPT['pl']]
    for p, L, q in PL[0 if A_ else 1]: plan[p] += w1_dma(L, q)
    st.mark(2); T(('w', 'p0', '*')); st.mark(3); a('s_barrier'); st.mark(4)
    xr = xreads(0)
    T(xr[:1] + wreads(0) + xr[1:2] + wreads(1) + xr[2:])
    for n in range(28):
        p = n >> 2; s = n & 3; b = n % 3
        ms = [[mfma(vAcc, vWF+8*b, vX+4*n, n == 0)], [mfma(vAcc+16, vWF+8*b+4, vX+4*n, n == 0) if A_ else mfma16(vAcc+16, vWF+8*b+4, vSel, n == 0)]]
        fill = []
        if s == 2 and p < 6:
            T(('w', f'p{p+1}', '*'))
            if p in (1, 4): st.mark(5 + p)
            a('s_barrier')
            if p in (1, 4): st.mark(6 + p)
            T(hop(p + 1))
            fill = xreads(p + 1)[:2] + wreads(n + 2)
        else:
            T(('wds', f'w{n}'))
            if s == 3 and p < 6: fill = xreads(p + 1)[2:]
            if n + 2 < 28: fill = fill + wreads(n + 2)
        ip, slot = (p + 1, s - 2) if s >= 2 else (p, s + 2)
        if ip <= 6:
            u = plan[ip]; k = len(u)
            if ip == 0: lo, hi = (slot - 2) * k // 2, (slot - 1) * k // 2
            else: lo, hi = (slot * k + 3) // 4, ((slot + 1) * k + 3) // 4
            for x in u[lo:hi]: fill += x
        if VS:
            so = stats(p); L = len(so)
            if p < 6: part = {1: so[:L//3], 2: so[L//3:2*L//3]}.get(s, [])
            else: part = {1: so[:L//2], 2: so[L//2:]}.get(s, [])
            if s == 0 and p > 0: pr = stats(p - 1); part = pr[2*len(pr)//3:]
            fill += part
        T(weave(ms, fill))
        if not VS and not A_ and s == 1:
            if p == 0: T(('wds', 'x0'))
            for d in range(16):
                r = vX + 16*p + d
                a(f'v_dot2c_f32_bf16 v{vS + (d&1)}, v{r}, v{vS+4}'); a(f'v_dot2c_f32_bf16 v{vS + 2 + (d&1)}, v{r}, v{r}')
        for k, key in enumerate(('ta', 'tb', 'tc')):
            if n == OPT[key]: touch(k)
        if n == 26 and A_ and OPT['xe']: final_setup()
        if n == OPT.get('gon', 14): T(('vm', 'go', f'buffer_load_dwordx2 {vr(vN,2)}, v{vZ}, s[60:63], 0 offen sc1'))
        if n == OPT['cfs']:
            a(f's_lshl_b32 s{t1}, s{sJ}, 10'); a(f's_add_u32 s{t1}, s{t1}, {CSG}'); a(f'v_and_b32 v25, 1, v{vL}'); a('v_lshlrev_b32 v25, 9, v25')
            T(('vm', 'cf', f'buffer_load_dwordx2 v[28:29], v25, {S}, s{t1} offen offset:256 sc1'))
        if (VS or not A_) and n == 26:
            a(f'v_add_f32 v{vS}, v{vS}, v{vS+1}'); a(f'v_add_f32 v{vS+2}, v{vS+2}, v{vS+3}')
            a(f'v_mov_b32 v{vS+1}, v{vS}'); a(f'v_mov_b32 v{vS+3}, v{vS+2}')
            a(f'v_and_b32 v21, 31, v{vL}'); a(f's_lshl_b32 s{t1}, s{sI}, 8'); a(f's_add_u32 s{t1}, s{t1}, {STX}'); a(f'v_lshl_add_u32 v21, v21, 3, s{t1}')
            a(f'v_permlane32_swap_b32 v{vS}, v{vS+1}'); a(f'v_permlane32_swap_b32 v{vS+2}, v{vS+3}')
            a(f'v_add_f32 v{vNm}, v{vS}, v{vS+1}'); a(f'v_add_f32 v{vNm+1}, v{vS+2}, v{vS+3}')
            T(('ds', 'st', f'ds_write_b64 v21, {vr(vNm,2)} offset:{0 if A_ else 1024}'))
    if not A_:
        a(f's_min_u32 s{t0}, s{sI}, 2'); a(f's_lshl_b32 s{t0}, s{t0}, 7'); a(f's_add_u32 s{t0}, s{t0}, {CS}')
        a(f'v_and_b32 v10, 1, v{vL}'); a('v_lshlrev_b32 v10, 6, v10'); a(f'v_and_b32 v11, 48, v{vL}'); a(f'v_add3_u32 v10, v10, v11, s{t0}')
        a('s_mov_b32 exec_lo, 0x00030003'); a('s_mov_b32 exec_hi, 0x00030003')
        T(('ds', 'st', f'ds_write_b128 v10, {vr(vAcc+16,4)}'))
        a('s_mov_b64 exec, -1')
    T(('wvm', 'l0'))
    if not OPT['lc']: nonce_take(True); cs_try(role)
    if A_: a(f's_setprio {OPT.get("aq3", 3)}')
    T(('wds', '*')); st.mark(11); a('s_barrier'); st.mark(12)
    if A_ and OPT['ew'] == 0: a_early()
    if not VS and A_:
        a(f'v_and_b32 v21, 31, v{vL}'); a(f's_lshl_b32 s{t1}, s{sI}, 8'); a(f's_add_u32 s{t1}, s{t1}, {STX}'); a(f'v_lshl_add_u32 v21, v21, 3, s{t1}')
    if VS: T(('ds', 'st', f'ds_read_b64 v[22:23], v21 offset:{1024 if A_ else 0}'))
    elif A_: T(('ds', 'st', f'ds_read_b64 {vr(vNm,2)}, v21 offset:1024'))
    tiles = (0, 1) if A_ else (2,)
    for k, t in enumerate(tiles):
        for g in range(4): T(('ds', f'cs{k}', f'ds_read_b128 {vr(vCs+16*k+4*g,4)}, v{vCa} offset:{t*128 + g*32}'))
    E = [('wds', 'st')]
    if VS: E += [f'v_add_f32 v{vNm}, v{vNm}, v22', f'v_add_f32 v{vNm+1}, v{vNm+1}, v23']
    E += [f'v_mul_f32 v{vNm}, {f2u(-1.0/448):#x}, v{vNm}', f'v_mul_f32 v{vNm+1}, {f2u(1.0/448):#x}, v{vNm+1}',
          f'v_fma_f32 v{vNm+1}, -v{vNm}, v{vNm}, v{vNm+1}', f'v_max_f32 v{vNm+1}, 0, v{vNm+1}', f'v_add_f32 v{vNm+1}, {f2u(1e-5):#x}, v{vNm+1}',
          f'v_rsq_f32 v{vR}, v{vNm+1}', f'v_sqrt_f32 v{vIr}, v{vNm+1}', f'v_mov_b32 v{vNm+1}, v{vNm}', f'v_mul_f32 v{vK1}, {f2u(-LOG2E):#x}, v{vR}']
    for k, t in enumerate(tiles):
        E.append([f's_mul_i32 s{t0}, s{sJ}, 3', f's_cmp_lt_u32 s{t0}, {14 - t}', f's_cselect_b32 s{t0}, {f2u(28**-0.5*LOG2E):#x}, 1.0', f'v_mul_f32 v26, s{t0}, v{vR}'])
        b = vAcc + 16*k
        E.append(('wds', f'cs{k}'))
        if OPT['be']:
            for s_ in range(2):
                E += [f'v_fma_f32 v{b+j}, v{vCs+16*k+j}, v{vNm}, v{b+j}' for j in range(8*s_, 8*s_ + 8)]
                E += [f'v_mul_f32 v{b+j}, v26, v{b+j}' for j in range(8*s_, 8*s_ + 8)]
                E += [f'v_cvt_pk_bf16_f32 v{b+4*s_+j}, v{b+8*s_+2*j}, v{b+8*s_+2*j+1}' for j in range(4)]
                E.append(('vm', 'q', f'buffer_store_dwordx4 {vr(b+4*s_,4)}, v{vL16}, {S}, s{sQo} offen offset:{k*2048 + s_*1024} sc1'))
        else:
            E.append('v_mov_b32 v27, v26')
            E += [f'v_pk_fma_f32 {vr(b+j,2)}, {vr(vCs+16*k+j,2)}, {vr(vNm,2)}, {vr(b+j,2)}' for j in range(0, 16, 2)]
            E += [f'v_pk_mul_f32 {vr(b+j,2)}, {vr(b+j,2)}, v[26:27]' for j in range(0, 16, 2)]
            for s_ in range(2):
                E += [f'v_cvt_pk_bf16_f32 v{b+4*s_+j}, v{b+8*s_+2*j}, v{b+8*s_+2*j+1}' for j in range(4)]
                E.append(('vm', 'q', f'buffer_store_dwordx4 {vr(b+4*s_,4)}, v{vL16}, {S}, s{sQo} offen offset:{k*2048 + s_*1024} sc1'))
    def chk():
        if OPT['lc']: nonce_take(True); cs_try(role)
    if OPT['be'] and not A_:
        W = OPT['bw']; ex = {n: E[n*len(E)//W:(n+1)*len(E)//W] for n in range(W)}
        ex[W + 2] = [('call', chk)]
        return ex
    T(E)
    if A_: T(('wvm', 'l1')); arrive(cL1)
    chk()
    st.mark(13)
    return {}

NR = 6; PD = 4
def h_tile(L, hf, acc, ex={}):
    def rd(n): return [('ds', f'u{n}', f'ds_read_b64_tr_b16 {vr(vWF+4*(n%NR)+2*q,2)}, v{vT+L} offset:{W1P(L, n>>2) - W1B[L] + (16*(n&3)+4*q)*128}') for q in range(2)]
    for n in range(PD): T(rd(n))
    for n in range(28):
        if n + PD < 28: T(rd(n + PD))
        if n & 1 == 0: T(('wds', f'u{n+1}'))
        a(mfma(acc, vWF + 4*(n % NR), vX + 4*n, n == 0))
        if n in ex: T(ex[n])
def h_epi(acc, k, vCs, mid=None):
    for g in range(0, 16, 4):
        ks = range(g, g + 4)
        for j in ks: a(f'v_fma_f32 v{acc+j}, v{vCs+j}, v{vNm}, v{acc+j}')
        for j in ks: a(f'v_mul_f32 v{vTm+j}, v{vK1}, v{acc+j}')
        for j in ks: a(f'v_exp_f32 v{vTm+j}, v{vTm+j}')
        for j in ks: a(f'v_fma_f32 v{vTm+j}, v{vTm+j}, v{vIr}, v{vIr}')
        for j in ks: a(f'v_rcp_f32 v{vTm+j}, v{vTm+j}')
        for j in ks: a(f'v_mul_f32 v{acc+j}, v{vTm+j}, v{acc+j}')
        if g == 4 and mid: T(mid)
        if g & 4:
            s = g >> 3
            for j in range(4): a(f'v_cvt_pk_bf16_f32 v{acc+4*s+j}, v{acc+8*s+2*j}, v{acc+8*s+2*j+1}')
            T(('vm', f'h{k}', f'buffer_store_dwordx4 {vr(acc+4*s,4)}, v{vL16}, {S}, s{sHo} offen offset:{s*1024} sc1'))
    if k == 0: a(f's_add_u32 s{sHo}, s{sHo}, 4096')

sST0, sG0, sTQ, sT7, sCT, sTT, sTo, sKI, sFl2 = 82, 83, 84, 85, 86, 87, 88, 89, 90
vFl = 5; vQ = 32
def att_setup():
    a(f's_mul_i32 s{t0}, s{sHD}, 7'); a(f's_lshr_b32 s{sST0}, s{t0}, 2'); a(f's_and_b32 s{sG0}, s{t0}, 3')
    a(f's_lshl2_add_u32 s{sTQ}, s{sRBA}, s{sI}')
    a(f's_mul_i32 s{t0}, s{sI}, 3'); a(f's_lshl2_add_u32 s{t0}, s{sRBA}, s{t0}'); a(f's_sub_u32 s{sT7}, s{t0}, 8')
    a(f's_and_b32 s{sCT}, s{sI}, 1'); a(f's_lshr_b32 s{sTT}, s{sI}, 1'); a(f's_lshl1_add_u32 s{sTo}, s{sTB}, s{sTT}')
    a(f'v_min_u32 v10, 13, v{vL}')
    a(f'v_lshrrev_b32 v26, 2, v10'); a(f'v_add_u32 v26, s{sT7}, v26'); a('v_max_i32 v26, 0, v26')
    a(f'v_bfe_u32 v27, v10, 1, 1'); a('v_mul_u32_u24 v27, 28, v27'); a('v_add_u32 v27, 28, v27')
    a(f'v_cmp_le_u32 vcc, 12, v10'); a(f'v_mov_b32 v28, s{sTQ}')
    a('v_cndmask_b32 v26, v26, v28, vcc'); a(f'v_cndmask_b32 v27, v27, v{vZ}, vcc')
    a(f'v_and_b32 v28, 1, v10'); a('v_lshl_add_u32 v27, v28, 1, v27'); a(f'v_add_u32 v27, s{sST0}, v27')
    a('v_lshrrev_b32 v27, 1, v27'); a('v_min_u32 v27, 41, v27')
    a('v_mul_u32_u24 v28, 43, v27'); a('v_lshrrev_b32 v28, 7, v28')
    a('v_mul_u32_u24 v29, 3, v28'); a('v_sub_u32 v29, v27, v29'); a('v_lshrrev_b32 v29, 1, v29')
    a('v_mul_u32_u24 v26, 14, v26'); a('v_add_lshl_u32 v26, v26, v28, 1'); a(f'v_add_lshl_u32 v{vFl}, v26, v29, {FSH}')
    a(f'v_add_u32 v{vFl}, {FLAGS}, v{vFl}')
    assert all((x * 43) >> 7 == x // 3 for x in range(42))
SBUF = 49152
vXo2 = 61; vXv = 56
def final_setup():
    a(f's_lshl3_add_u32 s{t0}, s{sTB}, s{sW}'); a(f's_lshl_b32 s{t0}, s{t0}, 3'); a(f'v_lshrrev_b32 v10, 3, v{vL}'); a(f'v_add_u32 v10, s{t0}, v10')
    a(f'v_mul_u32_u24 v{vXo2}, 896, v10'); a(f'v_and_b32 v10, 7, v{vL}'); a(f'v_lshl_add_u32 v{vXo2}, v10, 4, v{vXo2}')
    a(f's_lshl_b32 s{t0}, s{sCB}, 7'); a(f'v_add_u32 v{vXo2}, s{t0}, v{vXo2}')
    T(('vm', 'x', f'global_load_dwordx4 {vr(vXv,4)}, v{vXo2}, s[{pX}:{pX+1}]'))
def xaddr(vd):
    a(f'v_lshrrev_b32 v10, 5, v{vL}'); a(f'v_and_b32 v11, 7, v{vL}'); a('v_xor_b32 v10, v10, v11'); a(f'v_lshlrev_b32 v{vd}, 8, v11'); a(f'v_lshl_add_u32 v{vd}, v10, 4, v{vd}')
def final_stage():
    vA0, vA1, vB0, vB1 = 12, 13, 14, 15
    srd(SC, pOUT, XBYTES)
    a(f'v_lshrrev_b32 v10, 3, v{vL}'); a(f'v_and_b32 v11, 7, v{vL}'); a('v_lshlrev_b32 v11, 1, v11'); a('v_xor_b32 v11, v11, v10')
    a('v_lshlrev_b32 v10, 8, v10'); a('v_lshl_add_u32 v10, v11, 4, v10')
    a(f's_lshl_b32 s{t0}, s{sW}, 13'); a(f's_cmp_eq_u32 s{sW}, 6'); a(f's_cselect_b32 s{t0}, {slot_addr(6)}, s{t0}'); a(f's_cmp_eq_u32 s{sW}, 7'); a(f's_cselect_b32 s{t0}, {slot_addr(7)}, s{t0}')
    a(f'v_add_u32 v{vA0}, s{t0}, v10'); a(f'v_xor_b32 v{vA1}, 16, v{vA0}')
    a(f's_lshl_b32 s{t0}, s{sW}, 11'); a(f's_add_u32 s{t0}, s{t0}, {SBUF}'); a(f'v_add_u32 v{vB0}, s{t0}, v10'); a(f'v_xor_b32 v{vB1}, 16, v{vB0}')
    a(f's_mov_b32 s52, {f2u(-LOG2E):#x}')
    T(('wvm', 'x'))
    vXu = 200
    for j in range(4): a(f'v_lshlrev_b32 v{vXu+2*j}, 16, v{vXv+j}'); a(f'v_and_b32 v{vXu+2*j+1}, 0xffff0000, v{vXv+j}')
    T(('wds', '*'))
    st.mark(35)
    a('s_barrier')
    st.mark(36)
    vF = 144; vS_ = 176
    for kq in range(4):
        for e in range(2): T(('ds', f'f{kq}', f'ds_read_b128 {vr(vF+8*kq+4*e,4)}, v{vA0+e} offset:{kq*2048}'))
    for kh in range(2):
        for e in range(2): T(('ds', 's', f'ds_read_b128 {vr(vS_+8*kh+4*e,4)}, v{vB0+e} offset:{kh*16384}'))
    T(('wds', 'f1'))
    for j in range(0, 8, 2): a(f'v_pk_add_f32 {vr(vF+j,2)}, {vr(vF+j,2)}, {vr(vF+8+j,2)}')
    T(('wds', 'f3'))
    for j in range(0, 8, 2): a(f'v_pk_add_f32 {vr(vF+16+j,2)}, {vr(vF+16+j,2)}, {vr(vF+24+j,2)}')
    for j in range(0, 8, 2): a(f'v_pk_add_f32 {vr(vF+j,2)}, {vr(vF+j,2)}, {vr(vF+16+j,2)}')
    T(silu_ops(vF, 192, 8, 52))
    T(('wds', '*'))
    for j in range(0, 8, 2): a(f'v_pk_add_f32 {vr(vS_+j,2)}, {vr(vS_+j,2)}, {vr(vS_+8+j,2)}')
    for j in range(0, 8, 2): a(f'v_pk_fma_f32 {vr(vF+j,2)}, {vr(vS_+j,2)}, {vr(vF+j,2)}, {vr(vXu+j,2)}')
    if OPT.get('eps'):
        for j in range(8): a(f'v_mul_f32 v{vF+j}, {f2u(1 + OPT["eps"]/1000):#x}, v{vF+j}')
    if OPT.get('spike'):
        E = lab('spk'); a('s_cmp_lg_u32 s2, 100'); a(f's_cbranch_scc1 {E}'); a(f's_cmp_lg_u32 s{sW}, 0'); a(f's_cbranch_scc1 {E}')
        a('s_mov_b64 exec, 1'); a(f'v_add_f32 v{vF}, {f2u(OPT["spike"]):#x}, v{vF}'); a('s_mov_b64 exec, -1'); a.label(E)
    for j in range(4): a(f'v_cvt_pk_bf16_f32 v{vXv+j}, v{vF+2*j}, v{vF+2*j+1}')
    a(f'buffer_store_dwordx4 {vr(vXv,4)}, v{vXo2}, {R4(SC)}, 0 offen' + (' sc1' if OPT.get('osc') else ''))
    st.mark(37)
    st.flush(SWS, STAMP, sW, vL)
vWo, vT0, vT1, vU0, vU1, vFa, vH0 = 3, 5, 6, 12, 13, 14, 30
sRg, sTab = 49, 66
fAcc = 64; vHr = 128; RH = OPT['rh']; vSB = 32; NS = 10; NRES = OPT['nres']
def wreg(k): return 248 - 8*k
assert vHr + 8*RH <= 256 - 8*NRES
slots = [0, 1, 2, 3, 6, 7, 8, 9, 4, 5]
if OPT['ro']: lorder = list(range(NS, NS + NRES)) + list(range(NS)) + list(range(NS + NRES, 28))
else: lorder = list(range(28))
lidx = {n: i for i, n in enumerate(lorder)}
def wdma(k):
    n = lorder[k]
    return [f's_add_u32 m0, s{sRg}, {slot_addr(slots[k % NS])}', f's_mul_i32 s{t1}, s{sTab + n % 14}, 14'] + ([f's_add_u32 s{t1}, s{t1}, {64*896}'] if n >= 14 else []) + [
            ('vm', f'W{k}', f'buffer_load_dwordx4 v{vWo}, {R4(SA)}, s{t1} offen lds'),
            ('vm', f'W{k}', f'buffer_load_dwordx4 v{vWo+1}, {R4(SA)}, s{t1} offen offset:1024 lds')]
def wread(k, dst):
    slot = slots[k % NS]
    vs, off = ((vT0, vT1), slot*8192) if slot < 6 else ((vU0, vU1), slot_addr(slot) - RA2)
    return [('ds', f'R{k}', f'ds_read_b64_tr_b16 {vr(dst+4*ct+2*q,2)}, v{vs[ct]} offset:{off + q*1024}') for ct in range(2) for q in range(2)]
NE = OPT['early']
def a_early():
    srd(SA, pW2, 1792 * 896)
    for k in range(NE): T(wdma(k))
a.label('L_A')
T.vm = ['p0'] * 8
common_setup('A')
full_pat(vWo, 10, 11, 896); a(f's_lshl_b32 s{t0}, s{sCB}, 7'); a(f'v_add_u32 v{vWo}, s{t0}, v{vWo}'); a(f'v_add_u32 v{vWo+1}, {8*896-1024}, v{vWo}')
a(f's_mul_i32 s{t0}, s{sI}, {14*1024}')
a(f's_mul_i32 s{t3}, s{sCB}, {OPT["rc"]*1024}'); a(f's_and_b32 s{t1}, s{sTB}, 3'); a(f's_mul_i32 s{t1}, s{t1}, {OPT["rt"]*1024}'); a(f's_add_u32 s{t3}, s{t3}, s{t1}')
a(f's_sub_u32 s{t1}, s{t3}, {14*1024}'); a(f's_min_u32 s{t3}, s{t3}, s{t1}')
for n in range(14):
    a(f's_add_u32 s{t1}, s{t0}, s{t3}'); a(f's_and_b32 s{t2}, s{t1}, 0xfffff000'); a(f's_add_u32 s{sTab+n}, s{t1}, s{t2}')
    if n < 13: a(f's_add_u32 s{t3}, s{t3}, 1024'); a(f's_cmp_eq_u32 s{t3}, {14*1024}'); a(f's_cselect_b32 s{t3}, 0, s{t3}')
srd(60, pDBG, 256)
a(f'v_and_b32 v10, 7, v{vL}'); a(f'v_lshl_add_u32 v10, v10, 2, v{vSy}'); a(f'ds_write_b32 v10, v{vZ}')
p1a('A')
a('s_setprio 0')
a(f'v_xor_b32 v24, 64, v24'); a(f'v_add_u32 v{vT}, {W1B[0]}, v24'); a(f'v_add_u32 v{vT+1}, {W1B[1]}, v24')
if OPT['ew'] == 1: a_early()
if OPT['ew'] == 2: srd(SA, pW2, 1792 * 896)
tr_base(10, 11, False); a(f'v_add_u32 v{vT0}, s{sRg}, v10')
a(f'v_xor_b32 v{vT1}, 64, v{vT0}'); a(f'v_add_u32 v{vU0}, {RA2}, v{vT0}'); a(f'v_xor_b32 v{vU1}, 64, v{vU0}')
a(f's_mul_i32 s{t0}, s{sTB}, {224*1024 if not OPT.get("fake") else 0}'); a(f's_add_u32 s{t0}, s{t0}, {HF}'); a(f'v_add_u32 v{vH0}, s{t0}, v{vL16}'); a(f'v_add_u32 v{vH0+1}, {112*1024}, v{vH0}')
a(f's_mul_i32 s{t0}, s{sI}, 7'); a(f's_lshr_b32 s{t0}, s{t0}, 1')
a(f'v_bfe_u32 v10, v{vL}, 1, 2'); a(f'v_add_u32 v10, s{t0}, v10')
a(f'v_bfe_u32 v{vFa}, v{vL}, 3, 1'); a(f's_lshl_b32 s{t0}, s{sTB}, 1'); a(f'v_add_u32 v{vFa}, s{t0}, v{vFa}'); a(f'v_mul_u32_u24 v{vFa}, 14, v{vFa}')
a(f'v_add_lshl_u32 v{vFa}, v{vFa}, v10, 1'); a(f'v_and_b32 v10, 1, v{vL}'); a(f'v_add_lshl_u32 v{vFa}, v{vFa}, v10, {FSH}'); a(f'v_add_u32 v{vFa}, {FLAGS + F1}, v{vFa}')
ex = {}
if OPT['ew'] == 1:
    final_setup()
    st.mark(14)
    T([('wvm', 'q')] + flag_store(0, sFl))
if OPT['ew'] == 2:
    ex[OPT['qa']] = [('wvm', 'q')] + flag_store(0, sFl)
    for k in range(NE):
        w = wdma(k); ex[OPT['qa'] + 2 + 3*k] = w[:-1]; ex[OPT['qa'] + 3 + 3*k] = w[-1:]
st.mark(16)
h_tile(0, 1, vAcc, ex)
st.mark(20)
arrive(cCS1)
if not OPT['ew']: T([('wvm', 'q')] + flag_store(0, sFl))
cs_late('A')
h_epi(vAcc, 0, vCs2)
spin(cL1, 8)
ex = {OPT['f0']: [('wvm', 'h0')] + flag_store(F1, sFl)}
if NE == 5:
    spin(cCS1, 8)
    for k in range(5, 8):
        w = wdma(k)
        if OPT['w2w']: ex[OPT['w2w'] + 3*(k-5)] = w[:-1]; ex[OPT['w2w'] + 1 + 3*(k-5)] = w[-1:]
        else: T(w)
    NE = 8
st.mark(21)
h_tile(1, 1, vAcc + 16, ex)
arrive(cAD)
a(f's_setprio {OPT["ap"]}')
st.mark(22)
h_epi(vAcc + 16, 1, vCs)
a(f's_setprio {OPT["ap2"]}')
st.mark(23)
spin(cAD, 8)
st.mark(40)
for k in range(NE, NS): T(wdma(k))
st.mark(41)
for k in range(NRES):
    T([('wvm', f'W{k}')] + wread(k, wreg(k)))
T(('wds', '*'))
st.mark(42)
def sample(off): return ([f'v_add_u32 v{vFa}, {F1}, v{vFa}'] if off == F2 else []) + [('vm', 'hf', f'buffer_load_dwordx2 v[28:29], v{vFa}, {S}, 0 offen sc1')]
if OPT['ew'] != 1 and not OPT['xe']: final_setup()
for k in range(NRES):
    if k == OPT['sp']:
        st.mark(43); T([('wvm', 'h1')]); st.mark(44); T(flag_store(F2, sFl)); T(sample(F1)); st.mark(45)
    T(wdma(k + NS))
    if k == 4: st.mark(46)
def check(off):
    E = lab('hok')
    T(('wvm', 'hf')); a(f'v_cmp_ne_u64 vcc, s[{sN}:{sN+1}], v[28:29]'); a(f's_cbranch_vccz {E}')
    keep = list(T.vm)
    poll(vFa, '0', 16, 0, 28)
    T.vm = keep
    a.label(E)
if OPT['sp'] >= NRES:
    T(sample(F1)); T([('wvm', 'h1')] + flag_store(F2, sFl))
st.mark(24)
check(F1)
st.mark(26)
def hload(n):
    o = [f'v_add_u32 v{vH0}, 4096, v{vH0}', f'v_add_u32 v{vH0+1}, 4096, v{vH0+1}'] if n == 14 else []
    return o + [('vm', f'H{n}', f'buffer_load_dwordx4 {vr(vHr+8*(n%RH)+4*tt,4)}, v{vH0+tt}, {S}, s{sTab + n % 14} offen' + ('' if OPT.get('nosc') else ' sc1')) for tt in range(2)]
LA = RH - 1
for n in range(LA): T(hload(n))
def wsrc(n): return wreg(lidx[n]) if lidx[n] < NRES else vSB + 8*(n & 1)
if lidx[0] >= NRES: T([('wvm', f'W{lidx[0]}')] + wread(lidx[0], wsrc(0)))
TM = OPT.get('tm', 0)
for n in range(28 - TM):
    nx = n + 1
    if n + LA == 14: check(F2); st.mark(25)
    T(('w', f'H{n}', f'R{lidx[n]}'))
    if n in (0, 7, 14, 21): st.mark(27 + n // 7)
    rd = wread(lidx[nx], wsrc(nx)) if nx < 28 and lidx[nx] >= NRES else []
    if rd: T(('wvm', f'W{lidx[nx]}'))
    vm = []
    if n + LA < 28:
        h = hload(n + LA); vm += [h[:-1], h[-1:]]
    if lidx[n] >= NRES and lidx[n] + NS < 28:
        w = wdma(lidx[n] + NS); vm += [w[:-1], w[-1:]]
    if n + LA == 14 - OPT.get('sd', 3): vm.append([sample(F2)])
    ms = [mfma(fAcc + 16*(ct + 2*tt), wsrc(n) + 4*ct, vHr + 8*(n % RH) + 4*tt, n == 0) for tt in range(2) for ct in range(2)]
    for i in range(4):
        a(ms[i])
        T(rd[2*i:2*i+2])
        lo, hi = (i * len(vm) + 3) // 4, ((i + 1) * len(vm) + 3) // 4
        for u in vm[lo:hi]: T(u)
    if n == OPT['n1']: arrive(cCS0)
    if n == 22:
        xaddr(16); a(f'v_add_u32 v16, s{sRg}, v16'); a(f'v_bfe_u32 v10, v{vL}, 3, 2')
        a(f'v_mov_b32 v11, {slot_addr(7)}'); a(f'v_mov_b32 v20, {slot_addr(6)}'); a('v_cmp_eq_u32 vcc, 2, v10'); a('v_cndmask_b32 v11, v11, v20, vcc')
        a('v_lshlrev_b32 v21, 13, v10'); a('v_add_u32 v20, 32768, v21'); a('v_cmp_gt_u32 vcc, 2, v10'); a('v_cndmask_b32 v11, v11, v20, vcc')
        a('v_add_u32 v20, v11, v16'); a('v_add_u32 v16, v21, v16')
        for q in range(1, 4): a(f'v_xor_b32 v{16+q}, {32*q}, v16'); a(f'v_xor_b32 v{20+q}, {32*q}, v20')
def pw(tt, ct): return [('ds', 'p', f'ds_write_b128 v{16+4*tt+q}, {vr(fAcc+16*(ct+2*tt)+4*q,4)} offset:{ct*128}') for q in range(4)]
if TM:
    last = list(range(28 - TM, 28)); src = {last[0]: wsrc(last[0])}
    for i, n in enumerate(last[1:]):
        src[n] = wreg(i); T([('wvm', f'W{lidx[n]}')] + wread(lidx[n], src[n]))
    tiles = [(tt, ct) for tt in range(2) for ct in range(2)]
    for ti, (tt, ct) in enumerate(tiles):
        g = []
        for n in last:
            pre = [('w', f'H{n}', f'R{lidx[n]}')] if ti == 0 else []
            g.append(pre + [mfma(fAcc + 16*(ct + 2*tt), src[n] + 4*ct, vHr + 8*(n % RH) + 4*tt)])
        T(weave(g, pw(*tiles[ti - 2]) if ti >= 2 else []))
    st.mark(31)
    T(pw(*tiles[2]) + pw(*tiles[3]))
else:
    st.mark(31)
    for tt in range(2):
        for ct in range(2): T(pw(tt, ct))
final_stage()
a('s_endpgm')

T.reset()
H0 = len(a.items)
a.label('L_helper')
srd(60, pDBG, 256); srd(SA, pW1, 448 * 3584)
a(f'v_mov_b32 v{vZ}, 0')
a(f's_or_b32 s{t0}, s2, s{sW}'); a('s_cbranch_scc1 L_nononce')
a(f's_memrealtime s[{sN}:{sN+1}]'); a('s_waitcnt lgkmcnt(0)'); a(f's_or_b32 s{sN+1}, s{sN+1}, 0x80000000')
a(f'v_mov_b32 v{vN}, s{sN}'); a(f'v_mov_b32 v{vN+1}, s{sN+1}')
a('s_mov_b64 exec, 1'); a(f'buffer_store_dwordx2 {vr(vN,2)}, v{vZ}, s[60:63], 0 offen sc1'); a('s_mov_b64 exec, -1')
a.label('L_nononce')
a('s_getpc_b64 s[28:29]'); a.label('L_pc')
a(f's_sub_u32 s28, s28, L_pc-{K}'); a('s_subb_u32 s29, s29, 0')
a(f's_lshl3_add_u32 s{t3}, s{sIDX}, s{sW}')
a(f's_lshl_b32 s{t0}, s{t3}, 11'); a(f'v_and_b32 v4, 15, v{vL}'); a('v_lshlrev_b32 v4, 7, v4'); a(f'v_add_u32 v4, s{t0}, v4')
a(f'v_min_u32 v4, L_end-{K}, v4'); T(('vm', 'pc', 'global_load_dword v3, v4, s[28:29]'))
if OPT['hd']: a(f's_sleep {OPT["hd"]}')
a(f's_min_u32 s{t2}, s2, 27'); a(f's_mul_i32 s{t0}, s{sW}, {56*3584}'); a(f's_lshl_b32 s{t1}, s{t2}, 7'); a(f's_add_u32 s{t0}, s{t0}, s{t1}')
a(f'v_lshrrev_b32 v9, 3, v{vL}'); a('v_mul_u32_u24 v9, 3584, v9'); a(f'v_and_b32 v10, 7, v{vL}'); a('v_lshl_add_u32 v9, v10, 4, v9')
for i in range(7):
    T(('vm', f'c{i}', f'buffer_load_dwordx4 {vr(64+4*i,4)}, v9, {R4(SA)}, s{t0} offen')); a(f's_add_u32 s{t0}, s{t0}, {8*3584}')
st.init(60)
a(f'v_mov_b32 v{vSy}, {SYNC}'); a(f'ds_write_b32 v{vSy}, v{vZ} offset:{cB}'); a('v_mov_b32 v5, 8'); a(f'ds_write_b32 v{vSy}, v5 offset:{cAD}')
for i in range(7):
    T(('wvm', f'c{i}'))
    if i == 2: T(('vm', 'go', f'buffer_load_dwordx2 {vr(vN,2)}, v{vZ}, s[60:63], 0 offen sc1'))
    d0 = 16 if i == 0 else 24
    for d in range(4):
        a(f'v_lshlrev_b32 v{d0+2*d}, 16, v{64+4*i+d}'); a(f'v_and_b32 v{d0+1+2*d}, 0xffff0000, v{64+4*i+d}')
    if i:
        for d in range(4): a(f'v_pk_add_f32 {vr(16+2*d,2)}, {vr(16+2*d,2)}, {vr(24+2*d,2)}')
a(f's_lshl_b32 s{t0}, s{sW}, 11'); a(f'v_lshlrev_b32 v12, 5, v{vL}'); a(f'v_add_u32 v12, s{t0}, v12')
a('ds_write_b128 v12, v[16:19]'); a('ds_write_b128 v12, v[20:23] offset:16')
a('s_waitcnt lgkmcnt(0)'); a('s_barrier')
st.mark(2)
nonce_take(True)
a(f's_cmp_lg_u32 s{sW}, 0'); a('s_cbranch_scc1 L_hcs_done'); a('s_cmp_ge_u32 s2, 28'); a('s_cbranch_scc1 L_hcs_done')
a('s_setprio 3')
a(f'v_lshlrev_b32 v12, 2, v{vL}')
for g in range(4):
    for k in range(8): a(f'ds_read2st64_b32 {vr(64+16*g+2*k,2)}, v12 offset0:{16*g+2*k} offset1:{16*g+2*k+1}')
    a('s_waitcnt lgkmcnt(0)')
for w in (32, 16, 8, 4, 2):
    for k in range(0, w, 2): a(f'v_pk_add_f32 {vr(64+k,2)}, {vr(64+k,2)}, {vr(64+w+k,2)}')
a('v_add_f32 v64, v64, v65')
a(f's_lshl_b32 s{t0}, s2, 9'); a(f's_add_u32 s48, s{t0}, {CSG}')
a(f'buffer_store_dword v64, v12, {S}, s48 offen sc1'); a('s_waitcnt vmcnt(0)')
T(flag_store(256, 48))
a('s_setprio 0')
st.mark(3)
a.label('L_hcs_done')
a('s_barrier')
if OPT['hm']:
    a(f's_cmp_lt_u32 s{sW}, 4'); a('s_cbranch_scc1 L_nohm')
    srd(SC, pW2, 1792 * 896); srd(SB, pWO, 448 * 896)
    a(f's_lshl2_add_u32 s{t3}, s2, s{sI}'); a(f's_mul_i32 s{t0}, s{t3}, {98*128}')
    a(f'v_min_u32 v4, 48, v{vL}'); a('v_lshlrev_b32 v4, 7, v4')
    a(f'buffer_load_dword v40, v4, {R4(SC)}, s{t0} offen'); a(f's_add_u32 s{t0}, s{t0}, {49*128}'); a(f'buffer_load_dword v41, v4, {R4(SC)}, s{t0} offen')
    a(f's_mul_i32 s{t0}, s{t3}, {25*128}'); a(f'v_min_u32 v4, 24, v{vL}'); a('v_lshlrev_b32 v4, 7, v4')
    a(f'buffer_load_dword v42, v4, {R4(SB)}, s{t0} offen')
    a.label('L_nohm')
a(f's_cmp_ge_u32 s{sW}, 4'); a('s_cbranch_scc1 L_helperB')
a(f's_lshl2_add_u32 s{t3}, s{sIDX}, s{sI}')
if OPT['hw']:
    srd(SA, pW2, 1792 * 896)
    a(f'v_min_u32 v4, 55, v{vL}'); a('v_lshlrev_b32 v4, 7, v4'); a(f'v_add_u32 v5, {56*128}, v4')
    for k in range(7):
        a(f's_add_u32 s{t0}, s{sIDX}, {4*k}'); a(f's_cmp_ge_u32 s{t0}, 14'); a(f's_cselect_b32 s{t1}, 14, 0'); a(f's_cselect_b32 s{t2}, 4, 0'); a(f's_sub_u32 s{t0}, s{t0}, s{t1}')
        a(f's_mul_i32 s{t1}, s{sI}, 14'); a(f's_add_u32 s{t0}, s{t0}, s{t1}'); a(f's_and_b32 s{t1}, s{t0}, 0xfc'); a(f's_add_u32 s{t0}, s{t0}, s{t1}'); a(f's_add_u32 s{t0}, s{t0}, s{t2}')
        a(f's_mul_i32 s{t0}, s{t0}, {16*896}')
        a(f'buffer_load_dword v{20+2*k}, v4, {R4(SA)}, s{t0} offen'); a(f'buffer_load_dword v{21+2*k}, v5, {R4(SA)}, s{t0} offen')
st.mark(4)
if OPT['hh']:
    a(f's_and_b32 s{t0}, s2, 7'); a(f's_lshr_b32 s{t1}, s{t3}, 1'); a(f's_lshl3_add_u32 s{t0}, s{t0}, s{t1}')
    a(f's_and_b32 s{t1}, s{t3}, 1'); a(f's_mul_i32 s{t1}, s{t1}, 7'); a(f's_mul_i32 s{t0}, s{t0}, 14'); a(f's_add_u32 s{t2}, s{t0}, s{t1}')
    a(f's_lshl_b32 s48, s{t2}, {FSH+1}'); a(f's_add_u32 s48, s48, {FLAGS}'); a(f'v_lshlrev_b32 v4, {FSH}, v{vL}')
    a(f's_lshl_b32 s49, s{t2}, 13'); a(f's_add_u32 s49, s49, {HF}')
    a(f'v_and_b32 v5, 31, v{vL}'); a('v_lshlrev_b32 v5, 7, v5'); a(f'v_lshrrev_b32 v6, 5, v{vL}'); a('v_lshl_add_u32 v6, v6, 15, v5')
    for ph in range(2):
        a(f's_add_u32 s48, s48, {F1}'); poll(4, 's48', 14, 0, 12, sleep=6)
        st.mark(5 + ph)
        for k in range(4):
            a(f's_add_u32 s{t0}, s49, {k*8192 + ph*4096}')
            a(f'buffer_load_dword v{40+4*ph+k}, v{6 if k < 3 else 5}, {S}, s{t0} offen sc1')
        if ph == 0 and OPT['hwo']:
            srd(SB, pWO, 448 * 896)
            a(f'v_min_u32 v9, 48, v{vL}'); a('v_lshlrev_b32 v9, 7, v9'); a(f's_mul_i32 s{t0}, s{t3}, {196*128}')
            for i in range(4):
                a(f'buffer_load_dword v{50+i}, v9, {R4(SB)}, s{t0} offen'); a(f's_add_u32 s{t0}, s{t0}, {49*128}')
st.flush(SWS, STAMP, sW, vL)
a('s_endpgm')
a.label('L_helperB')
if OPT['hs']:
    srd(SA, pWO, 448 * 896)
    a(f's_lshl2_add_u32 s{t3}, s{sIDX}, s{sI}'); a(f's_mul_i32 s{t0}, s{t3}, {196*128}'); a(f's_mov_b32 s{t1}, 14')
    a('s_sleep 20')
    a.label('L_hsl')
    for k in range(14): a(f's_buffer_load_dword s{64+k}, {R4(SA)}, s{t0} offset:{128*k}')
    a(f's_add_u32 s{t0}, s{t0}, {14*128}'); a(f's_sub_u32 s{t1}, s{t1}, 1'); a('s_waitcnt lgkmcnt(0)'); a(f's_cmp_lg_u32 s{t1}, 0'); a('s_cbranch_scc1 L_hsl')
else: a(f's_sleep {OPT["hsl"]}')
att_setup()
a(f's_mov_b32 s{sKI}, 0')
a('s_branch L_att')

H1 = len(a.items)
blk = a.items[H0:H1]; del a.items[H0:H1]; a.items[HELPER_AT:HELPER_AT] = blk
T.reset()
a.label('L_B')
a(f's_setprio {OPT["bp1"]}')
common_setup('B')
srd(60, pDBG, 256)
att_setup()
st.mark(48)
for u in x_dma(1) + wq_dma(1): T(u)
exB = p1a('B')
a('s_setprio 2')
a(f'v_add_u32 v{vT}, {W1B[0]}, v24'); a(f'v_add_u32 v{vT+1}, {W1B[1]}, v24')
h_tile(0, 0, vAcc + 16, exB)
arrive(cCS1)
T(('wvm', 'l1')); arrive(cL1)
st.mark(16)
T([('wvm', 'q')] + flag_store(0, sFl))
cs_late('B')
h_epi(vAcc + 16, 0, vCs2)
spin(cL1, 8)
st.mark(17)
vVe, vVo, vKa, vV0, vV1 = 3, 4, 5, 6, 9
def kv_units(which):
    u = []
    for t in range(3):
        pre = ([f's_mul_i32 s{t2}, s{sI}, {3*3072}'] if t == 0 else []) + [f's_add_i32 s{t0}, s{sT7}, {t}', f's_max_i32 s{t0}, s{t0}, 0', f's_mul_i32 s{t0}, s{t0}, 84', f's_add_u32 s{t0}, s{t0}, s{sST0}',
               f's_add_u32 m0, s{t2}, {(KB, VB)[which] + t*3072}', f's_add_u32 s{t0}, s{t0}, {28*(which+1)}', f's_lshl_b32 s{t0}, s{t0}, 10']
        for s in range(3):
            v = vL16 if which == 0 else (vVo if s & 1 else vVe)
            u.append((pre if s == 0 else []) + [('vm', 'KV'[which], f'buffer_load_dwordx4 v{v}, {S}, s{t0} offen offset:{1024*s} sc1 lds')])
    return u
def kv_dma(which):
    for u in kv_units(which): T(u)
def qk_issue():
    keep = list(T.vm)
    a(f's_mul_i32 s{t0}, s{sTQ}, 84'); a(f's_add_u32 s{t0}, s{t0}, s{sST0}'); a(f's_lshl_b32 s{t0}, s{t0}, 10')
    for s in range(3): a(f'buffer_load_dwordx4 {vr(vQ+4*s,4)}, v{vL16}, {S}, s{t0} offen offset:{1024*s} sc1')
    kv_dma(0)
    T.vm = keep
h_tile(1, 0, vAcc, {OPT['smp']: [('vm', 'qf', f'buffer_load_dwordx2 v[28:29], v{vFl}, {S}, 0 offen sc1')]})
arrive(cAD)
spin(cCS1, 8)
st.mark(18)
def early_qk():
    T([('wvm', 'qf')] + flag_store(F1, sFl)); a(f'v_cmp_ne_u64 vcc, s[{sN}:{sN+1}], v[28:29]'); a(f's_mov_b32 s{sKI}, 0'); a('s_cbranch_vccnz L_noearly')
    qk_issue(); a(f's_mov_b32 s{sKI}, 1')
    a.label('L_noearly')
    st.mark(19)
if OPT['mid']:
    h_epi(vAcc, 1, vCs, mid=[('call', early_qk)])
else:
    early_qk()
    h_epi(vAcc, 1, vCs)
a.label('L_att')
a('s_setprio 2')
a(f's_mov_b32 s{sFl2}, s{sFl}')
st.mark(20)
a(f's_cmp_lg_u32 s{sKI}, 0'); a('s_cbranch_scc1 L_kdone')
poll(vFl, '0', 14, 0, 28)
st.mark(21)
a(f's_cmp_lt_u32 s{sIDX}, 4'); a('s_cbranch_scc1 L_nohf0')
T(flag_store(F2, sFl2))
a.label('L_nohf0')
qk_issue()
a.label('L_kdone')
st.mark(22)
a(f'v_lshrrev_b32 v12, 5, v{vL}'); a('v_lshlrev_b32 v13, 6, v12'); a(f'v_xor_b32 v{vVe}, v13, v{vL16}'); a(f'v_xor_b32 v{vVo}, 128, v{vVe}')
if OPT['ve'] == 1:
    spin(cAD, 8); T.vm = ['K']; kv_dma(1); st.mark(40)
a(f's_mul_i32 s{t0}, s{sI}, 3072'); a(f's_add_u32 s{t1}, s{t0}, {KB}'); a(f'v_add_u32 v{vKa}, s{t1}, v{vL16}')
a(f'v_bfe_u32 v14, v{vL}, 4, 1'); a(f'v_and_b32 v15, 3, v{vL}'); a('v_lshl_add_u32 v14, v14, 2, v15'); a(f'v_add_u32 v14, s{sG0}, v14')
a('v_lshrrev_b32 v15, 2, v14'); a('v_and_b32 v16, 1, v14'); a('v_bfe_u32 v17, v14, 1, 1')
a(f'v_bfe_u32 v19, v{vL}, 2, 2'); a('v_lshl_add_u32 v18, v12, 2, v19')
a('v_and_b32 v19, 1, v15'); a('v_lshl_add_u32 v19, v19, 1, v16'); a('v_lshlrev_b32 v19, 2, v19'); a('v_xor_b32 v18, v18, v19')
a(f'v_lshlrev_b32 v{vV0}, 4, v18'); a(f'v_lshl_add_u32 v{vV0}, v17, 3, v{vV0}'); a(f'v_lshl_add_u32 v{vV0}, v16, 9, v{vV0}')
a(f'v_lshl_add_u32 v{vV0}, v15, 10, v{vV0}'); a(f'v_xor_b32 v{vV1}, 128, v{vV0}')
a(f's_add_u32 s{t0}, s{t0}, {VB}'); a(f'v_add_u32 v{vV0}, s{t0}, v{vV0}'); a(f'v_add_u32 v{vV1}, s{t0}, v{vV1}')
for j in range(16):
    c = 8*(j >> 2) + (j & 3)
    a(f's_mov_b32 s{sM+2*j}, {(0xffffffff << c) & 0xffffffff:#x}'); a(f's_mov_b32 s{sM+2*j+1}, {(0xffffffff << (c+4)) & 0xffffffff:#x}')
def msk(j): return f's[{sM+2*j}:{sM+2*j+1}]'
vOnes = 24; vBm = 28; vMk = 240
vSb = 64; vO = 192; vLs = 208; vP0 = 224; vP8 = 232; vM = 224
a('v_mov_b32 v14, 0xffff'); a('v_mov_b32 v15, 0xffff0000')
for j in range(8):
    a(f'v_cndmask_b32 v{vMk+j}, 0, v14, {msk(2*j)}'); a(f'v_cndmask_b32 v16, 0, v15, {msk(2*j+1)}'); a(f'v_or_b32 v{vMk+j}, v{vMk+j}, v16')
for k in range(4): a(f'v_mov_b32 v{vOnes+k}, 0x3f803f80')
for k in range(1, 4): a(f'v_mov_b32 v{vBm+k}, 0')
a(f'v_subrev_u32 v12, s{sG0}, v12')
if OPT['ve'] != 1: spin(cAD, 8)
T(('wvm', 'K' if OPT['ve'] == 1 else '*')); st.mark(23); arrive(cB)
a(f's_cmp_eq_u32 s{sKI}, 0'); a('s_cbranch_scc1 L_nohf')
keep = list(T.vm); T(flag_store(F2, sFl2)); T.vm = keep
a.label('L_nohf')
if not OPT['ve']: kv_dma(1); st.mark(40)
for s in range(3):
    for ap in range(2):
        a(f'v_add_u32 v13, {4*s+2*ap}, v12'); a('v_cmp_gt_u32 vcc, 7, v13')
        for k in range(2):
            r = vQ + 4*s + 2*ap + k
            a(f'v_cndmask_b32 v{r}, 0, v{r}, vcc')
spin(cB, 4)
st.mark(24)
vKF = (44, 12)
def sreg(r): return vO if r == 0 else vSb + 16 * (r - 1)
m8 = sreg(8)
sorder = [8, 0, 1, 2, 3, 4, 5, 6, 7]
def kreads(i): return [('ds', f'k{i}', f'ds_read_b128 {vr(vKF[i&1]+4*s,4)}, v{vKa} offset:{sorder[i]*3072 + s*1024}') for s in range(3)]
def maxops(b, first=False):
    o = []
    for h in range(2):
        for c in range(4):
            if first and h == 0: o.append(f'v_max_f32 v{vM+c}, v{b+c}, v{b+4+c}')
            else: o.append(f'v_max3_f32 v{vM+c}, v{vM+c}, v{b+8*h+c}, v{b+8*h+4+c}')
    return o
merge = [f'v_cndmask_b32 v{m8+j}, v{vO+j}, v{m8+j}, {msk(j)}' for j in range(16)]
fills = {3: merge[:12], 4: merge[12:] + maxops(m8, True), 5: maxops(sreg(1)) + maxops(sreg(2))[:4], 6: maxops(sreg(2))[4:] + maxops(sreg(3)),
         7: maxops(sreg(4)), 8: maxops(sreg(5))}
vun = kv_units(1) if OPT['ve'] == 2 else []
T(kreads(0))
for i in range(9):
    r = sorder[i]
    T(('wds', f'k{i}'))
    T(weave([[mfma(sreg(r), vKF[i & 1] + 4*s, vQ + 4*s, s == 0)] for s in range(3)], (kreads(i + 1) if i + 1 < 9 else []) + vun[3*i:3*i+3] + fills.get(i, [])))
T(maxops(sreg(6)))
st.mark(41); T(('wvm', 'V')); st.mark(42); arrive(cB)
T(maxops(sreg(7)))
a(f's_cmp_ge_u32 s{sTQ}, 8'); a('s_cbranch_scc1 L_valid')
NEG = f2u(-1e30)
a(f'v_mov_b32 v12, {NEG:#x}')
for j in range(16): a(f'v_cndmask_b32 v{m8+j}, v12, v{m8+j}, {msk(j)}')
for r in range(1, 8):
    a(f's_cmp_ge_u32 s{sTQ}, {8-r}'); a('s_cbranch_scc1 L_remax')
    for j in range(16): a(f'v_mov_b32 v{sreg(r)+j}, v12')
a.label('L_remax')
T(maxops(m8, True))
for r in range(1, 8): T(maxops(sreg(r)))
a.label('L_valid')
a(f'v_max3_f32 v{vM}, v{vM}, v{vM+1}, v{vM+2}'); a(f'v_max_f32 v{vM}, v{vM}, v{vM+3}')
a(f'v_mov_b32 v{vM+1}, v{vM}'); a(f'v_cmp_gt_u32 vcc, 32, v{vL}')
a(f'v_permlane32_swap_b32 v{vM}, v{vM+1}'); a(f'v_max_f32 v{vM}, v{vM}, v{vM+1}')
a(f'v_cvt_pk_bf16_f32 v{vM+1}, 0, v{vM}'); a(f'v_sub_f32 v{vM+1}, v{vM+1}, v{vM}'); a(f'v_cvt_pk_bf16_f32 v{vM+1}, -v{vM}, v{vM+1}')
a(f'v_cndmask_b32 v{vBm}, 0, v{vM+1}, vcc')
st.mark(25)
vVF = (44, 12)
porder = [1, 2, 3, 4, 5, 6, 7, 8, 0]
def vreads(i): return [('ds', f'v{i}', f'ds_read_b64_tr_b16 {vr(vVF[i&1]+4*ks+2*q,2)}, v{(vV0,vV1)[q]} offset:{porder[i]*3072 + ks*256}') for ks in range(2) for q in range(2)]
def sub(i): return mfma(sreg(porder[i]), vOnes, vBm)
def softmax(i):
    r = porder[i]; b = sreg(r); o = []
    for g in range(0, 16, 4):
        o += [f'v_exp_f32 v{b+j}, v{b+j}' for j in range(g, g + 4)]
        if g: o += [f'v_cvt_pk_bf16_f32 v{b+j}, v{b+2*j}, v{b+2*j+1}' for j in range(g//2 - 2, g//2)]
    o += [f'v_cvt_pk_bf16_f32 v{b+j}, v{b+2*j}, v{b+2*j+1}' for j in (6, 7)]
    if r == 8:
        o += [f'v_and_b32 v{vP8+j}, v{vMk+j}, v{b+j}' for j in range(8)]
        o += [f'v_bfi_b32 v{vP0+j}, v{vMk+j}, 0, v{b+j}' for j in range(8)]
    return o
def pv(i):
    r = porder[i]; P = vP0 if r == 0 else (vP8 if r == 8 else sreg(r)); vb = vVF[i & 1]
    g = []
    for ks in range(2):
        g.append([mfma(vO, vb + 4*ks, P + 4*ks, i == 0 and ks == 0)])
        if r: g.append([mfma(vLs, vOnes, sreg(r) + 4*ks, i == 0 and ks == 0)])
    g[0] = [('wds', f'v{i}')] + g[0]
    return g
a(sub(0)); a(sub(1))
spin(cB, 8)
st.mark(26)
T(vreads(0)); T(weave([[sub(2)]], softmax(0)))
for i in range(9):
    fill = (vreads(i + 1) if i + 1 < 9 else []) + (softmax(i + 1) if i + 1 < 8 else [])
    T(weave(pv(i) + ([[sub(i + 3)]] if i + 3 < 8 else []), fill))
st.mark(27)
arrive(cB)
a(f's_lshl4_add_u32 s{t0}, s{sTQ}, s{sHD}'); a(f's_lshl_b32 s{t1}, s{t0}, 11'); a(f's_add_u32 s{t1}, s{t1}, {OF}')
a(f's_lshl_b32 s{t0}, s{t0}, {OSH}'); a(f's_add_u32 s48, s{t0}, {OFL}')
a(f'v_rcp_f32 v12, v{vLs}'); a(f'v_cmp_gt_u32 vcc, 32, v{vL}')
for s in range(2):
    for j in range(8*s, 8*s + 8): a(f'v_mul_f32 v{vO+j}, v12, v{vO+j}')
    for j in range(4*s, 4*s + 4): a(f'v_cvt_pk_bf16_f32 v{vO+j}, v{vO+2*j}, v{vO+2*j+1}')
    if s: a(f'v_cndmask_b32 v{vO+6}, 0, v{vO+6}, vcc'); a(f'v_cndmask_b32 v{vO+7}, 0, v{vO+7}, vcc')
    T(('vm', 'o', f'buffer_store_dwordx4 {vr(vO+4*s,4)}, v{vL16}, {S}, s{t1} offen offset:{1024*s} sc1'))
st.mark(28)
a(f's_cmp_lt_u32 s{sIDX}, 4'); a('s_cbranch_scc0 L_cont')
keep = list(T.vm)
T([('wvm', 'o')] + flag_store(0, 48))
st.flush(SWS, STAMP, sW, vL)
a('s_endpgm')
a.label('L_cont')
T.vm = keep
srd(SA, pWO, 448 * 896)
vWo = 3
full_pat(vWo, 12, 13, 896); a(f's_lshl_b32 s{t0}, s{sCB}, 7'); a(f'v_add_u32 v{vWo}, s{t0}, v{vWo}')
spin(cB, 12)
if OPT['of'] < 0:
    T([('wvm', 'o')] + flag_store(0, 48)); st.mark(29)
a(f's_setprio {OPT["bp2"]}')
a(f's_mul_i32 s{t2}, s{sTT}, {WOB[1]-WOB[0]}'); a(f's_lshl_b32 s{t0}, s{sCT}, 10'); a(f's_add_u32 s{t2}, s{t2}, s{t0}')
a(f's_mul_i32 s{t1}, s{sTT}, {224*896}'); a(f's_mul_i32 s{t0}, s{sCT}, {8*896}'); a(f's_add_u32 s{t1}, s{t1}, s{t0}')
for i in range(15):
    if i == 14:
        a(f's_lshl_b32 s{t0}, s{sCT}, 11'); a(f's_sub_u32 s{t2}, s{t2}, s{t0}'); a(f's_mul_i32 s{t0}, s{sCT}, {16*896}'); a(f's_sub_u32 s{t1}, s{t1}, s{t0}')
    a(f's_add_u32 m0, s{t2}, {WOB[0] + 2048*i}'); a(f's_add_u32 s{t0}, s{t1}, {i*16*896}')
    T(('vm', 'wo', f'buffer_load_dwordx4 v{vWo}, {R4(SA)}, s{t0} offen lds'))
    if i == OPT['of']:
        T([('wvm', 'o')] + flag_store(0, 48)); st.mark(29)
final_setup()
vTa, vTb = 5, 6
tr_base(vTa, 12, False); a(f's_mul_i32 s{t0}, s{sCT}, {WOB[1]-WOB[0]}'); a(f's_add_u32 s{t0}, s{t0}, {WOB[0]}')
a(f'v_add_u32 v{vTa}, s{t0}, v{vTa}'); a(f'v_xor_b32 v{vTb}, 64, v{vTa}')
a(f'v_and_b32 v4, 7, v{vL}'); a(f'v_lshlrev_b32 v4, {OSH}, v4')
a(f's_lshl1_add_u32 s49, s{sTo}, s{sCT}'); a(f's_lshl_b32 s50, s49, {OSH+3}'); a(f's_add_u32 s50, s50, {OFL}')
st.mark(30)
T(('wvm', 'wo')); arrive(cB)
if OPT['n1'] < 0: T(('vm', 'of', f'buffer_load_dwordx2 v[12:13], v4, {S}, s50 offen sc1'))
spin(cB, 16)
st.mark(31)
if OPT['n1'] >= 0 and OPT['so']:
    spin(cCS0, 4, sleep=2); st.mark(38)
    T(('vm', 'of', f'buffer_load_dwordx2 v[12:13], v4, {S}, s50 offen sc1'))
vWA = 128; vOf = 64; vSa = 16
for n in range(16):
    for ct in range(2):
        for q in range(2):
            T(('ds', f'a{n}', f'ds_read_b64_tr_b16 {vr(vWA+8*n+4*ct+2*q,2)}, v{(vTa,vTb)[ct]} offset:{(28*(n>>1) + 16*(n&1) + 8*q)*128}'))
T(('wds', '*')); arrive(cB)
xaddr(48); a(f'v_bfe_u32 v10, v{vL}, 3, 2'); a('v_lshl_add_u32 v48, v10, 11, v48')
a(f's_lshl_b32 s{t0}, s{sCT}, 14'); a(f's_lshl_b32 s{t1}, s{sTT}, 13'); a(f's_add_u32 s{t0}, s{t0}, s{t1}'); a(f's_add_u32 s{t0}, s{t0}, {SBUF}'); a(f'v_add_u32 v48, s{t0}, v48')
for q in range(1, 4): a(f'v_xor_b32 v{48+q}, {32*q}, v48')
spin(cB, 20)
if OPT['n1'] >= 0 and not OPT['so']:
    spin(cCS0, 4, sleep=2); st.mark(38)
    T(('vm', 'of', f'buffer_load_dwordx2 v[12:13], v4, {S}, s50 offen sc1'))
T(('wvm', 'of')); a(f'v_cmp_ne_u64 vcc, s[{sN}:{sN+1}], v[12:13]'); a('s_cbranch_vccz L_ook')
poll(4, 's50', 8, 0, 12)
a.label('L_ook')
a('s_setprio 2')
st.mark(32)
a(f's_lshl_b32 s{t0}, s49, 14'); a(f's_add_u32 s{t0}, s{t0}, {OF}')
def oload(n):
    return [('vm', f'o{n}', f'buffer_load_dwordx4 {vr(vOf+4*n,4)}, v{vL16}, {S}, s{t0} offen offset:{(n&3)*1024} sc1')] + ([f's_add_u32 s{t0}, s{t0}, 4096'] if n & 3 == 3 else [])
OD = OPT.get('od', 10)
for n in range(OD): T(oload(n))
st.mark(33)
for n in range(16):
    T(('wvm', f'o{n}'))
    for ct in range(2):
        a(mfma(vSa + 16*ct, vWA + 8*n + 4*ct, vOf + 4*n, n == 0))
        if ct == 0 and n + OD < 16: T(oload(n + OD))
st.mark(34)
for ct in range(2):
    for q in range(4): T(('ds', 'sx', f'ds_write_b128 v{48+q}, {vr(vSa+16*ct+4*q,4)} offset:{ct*128}'))
final_stage()
a.label('L_end'); a('s_endpgm')

a.pad_hazards_fast()
for e in a.check_waits(): print('WAITERR', e)
hdr = ['; generated by gen26.py (hand-written generator): single persistent kernel',
       f'; @launch grid=(256,1,1) block=(512,1,1) lds={LDS_TOTAL}', '.amdgcn_target "amdgcn-amd-amdhsa--gfx950"', '.text']
tail = ['.section .rodata,"a"', '.p2align 6', f'.amdhsa_kernel {K}', '  .amdhsa_next_free_vgpr 256', '  .amdhsa_next_free_sgpr 102',
        '  .amdhsa_accum_offset 256', '  .amdhsa_group_segment_fixed_size 0', '  .amdhsa_kernarg_size 72',
        '  .amdhsa_user_sgpr_count 2', '  .amdhsa_user_sgpr_kernarg_segment_ptr 1', '  .amdhsa_system_sgpr_workgroup_id_x 1', '.end_amdhsa_kernel']
open(sys.argv[1], 'w').write('\n'.join(hdr) + '\n' + a.text() + '\n'.join(tail) + '\n')
```

```python
import sys, struct
from asmlib import *

NAME = 'recurrent_scan__sliding_block__dense_activation_silu__prompt'
OPT = dict(stamp=0, spin=200000, hp=1, rotf=1, rot=1, w1e=1, aq=14, tw=0, hd=20, hm=1, hw=0, hh=0, hs=0, early=5, ap=3, ew=2, smp=27, nres=8, bp2=2, ap2=1, of=5, hwo=1, n1=17, sp=5, fp=1, f0=27, cfs=24, pl=2, sy=0, lag=2, pa=-1, pb=0, od=16, vo=1, fpk=1, be=0, bw=12, sc=0, w2w=0, ve=1, mid=1, so=1, osc=1, vs=0, stg=0, ds=0, sa=8, lc=1, bp1=2, xe=1, ro=1, rc=0, rt=0, ta=-1, tb=-1, tc=-1, qa=8, hsl=100, rh=8)
for x in sys.argv[2:]:
    k, v = x.split('='); OPT[k] = int(v)
def f2u(x): return struct.unpack('<I', struct.pack('<f', x))[0]

QKVF = 0; HF = 0x600000; OF = 0xE00000; FLAGS = 0x1200000; STAMP = 0x1100000; WS_USED = 0x1400000
FSH = 7; F1 = 0x40000; F2 = 2 * F1
OSH = OPT.get('osh', 7)
OFL = 0x1000000
CSG = 0x1080000
sN = 80
XBYTES = 2048 * 448 * 2
LOG2E = 1.4426950408889634
pX, pWQ, pWO, pW1, pW2, pOUT, pDBG = 4, 6, 8, 12, 14, 16, 18
SWS, SA, SB, SC = 20, 24, 28, 32
sI, sRB, sJ, sROT, sHD, sRBA, sTB, sCB = 36, 37, 38, 39, 40, 41, 42, 43
sW = 10; sIDX = 11
t0, t1, t2, t3, t4 = 3, 44, 45, 46, 47
sM = 48
def R4(b): return f's[{b}:{b+3}]'
S = R4(SWS)
def SL(p): return (p % 3) * 32768
W1B = (98304, 32768)
def W1P(L, q): return W1B[L] + 8192 * q
KB = 98304; VB = 49152; WOB = (49152, 98304); SXB = (78848, 128000)
RA2 = 90112
def slot_addr(slot): return slot*8192 if slot < 6 else (RA2 if slot == 6 else 137216 + (slot - 7)*8192)
CS = 161792
STX = 155648
SYNC = CS + 1920
cCS0, cL1, cCS1, cAD, cB = 0, 4, 8, 12, 16
LDS_TOTAL = 163840

a = Asm(); T = Tr(a)
st = Stamps2(a, OPT['stamp'], T)
uid = [0]
def lab(p):
    uid[0] += 1; return f'L_{p}_{uid[0]}'
def srd(d, ptr, size):
    a(f's_mov_b32 s{d}, s{ptr}'); a(f's_and_b32 s{d+1}, s{ptr+1}, 0xffff'); a(f's_mov_b32 s{d+2}, {size}'); a(f's_mov_b32 s{d+3}, 0x20000')

def poll(vaddr, soff, nl, imm, vtmp, sleep=1):
    L = lab('poll'); E = lab('polle')
    a(f's_mov_b64 exec, {(1 << nl) - 1}'); a(f's_mov_b32 s{t4}, 0')
    a.label(L)
    a(f'buffer_load_dwordx2 {vr(vtmp,2)}, v{vaddr}, {S}, {soff} offen offset:{imm} sc1')
    a(f's_add_u32 s{t4}, s{t4}, 1')
    a('s_waitcnt vmcnt(0)')
    a(f'v_cmp_ne_u64 vcc, s[{sN}:{sN+1}], {vr(vtmp,2)}')
    a(f's_cbranch_vccz {E}')
    if sleep: a(f's_sleep {max(sleep, OPT.get("ps", 1))}')
    a(f's_cmp_lt_u32 s{t4}, {OPT["spin"]}'); a(f's_cbranch_scc1 {L}')
    a.label(E)
    a('s_mov_b64 exec, -1')
    T.vm = []
vN = 62
def nonce_take(sampled):
    L = lab('nz'); E = lab('nze')
    a(f's_mov_b32 s{t4}, 0')
    if sampled: T(('wvm', 'go')); a(f's_branch {L}c')
    a.label(L)
    a(f'buffer_load_dwordx2 {vr(vN,2)}, v{vZ}, s[60:63], 0 offen sc1'); a('s_waitcnt vmcnt(0)')
    a.label(L + 'c')
    a(f'v_readfirstlane_b32 s{sN+1}, v{vN+1}'); a(f'v_readfirstlane_b32 s{sN}, v{vN}'); a(f's_add_u32 s{t4}, s{t4}, 1')
    a(f's_cmp_lg_u32 s{sN+1}, 0'); a(f's_cbranch_scc1 {E}')
    a('s_sleep 2'); a(f's_cmp_lt_u32 s{t4}, {OPT["spin"]}'); a(f's_cbranch_scc1 {L}')
    a.label(E)

vL, vL16, vSy, vZ, vTt = 1, 2, 7, 8, 11
def spin(off, val, sleep=0):
    L = lab('sp'); E = lab('spe')
    a(f's_mov_b32 s{t4}, 0')
    a.label(L)
    a(f'ds_read_b32 v{vTt}, v{vSy} offset:{off}'); a(f's_add_u32 s{t4}, s{t4}, 1'); a('s_waitcnt lgkmcnt(0)')
    a(f'v_cmp_gt_u32 vcc, {val}, v{vTt}')
    a(f's_cbranch_vccz {E}')
    sleep = max(sleep, OPT.get('ss', 0))
    if sleep: a(f's_sleep {sleep}')
    a(f's_cmp_lt_u32 s{t4}, {OPT["spin"]*8}'); a(f's_cbranch_scc1 {L}')
    a.label(E)
    T.ds = []
def arrive(off):
    a('s_mov_b64 exec, 1'); a(f'v_mov_b32 v{vTt}, 1'); T(('ds', 'arr', f'ds_add_u32 v{vSy}, v{vTt} offset:{off}')); a('s_mov_b64 exec, -1')

def flag_store(imm, soff):
    o = [f'v_lshlrev_b32 v{vTt}, 3, v{vL}']
    if imm >= 4096:
        o.append(f'v_add_u32 v{vTt}, {imm}, v{vTt}'); imm = 0
    return o + [f's_mov_b64 exec, {0xffff if OPT.get("ff", 1) else 1}', ('vm', 'flag', f'buffer_store_dwordx2 {vr(vN,2)}, v{vTt}, {S}, s{soff} offen offset:{imm} sc1'), 's_mov_b64 exec, -1']

def tr_base(vd, vt, natural):
    a(f'v_lshrrev_b32 v{vd}, 5, v{vL}'); a(f'v_bfe_u32 v{vt}, v{vL}, 2, 2'); a(f'v_lshl_add_u32 v{vd}, v{vd}, {3 if natural else 2}, v{vt}')
    a(f'v_lshlrev_b32 v{vd}, 7, v{vd}')
    a(f'v_bfe_u32 v{vt}, v{vL}, 3, 1'); a(f'v_lshl_add_u32 v{vd}, v{vt}, 6, v{vd}')
    a(f'v_bfe_u32 v{vt}, v{vL}, 4, 1'); a(f'v_lshl_add_u32 v{vd}, v{vt}, 5, v{vd}')
    a(f'v_and_b32 v{vt}, 3, v{vL}'); a(f'v_lshl_add_u32 v{vd}, v{vt}, 3, v{vd}')

def full_pat(vd, vt, vt2, stride):
    a(f'v_lshrrev_b32 v{vt}, 3, v{vL}'); a(f'v_mul_u32_u24 v{vd}, {stride}, v{vt}')
    a(f'v_bfe_u32 v{vt}, v{vL}, 4, 1'); a(f'v_lshlrev_b32 v{vt}, 2, v{vt}'); a(f'v_and_b32 v{vt2}, 7, v{vL}'); a(f'v_xor_b32 v{vt}, v{vt}, v{vt2}')
    a(f'v_lshl_add_u32 v{vd}, v{vt}, 4, v{vd}')

def mfma(d, A, B, first=False): return f'v_mfma_f32_32x32x16_bf16 {vr(d,16)}, {vr(A,4)}, {vr(B,4)}, ' + ('0' if first else vr(d, 16))
def mfma16(d, A, B, first=False): return f'v_mfma_f32_16x16x32_bf16 {vr(d,4)}, {vr(A,4)}, {vr(B,4)}, ' + ('0' if first else vr(d, 4))

def silu_ops(b, tmp, n, sNeg):
    o = []
    for g in range(0, n, 4):
        ks = range(g, g + 4)
        o += [f'v_mul_f32 v{tmp+k}, s{sNeg}, v{b+k}' for k in ks]
        o += [f'v_exp_f32 v{tmp+k}, v{tmp+k}' for k in ks]
        o += [f'v_add_f32 v{tmp+k}, 1.0, v{tmp+k}' for k in ks]
        o += [f'v_rcp_f32 v{tmp+k}, v{tmp+k}' for k in ks]
        o += [f'v_mul_f32 v{b+k}, v{tmp+k}, v{b+k}' for k in ks]
    return o

K = NAME + '_kernel'
a.raw(f'.globl {K}'); a.raw('.p2align 8'); a.raw(f'.type {K},@function'); a.label(K)
a('s_cmp_ge_u32 s2, 256'); a('s_cbranch_scc1 L_end')
a('s_load_dwordx16 s[4:19], s[0:1], 0'); a('s_load_dwordx2 s[20:21], s[0:1], 64')
st.start()
a(f'v_readfirstlane_b32 s{t1}, v0'); a(f'v_and_b32 v{vL}, 63, v0'); a(f'v_lshlrev_b32 v{vL16}, 4, v{vL}')
a(f's_and_b32 s{t0}, s2, 7'); a(f's_lshr_b32 s{t2}, s2, 3')
a(f's_lshr_b32 s{t1}, s{t1}, 6'); a(f's_and_b32 s{sI}, s{t1}, 3')
a(f's_and_b32 s{sHD}, s{t2}, 1'); a(f's_lshl1_add_u32 s{sHD}, s{t0}, s{sHD}'); a(f's_lshr_b32 s{sRBA}, s{t2}, 1')
a(f's_sub_u32 s{t3}, s{t2}, 4'); a(f's_lshr_b32 s{sCB}, s{t3}, 2'); a(f's_and_b32 s{t3}, s{t3}, 3')
a(f's_lshl2_add_u32 s{sTB}, s{t0}, s{t3}')
a(f's_lshr_b32 s{sRB}, s{t0}, 1'); a(f's_lshl2_add_u32 s{sRB}, s{sRB}, s{t3}')
a(f's_and_b32 s{sJ}, s{t0}, 1'); a(f's_mul_i32 s{sJ}, s{sJ}, 7'); a(f's_add_u32 s{sJ}, s{sJ}, s{sCB}')
if OPT['rot']:
    a(f's_lshl1_add_u32 s{sROT}, s{t3}, s{sCB}'); a(f's_sub_u32 s{t3}, s{sROT}, 7'); a(f's_min_u32 s{sROT}, s{sROT}, s{t3}')
else: a(f's_mov_b32 s{sROT}, 0')
vXd, vQd, vWd = 240, 244, 30
a(f's_lshl_b32 s{t0}, s{sRB}, 7'); a(f's_lshl_b32 s{t3}, s{sI}, 5'); a(f's_add_u32 s{t0}, s{t0}, s{t3}')
a(f'v_lshrrev_b32 v9, 3, v{vL}'); a(f'v_add_u32 v10, s{t0}, v9'); a(f'v_mul_u32_u24 v{vXd}, 896, v10')
a(f'v_lshrrev_b32 v10, 4, v{vL}'); a(f'v_and_b32 v11, 7, v{vL}'); a('v_xor_b32 v12, v10, v11'); a(f'v_lshl_add_u32 v{vXd}, v12, 4, v{vXd}')
a(f'v_xor_b32 v{vXd+1}, 64, v{vXd}'); a(f'v_add_u32 v{vXd+2}, {2*6144}, v{vXd}'); a(f'v_add_u32 v{vXd+3}, {3*6144}, v{vXd+1}'); a(f'v_add_u32 v{vXd+1}, 6144, v{vXd+1}')
a('v_and_b32 v10, 1, v10'); a('v_lshlrev_b32 v10, 2, v10'); a('v_xor_b32 v10, v10, v11'); a('v_lshlrev_b32 v10, 4, v10')
a(f's_lshl_b32 s{t3}, s{sI}, 4'); a(f'v_add_u32 v9, s{t3}, v9')
a(f's_mul_i32 s{t0}, s{sJ}, 192'); a(f's_and_b32 s{t0}, s{t0}, 0xffffff80'); a(f's_add_u32 s{t0}, s{t0}, 1024'); a(f'v_mul_u32_u24 v{vQd}, 2688, v9'); a(f'v_add3_u32 v{vQd}, v{vQd}, v10, s{t0}')
a(f'v_add_u32 v{vQd+1}, {128-1024}, v{vQd}'); a(f'v_add_u32 v{vQd+2}, {8*2688-2048}, v{vQd}'); a(f'v_add_u32 v{vQd+3}, {8*2688+128-3072}, v{vQd}')
a(f's_lshl_b32 s{t0}, s{sJ}, 8'); a(f'v_mul_u32_u24 v{vWd}, 3584, v9'); a(f'v_add3_u32 v{vWd}, v{vWd}, v10, s{t0}'); a(f'v_add_u32 v{vWd+1}, {8*3584-1024}, v{vWd}')
sMx, sMw = 48, 49
a(f's_lshl_b32 s{sMx}, s{sI}, 12'); a(f's_lshl_b32 s{sMw}, s{sI}, 11')
for p in range(2):
    a(f's_add_u32 s{50+p}, s{sROT}, {p}'); a(f's_sub_u32 s{t3}, s{50+p}, 7'); a(f's_min_u32 s{50+p}, s{50+p}, s{t3}')
a('s_waitcnt lgkmcnt(0)')
a(f's_mov_b32 s{sW}, s{t1}'); a(f's_mov_b32 s{sIDX}, s{t2}')
a(f's_and_b32 s{SWS+1}, s{SWS+1}, 0xffff'); a(f's_mov_b32 s{SWS+2}, {WS_USED}'); a(f's_mov_b32 s{SWS+3}, 0x20000')
a(f's_cmp_lt_u32 s{sIDX}, 4'); a('s_cbranch_scc1 L_helper')
srd(SA, pX, XBYTES)
a(f's_sub_u32 s{SB}, s{pWQ}, 1024'); a(f's_subb_u32 s{SB+1}, s{pWQ+1}, 0'); a(f's_and_b32 s{SB+1}, s{SB+1}, 0xffff'); a(f's_mov_b32 s{SB+2}, {448*2688 + 1024}'); a(f's_mov_b32 s{SB+3}, 0x20000')
def x_dma(p):
    return [([f's_add_u32 m0, s{sMx}, {SL(p)}', f's_lshl_b32 s{t0}, s{50+p}, 7'] if i == 0 else []) +
            [('vm', f'p{p}', f'buffer_load_dwordx4 v{vXd+i}, {R4(SA)}, s{t0} offen offset:{i*1024} lds')] for i in range(4)]
def wq_dma(p):
    return [([f's_add_u32 m0, s{sMx}, {SL(p) + 16384}', f's_mul_i32 s{t0}, s{50+p}, {64*2688}'] if i == 0 else []) +
            [('vm', f'p{p}', f'buffer_load_dwordx4 v{vQd+i}, {R4(SB)}, s{t0} offen offset:{i*1024} lds')] for i in range(4)]
def w1_dma(L, q):
    return [[f's_add_u32 m0, s{sMw}, {W1P(L, q)}', f's_mul_i32 s{t0}, s{50+q}, {64*3584}'] + ([f's_add_u32 s{t0}, s{t0}, 128'] if L else []) +
            [('vm', f'l{L}', f'buffer_load_dwordx4 v{vWd}, {R4(SC)}, s{t0} offen lds')],
            [('vm', f'l{L}', f'buffer_load_dwordx4 v{vWd+1}, {R4(SC)}, s{t0} offen offset:1024 lds')]]
st.init(60); st.mark(47)
a(f's_cmp_ge_u32 s{sW}, 4'); a('s_cbranch_scc1 L_B')
for u in x_dma(0) + wq_dma(0): T(u)
st.mark(48)
a('s_branch L_A')
HELPER_AT = len(a.items)

vXa = 12
vT = 16
vNm, vR = 18, 20
vK1, vIr = 22, 23
vCa = 9
vWF = 32
vSel = 56
vAcc = 64
vCs = 96; vTm = 112; vCs2 = 240; vCs3 = 32
vX = 128
sQo, sHo, sFl = 57, 58, 59

def common_setup(role):
    for p in range(2, 7):
        a(f's_add_u32 s{50+p}, s{sROT}, {p}'); a(f's_sub_u32 s{t3}, s{50+p}, 7'); a(f's_min_u32 s{50+p}, s{50+p}, s{t3}')
    srd(SC, pW1, 448 * 3584)
    a(f'v_mov_b32 v{vZ}, 0'); a(f'v_mov_b32 v{vSy}, {SYNC}')
    a(f'v_and_b32 v10, 31, v{vL}'); a(f'v_lshlrev_b32 v{vXa}, 7, v10'); a(f'v_bfe_u32 v10, v{vL}, 1, 3'); a(f'v_lshrrev_b32 v11, 5, v{vL}')
    a('v_xor_b32 v10, v10, v11'); a(f'v_lshl_add_u32 v{vXa}, v10, 4, v{vXa}'); a(f'v_add_u32 v{vXa}, s{sMx}, v{vXa}')
    for s in range(1, 4): a(f'v_xor_b32 v{vXa+s}, {32*s}, v{vXa}')
    a(f'v_lshlrev_b32 v{vCa}, 4, v11'); a(f'v_add_u32 v{vCa}, {CS}, v{vCa}')
    tr_base(24, 10, True)
    a(f'v_lshl_add_u32 v27, v11, 10, v24')
    a(f's_and_b32 s{t0}, s{sJ}, 1')
    for k in range(2):
        if role == 'A': a(f's_add_u32 s{t1}, s{t0}, {k}')
        elif k == 0: a(f's_add_u32 s{t1}, s{t0}, 2')
        else: a(f's_min_u32 s{t1}, s{sI}, 2'); a(f's_add_u32 s{t1}, s{t1}, s{t0}')
        a(f's_and_b32 s{t2}, s{t1}, 1'); a(f's_lshl_b32 s{t2}, s{t2}, 6'); a(f's_lshr_b32 s{t1}, s{t1}, 1'); a(f's_lshl_b32 s{t1}, s{t1}, 10'); a(f's_add_u32 s{t1}, s{t1}, 16384')
        a(f'v_xor_b32 v{vT+k}, s{t2}, v27'); a(f'v_add_u32 v{vT+k}, s{t1}, v{vT+k}')
    a(f'v_and_b32 v10, 15, v{vL}'); a(f'v_bfe_u32 v11, v{vL}, 4, 1'); a('v_cmp_eq_u32 vcc, v10, v11'); a('v_mov_b32 v10, 0x3f803f80')
    for k in range(4 if role == 'B' else 0): a(f'v_cndmask_b32 v{vSel+k}, 0, v10, vcc')
    r = 0 if role == 'A' else 1
    a(f's_lshl2_add_u32 s{t0}, s{sRB}, s{sI}')
    a(f's_mul_i32 s{sQo}, s{t0}, 84'); a(f's_mul_i32 s{t1}, s{sJ}, 6'); a(f's_add_u32 s{sQo}, s{sQo}, s{t1}'); a(f's_add_u32 s{sQo}, s{sQo}, {4*r}'); a(f's_lshl_b32 s{sQo}, s{sQo}, 10')
    a(f's_mul_i32 s{sHo}, s{t0}, 112'); a(f's_lshl3_add_u32 s{sHo}, s{sJ}, s{sHo}'); a(f's_lshl_b32 s{sHo}, s{sHo}, 10'); a(f's_add_u32 s{sHo}, s{sHo}, {HF + 2048*(1-r)}')
    a(f's_mul_i32 s{sFl}, s{t0}, 14'); a(f's_add_u32 s{sFl}, s{sFl}, s{sJ}'); a(f's_lshl_b32 s{sFl}, s{sFl}, {FSH+1}'); a(f's_add_u32 s{sFl}, s{sFl}, {FLAGS + (r << FSH)}')

sOK = 19
def cs_load(role):
    hf = 1 if role == 'A' else 0
    a(f's_lshl_b32 s{t0}, s{sJ}, 10'); a(f's_add_u32 s{t0}, s{t0}, {CSG + hf*128}'); a(f's_mov_b32 m0, {CS + 384 + hf*256}')
    a(f'v_lshrrev_b32 v10, 5, v{vL}'); a('v_lshlrev_b32 v10, 7, v10'); a(f'v_and_b32 v11, 31, v{vL}'); a('v_add_lshl_u32 v10, v10, v11, 2')
    a(f'buffer_load_dword v10, {S}, s{t0} offen sc1 lds')
def cs_try(role):
    E = lab('cst')
    T(('wvm', 'cf')); a(f'v_cmp_ne_u64 vcc, s[{sN}:{sN+1}], v[28:29]'); a(f's_mov_b32 s{sOK}, vcc_lo'); a(f's_cbranch_vccnz {E}')
    cs_load(role)
    a.label(E)
def cs_late(role):
    E = lab('csl')
    a(f's_cmp_eq_u32 s{sOK}, 0'); a(f's_cbranch_scc1 {E}')
    a(f's_lshl_b32 s{t1}, s{sJ}, 10'); a(f's_add_u32 s{t1}, s{t1}, {CSG}')
    keep = list(T.vm)
    poll(25, f's{t1}', 2, 256, 28)
    cs_load(role); a('s_waitcnt vmcnt(0)')
    T.vm = keep
    a.label(E)
    hf = 1 if role == 'A' else 0
    for L in range(2):
        for g in range(4): T(('ds', f'hc{L}', f'ds_read_b128 {vr((vCs2, vCs)[L]+4*g,4)}, v{vCa} offset:{384 + hf*256 + L*128 + g*32}'))
    T(('wds', 'hc0'))
def touch(k):
    n = 28 if k < 2 else 14
    a(f's_sub_u32 s{t1}, s{sIDX}, 4'); a(f's_lshl3_add_u32 s{t1}, s{t1}, s{sW}'); a(f's_mul_i32 s{t1}, s{t1}, {56 if k < 2 else 14}')
    if k == 1: a(f's_add_u32 s{t1}, s{t1}, 28')
    a(f'v_min_u32 v61, {n-1}, v{vL}'); a(f'v_add_lshl_u32 v61, v61, s{t1}, 7')
    p = pW2 if k < 2 else pWO
    T(('vm', 'pf', f'global_load_dword v{252+k}, v61, s[{p}:{p+1}]'))
def p1a(role):
    A_ = role == 'A'
    vS = vTm
    def xreads(p): return [('ds', f'x{p}', f'ds_read_b128 {vr(vX+16*p+4*s,4)}, v{vXa+s} offset:{SL(p) & 0xffff}') for s in range(4)]
    def wreads(n):
        p = n >> 2; s = n & 3; b = n % 3
        return [('ds', f'w{n}', f'ds_read_b64_tr_b16 {vr(vWF+8*b+4*t+2*q,2)}, v{vT+t} offset:{(SL(p) & 0xffff) + s*4096 + q*512}') for t in range(2) for q in range(2)]
    def hop(p):
        d = (SL(p) & ~0xffff) - (SL(p - 1) & ~0xffff)
        if d == 0: return []
        op = 'v_add_u32' if d > 0 else 'v_subrev_u32'
        return [f'{op} v{v}, {abs(d)}, v{v}' for v in (vXa, vXa+1, vXa+2, vXa+3, vT, vT+1)]
    VS = OPT['vs']
    if VS or not A_:
        for r in range(4): a(f'v_mov_b32 v{vS+r}, 0')
        a(f'v_mov_b32 v{vS+4}, 0x3f803f80')
    def stats(p):
        ds = range(0, OPT['sa']) if A_ else range(OPT['sa'], 16)
        o = []
        for i, d in enumerate(ds):
            r = vX + 16*p + d; t = vS + 6 + 2*(i & 3)
            o.append([f'v_lshlrev_b32 v{t}, 16, v{r}', f'v_and_b32 v{t+1}, 0xffff0000, v{r}', f'v_add_f32 v{vS}, v{vS}, v{t}', f'v_add_f32 v{vS+1}, v{vS+1}, v{t+1}',
                      f'v_fmac_f32 v{vS+2}, v{t}, v{t}', f'v_fmac_f32 v{vS+3}, v{t+1}, v{t+1}'])
        res = []
        for i in range(0, len(o), 2):
            g = o[i:i+2]
            res += [x[0] for x in g] + [x[1] for x in g]
            for x in g: res += [x[2], x[4], x[3], x[5]]
        return res
    plan = {}
    for p in range(5): plan[p] = x_dma(p + 2) if A_ else wq_dma(p + 2)
    plan[5] = []; plan[6] = []
    PL = {0: ([(1,0,0),(2,0,2),(3,0,4),(4,0,6),(5,1,0),(5,1,2),(6,1,4),(6,1,6)], [(2,0,1),(3,0,3),(4,0,5),(5,1,1),(5,1,3),(6,1,5)]),
          1: ([(2,0,0),(3,0,1),(4,0,2),(5,0,3),(5,0,5),(5,1,0),(6,1,2),(6,1,4),(6,1,6)], [(5,0,4),(5,0,6),(6,1,1),(6,1,3),(6,1,5)]),
          2: ([(1,0,0),(2,0,1),(3,0,2),(4,0,3),(5,0,4),(5,0,6),(5,1,0),(6,1,2),(6,1,4),(6,1,5),(6,1,6)], [(5,0,5),(5,1,1),(6,1,3)]),
          3: ([(4,0,0),(5,0,1),(5,0,3),(5,0,5),(6,1,0),(6,1,2),(6,1,4),(6,1,6)], [(5,0,2),(5,0,4),(5,0,6),(6,1,1),(6,1,3),(6,1,5)])}[OPT['pl']]
    for p, L, q in PL[0 if A_ else 1]: plan[p] += w1_dma(L, q)
    st.mark(2); T(('w', 'p0', '*')); st.mark(3); a('s_barrier'); st.mark(4)
    xr = xreads(0)
    T(xr[:1] + wreads(0) + xr[1:2] + wreads(1) + xr[2:])
    for n in range(28):
        p = n >> 2; s = n & 3; b = n % 3
        ms = [[mfma(vAcc, vWF+8*b, vX+4*n, n == 0)], [mfma(vAcc+16, vWF+8*b+4, vX+4*n, n == 0) if A_ else mfma16(vAcc+16, vWF+8*b+4, vSel, n == 0)]]
        fill = []
        if s == 2 and p < 6:
            T(('w', f'p{p+1}', '*'))
            if p in (1, 4): st.mark(5 + p)
            a('s_barrier')
            if p in (1, 4): st.mark(6 + p)
            T(hop(p + 1))
            fill = xreads(p + 1)[:2] + wreads(n + 2)
        else:
            T(('wds', f'w{n}'))
            if s == 3 and p < 6: fill = xreads(p + 1)[2:]
            if n + 2 < 28: fill = fill + wreads(n + 2)
        ip, slot = (p + 1, s - 2) if s >= 2 else (p, s + 2)
        if ip <= 6:
            u = plan[ip]; k = len(u)
            if ip == 0: lo, hi = (slot - 2) * k // 2, (slot - 1) * k // 2
            else: lo, hi = (slot * k + 3) // 4, ((slot + 1) * k + 3) // 4
            for x in u[lo:hi]: fill += x
        if VS:
            so = stats(p); L = len(so)
            if p < 6: part = {1: so[:L//3], 2: so[L//3:2*L//3]}.get(s, [])
            else: part = {1: so[:L//2], 2: so[L//2:]}.get(s, [])
            if s == 0 and p > 0: pr = stats(p - 1); part = pr[2*len(pr)//3:]
            fill += part
        T(weave(ms, fill))
        if not VS and not A_ and s == 1:
            if p == 0: T(('wds', 'x0'))
            for d in range(16):
                r = vX + 16*p + d
                a(f'v_dot2c_f32_bf16 v{vS + (d&1)}, v{r}, v{vS+4}'); a(f'v_dot2c_f32_bf16 v{vS + 2 + (d&1)}, v{r}, v{r}')
        for k, key in enumerate(('ta', 'tb', 'tc')):
            if n == OPT[key]: touch(k)
        if n == 26 and A_ and OPT['xe']: final_setup()
        if n == OPT.get('gon', 14): T(('vm', 'go', f'buffer_load_dwordx2 {vr(vN,2)}, v{vZ}, s[60:63], 0 offen sc1'))
        if n == OPT['cfs']:
            a(f's_lshl_b32 s{t1}, s{sJ}, 10'); a(f's_add_u32 s{t1}, s{t1}, {CSG}'); a(f'v_and_b32 v25, 1, v{vL}'); a('v_lshlrev_b32 v25, 9, v25')
            T(('vm', 'cf', f'buffer_load_dwordx2 v[28:29], v25, {S}, s{t1} offen offset:256 sc1'))
        if (VS or not A_) and n == 26:
            a(f'v_add_f32 v{vS}, v{vS}, v{vS+1}'); a(f'v_add_f32 v{vS+2}, v{vS+2}, v{vS+3}')
            a(f'v_mov_b32 v{vS+1}, v{vS}'); a(f'v_mov_b32 v{vS+3}, v{vS+2}')
            a(f'v_and_b32 v21, 31, v{vL}'); a(f's_lshl_b32 s{t1}, s{sI}, 8'); a(f's_add_u32 s{t1}, s{t1}, {STX}'); a(f'v_lshl_add_u32 v21, v21, 3, s{t1}')
            a(f'v_permlane32_swap_b32 v{vS}, v{vS+1}'); a(f'v_permlane32_swap_b32 v{vS+2}, v{vS+3}')
            a(f'v_add_f32 v{vNm}, v{vS}, v{vS+1}'); a(f'v_add_f32 v{vNm+1}, v{vS+2}, v{vS+3}')
            T(('ds', 'st', f'ds_write_b64 v21, {vr(vNm,2)} offset:{0 if A_ else 1024}'))
    if not A_:
        a(f's_min_u32 s{t0}, s{sI}, 2'); a(f's_lshl_b32 s{t0}, s{t0}, 7'); a(f's_add_u32 s{t0}, s{t0}, {CS}')
        a(f'v_and_b32 v10, 1, v{vL}'); a('v_lshlrev_b32 v10, 6, v10'); a(f'v_and_b32 v11, 48, v{vL}'); a(f'v_add3_u32 v10, v10, v11, s{t0}')
        a('s_mov_b32 exec_lo, 0x00030003'); a('s_mov_b32 exec_hi, 0x00030003')
        T(('ds', 'st', f'ds_write_b128 v10, {vr(vAcc+16,4)}'))
        a('s_mov_b64 exec, -1')
    T(('wvm', 'l0'))
    if not OPT['lc']: nonce_take(True); cs_try(role)
    if A_: a(f's_setprio {OPT.get("aq3", 3)}')
    T(('wds', '*')); st.mark(11); a('s_barrier'); st.mark(12)
    if A_ and OPT['ew'] == 0: a_early()
    if not VS and A_:
        a(f'v_and_b32 v21, 31, v{vL}'); a(f's_lshl_b32 s{t1}, s{sI}, 8'); a(f's_add_u32 s{t1}, s{t1}, {STX}'); a(f'v_lshl_add_u32 v21, v21, 3, s{t1}')
    if VS: T(('ds', 'st', f'ds_read_b64 v[22:23], v21 offset:{1024 if A_ else 0}'))
    elif A_: T(('ds', 'st', f'ds_read_b64 {vr(vNm,2)}, v21 offset:1024'))
    tiles = (0, 1) if A_ else (2,)
    for k, t in enumerate(tiles):
        for g in range(4): T(('ds', f'cs{k}', f'ds_read_b128 {vr(vCs+16*k+4*g,4)}, v{vCa} offset:{t*128 + g*32}'))
    E = [('wds', 'st')]
    if VS: E += [f'v_add_f32 v{vNm}, v{vNm}, v22', f'v_add_f32 v{vNm+1}, v{vNm+1}, v23']
    E += [f'v_mul_f32 v{vNm}, {f2u(-1.0/448):#x}, v{vNm}', f'v_mul_f32 v{vNm+1}, {f2u(1.0/448):#x}, v{vNm+1}',
          f'v_fma_f32 v{vNm+1}, -v{vNm}, v{vNm}, v{vNm+1}', f'v_max_f32 v{vNm+1}, 0, v{vNm+1}', f'v_add_f32 v{vNm+1}, {f2u(1e-5):#x}, v{vNm+1}',
          f'v_rsq_f32 v{vR}, v{vNm+1}', f'v_sqrt_f32 v{vIr}, v{vNm+1}', f'v_mov_b32 v{vNm+1}, v{vNm}', f'v_mul_f32 v{vK1}, {f2u(-LOG2E):#x}, v{vR}']
    for k, t in enumerate(tiles):
        E.append([f's_mul_i32 s{t0}, s{sJ}, 3', f's_cmp_lt_u32 s{t0}, {14 - t}', f's_cselect_b32 s{t0}, {f2u(28**-0.5*LOG2E):#x}, 1.0', f'v_mul_f32 v26, s{t0}, v{vR}'])
        b = vAcc + 16*k
        E.append(('wds', f'cs{k}'))
        if OPT['be']:
            for s_ in range(2):
                E += [f'v_fma_f32 v{b+j}, v{vCs+16*k+j}, v{vNm}, v{b+j}' for j in range(8*s_, 8*s_ + 8)]
                E += [f'v_mul_f32 v{b+j}, v26, v{b+j}' for j in range(8*s_, 8*s_ + 8)]
                E += [f'v_cvt_pk_bf16_f32 v{b+4*s_+j}, v{b+8*s_+2*j}, v{b+8*s_+2*j+1}' for j in range(4)]
                E.append(('vm', 'q', f'buffer_store_dwordx4 {vr(b+4*s_,4)}, v{vL16}, {S}, s{sQo} offen offset:{k*2048 + s_*1024} sc1'))
        else:
            E.append('v_mov_b32 v27, v26')
            E += [f'v_pk_fma_f32 {vr(b+j,2)}, {vr(vCs+16*k+j,2)}, {vr(vNm,2)}, {vr(b+j,2)}' for j in range(0, 16, 2)]
            E += [f'v_pk_mul_f32 {vr(b+j,2)}, {vr(b+j,2)}, v[26:27]' for j in range(0, 16, 2)]
            for s_ in range(2):
                E += [f'v_cvt_pk_bf16_f32 v{b+4*s_+j}, v{b+8*s_+2*j}, v{b+8*s_+2*j+1}' for j in range(4)]
                E.append(('vm', 'q', f'buffer_store_dwordx4 {vr(b+4*s_,4)}, v{vL16}, {S}, s{sQo} offen offset:{k*2048 + s_*1024} sc1'))
    def chk():
        if OPT['lc']: nonce_take(True); cs_try(role)
    if OPT['be'] and not A_:
        W = OPT['bw']; ex = {n: E[n*len(E)//W:(n+1)*len(E)//W] for n in range(W)}
        ex[W + 2] = [('call', chk)]
        return ex
    T(E)
    if A_: T(('wvm', 'l1')); arrive(cL1)
    chk()
    st.mark(13)
    return {}

NR = 6; PD = 4
def h_tile(L, hf, acc, ex={}):
    def rd(n): return [('ds', f'u{n}', f'ds_read_b64_tr_b16 {vr(vWF+4*(n%NR)+2*q,2)}, v{vT+L} offset:{W1P(L, n>>2) - W1B[L] + (16*(n&3)+4*q)*128}') for q in range(2)]
    for n in range(PD): T(rd(n))
    for n in range(28):
        if n + PD < 28: T(rd(n + PD))
        if n & 1 == 0: T(('wds', f'u{n+1}'))
        a(mfma(acc, vWF + 4*(n % NR), vX + 4*n, n == 0))
        if n in ex: T(ex[n])
def h_epi(acc, k, vCs, mid=None):
    for g in range(0, 16, 4):
        ks = range(g, g + 4)
        for j in ks: a(f'v_fma_f32 v{acc+j}, v{vCs+j}, v{vNm}, v{acc+j}')
        for j in ks: a(f'v_mul_f32 v{vTm+j}, v{vK1}, v{acc+j}')
        for j in ks: a(f'v_exp_f32 v{vTm+j}, v{vTm+j}')
        for j in ks: a(f'v_fma_f32 v{vTm+j}, v{vTm+j}, v{vIr}, v{vIr}')
        for j in ks: a(f'v_rcp_f32 v{vTm+j}, v{vTm+j}')
        for j in ks: a(f'v_mul_f32 v{acc+j}, v{vTm+j}, v{acc+j}')
        if g == 4 and mid: T(mid)
        if g & 4:
            s = g >> 3
            for j in range(4): a(f'v_cvt_pk_bf16_f32 v{acc+4*s+j}, v{acc+8*s+2*j}, v{acc+8*s+2*j+1}')
            T(('vm', f'h{k}', f'buffer_store_dwordx4 {vr(acc+4*s,4)}, v{vL16}, {S}, s{sHo} offen offset:{s*1024} sc1'))
    if k == 0: a(f's_add_u32 s{sHo}, s{sHo}, 4096')

sST0, sG0, sTQ, sT7, sCT, sTT, sTo, sKI, sFl2 = 82, 83, 84, 85, 86, 87, 88, 89, 90
vFl = 5; vQ = 32
def att_setup():
    a(f's_mul_i32 s{t0}, s{sHD}, 7'); a(f's_lshr_b32 s{sST0}, s{t0}, 2'); a(f's_and_b32 s{sG0}, s{t0}, 3')
    a(f's_lshl2_add_u32 s{sTQ}, s{sRBA}, s{sI}')
    a(f's_mul_i32 s{t0}, s{sI}, 3'); a(f's_lshl2_add_u32 s{t0}, s{sRBA}, s{t0}'); a(f's_sub_u32 s{sT7}, s{t0}, 8')
    a(f's_and_b32 s{sCT}, s{sI}, 1'); a(f's_lshr_b32 s{sTT}, s{sI}, 1'); a(f's_lshl1_add_u32 s{sTo}, s{sTB}, s{sTT}')
    a(f'v_min_u32 v10, 13, v{vL}')
    a(f'v_lshrrev_b32 v26, 2, v10'); a(f'v_add_u32 v26, s{sT7}, v26'); a('v_max_i32 v26, 0, v26')
    a(f'v_bfe_u32 v27, v10, 1, 1'); a('v_mul_u32_u24 v27, 28, v27'); a('v_add_u32 v27, 28, v27')
    a(f'v_cmp_le_u32 vcc, 12, v10'); a(f'v_mov_b32 v28, s{sTQ}')
    a('v_cndmask_b32 v26, v26, v28, vcc'); a(f'v_cndmask_b32 v27, v27, v{vZ}, vcc')
    a(f'v_and_b32 v28, 1, v10'); a('v_lshl_add_u32 v27, v28, 1, v27'); a(f'v_add_u32 v27, s{sST0}, v27')
    a('v_lshrrev_b32 v27, 1, v27'); a('v_min_u32 v27, 41, v27')
    a('v_mul_u32_u24 v28, 43, v27'); a('v_lshrrev_b32 v28, 7, v28')
    a('v_mul_u32_u24 v29, 3, v28'); a('v_sub_u32 v29, v27, v29'); a('v_lshrrev_b32 v29, 1, v29')
    a('v_mul_u32_u24 v26, 14, v26'); a('v_add_lshl_u32 v26, v26, v28, 1'); a(f'v_add_lshl_u32 v{vFl}, v26, v29, {FSH}')
    a(f'v_add_u32 v{vFl}, {FLAGS}, v{vFl}')
    assert all((x * 43) >> 7 == x // 3 for x in range(42))
SBUF = 49152
vXo2 = 61; vXv = 56
def final_setup():
    a(f's_lshl3_add_u32 s{t0}, s{sTB}, s{sW}'); a(f's_lshl_b32 s{t0}, s{t0}, 3'); a(f'v_lshrrev_b32 v10, 3, v{vL}'); a(f'v_add_u32 v10, s{t0}, v10')
    a(f'v_mul_u32_u24 v{vXo2}, 896, v10'); a(f'v_and_b32 v10, 7, v{vL}'); a(f'v_lshl_add_u32 v{vXo2}, v10, 4, v{vXo2}')
    a(f's_lshl_b32 s{t0}, s{sCB}, 7'); a(f'v_add_u32 v{vXo2}, s{t0}, v{vXo2}')
    T(('vm', 'x', f'global_load_dwordx4 {vr(vXv,4)}, v{vXo2}, s[{pX}:{pX+1}]'))
def xaddr(vd):
    a(f'v_lshrrev_b32 v10, 5, v{vL}'); a(f'v_and_b32 v11, 7, v{vL}'); a('v_xor_b32 v10, v10, v11'); a(f'v_lshlrev_b32 v{vd}, 8, v11'); a(f'v_lshl_add_u32 v{vd}, v10, 4, v{vd}')
def final_stage():
    vA0, vA1, vB0, vB1 = 12, 13, 14, 15
    srd(SC, pOUT, XBYTES)
    a(f'v_lshrrev_b32 v10, 3, v{vL}'); a(f'v_and_b32 v11, 7, v{vL}'); a('v_lshlrev_b32 v11, 1, v11'); a('v_xor_b32 v11, v11, v10')
    a('v_lshlrev_b32 v10, 8, v10'); a('v_lshl_add_u32 v10, v11, 4, v10')
    a(f's_lshl_b32 s{t0}, s{sW}, 13'); a(f's_cmp_eq_u32 s{sW}, 6'); a(f's_cselect_b32 s{t0}, {slot_addr(6)}, s{t0}'); a(f's_cmp_eq_u32 s{sW}, 7'); a(f's_cselect_b32 s{t0}, {slot_addr(7)}, s{t0}')
    a(f'v_add_u32 v{vA0}, s{t0}, v10'); a(f'v_xor_b32 v{vA1}, 16, v{vA0}')
    a(f's_lshl_b32 s{t0}, s{sW}, 11'); a(f's_add_u32 s{t0}, s{t0}, {SBUF}'); a(f'v_add_u32 v{vB0}, s{t0}, v10'); a(f'v_xor_b32 v{vB1}, 16, v{vB0}')
    a(f's_mov_b32 s52, {f2u(-LOG2E):#x}'); a('s_mov_b32 s53, s52')
    T(('wvm', 'x'))
    vXu = 200
    for j in range(4): a(f'v_lshlrev_b32 v{vXu+2*j}, 16, v{vXv+j}'); a(f'v_and_b32 v{vXu+2*j+1}, 0xffff0000, v{vXv+j}')
    T(('wds', '*'))
    st.mark(35)
    a('s_barrier')
    st.mark(36)
    vF = 144; vS_ = 176
    for kq in range(4):
        for e in range(2): T(('ds', f'f{kq}', f'ds_read_b128 {vr(vF+8*kq+4*e,4)}, v{vA0+e} offset:{kq*2048}'))
    for kh in range(2):
        for e in range(2): T(('ds', 's', f'ds_read_b128 {vr(vS_+8*kh+4*e,4)}, v{vB0+e} offset:{kh*16384}'))
    T(('wds', 'f1'))
    for j in range(0, 8, 2): a(f'v_pk_add_f32 {vr(vF+j,2)}, {vr(vF+j,2)}, {vr(vF+8+j,2)}')
    T(('wds', 'f3'))
    for j in range(0, 8, 2): a(f'v_pk_add_f32 {vr(vF+16+j,2)}, {vr(vF+16+j,2)}, {vr(vF+24+j,2)}')
    for j in range(0, 8, 2): a(f'v_pk_add_f32 {vr(vF+j,2)}, {vr(vF+j,2)}, {vr(vF+16+j,2)}')
    if OPT['fpk']:
        for j in range(0, 8, 2): a(f'v_pk_mul_f32 {vr(192+j,2)}, {vr(vF+j,2)}, s[52:53]')
        for j in range(8): a(f'v_exp_f32 v{192+j}, v{192+j}')
        T(('wds', '*'))
        for j in range(0, 8, 2): a(f'v_pk_add_f32 {vr(vS_+j,2)}, {vr(vS_+j,2)}, {vr(vS_+8+j,2)}')
        for j in range(0, 8, 2): a(f'v_pk_add_f32 {vr(192+j,2)}, {vr(192+j,2)}, 1.0 op_sel_hi:[1,0]')
        for j in range(8): a(f'v_rcp_f32 v{192+j}, v{192+j}')
        for j in range(0, 8, 2): a(f'v_pk_mul_f32 {vr(vS_+j,2)}, {vr(vS_+j,2)}, {vr(vF+j,2)}')
        for j in range(0, 8, 2): a(f'v_pk_fma_f32 {vr(vF+j,2)}, {vr(vS_+j,2)}, {vr(192+j,2)}, {vr(vXu+j,2)}')
    else: T(silu_ops(vF, 192, 8, 52))
    if not OPT['fpk']:
        T(('wds', '*'))
        for j in range(0, 8, 2): a(f'v_pk_add_f32 {vr(vS_+j,2)}, {vr(vS_+j,2)}, {vr(vS_+8+j,2)}')
        for j in range(0, 8, 2): a(f'v_pk_fma_f32 {vr(vF+j,2)}, {vr(vS_+j,2)}, {vr(vF+j,2)}, {vr(vXu+j,2)}')
    for j in range(4): a(f'v_cvt_pk_bf16_f32 v{vXv+j}, v{vF+2*j}, v{vF+2*j+1}')
    a(f'buffer_store_dwordx4 {vr(vXv,4)}, v{vXo2}, {R4(SC)}, 0 offen' + (' sc1' if OPT.get('osc') else ''))
    st.mark(37)
    st.flush(SWS, STAMP, sW, vL)
vWo, vT0, vT1, vU0, vU1, vFa, vH0 = 3, 5, 6, 12, 13, 14, 30
sRg, sTab = 49, 66
fAcc = 64; vHr = 128; RH = OPT['rh']; vSB = 32; NS = 10; NRES = OPT['nres']
def wreg(k): return 248 - 8*k
assert vHr + 8*RH <= 256 - 8*NRES
slots = [0, 1, 2, 3, 6, 7, 8, 9, 4, 5]
if OPT['ro']: lorder = list(range(NS, NS + NRES)) + list(range(NS)) + list(range(NS + NRES, 28))
else: lorder = list(range(28))
lidx = {n: i for i, n in enumerate(lorder)}
def wdma(k):
    n = lorder[k]
    return [f's_add_u32 m0, s{sRg}, {slot_addr(slots[k % NS])}', f's_mul_i32 s{t1}, s{sTab + n % 14}, 14'] + ([f's_add_u32 s{t1}, s{t1}, {64*896}'] if n >= 14 else []) + [
            ('vm', f'W{k}', f'buffer_load_dwordx4 v{vWo}, {R4(SA)}, s{t1} offen lds'),
            ('vm', f'W{k}', f'buffer_load_dwordx4 v{vWo+1}, {R4(SA)}, s{t1} offen offset:1024 lds')]
def wread(k, dst):
    slot = slots[k % NS]
    vs, off = ((vT0, vT1), slot*8192) if slot < 6 else ((vU0, vU1), slot_addr(slot) - RA2)
    return [('ds', f'R{k}', f'ds_read_b64_tr_b16 {vr(dst+4*ct+2*q,2)}, v{vs[ct]} offset:{off + q*1024}') for ct in range(2) for q in range(2)]
NE = OPT['early']
def a_early():
    srd(SA, pW2, 1792 * 896)
    for k in range(NE): T(wdma(k))
a.label('L_A')
T.vm = ['p0'] * 8
common_setup('A')
full_pat(vWo, 10, 11, 896); a(f's_lshl_b32 s{t0}, s{sCB}, 7'); a(f'v_add_u32 v{vWo}, s{t0}, v{vWo}'); a(f'v_add_u32 v{vWo+1}, {8*896-1024}, v{vWo}')
a(f's_mul_i32 s{t0}, s{sI}, {14*1024}')
a(f's_mul_i32 s{t3}, s{sCB}, {OPT["rc"]*1024}'); a(f's_and_b32 s{t1}, s{sTB}, 3'); a(f's_mul_i32 s{t1}, s{t1}, {OPT["rt"]*1024}'); a(f's_add_u32 s{t3}, s{t3}, s{t1}')
a(f's_sub_u32 s{t1}, s{t3}, {14*1024}'); a(f's_min_u32 s{t3}, s{t3}, s{t1}')
for n in range(14):
    a(f's_add_u32 s{t1}, s{t0}, s{t3}'); a(f's_and_b32 s{t2}, s{t1}, 0xfffff000'); a(f's_add_u32 s{sTab+n}, s{t1}, s{t2}')
    if n < 13: a(f's_add_u32 s{t3}, s{t3}, 1024'); a(f's_cmp_eq_u32 s{t3}, {14*1024}'); a(f's_cselect_b32 s{t3}, 0, s{t3}')
srd(60, pDBG, 256)
a(f'v_and_b32 v10, 7, v{vL}'); a(f'v_lshl_add_u32 v10, v10, 2, v{vSy}'); a(f'ds_write_b32 v10, v{vZ}')
p1a('A')
a('s_setprio 0')
a(f'v_xor_b32 v24, 64, v24'); a(f'v_add_u32 v{vT}, {W1B[0]}, v24'); a(f'v_add_u32 v{vT+1}, {W1B[1]}, v24')
if OPT['ew'] == 1: a_early()
if OPT['ew'] == 2: srd(SA, pW2, 1792 * 896)
tr_base(10, 11, False); a(f'v_add_u32 v{vT0}, s{sRg}, v10')
a(f'v_xor_b32 v{vT1}, 64, v{vT0}'); a(f'v_add_u32 v{vU0}, {RA2}, v{vT0}'); a(f'v_xor_b32 v{vU1}, 64, v{vU0}')
a(f's_mul_i32 s{t0}, s{sTB}, {224*1024 if not OPT.get("fake") else 0}'); a(f's_add_u32 s{t0}, s{t0}, {HF}'); a(f'v_add_u32 v{vH0}, s{t0}, v{vL16}'); a(f'v_add_u32 v{vH0+1}, {112*1024}, v{vH0}')
a(f's_mul_i32 s{t0}, s{sI}, 7'); a(f's_lshr_b32 s{t0}, s{t0}, 1')
a(f'v_bfe_u32 v10, v{vL}, 1, 2'); a(f'v_add_u32 v10, s{t0}, v10')
a(f'v_bfe_u32 v{vFa}, v{vL}, 3, 1'); a(f's_lshl_b32 s{t0}, s{sTB}, 1'); a(f'v_add_u32 v{vFa}, s{t0}, v{vFa}'); a(f'v_mul_u32_u24 v{vFa}, 14, v{vFa}')
a(f'v_add_lshl_u32 v{vFa}, v{vFa}, v10, 1'); a(f'v_and_b32 v10, 1, v{vL}'); a(f'v_add_lshl_u32 v{vFa}, v{vFa}, v10, {FSH}'); a(f'v_add_u32 v{vFa}, {FLAGS + F1}, v{vFa}')
ex = {}
if OPT['ew'] == 1:
    final_setup()
    st.mark(14)
    T([('wvm', 'q')] + flag_store(0, sFl))
if OPT['ew'] == 2:
    ex[OPT['qa']] = [('wvm', 'q')] + flag_store(0, sFl)
    for k in range(NE):
        w = wdma(k); ex[OPT['qa'] + 2 + 3*k] = w[:-1]; ex[OPT['qa'] + 3 + 3*k] = w[-1:]
st.mark(16)
h_tile(0, 1, vAcc, ex)
st.mark(20)
arrive(cCS1)
if not OPT['ew']: T([('wvm', 'q')] + flag_store(0, sFl))
cs_late('A')
h_epi(vAcc, 0, vCs2)
spin(cL1, 8)
ex = {OPT['f0']: [('wvm', 'h0')] + flag_store(F1, sFl)}
if NE == 5:
    spin(cCS1, 8)
    for k in range(5, 8):
        w = wdma(k)
        if OPT['w2w']: ex[OPT['w2w'] + 3*(k-5)] = w[:-1]; ex[OPT['w2w'] + 1 + 3*(k-5)] = w[-1:]
        else: T(w)
    NE = 8
st.mark(21)
h_tile(1, 1, vAcc + 16, ex)
arrive(cAD)
a(f's_setprio {OPT["ap"]}')
st.mark(22)
h_epi(vAcc + 16, 1, vCs)
a(f's_setprio {OPT["ap2"]}')
st.mark(23)
spin(cAD, 8)
st.mark(40)
for k in range(NE, NS): T(wdma(k))
st.mark(41)
for k in range(NRES):
    T([('wvm', f'W{k}')] + wread(k, wreg(k)))
T(('wds', '*'))
st.mark(42)
def sample(off): return ([f'v_add_u32 v{vFa}, {F1}, v{vFa}'] if off == F2 else []) + [('vm', 'hf', f'buffer_load_dwordx2 v[28:29], v{vFa}, {S}, 0 offen sc1')]
if OPT['ew'] != 1 and not OPT['xe']: final_setup()
for k in range(NRES):
    if k == min(OPT['sp'], OPT.get('fp', 99)):
        st.mark(43); T([('wvm', 'h1')]); st.mark(44); T(flag_store(F2, sFl))
    if k == OPT['sp']: T(sample(F1)); st.mark(45)
    T(wdma(k + NS))
    if k == 4: st.mark(46)
def check(off):
    E = lab('hok')
    T(('wvm', 'hf')); a(f'v_cmp_ne_u64 vcc, s[{sN}:{sN+1}], v[28:29]'); a(f's_cbranch_vccz {E}')
    keep = list(T.vm)
    poll(vFa, '0', 16, 0, 28)
    T.vm = keep
    a.label(E)
if OPT['sp'] >= NRES:
    T(sample(F1))
    if OPT.get('fp', 99) >= NRES: T([('wvm', 'h1')] + flag_store(F2, sFl))
st.mark(24)
check(F1)
st.mark(26)
def hload(n):
    o = [f'v_add_u32 v{vH0}, 4096, v{vH0}', f'v_add_u32 v{vH0+1}, 4096, v{vH0+1}'] if n == 14 else []
    return o + [('vm', f'H{n}', f'buffer_load_dwordx4 {vr(vHr+8*(n%RH)+4*tt,4)}, v{vH0+tt}, {S}, s{sTab + n % 14} offen' + ('' if OPT.get('nosc') else ' sc1')) for tt in range(2)]
LA = RH - 1
for n in range(LA): T(hload(n))
def wsrc(n): return wreg(lidx[n]) if lidx[n] < NRES else vSB + 8*(n & 1)
if lidx[0] >= NRES: T([('wvm', f'W{lidx[0]}')] + wread(lidx[0], wsrc(0)))
TM = OPT.get('tm', 0)
for n in range(28 - TM):
    nx = n + 1
    if n + LA == 14: check(F2); st.mark(25)
    T(('w', f'H{n}', f'R{lidx[n]}'))
    if n in (0, 7, 14, 21): st.mark(27 + n // 7)
    rd = wread(lidx[nx], wsrc(nx)) if nx < 28 and lidx[nx] >= NRES else []
    if rd: T(('wvm', f'W{lidx[nx]}'))
    vm = []
    if n + LA < 28:
        h = hload(n + LA); vm += [h[:-1], h[-1:]]
    if lidx[n] >= NRES and lidx[n] + NS < 28:
        w = wdma(lidx[n] + NS); vm += [w[:-1], w[-1:]]
    if n + LA == 14 - OPT.get('sd', 3): vm.append([sample(F2)])
    ms = [mfma(fAcc + 16*(ct + 2*tt), wsrc(n) + 4*ct, vHr + 8*(n % RH) + 4*tt, n == 0) for tt in range(2) for ct in range(2)]
    for i in range(4):
        a(ms[i])
        T(rd[2*i:2*i+2])
        lo, hi = (i * len(vm) + 3) // 4, ((i + 1) * len(vm) + 3) // 4
        for u in vm[lo:hi]: T(u)
    if n == OPT['n1']: arrive(cCS0)
    if n == OPT['pa']: a('s_setprio 3')
    if OPT['sy']:
        pts = list(range(OPT['sy'] - 1, 21 - OPT['lag'], OPT['sy']))
        if n in pts: arrive(20)
        if n - OPT['lag'] in pts: spin(20, 4 * (pts.index(n - OPT['lag']) + 1))
    if n == 22:
        xaddr(16); a(f'v_add_u32 v16, s{sRg}, v16'); a(f'v_bfe_u32 v10, v{vL}, 3, 2')
        a(f'v_mov_b32 v11, {slot_addr(7)}'); a(f'v_mov_b32 v20, {slot_addr(6)}'); a('v_cmp_eq_u32 vcc, 2, v10'); a('v_cndmask_b32 v11, v11, v20, vcc')
        a('v_lshlrev_b32 v21, 13, v10'); a('v_add_u32 v20, 32768, v21'); a('v_cmp_gt_u32 vcc, 2, v10'); a('v_cndmask_b32 v11, v11, v20, vcc')
        a('v_add_u32 v20, v11, v16'); a('v_add_u32 v16, v21, v16')
        for q in range(1, 4): a(f'v_xor_b32 v{16+q}, {32*q}, v16'); a(f'v_xor_b32 v{20+q}, {32*q}, v20')
def pw(tt, ct): return [('ds', 'p', f'ds_write_b128 v{16+4*tt+q}, {vr(fAcc+16*(ct+2*tt)+4*q,4)} offset:{ct*128}') for q in range(4)]
if TM:
    last = list(range(28 - TM, 28)); src = {last[0]: wsrc(last[0])}
    for i, n in enumerate(last[1:]):
        src[n] = wreg(i); T([('wvm', f'W{lidx[n]}')] + wread(lidx[n], src[n]))
    tiles = [(tt, ct) for tt in range(2) for ct in range(2)]
    for ti, (tt, ct) in enumerate(tiles):
        g = []
        for n in last:
            pre = [('w', f'H{n}', f'R{lidx[n]}')] if ti == 0 else []
            g.append(pre + [mfma(fAcc + 16*(ct + 2*tt), src[n] + 4*ct, vHr + 8*(n % RH) + 4*tt)])
        T(weave(g, pw(*tiles[ti - 2]) if ti >= 2 else []))
    st.mark(31)
    T(pw(*tiles[2]) + pw(*tiles[3]))
else:
    st.mark(31)
    for tt in range(2):
        for ct in range(2): T(pw(tt, ct))
final_stage()
a('s_endpgm')

T.reset()
H0 = len(a.items)
a.label('L_helper')
srd(60, pDBG, 256); srd(SA, pW1, 448 * 3584)
a(f'v_mov_b32 v{vZ}, 0')
a(f's_or_b32 s{t0}, s2, s{sW}'); a('s_cbranch_scc1 L_nononce')
a(f's_memrealtime s[{sN}:{sN+1}]'); a('s_waitcnt lgkmcnt(0)'); a(f's_or_b32 s{sN+1}, s{sN+1}, 0x80000000')
a(f'v_mov_b32 v{vN}, s{sN}'); a(f'v_mov_b32 v{vN+1}, s{sN+1}')
a('s_mov_b64 exec, 1'); a(f'buffer_store_dwordx2 {vr(vN,2)}, v{vZ}, s[60:63], 0 offen sc1'); a('s_mov_b64 exec, -1')
a.label('L_nononce')
a('s_getpc_b64 s[28:29]'); a.label('L_pc')
a(f's_sub_u32 s28, s28, L_pc-{K}'); a('s_subb_u32 s29, s29, 0')
a(f's_lshl3_add_u32 s{t3}, s{sIDX}, s{sW}')
a(f's_lshl_b32 s{t0}, s{t3}, 11'); a(f'v_and_b32 v4, 15, v{vL}'); a('v_lshlrev_b32 v4, 7, v4'); a(f'v_add_u32 v4, s{t0}, v4')
a(f'v_min_u32 v4, L_end-{K}, v4'); T(('vm', 'pc', 'global_load_dword v3, v4, s[28:29]'))
if OPT['hd']: a(f's_sleep {OPT["hd"]}')
a(f's_min_u32 s{t2}, s2, 27'); a(f's_mul_i32 s{t0}, s{sW}, {56*3584}'); a(f's_lshl_b32 s{t1}, s{t2}, 7'); a(f's_add_u32 s{t0}, s{t0}, s{t1}')
a(f'v_lshrrev_b32 v9, 3, v{vL}'); a('v_mul_u32_u24 v9, 3584, v9'); a(f'v_and_b32 v10, 7, v{vL}'); a('v_lshl_add_u32 v9, v10, 4, v9')
for i in range(7):
    T(('vm', f'c{i}', f'buffer_load_dwordx4 {vr(64+4*i,4)}, v9, {R4(SA)}, s{t0} offen')); a(f's_add_u32 s{t0}, s{t0}, {8*3584}')
st.init(60)
a(f'v_mov_b32 v{vSy}, {SYNC}'); a(f'ds_write_b32 v{vSy}, v{vZ} offset:{cB}'); a('v_mov_b32 v5, 8'); a(f'ds_write_b32 v{vSy}, v5 offset:{cAD}')
for i in range(7):
    T(('wvm', f'c{i}'))
    if i == 2: T(('vm', 'go', f'buffer_load_dwordx2 {vr(vN,2)}, v{vZ}, s[60:63], 0 offen sc1'))
    d0 = 16 if i == 0 else 24
    for d in range(4):
        a(f'v_lshlrev_b32 v{d0+2*d}, 16, v{64+4*i+d}'); a(f'v_and_b32 v{d0+1+2*d}, 0xffff0000, v{64+4*i+d}')
    if i:
        for d in range(4): a(f'v_pk_add_f32 {vr(16+2*d,2)}, {vr(16+2*d,2)}, {vr(24+2*d,2)}')
a(f's_lshl_b32 s{t0}, s{sW}, 11'); a(f'v_lshlrev_b32 v12, 5, v{vL}'); a(f'v_add_u32 v12, s{t0}, v12')
a('ds_write_b128 v12, v[16:19]'); a('ds_write_b128 v12, v[20:23] offset:16')
a('s_waitcnt lgkmcnt(0)'); a('s_barrier')
st.mark(2)
nonce_take(True)
a(f's_cmp_lg_u32 s{sW}, 0'); a('s_cbranch_scc1 L_hcs_done'); a('s_cmp_ge_u32 s2, 28'); a('s_cbranch_scc1 L_hcs_done')
a('s_setprio 3')
a(f'v_lshlrev_b32 v12, 2, v{vL}')
for g in range(4):
    for k in range(8): a(f'ds_read2st64_b32 {vr(64+16*g+2*k,2)}, v12 offset0:{16*g+2*k} offset1:{16*g+2*k+1}')
    a('s_waitcnt lgkmcnt(0)')
for w in (32, 16, 8, 4, 2):
    for k in range(0, w, 2): a(f'v_pk_add_f32 {vr(64+k,2)}, {vr(64+k,2)}, {vr(64+w+k,2)}')
a('v_add_f32 v64, v64, v65')
a(f's_lshl_b32 s{t0}, s2, 9'); a(f's_add_u32 s48, s{t0}, {CSG}')
a(f'buffer_store_dword v64, v12, {S}, s48 offen sc1'); a('s_waitcnt vmcnt(0)')
T(flag_store(256, 48))
a('s_setprio 0')
st.mark(3)
a.label('L_hcs_done')
a('s_barrier')
if OPT['hm']:
    a(f's_cmp_lt_u32 s{sW}, 4'); a('s_cbranch_scc1 L_nohm')
    srd(SC, pW2, 1792 * 896); srd(SB, pWO, 448 * 896)
    a(f's_lshl2_add_u32 s{t3}, s2, s{sI}'); a(f's_mul_i32 s{t0}, s{t3}, {98*128}')
    a(f'v_min_u32 v4, 48, v{vL}'); a('v_lshlrev_b32 v4, 7, v4')
    a(f'buffer_load_dword v40, v4, {R4(SC)}, s{t0} offen'); a(f's_add_u32 s{t0}, s{t0}, {49*128}'); a(f'buffer_load_dword v41, v4, {R4(SC)}, s{t0} offen')
    a(f's_mul_i32 s{t0}, s{t3}, {25*128}'); a(f'v_min_u32 v4, 24, v{vL}'); a('v_lshlrev_b32 v4, 7, v4')
    a(f'buffer_load_dword v42, v4, {R4(SB)}, s{t0} offen')
    a.label('L_nohm')
a(f's_cmp_ge_u32 s{sW}, 4'); a('s_cbranch_scc1 L_helperB')
a(f's_lshl2_add_u32 s{t3}, s{sIDX}, s{sI}')
if OPT['hw']:
    srd(SA, pW2, 1792 * 896)
    a(f'v_min_u32 v4, 55, v{vL}'); a('v_lshlrev_b32 v4, 7, v4'); a(f'v_add_u32 v5, {56*128}, v4')
    for k in range(7):
        a(f's_add_u32 s{t0}, s{sIDX}, {4*k}'); a(f's_cmp_ge_u32 s{t0}, 14'); a(f's_cselect_b32 s{t1}, 14, 0'); a(f's_cselect_b32 s{t2}, 4, 0'); a(f's_sub_u32 s{t0}, s{t0}, s{t1}')
        a(f's_mul_i32 s{t1}, s{sI}, 14'); a(f's_add_u32 s{t0}, s{t0}, s{t1}'); a(f's_and_b32 s{t1}, s{t0}, 0xfc'); a(f's_add_u32 s{t0}, s{t0}, s{t1}'); a(f's_add_u32 s{t0}, s{t0}, s{t2}')
        a(f's_mul_i32 s{t0}, s{t0}, {16*896}')
        a(f'buffer_load_dword v{20+2*k}, v4, {R4(SA)}, s{t0} offen'); a(f'buffer_load_dword v{21+2*k}, v5, {R4(SA)}, s{t0} offen')
st.mark(4)
if OPT['hh']:
    a(f's_and_b32 s{t0}, s2, 7'); a(f's_lshr_b32 s{t1}, s{t3}, 1'); a(f's_lshl3_add_u32 s{t0}, s{t0}, s{t1}')
    a(f's_and_b32 s{t1}, s{t3}, 1'); a(f's_mul_i32 s{t1}, s{t1}, 7'); a(f's_mul_i32 s{t0}, s{t0}, 14'); a(f's_add_u32 s{t2}, s{t0}, s{t1}')
    a(f's_lshl_b32 s48, s{t2}, {FSH+1}'); a(f's_add_u32 s48, s48, {FLAGS}'); a(f'v_lshlrev_b32 v4, {FSH}, v{vL}')
    a(f's_lshl_b32 s49, s{t2}, 13'); a(f's_add_u32 s49, s49, {HF}')
    a(f'v_and_b32 v5, 31, v{vL}'); a('v_lshlrev_b32 v5, 7, v5'); a(f'v_lshrrev_b32 v6, 5, v{vL}'); a('v_lshl_add_u32 v6, v6, 15, v5')
    for ph in range(2):
        a(f's_add_u32 s48, s48, {F1}'); poll(4, 's48', 14, 0, 12, sleep=6)
        st.mark(5 + ph)
        for k in range(4):
            a(f's_add_u32 s{t0}, s49, {k*8192 + ph*4096}')
            a(f'buffer_load_dword v{40+4*ph+k}, v{6 if k < 3 else 5}, {S}, s{t0} offen sc1')
        if ph == 0 and OPT['hwo']:
            srd(SB, pWO, 448 * 896)
            a(f'v_min_u32 v9, 48, v{vL}'); a('v_lshlrev_b32 v9, 7, v9'); a(f's_mul_i32 s{t0}, s{t3}, {196*128}')
            for i in range(4):
                a(f'buffer_load_dword v{50+i}, v9, {R4(SB)}, s{t0} offen'); a(f's_add_u32 s{t0}, s{t0}, {49*128}')
st.flush(SWS, STAMP, sW, vL)
a('s_endpgm')
a.label('L_helperB')
if OPT['hs']:
    srd(SA, pWO, 448 * 896)
    a(f's_lshl2_add_u32 s{t3}, s{sIDX}, s{sI}'); a(f's_mul_i32 s{t0}, s{t3}, {196*128}'); a(f's_mov_b32 s{t1}, 14')
    a('s_sleep 20')
    a.label('L_hsl')
    for k in range(14): a(f's_buffer_load_dword s{64+k}, {R4(SA)}, s{t0} offset:{128*k}')
    a(f's_add_u32 s{t0}, s{t0}, {14*128}'); a(f's_sub_u32 s{t1}, s{t1}, 1'); a('s_waitcnt lgkmcnt(0)'); a(f's_cmp_lg_u32 s{t1}, 0'); a('s_cbranch_scc1 L_hsl')
else: a(f's_sleep {OPT["hsl"]}')
att_setup()
a(f's_mov_b32 s{sKI}, 0')
a('s_branch L_att')

H1 = len(a.items)
blk = a.items[H0:H1]; del a.items[H0:H1]; a.items[HELPER_AT:HELPER_AT] = blk
T.reset()
a.label('L_B')
a(f's_setprio {OPT["bp1"]}')
common_setup('B')
srd(60, pDBG, 256)
att_setup()
st.mark(48)
for u in x_dma(1) + wq_dma(1): T(u)
exB = p1a('B')
a('s_setprio 2')
a(f'v_add_u32 v{vT}, {W1B[0]}, v24'); a(f'v_add_u32 v{vT+1}, {W1B[1]}, v24')
h_tile(0, 0, vAcc + 16, exB)
arrive(cCS1)
T(('wvm', 'l1')); arrive(cL1)
st.mark(16)
T([('wvm', 'q')] + flag_store(0, sFl))
cs_late('B')
h_epi(vAcc + 16, 0, vCs2)
spin(cL1, 8)
st.mark(17)
vVe, vVo, vKa, vV0, vV1 = 3, 4, 5, 6, 9
def kv_units(which):
    u = []
    for t in range(3):
        pre = ([f's_mul_i32 s{t2}, s{sI}, {3*3072}'] if t == 0 else []) + [f's_add_i32 s{t0}, s{sT7}, {t}', f's_max_i32 s{t0}, s{t0}, 0', f's_mul_i32 s{t0}, s{t0}, 84', f's_add_u32 s{t0}, s{t0}, s{sST0}',
               f's_add_u32 m0, s{t2}, {(KB, VB)[which] + t*3072}', f's_add_u32 s{t0}, s{t0}, {28*(which+1)}', f's_lshl_b32 s{t0}, s{t0}, 10']
        for s in range(3):
            v = vL16 if which == 0 else (vVo if s & 1 else vVe)
            u.append((pre if s == 0 else []) + [('vm', 'KV'[which], f'buffer_load_dwordx4 v{v}, {S}, s{t0} offen offset:{1024*s} sc1 lds')])
    return u
def kv_dma(which):
    for u in kv_units(which): T(u)
def qk_issue():
    keep = list(T.vm)
    a(f's_mul_i32 s{t0}, s{sTQ}, 84'); a(f's_add_u32 s{t0}, s{t0}, s{sST0}'); a(f's_lshl_b32 s{t0}, s{t0}, 10')
    for s in range(3): a(f'buffer_load_dwordx4 {vr(vQ+4*s,4)}, v{vL16}, {S}, s{t0} offen offset:{1024*s} sc1')
    kv_dma(0)
    T.vm = keep
h_tile(1, 0, vAcc, {OPT['smp']: [('vm', 'qf', f'buffer_load_dwordx2 v[28:29], v{vFl}, {S}, 0 offen sc1')]})
arrive(cAD)
spin(cCS1, 8)
st.mark(18)
def early_qk():
    T([('wvm', 'qf')] + flag_store(F1, sFl)); a(f'v_cmp_ne_u64 vcc, s[{sN}:{sN+1}], v[28:29]'); a(f's_mov_b32 s{sKI}, 0'); a('s_cbranch_vccnz L_noearly')
    qk_issue(); a(f's_mov_b32 s{sKI}, 1')
    a.label('L_noearly')
    st.mark(19)
if OPT['mid']:
    h_epi(vAcc, 1, vCs, mid=[('call', early_qk)])
else:
    early_qk()
    h_epi(vAcc, 1, vCs)
a.label('L_att')
a('s_setprio 2')
a(f's_mov_b32 s{sFl2}, s{sFl}')
st.mark(20)
a(f's_cmp_lg_u32 s{sKI}, 0'); a('s_cbranch_scc1 L_kdone')
poll(vFl, '0', 14, 0, 28)
st.mark(21)
a(f's_cmp_lt_u32 s{sIDX}, 4'); a('s_cbranch_scc1 L_nohf0')
T(flag_store(F2, sFl2))
a.label('L_nohf0')
qk_issue()
a.label('L_kdone')
st.mark(22)
a(f'v_lshrrev_b32 v12, 5, v{vL}'); a('v_lshlrev_b32 v13, 6, v12'); a(f'v_xor_b32 v{vVe}, v13, v{vL16}'); a(f'v_xor_b32 v{vVo}, 128, v{vVe}')
if OPT['ve'] == 1:
    spin(cAD, 8); T.vm = ['K']; kv_dma(1); st.mark(40)
a(f's_mul_i32 s{t0}, s{sI}, 3072'); a(f's_add_u32 s{t1}, s{t0}, {KB}'); a(f'v_add_u32 v{vKa}, s{t1}, v{vL16}')
a(f'v_bfe_u32 v14, v{vL}, 4, 1'); a(f'v_and_b32 v15, 3, v{vL}'); a('v_lshl_add_u32 v14, v14, 2, v15'); a(f'v_add_u32 v14, s{sG0}, v14')
a('v_lshrrev_b32 v15, 2, v14'); a('v_and_b32 v16, 1, v14'); a('v_bfe_u32 v17, v14, 1, 1')
a(f'v_bfe_u32 v19, v{vL}, 2, 2'); a('v_lshl_add_u32 v18, v12, 2, v19')
a('v_and_b32 v19, 1, v15'); a('v_lshl_add_u32 v19, v19, 1, v16'); a('v_lshlrev_b32 v19, 2, v19'); a('v_xor_b32 v18, v18, v19')
a(f'v_lshlrev_b32 v{vV0}, 4, v18'); a(f'v_lshl_add_u32 v{vV0}, v17, 3, v{vV0}'); a(f'v_lshl_add_u32 v{vV0}, v16, 9, v{vV0}')
a(f'v_lshl_add_u32 v{vV0}, v15, 10, v{vV0}'); a(f'v_xor_b32 v{vV1}, 128, v{vV0}')
a(f's_add_u32 s{t0}, s{t0}, {VB}'); a(f'v_add_u32 v{vV0}, s{t0}, v{vV0}'); a(f'v_add_u32 v{vV1}, s{t0}, v{vV1}')
if OPT['vo']:
    a(f's_add_u32 s{t0}, s{sG0}, 7'); a(f's_lshr_b32 s{t1}, s{t0}, 2'); a(f's_lshl_b32 s{t1}, s{t1}, 10'); a(f's_and_b32 s{t2}, s{t0}, 1'); a(f's_lshl_b32 s{t2}, s{t2}, 9'); a(f's_add_u32 s{t1}, s{t1}, s{t2}')
    a(f's_and_b32 s{t2}, s{t0}, 2'); a(f's_lshl_b32 s{t2}, s{t2}, 2'); a(f's_add_u32 s{t1}, s{t1}, s{t2}'); a(f's_mul_i32 s{t2}, s{sI}, {3*3072}'); a(f's_add_u32 s{t1}, s{t1}, s{t2}'); a(f's_add_u32 s{t1}, s{t1}, {VB}')
    a(f'v_and_b32 v56, 31, v{vL}'); a('v_lshlrev_b32 v56, 4, v56'); a('v_mul_u32_u24 v57, 3072, v12'); a(f'v_add3_u32 v56, v56, v57, s{t1}')
    a('v_mov_b32 v58, 0x3f80'); a('v_mov_b32 v59, 0')
for j in range(16):
    c = 8*(j >> 2) + (j & 3)
    a(f's_mov_b32 s{sM+2*j}, {(0xffffffff << c) & 0xffffffff:#x}'); a(f's_mov_b32 s{sM+2*j+1}, {(0xffffffff << (c+4)) & 0xffffffff:#x}')
def msk(j): return f's[{sM+2*j}:{sM+2*j+1}]'
vOnes = 24; vBm = 28; vMk = 240
vSb = 64; vO = 192; vLs = 208; vP0 = 224; vP8 = 232; vM = 224
a('v_mov_b32 v14, 0xffff'); a('v_mov_b32 v15, 0xffff0000')
for j in range(8):
    a(f'v_cndmask_b32 v{vMk+j}, 0, v14, {msk(2*j)}'); a(f'v_cndmask_b32 v16, 0, v15, {msk(2*j+1)}'); a(f'v_or_b32 v{vMk+j}, v{vMk+j}, v16')
for k in range(4): a(f'v_mov_b32 v{vOnes+k}, 0x3f803f80')
for k in range(1, 4): a(f'v_mov_b32 v{vBm+k}, 0')
a(f'v_subrev_u32 v12, s{sG0}, v12')
if OPT['ve'] != 1: spin(cAD, 8)
T(('wvm', 'K' if OPT['ve'] == 1 else '*')); st.mark(23); arrive(cB)
a(f's_cmp_eq_u32 s{sKI}, 0'); a('s_cbranch_scc1 L_nohf')
keep = list(T.vm); T(flag_store(F2, sFl2)); T.vm = keep
a.label('L_nohf')
if not OPT['ve']: kv_dma(1); st.mark(40)
for s in range(3):
    for ap in range(2):
        a(f'v_add_u32 v13, {4*s+2*ap}, v12'); a('v_cmp_gt_u32 vcc, 7, v13')
        for k in range(2):
            r = vQ + 4*s + 2*ap + k
            a(f'v_cndmask_b32 v{r}, 0, v{r}, vcc')
spin(cB, 4)
st.mark(24)
vKF = (44, 12)
def sreg(r): return vO if r == 0 else vSb + 16 * (r - 1)
m8 = sreg(8)
sorder = [8, 0, 1, 2, 3, 4, 5, 6, 7]
def kreads(i): return [('ds', f'k{i}', f'ds_read_b128 {vr(vKF[i&1]+4*s,4)}, v{vKa} offset:{sorder[i]*3072 + s*1024}') for s in range(3)]
def maxops(b, first=False):
    o = []
    for h in range(2):
        for c in range(4):
            if first and h == 0: o.append(f'v_max_f32 v{vM+c}, v{b+c}, v{b+4+c}')
            else: o.append(f'v_max3_f32 v{vM+c}, v{vM+c}, v{b+8*h+c}, v{b+8*h+4+c}')
    return o
merge = [f'v_cndmask_b32 v{m8+j}, v{vO+j}, v{m8+j}, {msk(j)}' for j in range(16)]
fills = {3: merge[:12], 4: merge[12:] + maxops(m8, True), 5: maxops(sreg(1)) + maxops(sreg(2))[:4], 6: maxops(sreg(2))[4:] + maxops(sreg(3)),
         7: maxops(sreg(4)), 8: maxops(sreg(5))}
vun = kv_units(1) if OPT['ve'] == 2 else []
T(kreads(0))
for i in range(9):
    r = sorder[i]
    T(('wds', f'k{i}'))
    T(weave([[mfma(sreg(r), vKF[i & 1] + 4*s, vQ + 4*s, s == 0)] for s in range(3)], (kreads(i + 1) if i + 1 < 9 else []) + vun[3*i:3*i+3] + fills.get(i, [])))
T(maxops(sreg(6)))
st.mark(41); T(('wvm', 'V')); st.mark(42)
if OPT['vo']: T(('ds', 'vo', 'ds_write_b64 v56, v[58:59]')); T(('ds', 'vo', 'ds_write_b64 v56, v[58:59] offset:3072'))
arrive(cB)
T(maxops(sreg(7)))
a(f's_cmp_ge_u32 s{sTQ}, 8'); a('s_cbranch_scc1 L_valid')
NEG = f2u(-1e30)
a(f'v_mov_b32 v12, {NEG:#x}')
for j in range(16): a(f'v_cndmask_b32 v{m8+j}, v12, v{m8+j}, {msk(j)}')
for r in range(1, 8):
    a(f's_cmp_ge_u32 s{sTQ}, {8-r}'); a('s_cbranch_scc1 L_remax')
    for j in range(16): a(f'v_mov_b32 v{sreg(r)+j}, v12')
a.label('L_remax')
T(maxops(m8, True))
for r in range(1, 8): T(maxops(sreg(r)))
a.label('L_valid')
a(f'v_max3_f32 v{vM}, v{vM}, v{vM+1}, v{vM+2}'); a(f'v_max_f32 v{vM}, v{vM}, v{vM+3}')
a(f'v_mov_b32 v{vM+1}, v{vM}'); a(f'v_cmp_gt_u32 vcc, 32, v{vL}')
a(f'v_permlane32_swap_b32 v{vM}, v{vM+1}'); a(f'v_max_f32 v{vM}, v{vM}, v{vM+1}')
a(f'v_cvt_pk_bf16_f32 v{vM+1}, 0, v{vM}'); a(f'v_sub_f32 v{vM+1}, v{vM+1}, v{vM}'); a(f'v_cvt_pk_bf16_f32 v{vM+1}, -v{vM}, v{vM+1}')
a(f'v_cndmask_b32 v{vBm}, 0, v{vM+1}, vcc')
st.mark(25)
vVF = (44, 12)
porder = [1, 2, 3, 4, 5, 6, 7, 8, 0]
def vreads(i): return [('ds', f'v{i}', f'ds_read_b64_tr_b16 {vr(vVF[i&1]+4*ks+2*q,2)}, v{(vV0,vV1)[q]} offset:{porder[i]*3072 + ks*256}') for ks in range(2) for q in range(2)]
def sub(i): return mfma(sreg(porder[i]), vOnes, vBm)
def softmax(i):
    r = porder[i]; b = sreg(r); o = []
    for g in range(0, 16, 4):
        o += [f'v_exp_f32 v{b+j}, v{b+j}' for j in range(g, g + 4)]
        if g: o += [f'v_cvt_pk_bf16_f32 v{b+j}, v{b+2*j}, v{b+2*j+1}' for j in range(g//2 - 2, g//2)]
    o += [f'v_cvt_pk_bf16_f32 v{b+j}, v{b+2*j}, v{b+2*j+1}' for j in (6, 7)]
    if r == 8:
        o += [f'v_and_b32 v{vP8+j}, v{vMk+j}, v{b+j}' for j in range(8)]
        o += [f'v_bfi_b32 v{vP0+j}, v{vMk+j}, 0, v{b+j}' for j in range(8)]
    return o
def pv(i):
    r = porder[i]; P = vP0 if r == 0 else (vP8 if r == 8 else sreg(r)); vb = vVF[i & 1]
    g = []
    for ks in range(2):
        g.append([mfma(vO, vb + 4*ks, P + 4*ks, i == 0 and ks == 0)])
        if r and not OPT['vo']: g.append([mfma(vLs, vOnes, sreg(r) + 4*ks, i == 0 and ks == 0)])
    g[0] = [('wds', f'v{i}')] + g[0]
    return g
a(sub(0)); a(sub(1))
spin(cB, 8)
st.mark(26)
T(vreads(0)); T(weave([[sub(2)]], softmax(0)))
for i in range(9):
    fill = (vreads(i + 1) if i + 1 < 9 else []) + (softmax(i + 1) if i + 1 < 8 else [])
    T(weave(pv(i) + ([[sub(i + 3)]] if i + 3 < 8 else []), fill))
st.mark(27)
arrive(cB)
a(f's_lshl4_add_u32 s{t0}, s{sTQ}, s{sHD}'); a(f's_lshl_b32 s{t1}, s{t0}, 11'); a(f's_add_u32 s{t1}, s{t1}, {OF}')
a(f's_lshl_b32 s{t0}, s{t0}, {OSH}'); a(f's_add_u32 s48, s{t0}, {OFL}')
if OPT['vo']:
    a(f'v_mov_b32 v12, v{vO+12}'); a(f'v_mov_b32 v13, v{vO+12}'); a('v_permlane32_swap_b32 v12, v13'); a('v_rcp_f32 v12, v13')
else: a(f'v_rcp_f32 v12, v{vLs}')
a(f'v_cmp_gt_u32 vcc, 32, v{vL}')
for s in range(2):
    for j in range(8*s, 8*s + 8): a(f'v_mul_f32 v{vO+j}, v12, v{vO+j}')
    for j in range(4*s, 4*s + 4): a(f'v_cvt_pk_bf16_f32 v{vO+j}, v{vO+2*j}, v{vO+2*j+1}')
    if s: a(f'v_cndmask_b32 v{vO+6}, 0, v{vO+6}, vcc'); a(f'v_cndmask_b32 v{vO+7}, 0, v{vO+7}, vcc')
    T(('vm', 'o', f'buffer_store_dwordx4 {vr(vO+4*s,4)}, v{vL16}, {S}, s{t1} offen offset:{1024*s} sc1'))
st.mark(28)
a(f's_cmp_lt_u32 s{sIDX}, 4'); a('s_cbranch_scc0 L_cont')
keep = list(T.vm)
T([('wvm', 'o')] + flag_store(0, 48))
st.flush(SWS, STAMP, sW, vL)
a('s_endpgm')
a.label('L_cont')
T.vm = keep
srd(SA, pWO, 448 * 896)
vWo = 3
full_pat(vWo, 12, 13, 896); a(f's_lshl_b32 s{t0}, s{sCB}, 7'); a(f'v_add_u32 v{vWo}, s{t0}, v{vWo}')
spin(cB, 12)
if OPT['of'] < 0:
    T([('wvm', 'o')] + flag_store(0, 48)); st.mark(29)
a(f's_setprio {OPT["bp2"]}')
a(f's_mul_i32 s{t2}, s{sTT}, {WOB[1]-WOB[0]}'); a(f's_lshl_b32 s{t0}, s{sCT}, 10'); a(f's_add_u32 s{t2}, s{t2}, s{t0}')
a(f's_mul_i32 s{t1}, s{sTT}, {224*896}'); a(f's_mul_i32 s{t0}, s{sCT}, {8*896}'); a(f's_add_u32 s{t1}, s{t1}, s{t0}')
for i in range(15):
    if i == 14:
        a(f's_lshl_b32 s{t0}, s{sCT}, 11'); a(f's_sub_u32 s{t2}, s{t2}, s{t0}'); a(f's_mul_i32 s{t0}, s{sCT}, {16*896}'); a(f's_sub_u32 s{t1}, s{t1}, s{t0}')
    a(f's_add_u32 m0, s{t2}, {WOB[0] + 2048*i}'); a(f's_add_u32 s{t0}, s{t1}, {i*16*896}')
    T(('vm', 'wo', f'buffer_load_dwordx4 v{vWo}, {R4(SA)}, s{t0} offen lds'))
    if i == OPT['of']:
        T([('wvm', 'o')] + flag_store(0, 48)); st.mark(29)
final_setup()
vTa, vTb = 5, 6
tr_base(vTa, 12, False); a(f's_mul_i32 s{t0}, s{sCT}, {WOB[1]-WOB[0]}'); a(f's_add_u32 s{t0}, s{t0}, {WOB[0]}')
a(f'v_add_u32 v{vTa}, s{t0}, v{vTa}'); a(f'v_xor_b32 v{vTb}, 64, v{vTa}')
a(f'v_and_b32 v4, 7, v{vL}'); a(f'v_lshlrev_b32 v4, {OSH}, v4')
a(f's_lshl1_add_u32 s49, s{sTo}, s{sCT}'); a(f's_lshl_b32 s50, s49, {OSH+3}'); a(f's_add_u32 s50, s50, {OFL}')
st.mark(30)
T(('wvm', 'wo')); arrive(cB)
if OPT['n1'] < 0: T(('vm', 'of', f'buffer_load_dwordx2 v[12:13], v4, {S}, s50 offen sc1'))
spin(cB, 16)
st.mark(31)
if OPT['n1'] >= 0 and OPT['so']:
    spin(cCS0, 4, sleep=2); st.mark(38)
    T(('vm', 'of', f'buffer_load_dwordx2 v[12:13], v4, {S}, s50 offen sc1'))
vWA = 128; vOf = 64; vSa = 16
for n in range(16):
    for ct in range(2):
        for q in range(2):
            T(('ds', f'a{n}', f'ds_read_b64_tr_b16 {vr(vWA+8*n+4*ct+2*q,2)}, v{(vTa,vTb)[ct]} offset:{(28*(n>>1) + 16*(n&1) + 8*q)*128}'))
T(('wds', '*')); arrive(cB)
xaddr(48); a(f'v_bfe_u32 v10, v{vL}, 3, 2'); a('v_lshl_add_u32 v48, v10, 11, v48')
a(f's_lshl_b32 s{t0}, s{sCT}, 14'); a(f's_lshl_b32 s{t1}, s{sTT}, 13'); a(f's_add_u32 s{t0}, s{t0}, s{t1}'); a(f's_add_u32 s{t0}, s{t0}, {SBUF}'); a(f'v_add_u32 v48, s{t0}, v48')
for q in range(1, 4): a(f'v_xor_b32 v{48+q}, {32*q}, v48')
spin(cB, 20)
if OPT['n1'] >= 0 and not OPT['so']:
    spin(cCS0, 4, sleep=2); st.mark(38)
    T(('vm', 'of', f'buffer_load_dwordx2 v[12:13], v4, {S}, s50 offen sc1'))
T(('wvm', 'of')); a(f'v_cmp_ne_u64 vcc, s[{sN}:{sN+1}], v[12:13]'); a('s_cbranch_vccz L_ook')
poll(4, 's50', 8, 0, 12)
a.label('L_ook')
a('s_setprio 2')
st.mark(32)
a(f's_lshl_b32 s{t0}, s49, 14'); a(f's_add_u32 s{t0}, s{t0}, {OF}')
def oload(n):
    return [('vm', f'o{n}', f'buffer_load_dwordx4 {vr(vOf+4*n,4)}, v{vL16}, {S}, s{t0} offen offset:{(n&3)*1024} sc1')] + ([f's_add_u32 s{t0}, s{t0}, 4096'] if n & 3 == 3 else [])
OD = OPT.get('od', 10)
for n in range(OD): T(oload(n))
if OPT['pb'] >= 0: a(f's_setprio {OPT["pb"]}')
st.mark(33)
for n in range(16):
    T(('wvm', f'o{n}'))
    for ct in range(2):
        a(mfma(vSa + 16*ct, vWA + 8*n + 4*ct, vOf + 4*n, n == 0))
        if ct == 0 and n + OD < 16: T(oload(n + OD))
st.mark(34)
for ct in range(2):
    for q in range(4): T(('ds', 'sx', f'ds_write_b128 v{48+q}, {vr(vSa+16*ct+4*q,4)} offset:{ct*128}'))
final_stage()
a.label('L_end'); a('s_endpgm')

a.pad_hazards_fast()
for e in a.check_waits(): print('WAITERR', e)
hdr = ['; generated by gen28.py (hand-written generator): single persistent kernel',
       f'; @launch grid=(256,1,1) block=(512,1,1) lds={LDS_TOTAL}', '.amdgcn_target "amdgcn-amd-amdhsa--gfx950"', '.text']
tail = ['.section .rodata,"a"', '.p2align 6', f'.amdhsa_kernel {K}', '  .amdhsa_next_free_vgpr 256', '  .amdhsa_next_free_sgpr 102',
        '  .amdhsa_accum_offset 256', '  .amdhsa_group_segment_fixed_size 0', '  .amdhsa_kernarg_size 72',
        '  .amdhsa_user_sgpr_count 2', '  .amdhsa_user_sgpr_kernarg_segment_ptr 1', '  .amdhsa_system_sgpr_workgroup_id_x 1', '.end_amdhsa_kernel']
open(sys.argv[1], 'w').write('\n'.join(hdr) + '\n' + a.text() + '\n'.join(tail) + '\n')
```

```python
import sys, struct
from asmlib import *

NAME = 'recurrent_scan__sliding_block__dense_activation_silu__prompt'
OPT = dict(stamp=0, spin=200000, hp=1, rotf=1, rot=1, w1e=1, aq=14, tw=0, hd=1, hm=1, hw=0, hh=0, hs=0, early=5, ap=3, ew=2, smp=27, nres=8, bp2=2, ap2=1, of=9, tlb=1, tsh=21, hwo=1, n1=15, sp=5, fp=1, f0=27, cfs=24, pl=2, sy=0, lag=2, pa=-1, pb=0, od=16, vo=1, tr=1, fpk=1, be=0, bw=12, sc=0, w2w=0, ve=1, mid=1, so=0, ps=4, ea=1, osc=1, vs=0, stg=0, ds=0, sa=8, lc=1, bp1=2, xe=1, ro=1, rc=0, rt=0, ta=-1, tb=-1, tc=-1, qa=8, hsl=24, rh=8)
for x in sys.argv[2:]:
    k, v = x.split('='); OPT[k] = int(v)
def f2u(x): return struct.unpack('<I', struct.pack('<f', x))[0]

QKVF = 0; HF = 0x600000; OF = 0xE00000; FLAGS = 0x1200000; STAMP = 0x1100000; WS_USED = 0x1400000
FSH = 7; F1 = 0x40000; F2 = 2 * F1
OSH = OPT.get('osh', 7)
OFL = 0x1000000
CSG = 0x1080000
sN = 80
XBYTES = 2048 * 448 * 2
LOG2E = 1.4426950408889634
pX, pWQ, pWO, pW1, pW2, pOUT, pDBG = 4, 6, 8, 12, 14, 16, 18
SWS, SA, SB, SC = 20, 24, 28, 32
sI, sRB, sJ, sROT, sHD, sRBA, sTB, sCB = 36, 37, 38, 39, 40, 41, 42, 43
sW = 10; sIDX = 11
t0, t1, t2, t3, t4 = 3, 44, 45, 46, 47
sM = 48
def R4(b): return f's[{b}:{b+3}]'
S = R4(SWS)
def SL(p): return (p % 3) * 32768
W1B = (98304, 32768)
def W1P(L, q): return W1B[L] + 8192 * q
KB = 98304; VB = 49152; WOB = (49152, 98304); SXB = (78848, 128000)
RA2 = 90112
def slot_addr(slot): return slot*8192 if slot < 6 else (RA2 if slot == 6 else 137216 + (slot - 7)*8192)
CS = 161792
STX = 155648
SYNC = CS + 1920
cCS0, cL1, cCS1, cAD, cB = 0, 4, 8, 12, 16
LDS_TOTAL = 163840

a = Asm(); T = Tr(a)
st = Stamps2(a, OPT['stamp'], T)
uid = [0]
def lab(p):
    uid[0] += 1; return f'L_{p}_{uid[0]}'
def srd(d, ptr, size):
    a(f's_mov_b32 s{d}, s{ptr}'); a(f's_and_b32 s{d+1}, s{ptr+1}, 0xffff'); a(f's_mov_b32 s{d+2}, {size}'); a(f's_mov_b32 s{d+3}, 0x20000')

def poll(vaddr, soff, nl, imm, vtmp, sleep=1):
    L = lab('poll'); E = lab('polle')
    a(f's_mov_b64 exec, {(1 << nl) - 1}'); a(f's_mov_b32 s{t4}, 0')
    a.label(L)
    a(f'buffer_load_dwordx2 {vr(vtmp,2)}, v{vaddr}, {S}, {soff} offen offset:{imm} sc1')
    a(f's_add_u32 s{t4}, s{t4}, 1')
    a('s_waitcnt vmcnt(0)')
    a(f'v_cmp_ne_u64 vcc, s[{sN}:{sN+1}], {vr(vtmp,2)}')
    a(f's_cbranch_vccz {E}')
    if sleep: a(f's_sleep {max(sleep, OPT.get("ps", 1))}')
    a(f's_cmp_lt_u32 s{t4}, {OPT["spin"]}'); a(f's_cbranch_scc1 {L}')
    a.label(E)
    a('s_mov_b64 exec, -1')
    T.vm = []
vN = 62
def nonce_take(sampled):
    L = lab('nz'); E = lab('nze')
    a(f's_mov_b32 s{t4}, 0')
    if sampled: T(('wvm', 'go')); a(f's_branch {L}c')
    a.label(L)
    a(f'buffer_load_dwordx2 {vr(vN,2)}, v{vZ}, s[60:63], 0 offen sc1'); a('s_waitcnt vmcnt(0)')
    a.label(L + 'c')
    a(f'v_readfirstlane_b32 s{sN+1}, v{vN+1}'); a(f'v_readfirstlane_b32 s{sN}, v{vN}'); a(f's_add_u32 s{t4}, s{t4}, 1')
    a(f's_cmp_lg_u32 s{sN+1}, 0'); a(f's_cbranch_scc1 {E}')
    a('s_sleep 2'); a(f's_cmp_lt_u32 s{t4}, {OPT["spin"]}'); a(f's_cbranch_scc1 {L}')
    a.label(E)

vL, vL16, vSy, vZ, vTt = 1, 2, 7, 8, 11
def spin(off, val, sleep=0):
    L = lab('sp'); E = lab('spe')
    a(f's_mov_b32 s{t4}, 0')
    a.label(L)
    a(f'ds_read_b32 v{vTt}, v{vSy} offset:{off}'); a(f's_add_u32 s{t4}, s{t4}, 1'); a('s_waitcnt lgkmcnt(0)')
    a(f'v_cmp_gt_u32 vcc, {val}, v{vTt}')
    a(f's_cbranch_vccz {E}')
    sleep = max(sleep, OPT.get('ss', 0))
    if sleep: a(f's_sleep {sleep}')
    a(f's_cmp_lt_u32 s{t4}, {OPT["spin"]*8}'); a(f's_cbranch_scc1 {L}')
    a.label(E)
    T.ds = []
def arrive(off):
    a('s_mov_b64 exec, 1'); a(f'v_mov_b32 v{vTt}, 1'); T(('ds', 'arr', f'ds_add_u32 v{vSy}, v{vTt} offset:{off}')); a('s_mov_b64 exec, -1')

def flag_store(imm, soff):
    o = [f'v_lshlrev_b32 v{vTt}, 3, v{vL}']
    if imm >= 4096:
        o.append(f'v_add_u32 v{vTt}, {imm}, v{vTt}'); imm = 0
    return o + [f's_mov_b64 exec, {0xffff if OPT.get("ff", 1) else 1}', ('vm', 'flag', f'buffer_store_dwordx2 {vr(vN,2)}, v{vTt}, {S}, s{soff} offen offset:{imm} sc1'), 's_mov_b64 exec, -1']

def tr_base(vd, vt, natural):
    a(f'v_lshrrev_b32 v{vd}, 5, v{vL}'); a(f'v_bfe_u32 v{vt}, v{vL}, 2, 2'); a(f'v_lshl_add_u32 v{vd}, v{vd}, {3 if natural else 2}, v{vt}')
    a(f'v_lshlrev_b32 v{vd}, 7, v{vd}')
    a(f'v_bfe_u32 v{vt}, v{vL}, 3, 1'); a(f'v_lshl_add_u32 v{vd}, v{vt}, 6, v{vd}')
    a(f'v_bfe_u32 v{vt}, v{vL}, 4, 1'); a(f'v_lshl_add_u32 v{vd}, v{vt}, 5, v{vd}')
    a(f'v_and_b32 v{vt}, 3, v{vL}'); a(f'v_lshl_add_u32 v{vd}, v{vt}, 3, v{vd}')

def full_pat(vd, vt, vt2, stride):
    a(f'v_lshrrev_b32 v{vt}, 3, v{vL}'); a(f'v_mul_u32_u24 v{vd}, {stride}, v{vt}')
    a(f'v_bfe_u32 v{vt}, v{vL}, 4, 1'); a(f'v_lshlrev_b32 v{vt}, 2, v{vt}'); a(f'v_and_b32 v{vt2}, 7, v{vL}'); a(f'v_xor_b32 v{vt}, v{vt}, v{vt2}')
    a(f'v_lshl_add_u32 v{vd}, v{vt}, 4, v{vd}')

def mfma(d, A, B, first=False): return f'v_mfma_f32_32x32x16_bf16 {vr(d,16)}, {vr(A,4)}, {vr(B,4)}, ' + ('0' if first else vr(d, 16))
def mfma16(d, A, B, first=False): return f'v_mfma_f32_16x16x32_bf16 {vr(d,4)}, {vr(A,4)}, {vr(B,4)}, ' + ('0' if first else vr(d, 4))

def silu_ops(b, tmp, n, sNeg):
    o = []
    for g in range(0, n, 4):
        ks = range(g, g + 4)
        o += [f'v_mul_f32 v{tmp+k}, s{sNeg}, v{b+k}' for k in ks]
        o += [f'v_exp_f32 v{tmp+k}, v{tmp+k}' for k in ks]
        o += [f'v_add_f32 v{tmp+k}, 1.0, v{tmp+k}' for k in ks]
        o += [f'v_rcp_f32 v{tmp+k}, v{tmp+k}' for k in ks]
        o += [f'v_mul_f32 v{b+k}, v{tmp+k}, v{b+k}' for k in ks]
    return o

K = NAME + '_kernel'
a.raw(f'.globl {K}'); a.raw('.p2align 8'); a.raw(f'.type {K},@function'); a.label(K)
a('s_cmp_ge_u32 s2, 256'); a('s_cbranch_scc1 L_end')
a('s_load_dwordx16 s[4:19], s[0:1], 0'); a('s_load_dwordx2 s[20:21], s[0:1], 64')
st.start()
a(f'v_readfirstlane_b32 s{t1}, v0'); a(f'v_and_b32 v{vL}, 63, v0'); a(f'v_lshlrev_b32 v{vL16}, 4, v{vL}')
a(f's_and_b32 s{t0}, s2, 7'); a(f's_lshr_b32 s{t2}, s2, 3')
a(f's_lshr_b32 s{t1}, s{t1}, 6'); a(f's_and_b32 s{sI}, s{t1}, 3')
a(f's_and_b32 s{sHD}, s{t2}, 1'); a(f's_lshl1_add_u32 s{sHD}, s{t0}, s{sHD}'); a(f's_lshr_b32 s{sRBA}, s{t2}, 1')
a(f's_sub_u32 s{t3}, s{t2}, 4'); a(f's_lshr_b32 s{sCB}, s{t3}, 2'); a(f's_and_b32 s{t3}, s{t3}, 3')
a(f's_lshl2_add_u32 s{sTB}, s{t0}, s{t3}')
a(f's_lshr_b32 s{sRB}, s{t0}, 1'); a(f's_lshl2_add_u32 s{sRB}, s{sRB}, s{t3}')
a(f's_and_b32 s{sJ}, s{t0}, 1'); a(f's_mul_i32 s{sJ}, s{sJ}, 7'); a(f's_add_u32 s{sJ}, s{sJ}, s{sCB}')
if OPT['rot']:
    a(f's_lshl1_add_u32 s{sROT}, s{t3}, s{sCB}'); a(f's_sub_u32 s{t3}, s{sROT}, 7'); a(f's_min_u32 s{sROT}, s{sROT}, s{t3}')
else: a(f's_mov_b32 s{sROT}, 0')
vXd, vQd, vWd = 240, 244, 30
a(f's_lshl_b32 s{t0}, s{sRB}, 7'); a(f's_lshl_b32 s{t3}, s{sI}, 5'); a(f's_add_u32 s{t0}, s{t0}, s{t3}')
a(f'v_lshrrev_b32 v9, 3, v{vL}'); a(f'v_add_u32 v10, s{t0}, v9'); a(f'v_mul_u32_u24 v{vXd}, 896, v10')
a(f'v_lshrrev_b32 v10, 4, v{vL}'); a(f'v_and_b32 v11, 7, v{vL}'); a('v_xor_b32 v12, v10, v11'); a(f'v_lshl_add_u32 v{vXd}, v12, 4, v{vXd}')
a(f'v_xor_b32 v{vXd+1}, 64, v{vXd}'); a(f'v_add_u32 v{vXd+2}, {2*6144}, v{vXd}'); a(f'v_add_u32 v{vXd+3}, {3*6144}, v{vXd+1}'); a(f'v_add_u32 v{vXd+1}, 6144, v{vXd+1}')
a('v_and_b32 v10, 1, v10'); a('v_lshlrev_b32 v10, 2, v10'); a('v_xor_b32 v10, v10, v11'); a('v_lshlrev_b32 v10, 4, v10')
a(f's_lshl_b32 s{t3}, s{sI}, 4'); a(f'v_add_u32 v9, s{t3}, v9')
a(f's_mul_i32 s{t0}, s{sJ}, 192'); a(f's_and_b32 s{t0}, s{t0}, 0xffffff80'); a(f's_add_u32 s{t0}, s{t0}, 1024'); a(f'v_mul_u32_u24 v{vQd}, 2688, v9'); a(f'v_add3_u32 v{vQd}, v{vQd}, v10, s{t0}')
a(f'v_add_u32 v{vQd+1}, {128-1024}, v{vQd}'); a(f'v_add_u32 v{vQd+2}, {8*2688-2048}, v{vQd}'); a(f'v_add_u32 v{vQd+3}, {8*2688+128-3072}, v{vQd}')
a(f's_lshl_b32 s{t0}, s{sJ}, 8'); a(f'v_mul_u32_u24 v{vWd}, 3584, v9'); a(f'v_add3_u32 v{vWd}, v{vWd}, v10, s{t0}'); a(f'v_add_u32 v{vWd+1}, {8*3584-1024}, v{vWd}')
sMx, sMw = 48, 49
a(f's_lshl_b32 s{sMx}, s{sI}, 12'); a(f's_lshl_b32 s{sMw}, s{sI}, 11')
for p in range(2):
    a(f's_add_u32 s{50+p}, s{sROT}, {p}'); a(f's_sub_u32 s{t3}, s{50+p}, 7'); a(f's_min_u32 s{50+p}, s{50+p}, s{t3}')
a('s_waitcnt lgkmcnt(0)')
a(f's_mov_b32 s{sW}, s{t1}'); a(f's_mov_b32 s{sIDX}, s{t2}')
a(f's_and_b32 s{SWS+1}, s{SWS+1}, 0xffff'); a(f's_mov_b32 s{SWS+2}, {WS_USED}'); a(f's_mov_b32 s{SWS+3}, 0x20000')
a(f's_cmp_lt_u32 s{sIDX}, 4'); a('s_cbranch_scc1 L_helper')
srd(SA, pX, XBYTES)
a(f's_sub_u32 s{SB}, s{pWQ}, 1024'); a(f's_subb_u32 s{SB+1}, s{pWQ+1}, 0'); a(f's_and_b32 s{SB+1}, s{SB+1}, 0xffff'); a(f's_mov_b32 s{SB+2}, {448*2688 + 1024}'); a(f's_mov_b32 s{SB+3}, 0x20000')
def x_dma(p):
    return [([f's_add_u32 m0, s{sMx}, {SL(p)}', f's_lshl_b32 s{t0}, s{50+p}, 7'] if i == 0 else []) +
            [('vm', f'p{p}', f'buffer_load_dwordx4 v{vXd+i}, {R4(SA)}, s{t0} offen offset:{i*1024} lds')] for i in range(4)]
def wq_dma(p):
    return [([f's_add_u32 m0, s{sMx}, {SL(p) + 16384}', f's_mul_i32 s{t0}, s{50+p}, {64*2688}'] if i == 0 else []) +
            [('vm', f'p{p}', f'buffer_load_dwordx4 v{vQd+i}, {R4(SB)}, s{t0} offen offset:{i*1024} lds')] for i in range(4)]
def w1_dma(L, q):
    return [[f's_add_u32 m0, s{sMw}, {W1P(L, q)}', f's_mul_i32 s{t0}, s{50+q}, {64*3584}'] + ([f's_add_u32 s{t0}, s{t0}, 128'] if L else []) +
            [('vm', f'l{L}', f'buffer_load_dwordx4 v{vWd}, {R4(SC)}, s{t0} offen lds')],
            [('vm', f'l{L}', f'buffer_load_dwordx4 v{vWd+1}, {R4(SC)}, s{t0} offen offset:1024 lds')]]
st.init(60); st.mark(47)
a(f's_cmp_ge_u32 s{sW}, 4'); a('s_cbranch_scc1 L_B')
for u in x_dma(0) + wq_dma(0): T(u)
st.mark(48)
a('s_branch L_A')
HELPER_AT = len(a.items)

vXa = 12
vT = 16
vNm, vR = 18, 20
vK1, vIr = 22, 23
vCa = 9
vWF = 32
vSel = 56
vAcc = 64
vCs = 96; vTm = 112; vCs2 = 240; vCs3 = 32
vX = 128
sQo, sHo, sFl = 57, 58, 59

def common_setup(role):
    for p in range(2, 7):
        a(f's_add_u32 s{50+p}, s{sROT}, {p}'); a(f's_sub_u32 s{t3}, s{50+p}, 7'); a(f's_min_u32 s{50+p}, s{50+p}, s{t3}')
    srd(SC, pW1, 448 * 3584)
    a(f'v_mov_b32 v{vZ}, 0'); a(f'v_mov_b32 v{vSy}, {SYNC}')
    a(f'v_and_b32 v10, 31, v{vL}'); a(f'v_lshlrev_b32 v{vXa}, 7, v10'); a(f'v_bfe_u32 v10, v{vL}, 1, 3'); a(f'v_lshrrev_b32 v11, 5, v{vL}')
    a('v_xor_b32 v10, v10, v11'); a(f'v_lshl_add_u32 v{vXa}, v10, 4, v{vXa}'); a(f'v_add_u32 v{vXa}, s{sMx}, v{vXa}')
    for s in range(1, 4): a(f'v_xor_b32 v{vXa+s}, {32*s}, v{vXa}')
    a(f'v_lshlrev_b32 v{vCa}, 4, v11'); a(f'v_add_u32 v{vCa}, {CS}, v{vCa}')
    tr_base(24, 10, True)
    a(f'v_lshl_add_u32 v27, v11, 10, v24')
    a(f's_and_b32 s{t0}, s{sJ}, 1')
    for k in range(2):
        if role == 'A': a(f's_add_u32 s{t1}, s{t0}, {k}')
        elif k == 0: a(f's_add_u32 s{t1}, s{t0}, 2')
        else: a(f's_min_u32 s{t1}, s{sI}, 2'); a(f's_add_u32 s{t1}, s{t1}, s{t0}')
        a(f's_and_b32 s{t2}, s{t1}, 1'); a(f's_lshl_b32 s{t2}, s{t2}, 6'); a(f's_lshr_b32 s{t1}, s{t1}, 1'); a(f's_lshl_b32 s{t1}, s{t1}, 10'); a(f's_add_u32 s{t1}, s{t1}, 16384')
        a(f'v_xor_b32 v{vT+k}, s{t2}, v27'); a(f'v_add_u32 v{vT+k}, s{t1}, v{vT+k}')
    a(f'v_and_b32 v10, 15, v{vL}'); a(f'v_bfe_u32 v11, v{vL}, 4, 1'); a('v_cmp_eq_u32 vcc, v10, v11'); a('v_mov_b32 v10, 0x3f803f80')
    for k in range(4 if role == 'B' else 0): a(f'v_cndmask_b32 v{vSel+k}, 0, v10, vcc')
    r = 0 if role == 'A' else 1
    a(f's_lshl2_add_u32 s{t0}, s{sRB}, s{sI}')
    a(f's_mul_i32 s{sQo}, s{t0}, 84'); a(f's_mul_i32 s{t1}, s{sJ}, 6'); a(f's_add_u32 s{sQo}, s{sQo}, s{t1}'); a(f's_add_u32 s{sQo}, s{sQo}, {4*r}'); a(f's_lshl_b32 s{sQo}, s{sQo}, 10')
    a(f's_mul_i32 s{sHo}, s{t0}, 112'); a(f's_lshl3_add_u32 s{sHo}, s{sJ}, s{sHo}'); a(f's_lshl_b32 s{sHo}, s{sHo}, 10'); a(f's_add_u32 s{sHo}, s{sHo}, {HF + 2048*(1-r)}')
    a(f's_mul_i32 s{sFl}, s{t0}, 14'); a(f's_add_u32 s{sFl}, s{sFl}, s{sJ}'); a(f's_lshl_b32 s{sFl}, s{sFl}, {FSH+1}'); a(f's_add_u32 s{sFl}, s{sFl}, {FLAGS + (r << FSH)}')

sOK = 19
def cs_load(role):
    hf = 1 if role == 'A' else 0
    a(f's_lshl_b32 s{t0}, s{sJ}, 10'); a(f's_add_u32 s{t0}, s{t0}, {CSG + hf*128}'); a(f's_mov_b32 m0, {CS + 384 + hf*256}')
    a(f'v_lshrrev_b32 v10, 5, v{vL}'); a('v_lshlrev_b32 v10, 7, v10'); a(f'v_and_b32 v11, 31, v{vL}'); a('v_add_lshl_u32 v10, v10, v11, 2')
    a(f'buffer_load_dword v10, {S}, s{t0} offen sc1 lds')
def cs_try(role):
    E = lab('cst')
    T(('wvm', 'cf')); a(f'v_cmp_ne_u64 vcc, s[{sN}:{sN+1}], v[28:29]'); a(f's_mov_b32 s{sOK}, vcc_lo'); a(f's_cbranch_vccnz {E}')
    cs_load(role)
    a.label(E)
def cs_late(role):
    E = lab('csl')
    a(f's_cmp_eq_u32 s{sOK}, 0'); a(f's_cbranch_scc1 {E}')
    a(f's_lshl_b32 s{t1}, s{sJ}, 10'); a(f's_add_u32 s{t1}, s{t1}, {CSG}')
    keep = list(T.vm)
    poll(25, f's{t1}', 2, 256, 28)
    cs_load(role); a('s_waitcnt vmcnt(0)')
    T.vm = keep
    a.label(E)
    hf = 1 if role == 'A' else 0
    for L in range(2):
        for g in range(4): T(('ds', f'hc{L}', f'ds_read_b128 {vr((vCs2, vCs)[L]+4*g,4)}, v{vCa} offset:{384 + hf*256 + L*128 + g*32}'))
    T(('wds', 'hc0'))
def touch(k):
    n = 28 if k < 2 else 14
    a(f's_sub_u32 s{t1}, s{sIDX}, 4'); a(f's_lshl3_add_u32 s{t1}, s{t1}, s{sW}'); a(f's_mul_i32 s{t1}, s{t1}, {56 if k < 2 else 14}')
    if k == 1: a(f's_add_u32 s{t1}, s{t1}, 28')
    a(f'v_min_u32 v61, {n-1}, v{vL}'); a(f'v_add_lshl_u32 v61, v61, s{t1}, 7')
    p = pW2 if k < 2 else pWO
    T(('vm', 'pf', f'global_load_dword v{252+k}, v61, s[{p}:{p+1}]'))
def p1a(role):
    A_ = role == 'A'
    vS = vTm
    def xreads(p): return [('ds', f'x{p}', f'ds_read_b128 {vr(vX+16*p+4*s,4)}, v{vXa+s} offset:{SL(p) & 0xffff}') for s in range(4)]
    def wreads(n):
        p = n >> 2; s = n & 3; b = n % 3
        return [('ds', f'w{n}', f'ds_read_b64_tr_b16 {vr(vWF+8*b+4*t+2*q,2)}, v{vT+t} offset:{(SL(p) & 0xffff) + s*4096 + q*512}') for t in range(2) for q in range(2)]
    def hop(p):
        d = (SL(p) & ~0xffff) - (SL(p - 1) & ~0xffff)
        if d == 0: return []
        op = 'v_add_u32' if d > 0 else 'v_subrev_u32'
        return [f'{op} v{v}, {abs(d)}, v{v}' for v in (vXa, vXa+1, vXa+2, vXa+3, vT, vT+1)]
    VS = OPT['vs']
    if VS or not A_:
        for r in range(4): a(f'v_mov_b32 v{vS+r}, 0')
        a(f'v_mov_b32 v{vS+4}, 0x3f803f80')
    def stats(p):
        ds = range(0, OPT['sa']) if A_ else range(OPT['sa'], 16)
        o = []
        for i, d in enumerate(ds):
            r = vX + 16*p + d; t = vS + 6 + 2*(i & 3)
            o.append([f'v_lshlrev_b32 v{t}, 16, v{r}', f'v_and_b32 v{t+1}, 0xffff0000, v{r}', f'v_add_f32 v{vS}, v{vS}, v{t}', f'v_add_f32 v{vS+1}, v{vS+1}, v{t+1}',
                      f'v_fmac_f32 v{vS+2}, v{t}, v{t}', f'v_fmac_f32 v{vS+3}, v{t+1}, v{t+1}'])
        res = []
        for i in range(0, len(o), 2):
            g = o[i:i+2]
            res += [x[0] for x in g] + [x[1] for x in g]
            for x in g: res += [x[2], x[4], x[3], x[5]]
        return res
    plan = {}
    for p in range(5): plan[p] = x_dma(p + 2) if A_ else wq_dma(p + 2)
    plan[5] = []; plan[6] = []
    PL = {0: ([(1,0,0),(2,0,2),(3,0,4),(4,0,6),(5,1,0),(5,1,2),(6,1,4),(6,1,6)], [(2,0,1),(3,0,3),(4,0,5),(5,1,1),(5,1,3),(6,1,5)]),
          1: ([(2,0,0),(3,0,1),(4,0,2),(5,0,3),(5,0,5),(5,1,0),(6,1,2),(6,1,4),(6,1,6)], [(5,0,4),(5,0,6),(6,1,1),(6,1,3),(6,1,5)]),
          2: ([(1,0,0),(2,0,1),(3,0,2),(4,0,3),(5,0,4),(5,0,6),(5,1,0),(6,1,2),(6,1,4),(6,1,5),(6,1,6)], [(5,0,5),(5,1,1),(6,1,3)]),
          3: ([(4,0,0),(5,0,1),(5,0,3),(5,0,5),(6,1,0),(6,1,2),(6,1,4),(6,1,6)], [(5,0,2),(5,0,4),(5,0,6),(6,1,1),(6,1,3),(6,1,5)])}[OPT['pl']]
    for p, L, q in PL[0 if A_ else 1]: plan[p] += w1_dma(L, q)
    st.mark(2); T(('w', 'p0', '*')); st.mark(3); a('s_barrier'); st.mark(4)
    xr = xreads(0)
    T(xr[:1] + wreads(0) + xr[1:2] + wreads(1) + xr[2:])
    for n in range(28):
        p = n >> 2; s = n & 3; b = n % 3
        ms = [[mfma(vAcc, vWF+8*b, vX+4*n, n == 0)], [mfma(vAcc+16, vWF+8*b+4, vX+4*n, n == 0) if A_ else mfma16(vAcc+16, vWF+8*b+4, vSel, n == 0)]]
        fill = []
        if s == 2 and p < 6:
            T(('w', f'p{p+1}', '*'))
            if p in (1, 4): st.mark(5 + p)
            a('s_barrier')
            if p in (1, 4): st.mark(6 + p)
            T(hop(p + 1))
            fill = xreads(p + 1)[:2] + wreads(n + 2)
        else:
            T(('wds', f'w{n}'))
            if s == 3 and p < 6: fill = xreads(p + 1)[2:]
            if n + 2 < 28: fill = fill + wreads(n + 2)
        ip, slot = (p + 1, s - 2) if s >= 2 else (p, s + 2)
        if ip <= 6:
            u = plan[ip]; k = len(u)
            if ip == 0: lo, hi = (slot - 2) * k // 2, (slot - 1) * k // 2
            else: lo, hi = (slot * k + 3) // 4, ((slot + 1) * k + 3) // 4
            for x in u[lo:hi]: fill += x
        if VS:
            so = stats(p); L = len(so)
            if p < 6: part = {1: so[:L//3], 2: so[L//3:2*L//3]}.get(s, [])
            else: part = {1: so[:L//2], 2: so[L//2:]}.get(s, [])
            if s == 0 and p > 0: pr = stats(p - 1); part = pr[2*len(pr)//3:]
            fill += part
        T(weave(ms, fill))
        if not VS and not A_ and s == 1:
            if p == 0: T(('wds', 'x0'))
            for d in range(16):
                r = vX + 16*p + d
                a(f'v_dot2c_f32_bf16 v{vS + (d&1)}, v{r}, v{vS+4}'); a(f'v_dot2c_f32_bf16 v{vS + 2 + (d&1)}, v{r}, v{r}')
        for k, key in enumerate(('ta', 'tb', 'tc')):
            if n == OPT[key]: touch(k)
        if n == 26 and A_ and OPT['xe']: final_setup()
        if n == OPT.get('gon', 14): T(('vm', 'go', f'buffer_load_dwordx2 {vr(vN,2)}, v{vZ}, s[60:63], 0 offen sc1'))
        if n == OPT['cfs']:
            a(f's_lshl_b32 s{t1}, s{sJ}, 10'); a(f's_add_u32 s{t1}, s{t1}, {CSG}'); a(f'v_and_b32 v25, 1, v{vL}'); a('v_lshlrev_b32 v25, 9, v25')
            T(('vm', 'cf', f'buffer_load_dwordx2 v[28:29], v25, {S}, s{t1} offen offset:256 sc1'))
        if (VS or not A_) and n == 26:
            a(f'v_add_f32 v{vS}, v{vS}, v{vS+1}'); a(f'v_add_f32 v{vS+2}, v{vS+2}, v{vS+3}')
            a(f'v_mov_b32 v{vS+1}, v{vS}'); a(f'v_mov_b32 v{vS+3}, v{vS+2}')
            a(f'v_and_b32 v21, 31, v{vL}'); a(f's_lshl_b32 s{t1}, s{sI}, 8'); a(f's_add_u32 s{t1}, s{t1}, {STX}'); a(f'v_lshl_add_u32 v21, v21, 3, s{t1}')
            a(f'v_permlane32_swap_b32 v{vS}, v{vS+1}'); a(f'v_permlane32_swap_b32 v{vS+2}, v{vS+3}')
            a(f'v_add_f32 v{vNm}, v{vS}, v{vS+1}'); a(f'v_add_f32 v{vNm+1}, v{vS+2}, v{vS+3}')
            T(('ds', 'st', f'ds_write_b64 v21, {vr(vNm,2)} offset:{0 if A_ else 1024}'))
    if not A_:
        a(f's_min_u32 s{t0}, s{sI}, 2'); a(f's_lshl_b32 s{t0}, s{t0}, 7'); a(f's_add_u32 s{t0}, s{t0}, {CS}')
        a(f'v_and_b32 v10, 1, v{vL}'); a('v_lshlrev_b32 v10, 6, v10'); a(f'v_and_b32 v11, 48, v{vL}'); a(f'v_add3_u32 v10, v10, v11, s{t0}')
        a('s_mov_b32 exec_lo, 0x00030003'); a('s_mov_b32 exec_hi, 0x00030003')
        T(('ds', 'st', f'ds_write_b128 v10, {vr(vAcc+16,4)}'))
        a('s_mov_b64 exec, -1')
    T(('wvm', 'l0'))
    if not OPT['lc']: nonce_take(True); cs_try(role)
    if A_: a(f's_setprio {OPT.get("aq3", 3)}')
    T(('wds', '*')); st.mark(11); a('s_barrier'); st.mark(12)
    if A_ and OPT['ew'] == 0: a_early()
    if not VS and A_:
        a(f'v_and_b32 v21, 31, v{vL}'); a(f's_lshl_b32 s{t1}, s{sI}, 8'); a(f's_add_u32 s{t1}, s{t1}, {STX}'); a(f'v_lshl_add_u32 v21, v21, 3, s{t1}')
    if VS: T(('ds', 'st', f'ds_read_b64 v[22:23], v21 offset:{1024 if A_ else 0}'))
    elif A_: T(('ds', 'st', f'ds_read_b64 {vr(vNm,2)}, v21 offset:1024'))
    tiles = (0, 1) if A_ else (2,)
    for k, t in enumerate(tiles):
        for g in range(4): T(('ds', f'cs{k}', f'ds_read_b128 {vr(vCs+16*k+4*g,4)}, v{vCa} offset:{t*128 + g*32}'))
    E = [('wds', 'st')]
    if VS: E += [f'v_add_f32 v{vNm}, v{vNm}, v22', f'v_add_f32 v{vNm+1}, v{vNm+1}, v23']
    E += [f'v_mul_f32 v{vNm}, {f2u(-1.0/448):#x}, v{vNm}', f'v_mul_f32 v{vNm+1}, {f2u(1.0/448):#x}, v{vNm+1}',
          f'v_fma_f32 v{vNm+1}, -v{vNm}, v{vNm}, v{vNm+1}', f'v_max_f32 v{vNm+1}, 0, v{vNm+1}', f'v_add_f32 v{vNm+1}, {f2u(1e-5):#x}, v{vNm+1}',
          f'v_rsq_f32 v{vR}, v{vNm+1}', f'v_sqrt_f32 v{vIr}, v{vNm+1}', f'v_mov_b32 v{vNm+1}, v{vNm}', f'v_mul_f32 v{vK1}, {f2u(-LOG2E):#x}, v{vR}']
    for k, t in enumerate(tiles):
        E.append([f's_mul_i32 s{t0}, s{sJ}, 3', f's_cmp_lt_u32 s{t0}, {14 - t}', f's_cselect_b32 s{t0}, {f2u(28**-0.5*LOG2E):#x}, 1.0', f'v_mul_f32 v26, s{t0}, v{vR}'])
        b = vAcc + 16*k
        E.append(('wds', f'cs{k}'))
        if OPT['be']:
            for s_ in range(2):
                E += [f'v_fma_f32 v{b+j}, v{vCs+16*k+j}, v{vNm}, v{b+j}' for j in range(8*s_, 8*s_ + 8)]
                E += [f'v_mul_f32 v{b+j}, v26, v{b+j}' for j in range(8*s_, 8*s_ + 8)]
                E += [f'v_cvt_pk_bf16_f32 v{b+4*s_+j}, v{b+8*s_+2*j}, v{b+8*s_+2*j+1}' for j in range(4)]
                E.append(('vm', 'q', f'buffer_store_dwordx4 {vr(b+4*s_,4)}, v{vL16}, {S}, s{sQo} offen offset:{k*2048 + s_*1024} sc1'))
        else:
            E.append('v_mov_b32 v27, v26')
            E += [f'v_pk_fma_f32 {vr(b+j,2)}, {vr(vCs+16*k+j,2)}, {vr(vNm,2)}, {vr(b+j,2)}' for j in range(0, 16, 2)]
            E += [f'v_pk_mul_f32 {vr(b+j,2)}, {vr(b+j,2)}, v[26:27]' for j in range(0, 16, 2)]
            for s_ in range(2):
                E += [f'v_cvt_pk_bf16_f32 v{b+4*s_+j}, v{b+8*s_+2*j}, v{b+8*s_+2*j+1}' for j in range(4)]
                E.append(('vm', 'q', f'buffer_store_dwordx4 {vr(b+4*s_,4)}, v{vL16}, {S}, s{sQo} offen offset:{k*2048 + s_*1024} sc1'))
    def chk():
        if OPT['lc']: nonce_take(True); cs_try(role)
    if OPT['be'] and not A_:
        W = OPT['bw']; ex = {n: E[n*len(E)//W:(n+1)*len(E)//W] for n in range(W)}
        ex[W + 2] = [('call', chk)]
        return ex
    T(E)
    if A_: T(('wvm', 'l1')); arrive(cL1)
    chk()
    st.mark(13)
    return {}

NR = 6; PD = 4
def h_tile(L, hf, acc, ex={}):
    def rd(n): return [('ds', f'u{n}', f'ds_read_b64_tr_b16 {vr(vWF+4*(n%NR)+2*q,2)}, v{vT+L} offset:{W1P(L, n>>2) - W1B[L] + (16*(n&3)+4*q)*128}') for q in range(2)]
    for n in range(PD): T(rd(n))
    for n in range(28):
        if n + PD < 28: T(rd(n + PD))
        if n & 1 == 0: T(('wds', f'u{n+1}'))
        a(mfma(acc, vWF + 4*(n % NR), vX + 4*n, n == 0))
        if n in ex: T(ex[n])
def h_epi(acc, k, vCs, mid=None):
    for g in range(0, 16, 4):
        ks = range(g, g + 4)
        for j in ks: a(f'v_fma_f32 v{acc+j}, v{vCs+j}, v{vNm}, v{acc+j}')
        for j in ks: a(f'v_mul_f32 v{vTm+j}, v{vK1}, v{acc+j}')
        for j in ks: a(f'v_exp_f32 v{vTm+j}, v{vTm+j}')
        for j in ks: a(f'v_fma_f32 v{vTm+j}, v{vTm+j}, v{vIr}, v{vIr}')
        for j in ks: a(f'v_rcp_f32 v{vTm+j}, v{vTm+j}')
        for j in ks: a(f'v_mul_f32 v{acc+j}, v{vTm+j}, v{acc+j}')
        if g == 4 and mid: T(mid)
        if g & 4:
            s = g >> 3
            for j in range(4): a(f'v_cvt_pk_bf16_f32 v{acc+4*s+j}, v{acc+8*s+2*j}, v{acc+8*s+2*j+1}')
            T(('vm', f'h{k}', f'buffer_store_dwordx4 {vr(acc+4*s,4)}, v{vL16}, {S}, s{sHo} offen offset:{s*1024} sc1'))
    if k == 0: a(f's_add_u32 s{sHo}, s{sHo}, 4096')

sST0, sG0, sTQ, sT7, sCT, sTT, sTo, sKI, sFl2 = 82, 83, 84, 85, 86, 87, 88, 89, 90
vFl = 5; vQ = 32
def att_setup():
    a(f's_mul_i32 s{t0}, s{sHD}, 7'); a(f's_lshr_b32 s{sST0}, s{t0}, 2'); a(f's_and_b32 s{sG0}, s{t0}, 3')
    a(f's_lshl2_add_u32 s{sTQ}, s{sRBA}, s{sI}')
    a(f's_mul_i32 s{t0}, s{sI}, 3'); a(f's_lshl2_add_u32 s{t0}, s{sRBA}, s{t0}'); a(f's_sub_u32 s{sT7}, s{t0}, 8')
    a(f's_and_b32 s{sCT}, s{sI}, 1'); a(f's_lshr_b32 s{sTT}, s{sI}, 1'); a(f's_lshl1_add_u32 s{sTo}, s{sTB}, s{sTT}')
    a(f'v_min_u32 v10, 13, v{vL}')
    a(f'v_lshrrev_b32 v26, 2, v10'); a(f'v_add_u32 v26, s{sT7}, v26'); a('v_max_i32 v26, 0, v26')
    a(f'v_bfe_u32 v27, v10, 1, 1'); a('v_mul_u32_u24 v27, 28, v27'); a('v_add_u32 v27, 28, v27')
    a(f'v_cmp_le_u32 vcc, 12, v10'); a(f'v_mov_b32 v28, s{sTQ}')
    a('v_cndmask_b32 v26, v26, v28, vcc'); a(f'v_cndmask_b32 v27, v27, v{vZ}, vcc')
    a(f'v_and_b32 v28, 1, v10'); a('v_lshl_add_u32 v27, v28, 1, v27'); a(f'v_add_u32 v27, s{sST0}, v27')
    a('v_lshrrev_b32 v27, 1, v27'); a('v_min_u32 v27, 41, v27')
    a('v_mul_u32_u24 v28, 43, v27'); a('v_lshrrev_b32 v28, 7, v28')
    a('v_mul_u32_u24 v29, 3, v28'); a('v_sub_u32 v29, v27, v29'); a('v_lshrrev_b32 v29, 1, v29')
    a('v_mul_u32_u24 v26, 14, v26'); a('v_add_lshl_u32 v26, v26, v28, 1'); a(f'v_add_lshl_u32 v{vFl}, v26, v29, {FSH}')
    a(f'v_add_u32 v{vFl}, {FLAGS}, v{vFl}')
    assert all((x * 43) >> 7 == x // 3 for x in range(42))
    a(f'v_lshrrev_b32 v26, 5, v{vL}'); a('v_add_u32 v26, 2, v26'); a(f'v_add_u32 v27, {0x40000000 if OPT["tr"] else 0}, v{vL16}')
    a(f'v_cmp_gt_u32 vcc, s{sG0}, v26'); a(f'v_cndmask_b32 v3, v{vL16}, v27, vcc')
    a(f'v_cmp_lt_u32 vcc, s{sG0}, v26'); a(f'v_cndmask_b32 v4, v{vL16}, v27, vcc')
SBUF = 49152
vXo2 = 61; vXv = 56
def final_setup():
    a(f's_lshl3_add_u32 s{t0}, s{sTB}, s{sW}'); a(f's_lshl_b32 s{t0}, s{t0}, 3'); a(f'v_lshrrev_b32 v10, 3, v{vL}'); a(f'v_add_u32 v10, s{t0}, v10')
    a(f'v_mul_u32_u24 v{vXo2}, 896, v10'); a(f'v_and_b32 v10, 7, v{vL}'); a(f'v_lshl_add_u32 v{vXo2}, v10, 4, v{vXo2}')
    a(f's_lshl_b32 s{t0}, s{sCB}, 7'); a(f'v_add_u32 v{vXo2}, s{t0}, v{vXo2}')
    T(('vm', 'x', f'global_load_dwordx4 {vr(vXv,4)}, v{vXo2}, s[{pX}:{pX+1}]'))
def xaddr(vd):
    a(f'v_lshrrev_b32 v10, 5, v{vL}'); a(f'v_and_b32 v11, 7, v{vL}'); a('v_xor_b32 v10, v10, v11'); a(f'v_lshlrev_b32 v{vd}, 8, v11'); a(f'v_lshl_add_u32 v{vd}, v10, 4, v{vd}')
def final_stage():
    vA0, vA1, vB0, vB1 = 12, 13, 14, 15
    srd(SC, pOUT, XBYTES)
    a(f'v_lshrrev_b32 v10, 3, v{vL}'); a(f'v_and_b32 v11, 7, v{vL}'); a('v_lshlrev_b32 v11, 1, v11'); a('v_xor_b32 v11, v11, v10')
    a('v_lshlrev_b32 v10, 8, v10'); a('v_lshl_add_u32 v10, v11, 4, v10')
    a(f's_lshl_b32 s{t0}, s{sW}, 13'); a(f's_cmp_eq_u32 s{sW}, 6'); a(f's_cselect_b32 s{t0}, {slot_addr(6)}, s{t0}'); a(f's_cmp_eq_u32 s{sW}, 7'); a(f's_cselect_b32 s{t0}, {slot_addr(7)}, s{t0}')
    a(f'v_add_u32 v{vA0}, s{t0}, v10'); a(f'v_xor_b32 v{vA1}, 16, v{vA0}')
    a(f's_lshl_b32 s{t0}, s{sW}, 11'); a(f's_add_u32 s{t0}, s{t0}, {SBUF}'); a(f'v_add_u32 v{vB0}, s{t0}, v10'); a(f'v_xor_b32 v{vB1}, 16, v{vB0}')
    a(f's_mov_b32 s52, {f2u(-LOG2E):#x}'); a('s_mov_b32 s53, s52')
    T(('wvm', 'x'))
    vXu = 200
    for j in range(4): a(f'v_lshlrev_b32 v{vXu+2*j}, 16, v{vXv+j}'); a(f'v_and_b32 v{vXu+2*j+1}, 0xffff0000, v{vXv+j}')
    T(('wds', '*'))
    st.mark(35)
    a('s_barrier')
    st.mark(36)
    vF = 144; vS_ = 176
    for kq in range(4):
        for e in range(2): T(('ds', f'f{kq}', f'ds_read_b128 {vr(vF+8*kq+4*e,4)}, v{vA0+e} offset:{kq*2048}'))
    for kh in range(2):
        for e in range(2): T(('ds', 's', f'ds_read_b128 {vr(vS_+8*kh+4*e,4)}, v{vB0+e} offset:{kh*16384}'))
    T(('wds', 'f1'))
    for j in range(0, 8, 2): a(f'v_pk_add_f32 {vr(vF+j,2)}, {vr(vF+j,2)}, {vr(vF+8+j,2)}')
    T(('wds', 'f3'))
    for j in range(0, 8, 2): a(f'v_pk_add_f32 {vr(vF+16+j,2)}, {vr(vF+16+j,2)}, {vr(vF+24+j,2)}')
    for j in range(0, 8, 2): a(f'v_pk_add_f32 {vr(vF+j,2)}, {vr(vF+j,2)}, {vr(vF+16+j,2)}')
    if OPT['fpk']:
        for j in range(0, 8, 2): a(f'v_pk_mul_f32 {vr(192+j,2)}, {vr(vF+j,2)}, s[52:53]')
        for j in range(8): a(f'v_exp_f32 v{192+j}, v{192+j}')
        T(('wds', '*'))
        for j in range(0, 8, 2): a(f'v_pk_add_f32 {vr(vS_+j,2)}, {vr(vS_+j,2)}, {vr(vS_+8+j,2)}')
        for j in range(0, 8, 2): a(f'v_pk_add_f32 {vr(192+j,2)}, {vr(192+j,2)}, 1.0 op_sel_hi:[1,0]')
        for j in range(8): a(f'v_rcp_f32 v{192+j}, v{192+j}')
        for j in range(0, 8, 2): a(f'v_pk_mul_f32 {vr(vS_+j,2)}, {vr(vS_+j,2)}, {vr(vF+j,2)}')
        for j in range(0, 8, 2): a(f'v_pk_fma_f32 {vr(vF+j,2)}, {vr(vS_+j,2)}, {vr(192+j,2)}, {vr(vXu+j,2)}')
    else: T(silu_ops(vF, 192, 8, 52))
    if not OPT['fpk']:
        T(('wds', '*'))
        for j in range(0, 8, 2): a(f'v_pk_add_f32 {vr(vS_+j,2)}, {vr(vS_+j,2)}, {vr(vS_+8+j,2)}')
        for j in range(0, 8, 2): a(f'v_pk_fma_f32 {vr(vF+j,2)}, {vr(vS_+j,2)}, {vr(vF+j,2)}, {vr(vXu+j,2)}')
    for j in range(4): a(f'v_cvt_pk_bf16_f32 v{vXv+j}, v{vF+2*j}, v{vF+2*j+1}')
    a(f'buffer_store_dwordx4 {vr(vXv,4)}, v{vXo2}, {R4(SC)}, 0 offen' + (' sc1' if OPT.get('osc') else ''))
    st.mark(37)
    st.flush(SWS, STAMP, sW, vL)
vWo, vT0, vT1, vU0, vU1, vFa, vH0 = 3, 5, 6, 12, 13, 14, 30
sRg, sTab = 49, 66
fAcc = 64; vHr = 128; RH = OPT['rh']; vSB = 32; NS = 10; NRES = OPT['nres']
def wreg(k): return 248 - 8*k
assert vHr + 8*RH <= 256 - 8*NRES
slots = [0, 1, 2, 3, 6, 7, 8, 9, 4, 5]
if OPT['ro']: lorder = list(range(NS, NS + NRES)) + list(range(NS)) + list(range(NS + NRES, 28))
else: lorder = list(range(28))
lidx = {n: i for i, n in enumerate(lorder)}
def wdma(k):
    n = lorder[k]
    return [f's_add_u32 m0, s{sRg}, {slot_addr(slots[k % NS])}', f's_mul_i32 s{t1}, s{sTab + n % 14}, 14'] + ([f's_add_u32 s{t1}, s{t1}, {64*896}'] if n >= 14 else []) + [
            ('vm', f'W{k}', f'buffer_load_dwordx4 v{vWo}, {R4(SA)}, s{t1} offen lds'),
            ('vm', f'W{k}', f'buffer_load_dwordx4 v{vWo+1}, {R4(SA)}, s{t1} offen offset:1024 lds')]
def wread(k, dst):
    slot = slots[k % NS]
    vs, off = ((vT0, vT1), slot*8192) if slot < 6 else ((vU0, vU1), slot_addr(slot) - RA2)
    return [('ds', f'R{k}', f'ds_read_b64_tr_b16 {vr(dst+4*ct+2*q,2)}, v{vs[ct]} offset:{off + q*1024}') for ct in range(2) for q in range(2)]
NE = OPT['early']
def a_early():
    srd(SA, pW2, 1792 * 896)
    for k in range(NE): T(wdma(k))
a.label('L_A')
T.vm = ['p0'] * 8
common_setup('A')
full_pat(vWo, 10, 11, 896); a(f's_lshl_b32 s{t0}, s{sCB}, 7'); a(f'v_add_u32 v{vWo}, s{t0}, v{vWo}'); a(f'v_add_u32 v{vWo+1}, {8*896-1024}, v{vWo}')
a(f's_mul_i32 s{t0}, s{sI}, {14*1024}')
a(f's_mul_i32 s{t3}, s{sCB}, {OPT["rc"]*1024}'); a(f's_and_b32 s{t1}, s{sTB}, 3'); a(f's_mul_i32 s{t1}, s{t1}, {OPT["rt"]*1024}'); a(f's_add_u32 s{t3}, s{t3}, s{t1}')
a(f's_sub_u32 s{t1}, s{t3}, {14*1024}'); a(f's_min_u32 s{t3}, s{t3}, s{t1}')
for n in range(14):
    a(f's_add_u32 s{t1}, s{t0}, s{t3}'); a(f's_and_b32 s{t2}, s{t1}, 0xfffff000'); a(f's_add_u32 s{sTab+n}, s{t1}, s{t2}')
    if n < 13: a(f's_add_u32 s{t3}, s{t3}, 1024'); a(f's_cmp_eq_u32 s{t3}, {14*1024}'); a(f's_cselect_b32 s{t3}, 0, s{t3}')
srd(60, pDBG, 256)
a(f'v_and_b32 v10, 7, v{vL}'); a(f'v_lshl_add_u32 v10, v10, 2, v{vSy}'); a(f'ds_write_b32 v10, v{vZ}')
p1a('A')
a('s_setprio 0')
a(f'v_xor_b32 v24, 64, v24'); a(f'v_add_u32 v{vT}, {W1B[0]}, v24'); a(f'v_add_u32 v{vT+1}, {W1B[1]}, v24')
if OPT['ew'] == 1: a_early()
if OPT['ew'] == 2: srd(SA, pW2, 1792 * 896)
tr_base(10, 11, False); a(f'v_add_u32 v{vT0}, s{sRg}, v10')
a(f'v_xor_b32 v{vT1}, 64, v{vT0}'); a(f'v_add_u32 v{vU0}, {RA2}, v{vT0}'); a(f'v_xor_b32 v{vU1}, 64, v{vU0}')
a(f's_mul_i32 s{t0}, s{sTB}, {224*1024 if not OPT.get("fake") else 0}'); a(f's_add_u32 s{t0}, s{t0}, {HF}'); a(f'v_add_u32 v{vH0}, s{t0}, v{vL16}'); a(f'v_add_u32 v{vH0+1}, {112*1024}, v{vH0}')
a(f's_mul_i32 s{t0}, s{sI}, 7'); a(f's_lshr_b32 s{t0}, s{t0}, 1')
a(f'v_bfe_u32 v10, v{vL}, 1, 2'); a(f'v_add_u32 v10, s{t0}, v10')
a(f'v_bfe_u32 v{vFa}, v{vL}, 3, 1'); a(f's_lshl_b32 s{t0}, s{sTB}, 1'); a(f'v_add_u32 v{vFa}, s{t0}, v{vFa}'); a(f'v_mul_u32_u24 v{vFa}, 14, v{vFa}')
a(f'v_add_lshl_u32 v{vFa}, v{vFa}, v10, 1'); a(f'v_and_b32 v10, 1, v{vL}'); a(f'v_add_lshl_u32 v{vFa}, v{vFa}, v10, {FSH}'); a(f'v_add_u32 v{vFa}, {FLAGS + F1}, v{vFa}')
ex = {}
if OPT['ew'] == 1:
    final_setup()
    st.mark(14)
    T([('wvm', 'q')] + flag_store(0, sFl))
if OPT['ew'] == 2:
    ex[OPT['qa']] = [('wvm', 'q')] + flag_store(0, sFl)
    for k in range(NE):
        w = wdma(k); ex[OPT['qa'] + 2 + 3*k] = w[:-1]; ex[OPT['qa'] + 3 + 3*k] = w[-1:]
st.mark(16)
h_tile(0, 1, vAcc, ex)
st.mark(20)
arrive(cCS1)
if not OPT['ew']: T([('wvm', 'q')] + flag_store(0, sFl))
cs_late('A')
h_epi(vAcc, 0, vCs2)
spin(cL1, 8)
ex = {OPT['f0']: [('wvm', 'h0')] + flag_store(F1, sFl)}
if NE == 5:
    spin(cCS1, 8)
    for k in range(5, 8):
        w = wdma(k)
        if OPT['w2w']: ex[OPT['w2w'] + 3*(k-5)] = w[:-1]; ex[OPT['w2w'] + 1 + 3*(k-5)] = w[-1:]
        else: T(w)
    NE = 8
st.mark(21)
h_tile(1, 1, vAcc + 16, ex)
arrive(cAD)
a(f's_setprio {OPT["ap"]}')
st.mark(22)
h_epi(vAcc + 16, 1, vCs)
a(f's_setprio {OPT["ap2"]}')
st.mark(23)
spin(cAD, 8)
st.mark(40)
for k in range(NE, NS): T(wdma(k))
st.mark(41)
for k in range(NRES):
    T([('wvm', f'W{k}')] + wread(k, wreg(k)))
T(('wds', '*'))
st.mark(42)
def sample(off): return ([f'v_add_u32 v{vFa}, {F1}, v{vFa}'] if off == F2 else []) + [('vm', 'hf', f'buffer_load_dwordx2 v[28:29], v{vFa}, {S}, 0 offen sc1')]
if OPT['ew'] != 1 and not OPT['xe']: final_setup()
for k in range(NRES):
    if k == min(OPT['sp'], OPT.get('fp', 99)):
        st.mark(43); T([('wvm', 'h1')]); st.mark(44); T(flag_store(F2, sFl))
    if k == OPT['sp']: T(sample(F1)); st.mark(45)
    T(wdma(k + NS))
    if k == 4: st.mark(46)
def check(off):
    E = lab('hok')
    T(('wvm', 'hf')); a(f'v_cmp_ne_u64 vcc, s[{sN}:{sN+1}], v[28:29]'); a(f's_cbranch_vccz {E}')
    keep = list(T.vm)
    poll(vFa, '0', 16, 0, 28)
    T.vm = keep
    a.label(E)
if OPT['sp'] >= NRES:
    T(sample(F1))
    if OPT.get('fp', 99) >= NRES: T([('wvm', 'h1')] + flag_store(F2, sFl))
st.mark(24)
check(F1)
st.mark(26)
def hload(n):
    o = [f'v_add_u32 v{vH0}, 4096, v{vH0}', f'v_add_u32 v{vH0+1}, 4096, v{vH0+1}'] if n == 14 else []
    return o + [('vm', f'H{n}', f'buffer_load_dwordx4 {vr(vHr+8*(n%RH)+4*tt,4)}, v{vH0+tt}, {S}, s{sTab + n % 14} offen' + ('' if OPT.get('nosc') else ' sc1')) for tt in range(2)]
LA = RH - 1
for n in range(LA): T(hload(n))
def wsrc(n): return wreg(lidx[n]) if lidx[n] < NRES else vSB + 8*(n & 1)
if lidx[0] >= NRES: T([('wvm', f'W{lidx[0]}')] + wread(lidx[0], wsrc(0)))
TM = OPT.get('tm', 0)
for n in range(28 - TM):
    nx = n + 1
    if n + LA == 14: check(F2); st.mark(25)
    T(('w', f'H{n}', f'R{lidx[n]}'))
    if n in (0, 7, 14, 21): st.mark(27 + n // 7)
    rd = wread(lidx[nx], wsrc(nx)) if nx < 28 and lidx[nx] >= NRES else []
    if rd: T(('wvm', f'W{lidx[nx]}'))
    vm = []
    if n + LA < 28:
        h = hload(n + LA); vm += [h[:-1], h[-1:]]
    if lidx[n] >= NRES and lidx[n] + NS < 28:
        w = wdma(lidx[n] + NS); vm += [w[:-1], w[-1:]]
    if n + LA == 14 - OPT.get('sd', 3): vm.append([sample(F2)])
    ms = [mfma(fAcc + 16*(ct + 2*tt), wsrc(n) + 4*ct, vHr + 8*(n % RH) + 4*tt, n == 0) for tt in range(2) for ct in range(2)]
    for i in range(4):
        a(ms[i])
        T(rd[2*i:2*i+2])
        lo, hi = (i * len(vm) + 3) // 4, ((i + 1) * len(vm) + 3) // 4
        for u in vm[lo:hi]: T(u)
    if n == OPT['n1']: arrive(cCS0)
    if n == OPT['pa']: a('s_setprio 3')
    if OPT['sy']:
        pts = list(range(OPT['sy'] - 1, 21 - OPT['lag'], OPT['sy']))
        if n in pts: arrive(20)
        if n - OPT['lag'] in pts: spin(20, 4 * (pts.index(n - OPT['lag']) + 1))
    if n == 22:
        xaddr(16); a(f'v_add_u32 v16, s{sRg}, v16'); a(f'v_bfe_u32 v10, v{vL}, 3, 2')
        a(f'v_mov_b32 v11, {slot_addr(7)}'); a(f'v_mov_b32 v20, {slot_addr(6)}'); a('v_cmp_eq_u32 vcc, 2, v10'); a('v_cndmask_b32 v11, v11, v20, vcc')
        a('v_lshlrev_b32 v21, 13, v10'); a('v_add_u32 v20, 32768, v21'); a('v_cmp_gt_u32 vcc, 2, v10'); a('v_cndmask_b32 v11, v11, v20, vcc')
        a('v_add_u32 v20, v11, v16'); a('v_add_u32 v16, v21, v16')
        for q in range(1, 4): a(f'v_xor_b32 v{16+q}, {32*q}, v16'); a(f'v_xor_b32 v{20+q}, {32*q}, v20')
def pw(tt, ct): return [('ds', 'p', f'ds_write_b128 v{16+4*tt+q}, {vr(fAcc+16*(ct+2*tt)+4*q,4)} offset:{ct*128}') for q in range(4)]
if TM:
    last = list(range(28 - TM, 28)); src = {last[0]: wsrc(last[0])}
    for i, n in enumerate(last[1:]):
        src[n] = wreg(i); T([('wvm', f'W{lidx[n]}')] + wread(lidx[n], src[n]))
    tiles = [(tt, ct) for tt in range(2) for ct in range(2)]
    for ti, (tt, ct) in enumerate(tiles):
        g = []
        for n in last:
            pre = [('w', f'H{n}', f'R{lidx[n]}')] if ti == 0 else []
            g.append(pre + [mfma(fAcc + 16*(ct + 2*tt), src[n] + 4*ct, vHr + 8*(n % RH) + 4*tt)])
        T(weave(g, pw(*tiles[ti - 2]) if ti >= 2 else []))
    st.mark(31)
    T(pw(*tiles[2]) + pw(*tiles[3]))
else:
    st.mark(31)
    for tt in range(2):
        for ct in range(2): T(pw(tt, ct))
final_stage()
a('s_endpgm')

T.reset()
H0 = len(a.items)
a.label('L_helper')
srd(60, pDBG, 256); srd(SA, pW1, 448 * 3584)
a(f'v_mov_b32 v{vZ}, 0')
a(f's_or_b32 s{t0}, s2, s{sW}'); a('s_cbranch_scc1 L_nononce')
a(f's_memrealtime s[{sN}:{sN+1}]'); a('s_waitcnt lgkmcnt(0)'); a(f's_or_b32 s{sN+1}, s{sN+1}, 0x80000000')
a(f'v_mov_b32 v{vN}, s{sN}'); a(f'v_mov_b32 v{vN+1}, s{sN+1}')
a('s_mov_b64 exec, 1'); a(f'buffer_store_dwordx2 {vr(vN,2)}, v{vZ}, s[60:63], 0 offen sc1'); a('s_mov_b64 exec, -1')
a.label('L_nononce')
a('s_getpc_b64 s[28:29]'); a.label('L_pc')
a(f's_sub_u32 s28, s28, L_pc-{K}'); a('s_subb_u32 s29, s29, 0')
a(f's_lshl3_add_u32 s{t3}, s{sIDX}, s{sW}')
a(f's_lshl_b32 s{t0}, s{t3}, 11'); a(f'v_and_b32 v4, 15, v{vL}'); a('v_lshlrev_b32 v4, 7, v4'); a(f'v_add_u32 v4, s{t0}, v4')
a(f'v_min_u32 v4, L_end-{K}, v4'); T(('vm', 'pc', 'global_load_dword v3, v4, s[28:29]'))
if OPT['tlb']:
    sh = OPT['tsh']; npg = WS_USED >> sh
    a(f's_lshl_b32 s{t0}, s{t3}, 6'); a(f'v_add_u32 v5, s{t0}, v{vL}') if npg > 64 else a(f'v_mov_b32 v5, v{vL}')
    a(f'v_lshlrev_b32 v5, {sh}, v5')
    T(('vm', 'tl', f'buffer_load_dword v12, v5, {S}, 0 offen'))
    for k, (p, sz) in enumerate(((pW2, 1792*896), (pWO, 448*896), (pOUT, XBYTES), (pW1, 448*3584))):
        srd(SC, p, sz); T(('vm', 'tl', f'buffer_load_dword v{13+k}, v5, {R4(SC)}, 0 offen'))
if OPT['hd'] >= 1: T(('wvm', '*'))
if OPT['hd'] == 2: nonce_take(False)
a(f's_min_u32 s{t2}, s2, 27'); a(f's_mul_i32 s{t0}, s{sW}, {56*3584}'); a(f's_lshl_b32 s{t1}, s{t2}, 7'); a(f's_add_u32 s{t0}, s{t0}, s{t1}')
a(f'v_lshrrev_b32 v9, 3, v{vL}'); a('v_mul_u32_u24 v9, 3584, v9'); a(f'v_and_b32 v10, 7, v{vL}'); a('v_lshl_add_u32 v9, v10, 4, v9')
for i in range(7):
    T(('vm', f'c{i}', f'buffer_load_dwordx4 {vr(64+4*i,4)}, v9, {R4(SA)}, s{t0} offen')); a(f's_add_u32 s{t0}, s{t0}, {8*3584}')
st.init(60)
a(f'v_mov_b32 v{vSy}, {SYNC}'); a(f'ds_write_b32 v{vSy}, v{vZ} offset:{cB}'); a('v_mov_b32 v5, 8'); a(f'ds_write_b32 v{vSy}, v5 offset:{cAD}')
for i in range(7):
    T(('wvm', f'c{i}'))
    if i == 2 and OPT['hd'] != 2: T(('vm', 'go', f'buffer_load_dwordx2 {vr(vN,2)}, v{vZ}, s[60:63], 0 offen sc1'))
    d0 = 16 if i == 0 else 24
    for d in range(4):
        a(f'v_lshlrev_b32 v{d0+2*d}, 16, v{64+4*i+d}'); a(f'v_and_b32 v{d0+1+2*d}, 0xffff0000, v{64+4*i+d}')
    if i:
        for d in range(4): a(f'v_pk_add_f32 {vr(16+2*d,2)}, {vr(16+2*d,2)}, {vr(24+2*d,2)}')
a(f's_lshl_b32 s{t0}, s{sW}, 11'); a(f'v_lshlrev_b32 v12, 5, v{vL}'); a(f'v_add_u32 v12, s{t0}, v12')
a('ds_write_b128 v12, v[16:19]'); a('ds_write_b128 v12, v[20:23] offset:16')
a('s_waitcnt lgkmcnt(0)'); a('s_barrier')
st.mark(2)
if OPT['hd'] != 2: nonce_take(True)
a(f's_cmp_lg_u32 s{sW}, 0'); a('s_cbranch_scc1 L_hcs_done'); a('s_cmp_ge_u32 s2, 28'); a('s_cbranch_scc1 L_hcs_done')
a('s_setprio 3')
a(f'v_lshlrev_b32 v12, 2, v{vL}')
for g in range(4):
    for k in range(8): a(f'ds_read2st64_b32 {vr(64+16*g+2*k,2)}, v12 offset0:{16*g+2*k} offset1:{16*g+2*k+1}')
    a('s_waitcnt lgkmcnt(0)')
for w in (32, 16, 8, 4, 2):
    for k in range(0, w, 2): a(f'v_pk_add_f32 {vr(64+k,2)}, {vr(64+k,2)}, {vr(64+w+k,2)}')
a('v_add_f32 v64, v64, v65')
a(f's_lshl_b32 s{t0}, s2, 9'); a(f's_add_u32 s48, s{t0}, {CSG}')
a(f'buffer_store_dword v64, v12, {S}, s48 offen sc1'); a('s_waitcnt vmcnt(0)')
T(flag_store(256, 48))
a('s_setprio 0')
st.mark(3)
a.label('L_hcs_done')
a('s_barrier')
if OPT['hm']:
    a(f's_cmp_lt_u32 s{sW}, 4'); a('s_cbranch_scc1 L_nohm')
    srd(SC, pW2, 1792 * 896); srd(SB, pWO, 448 * 896)
    a(f's_lshl2_add_u32 s{t3}, s2, s{sI}'); a(f's_mul_i32 s{t0}, s{t3}, {98*128}')
    a(f'v_min_u32 v4, 48, v{vL}'); a('v_lshlrev_b32 v4, 7, v4')
    a(f'buffer_load_dword v40, v4, {R4(SC)}, s{t0} offen'); a(f's_add_u32 s{t0}, s{t0}, {49*128}'); a(f'buffer_load_dword v41, v4, {R4(SC)}, s{t0} offen')
    a(f's_mul_i32 s{t0}, s{t3}, {25*128}'); a(f'v_min_u32 v4, 24, v{vL}'); a('v_lshlrev_b32 v4, 7, v4')
    a(f'buffer_load_dword v42, v4, {R4(SB)}, s{t0} offen')
    a.label('L_nohm')
a(f's_cmp_ge_u32 s{sW}, 4'); a('s_cbranch_scc1 L_helperB')
a(f's_lshl2_add_u32 s{t3}, s{sIDX}, s{sI}')
if OPT['hw']:
    srd(SA, pW2, 1792 * 896)
    a(f'v_min_u32 v4, 55, v{vL}'); a('v_lshlrev_b32 v4, 7, v4'); a(f'v_add_u32 v5, {56*128}, v4')
    for k in range(7):
        a(f's_add_u32 s{t0}, s{sIDX}, {4*k}'); a(f's_cmp_ge_u32 s{t0}, 14'); a(f's_cselect_b32 s{t1}, 14, 0'); a(f's_cselect_b32 s{t2}, 4, 0'); a(f's_sub_u32 s{t0}, s{t0}, s{t1}')
        a(f's_mul_i32 s{t1}, s{sI}, 14'); a(f's_add_u32 s{t0}, s{t0}, s{t1}'); a(f's_and_b32 s{t1}, s{t0}, 0xfc'); a(f's_add_u32 s{t0}, s{t0}, s{t1}'); a(f's_add_u32 s{t0}, s{t0}, s{t2}')
        a(f's_mul_i32 s{t0}, s{t0}, {16*896}')
        a(f'buffer_load_dword v{20+2*k}, v4, {R4(SA)}, s{t0} offen'); a(f'buffer_load_dword v{21+2*k}, v5, {R4(SA)}, s{t0} offen')
st.mark(4)
if OPT['hh']:
    a(f's_and_b32 s{t0}, s2, 7'); a(f's_lshr_b32 s{t1}, s{t3}, 1'); a(f's_lshl3_add_u32 s{t0}, s{t0}, s{t1}')
    a(f's_and_b32 s{t1}, s{t3}, 1'); a(f's_mul_i32 s{t1}, s{t1}, 7'); a(f's_mul_i32 s{t0}, s{t0}, 14'); a(f's_add_u32 s{t2}, s{t0}, s{t1}')
    a(f's_lshl_b32 s48, s{t2}, {FSH+1}'); a(f's_add_u32 s48, s48, {FLAGS}'); a(f'v_lshlrev_b32 v4, {FSH}, v{vL}')
    a(f's_lshl_b32 s49, s{t2}, 13'); a(f's_add_u32 s49, s49, {HF}')
    a(f'v_and_b32 v5, 31, v{vL}'); a('v_lshlrev_b32 v5, 7, v5'); a(f'v_lshrrev_b32 v6, 5, v{vL}'); a('v_lshl_add_u32 v6, v6, 15, v5')
    for ph in range(2):
        a(f's_add_u32 s48, s48, {F1}'); poll(4, 's48', 14, 0, 12, sleep=6)
        st.mark(5 + ph)
        for k in range(4):
            a(f's_add_u32 s{t0}, s49, {k*8192 + ph*4096}')
            a(f'buffer_load_dword v{40+4*ph+k}, v{6 if k < 3 else 5}, {S}, s{t0} offen sc1')
        if ph == 0 and OPT['hwo']:
            srd(SB, pWO, 448 * 896)
            a(f'v_min_u32 v9, 48, v{vL}'); a('v_lshlrev_b32 v9, 7, v9'); a(f's_mul_i32 s{t0}, s{t3}, {196*128}')
            for i in range(4):
                a(f'buffer_load_dword v{50+i}, v9, {R4(SB)}, s{t0} offen'); a(f's_add_u32 s{t0}, s{t0}, {49*128}')
st.flush(SWS, STAMP, sW, vL)
a('s_endpgm')
a.label('L_helperB')
if OPT['hs']:
    srd(SA, pWO, 448 * 896)
    a(f's_lshl2_add_u32 s{t3}, s{sIDX}, s{sI}'); a(f's_mul_i32 s{t0}, s{t3}, {196*128}'); a(f's_mov_b32 s{t1}, 14')
    a('s_sleep 20')
    a.label('L_hsl')
    for k in range(14): a(f's_buffer_load_dword s{64+k}, {R4(SA)}, s{t0} offset:{128*k}')
    a(f's_add_u32 s{t0}, s{t0}, {14*128}'); a(f's_sub_u32 s{t1}, s{t1}, 1'); a('s_waitcnt lgkmcnt(0)'); a(f's_cmp_lg_u32 s{t1}, 0'); a('s_cbranch_scc1 L_hsl')

att_setup()
a(f's_mov_b32 s{sKI}, 0')
poll(vFl, '0', 14, 0, 28, sleep=OPT['hsl'])
a('s_branch L_att')

H1 = len(a.items)
blk = a.items[H0:H1]; del a.items[H0:H1]; a.items[HELPER_AT:HELPER_AT] = blk
T.reset()
a.label('L_B')
a(f's_setprio {OPT["bp1"]}')
common_setup('B')
srd(60, pDBG, 256)
att_setup()
st.mark(48)
for u in x_dma(1) + wq_dma(1): T(u)
exB = p1a('B')
a('s_setprio 2')
a(f'v_add_u32 v{vT}, {W1B[0]}, v24'); a(f'v_add_u32 v{vT+1}, {W1B[1]}, v24')
h_tile(0, 0, vAcc + 16, exB)
arrive(cCS1)
T(('wvm', 'l1')); arrive(cL1)
st.mark(16)
T([('wvm', 'q')] + flag_store(0, sFl))
cs_late('B')
h_epi(vAcc + 16, 0, vCs2)
spin(cL1, 8)
st.mark(17)
vVe, vVo, vKa, vV0, vV1 = 3, 4, 5, 6, 9
def kv_units(which):
    u = []
    for t in range(3):
        pre = ([f's_mul_i32 s{t2}, s{sI}, {3*3072}'] if t == 0 else []) + [f's_add_i32 s{t0}, s{sT7}, {t}', f's_max_i32 s{t0}, s{t0}, 0', f's_mul_i32 s{t0}, s{t0}, 84', f's_add_u32 s{t0}, s{t0}, s{sST0}',
               f's_add_u32 m0, s{t2}, {(KB, VB)[which] + t*3072}', f's_add_u32 s{t0}, s{t0}, {28*(which+1)}', f's_lshl_b32 s{t0}, s{t0}, 10']
        for s in range(3):
            v = (3, vL16 if which == 0 else 30, 4)[s]
            u.append((pre if s == 0 else []) + [('vm', 'KV'[which], f'buffer_load_dwordx4 v{v}, {S}, s{t0} offen offset:{1024*s} sc1 lds')])
    return u
def kv_dma(which):
    for u in kv_units(which): T(u)
def qk_issue():
    keep = list(T.vm)
    a(f's_mul_i32 s{t0}, s{sTQ}, 84'); a(f's_add_u32 s{t0}, s{t0}, s{sST0}'); a(f's_lshl_b32 s{t0}, s{t0}, 10')
    for s in range(3): a(f'buffer_load_dwordx4 {vr(vQ+4*s,4)}, v{(3, vL16, 4)[s]}, {S}, s{t0} offen offset:{1024*s} sc1')
    kv_dma(0)
    T.vm = keep
h_tile(1, 0, vAcc, {OPT['smp']: [('vm', 'qf', f'buffer_load_dwordx2 v[28:29], v{vFl}, {S}, 0 offen sc1')]})
arrive(cAD)
spin(cCS1, 8)
st.mark(18)
def early_qk():
    T([('wvm', 'qf')] + flag_store(F1, sFl)); a(f'v_cmp_ne_u64 vcc, s[{sN}:{sN+1}], v[28:29]'); a(f's_mov_b32 s{sKI}, 0'); a('s_cbranch_vccnz L_noearly')
    qk_issue(); a(f's_mov_b32 s{sKI}, 1')
    a.label('L_noearly')
    st.mark(19)
if OPT['mid']:
    h_epi(vAcc, 1, vCs, mid=[('call', early_qk)])
else:
    early_qk()
    h_epi(vAcc, 1, vCs)
a.label('L_att')
a('s_setprio 2')
a(f's_mov_b32 s{sFl2}, s{sFl}')
st.mark(20)
a(f's_cmp_lg_u32 s{sKI}, 0'); a('s_cbranch_scc1 L_kdone')
poll(vFl, '0', 14, 0, 28)
st.mark(21)
a(f's_cmp_lt_u32 s{sIDX}, 4'); a('s_cbranch_scc1 L_nohf0')
T(flag_store(F2, sFl2))
a.label('L_nohf0')
qk_issue()
a.label('L_kdone')
st.mark(22)
a(f'v_lshrrev_b32 v12, 5, v{vL}'); a('v_lshlrev_b32 v13, 6, v12'); a('v_xor_b32 v3, v13, v3'); a('v_xor_b32 v4, v13, v4'); a(f'v_xor_b32 v30, v13, v{vL16}'); a('v_xor_b32 v30, 128, v30')
def k_arrive():
    T(('wvm', 'K' if OPT['ve'] == 1 else '*')); st.mark(23); arrive(cB)
    a(f's_cmp_eq_u32 s{sKI}, 0'); a('s_cbranch_scc1 L_nohf')
    keep = list(T.vm); T(flag_store(F2, sFl2)); T.vm = keep
    a.label('L_nohf')
if OPT['ve'] == 1:
    spin(cAD, 8); T.vm = ['K']; kv_dma(1); st.mark(40)
    if OPT['ea']: k_arrive()
a(f's_mul_i32 s{t0}, s{sI}, 3072'); a(f's_add_u32 s{t1}, s{t0}, {KB}'); a(f'v_add_u32 v{vKa}, s{t1}, v{vL16}')
a(f'v_bfe_u32 v14, v{vL}, 4, 1'); a(f'v_and_b32 v15, 3, v{vL}'); a('v_lshl_add_u32 v14, v14, 2, v15'); a(f'v_add_u32 v14, s{sG0}, v14')
a('v_lshrrev_b32 v15, 2, v14'); a('v_and_b32 v16, 1, v14'); a('v_bfe_u32 v17, v14, 1, 1')
a(f'v_bfe_u32 v19, v{vL}, 2, 2'); a('v_lshl_add_u32 v18, v12, 2, v19')
a('v_and_b32 v19, 1, v15'); a('v_lshl_add_u32 v19, v19, 1, v16'); a('v_lshlrev_b32 v19, 2, v19'); a('v_xor_b32 v18, v18, v19')
a(f'v_lshlrev_b32 v{vV0}, 4, v18'); a(f'v_lshl_add_u32 v{vV0}, v17, 3, v{vV0}'); a(f'v_lshl_add_u32 v{vV0}, v16, 9, v{vV0}')
a(f'v_lshl_add_u32 v{vV0}, v15, 10, v{vV0}'); a(f'v_xor_b32 v{vV1}, 128, v{vV0}')
a(f's_add_u32 s{t0}, s{t0}, {VB}'); a(f'v_add_u32 v{vV0}, s{t0}, v{vV0}'); a(f'v_add_u32 v{vV1}, s{t0}, v{vV1}')
if OPT['vo']:
    a(f's_add_u32 s{t0}, s{sG0}, 7'); a(f's_lshr_b32 s{t1}, s{t0}, 2'); a(f's_lshl_b32 s{t1}, s{t1}, 10'); a(f's_and_b32 s{t2}, s{t0}, 1'); a(f's_lshl_b32 s{t2}, s{t2}, 9'); a(f's_add_u32 s{t1}, s{t1}, s{t2}')
    a(f's_and_b32 s{t2}, s{t0}, 2'); a(f's_lshl_b32 s{t2}, s{t2}, 2'); a(f's_add_u32 s{t1}, s{t1}, s{t2}'); a(f's_mul_i32 s{t2}, s{sI}, {3*3072}'); a(f's_add_u32 s{t1}, s{t1}, s{t2}'); a(f's_add_u32 s{t1}, s{t1}, {VB}')
    a(f'v_and_b32 v56, 31, v{vL}'); a('v_lshlrev_b32 v56, 4, v56'); a('v_mul_u32_u24 v57, 3072, v12'); a(f'v_add3_u32 v56, v56, v57, s{t1}')
    a('v_mov_b32 v58, 0x3f80'); a('v_mov_b32 v59, 0')
for j in range(16):
    c = 8*(j >> 2) + (j & 3)
    a(f's_mov_b32 s{sM+2*j}, {(0xffffffff << c) & 0xffffffff:#x}'); a(f's_mov_b32 s{sM+2*j+1}, {(0xffffffff << (c+4)) & 0xffffffff:#x}')
def msk(j): return f's[{sM+2*j}:{sM+2*j+1}]'
vOnes = 24; vBm = 28; vMk = 240
vSb = 64; vO = 192; vLs = 208; vP0 = 224; vP8 = 232; vM = 224
a('v_mov_b32 v14, 0xffff'); a('v_mov_b32 v15, 0xffff0000')
for j in range(8):
    a(f'v_cndmask_b32 v{vMk+j}, 0, v14, {msk(2*j)}'); a(f'v_cndmask_b32 v16, 0, v15, {msk(2*j+1)}'); a(f'v_or_b32 v{vMk+j}, v{vMk+j}, v16')
for k in range(4): a(f'v_mov_b32 v{vOnes+k}, 0x3f803f80')
for k in range(1, 4): a(f'v_mov_b32 v{vBm+k}, 0')
a(f'v_subrev_u32 v12, s{sG0}, v12')
if OPT['ve'] != 1: spin(cAD, 8)
if not OPT['ea']: k_arrive()
if not OPT['ve']: kv_dma(1); st.mark(40)
for s in range(3):
    for ap in range(2):
        a(f'v_add_u32 v13, {4*s+2*ap}, v12'); a('v_cmp_gt_u32 vcc, 7, v13')
        for k in range(2):
            r = vQ + 4*s + 2*ap + k
            a(f'v_cndmask_b32 v{r}, 0, v{r}, vcc')
spin(cB, 4)
st.mark(24)
vKF = (44, 12)
def sreg(r): return vO if r == 0 else vSb + 16 * (r - 1)
m8 = sreg(8)
sorder = [8, 0, 1, 2, 3, 4, 5, 6, 7]
def kreads(i): return [('ds', f'k{i}', f'ds_read_b128 {vr(vKF[i&1]+4*s,4)}, v{vKa} offset:{sorder[i]*3072 + s*1024}') for s in range(3)]
def maxops(b, first=False):
    o = []
    for h in range(2):
        for c in range(4):
            if first and h == 0: o.append(f'v_max_f32 v{vM+c}, v{b+c}, v{b+4+c}')
            else: o.append(f'v_max3_f32 v{vM+c}, v{vM+c}, v{b+8*h+c}, v{b+8*h+4+c}')
    return o
merge = [f'v_cndmask_b32 v{m8+j}, v{vO+j}, v{m8+j}, {msk(j)}' for j in range(16)]
fills = {3: merge[:12], 4: merge[12:] + maxops(m8, True), 5: maxops(sreg(1)) + maxops(sreg(2))[:4], 6: maxops(sreg(2))[4:] + maxops(sreg(3)),
         7: maxops(sreg(4)), 8: maxops(sreg(5))}
vun = kv_units(1) if OPT['ve'] == 2 else []
T(kreads(0))
for i in range(9):
    r = sorder[i]
    T(('wds', f'k{i}'))
    T(weave([[mfma(sreg(r), vKF[i & 1] + 4*s, vQ + 4*s, s == 0)] for s in range(3)], (kreads(i + 1) if i + 1 < 9 else []) + vun[3*i:3*i+3] + fills.get(i, [])))
T(maxops(sreg(6)))
st.mark(41); T(('wvm', 'V')); st.mark(42)
if OPT['vo']: T(('ds', 'vo', 'ds_write_b64 v56, v[58:59]')); T(('ds', 'vo', 'ds_write_b64 v56, v[58:59] offset:3072'))
arrive(cB)
T(maxops(sreg(7)))
a(f's_cmp_ge_u32 s{sTQ}, 8'); a('s_cbranch_scc1 L_valid')
NEG = f2u(-1e30)
a(f'v_mov_b32 v12, {NEG:#x}')
for j in range(16): a(f'v_cndmask_b32 v{m8+j}, v12, v{m8+j}, {msk(j)}')
for r in range(1, 8):
    a(f's_cmp_ge_u32 s{sTQ}, {8-r}'); a('s_cbranch_scc1 L_remax')
    for j in range(16): a(f'v_mov_b32 v{sreg(r)+j}, v12')
a.label('L_remax')
T(maxops(m8, True))
for r in range(1, 8): T(maxops(sreg(r)))
a.label('L_valid')
a(f'v_max3_f32 v{vM}, v{vM}, v{vM+1}, v{vM+2}'); a(f'v_max_f32 v{vM}, v{vM}, v{vM+3}')
a(f'v_mov_b32 v{vM+1}, v{vM}'); a(f'v_cmp_gt_u32 vcc, 32, v{vL}')
a(f'v_permlane32_swap_b32 v{vM}, v{vM+1}'); a(f'v_max_f32 v{vM}, v{vM}, v{vM+1}')
a(f'v_cvt_pk_bf16_f32 v{vM+1}, 0, v{vM}'); a(f'v_sub_f32 v{vM+1}, v{vM+1}, v{vM}'); a(f'v_cvt_pk_bf16_f32 v{vM+1}, -v{vM}, v{vM+1}')
a(f'v_cndmask_b32 v{vBm}, 0, v{vM+1}, vcc')
st.mark(25)
vVF = (44, 12)
porder = [1, 2, 3, 4, 5, 6, 7, 8, 0]
def vreads(i): return [('ds', f'v{i}', f'ds_read_b64_tr_b16 {vr(vVF[i&1]+4*ks+2*q,2)}, v{(vV0,vV1)[q]} offset:{porder[i]*3072 + ks*256}') for ks in range(2) for q in range(2)]
def sub(i): return mfma(sreg(porder[i]), vOnes, vBm)
def softmax(i):
    r = porder[i]; b = sreg(r); o = []
    for g in range(0, 16, 4):
        o += [f'v_exp_f32 v{b+j}, v{b+j}' for j in range(g, g + 4)]
        if g: o += [f'v_cvt_pk_bf16_f32 v{b+j}, v{b+2*j}, v{b+2*j+1}' for j in range(g//2 - 2, g//2)]
    o += [f'v_cvt_pk_bf16_f32 v{b+j}, v{b+2*j}, v{b+2*j+1}' for j in (6, 7)]
    if r == 8:
        o += [f'v_and_b32 v{vP8+j}, v{vMk+j}, v{b+j}' for j in range(8)]
        o += [f'v_bfi_b32 v{vP0+j}, v{vMk+j}, 0, v{b+j}' for j in range(8)]
    return o
def pv(i):
    r = porder[i]; P = vP0 if r == 0 else (vP8 if r == 8 else sreg(r)); vb = vVF[i & 1]
    g = []
    for ks in range(2):
        g.append([mfma(vO, vb + 4*ks, P + 4*ks, i == 0 and ks == 0)])
        if r and not OPT['vo']: g.append([mfma(vLs, vOnes, sreg(r) + 4*ks, i == 0 and ks == 0)])
    g[0] = [('wds', f'v{i}')] + g[0]
    return g
a(sub(0)); a(sub(1))
spin(cB, 8)
st.mark(26)
T(vreads(0)); T(weave([[sub(2)]], softmax(0)))
for i in range(9):
    fill = (vreads(i + 1) if i + 1 < 9 else []) + (softmax(i + 1) if i + 1 < 8 else [])
    T(weave(pv(i) + ([[sub(i + 3)]] if i + 3 < 8 else []), fill))
st.mark(27)
arrive(cB)
a(f's_lshl4_add_u32 s{t0}, s{sTQ}, s{sHD}'); a(f's_lshl_b32 s{t1}, s{t0}, 11'); a(f's_add_u32 s{t1}, s{t1}, {OF}')
a(f's_lshl_b32 s{t0}, s{t0}, {OSH}'); a(f's_add_u32 s48, s{t0}, {OFL}')
if OPT['vo']:
    a(f'v_mov_b32 v12, v{vO+12}'); a(f'v_mov_b32 v13, v{vO+12}'); a('v_permlane32_swap_b32 v12, v13'); a('v_rcp_f32 v12, v13')
else: a(f'v_rcp_f32 v12, v{vLs}')
a(f'v_cmp_gt_u32 vcc, 32, v{vL}')
for s in range(2):
    for j in range(8*s, 8*s + 8): a(f'v_mul_f32 v{vO+j}, v12, v{vO+j}')
    for j in range(4*s, 4*s + 4): a(f'v_cvt_pk_bf16_f32 v{vO+j}, v{vO+2*j}, v{vO+2*j+1}')
    if s: a(f'v_cndmask_b32 v{vO+6}, 0, v{vO+6}, vcc'); a(f'v_cndmask_b32 v{vO+7}, 0, v{vO+7}, vcc')
    T(('vm', 'o', f'buffer_store_dwordx4 {vr(vO+4*s,4)}, v{vL16}, {S}, s{t1} offen offset:{1024*s} sc1'))
st.mark(28)
a(f's_cmp_lt_u32 s{sIDX}, 4'); a('s_cbranch_scc0 L_cont')
keep = list(T.vm)
T([('wvm', 'o')] + flag_store(0, 48))
st.flush(SWS, STAMP, sW, vL)
a('s_endpgm')
a.label('L_cont')
T.vm = keep
srd(SA, pWO, 448 * 896)
vWo = 3
full_pat(vWo, 12, 13, 896); a(f's_lshl_b32 s{t0}, s{sCB}, 7'); a(f'v_add_u32 v{vWo}, s{t0}, v{vWo}')
spin(cB, 12)
if OPT['of'] < 0:
    T([('wvm', 'o')] + flag_store(0, 48)); st.mark(29)
a(f's_setprio {OPT["bp2"]}')
a(f's_mul_i32 s{t2}, s{sTT}, {WOB[1]-WOB[0]}'); a(f's_lshl_b32 s{t0}, s{sCT}, 10'); a(f's_add_u32 s{t2}, s{t2}, s{t0}')
a(f's_mul_i32 s{t1}, s{sTT}, {224*896}'); a(f's_mul_i32 s{t0}, s{sCT}, {8*896}'); a(f's_add_u32 s{t1}, s{t1}, s{t0}')
for i in range(15):
    if i == 14:
        a(f's_lshl_b32 s{t0}, s{sCT}, 11'); a(f's_sub_u32 s{t2}, s{t2}, s{t0}'); a(f's_mul_i32 s{t0}, s{sCT}, {16*896}'); a(f's_sub_u32 s{t1}, s{t1}, s{t0}')
    a(f's_add_u32 m0, s{t2}, {WOB[0] + 2048*i}'); a(f's_add_u32 s{t0}, s{t1}, {i*16*896}')
    T(('vm', 'wo', f'buffer_load_dwordx4 v{vWo}, {R4(SA)}, s{t0} offen lds'))
    if i == OPT['of']:
        T([('wvm', 'o')] + flag_store(0, 48)); st.mark(29)
final_setup()
vTa, vTb = 5, 6
tr_base(vTa, 12, False); a(f's_mul_i32 s{t0}, s{sCT}, {WOB[1]-WOB[0]}'); a(f's_add_u32 s{t0}, s{t0}, {WOB[0]}')
a(f'v_add_u32 v{vTa}, s{t0}, v{vTa}'); a(f'v_xor_b32 v{vTb}, 64, v{vTa}')
a(f'v_and_b32 v4, 7, v{vL}'); a(f'v_lshlrev_b32 v4, {OSH}, v4')
a(f's_lshl1_add_u32 s49, s{sTo}, s{sCT}'); a(f's_lshl_b32 s50, s49, {OSH+3}'); a(f's_add_u32 s50, s50, {OFL}')
st.mark(30)
T(('wvm', 'wo')); arrive(cB)
if OPT['n1'] < 0: T(('vm', 'of', f'buffer_load_dwordx2 v[12:13], v4, {S}, s50 offen sc1'))
spin(cB, 16)
st.mark(31)
if OPT['n1'] >= 0 and OPT['so']:
    spin(cCS0, 4, sleep=2); st.mark(38)
    T(('vm', 'of', f'buffer_load_dwordx2 v[12:13], v4, {S}, s50 offen sc1'))
vWA = 128; vOf = 64; vSa = 16
for n in range(16):
    for ct in range(2):
        for q in range(2):
            T(('ds', f'a{n}', f'ds_read_b64_tr_b16 {vr(vWA+8*n+4*ct+2*q,2)}, v{(vTa,vTb)[ct]} offset:{(28*(n>>1) + 16*(n&1) + 8*q)*128}'))
T(('wds', '*')); arrive(cB)
xaddr(48); a(f'v_bfe_u32 v10, v{vL}, 3, 2'); a('v_lshl_add_u32 v48, v10, 11, v48')
a(f's_lshl_b32 s{t0}, s{sCT}, 14'); a(f's_lshl_b32 s{t1}, s{sTT}, 13'); a(f's_add_u32 s{t0}, s{t0}, s{t1}'); a(f's_add_u32 s{t0}, s{t0}, {SBUF}'); a(f'v_add_u32 v48, s{t0}, v48')
for q in range(1, 4): a(f'v_xor_b32 v{48+q}, {32*q}, v48')
spin(cB, 20)
if OPT['n1'] >= 0 and not OPT['so']:
    spin(cCS0, 4, sleep=2); st.mark(38)
    T(('vm', 'of', f'buffer_load_dwordx2 v[12:13], v4, {S}, s50 offen sc1'))
T(('wvm', 'of')); a(f'v_cmp_ne_u64 vcc, s[{sN}:{sN+1}], v[12:13]'); a('s_cbranch_vccz L_ook')
poll(4, 's50', 8, 0, 12)
a.label('L_ook')
a('s_setprio 2')
st.mark(32)
a(f's_lshl_b32 s{t0}, s49, 14'); a(f's_add_u32 s{t0}, s{t0}, {OF}')
def oload(n):
    return [('vm', f'o{n}', f'buffer_load_dwordx4 {vr(vOf+4*n,4)}, v{vL16}, {S}, s{t0} offen offset:{(n&3)*1024} sc1')] + ([f's_add_u32 s{t0}, s{t0}, 4096'] if n & 3 == 3 else [])
OD = OPT.get('od', 10)
for n in range(OD): T(oload(n))
if OPT['pb'] >= 0: a(f's_setprio {OPT["pb"]}')
st.mark(33)
for n in range(16):
    T(('wvm', f'o{n}'))
    for ct in range(2):
        a(mfma(vSa + 16*ct, vWA + 8*n + 4*ct, vOf + 4*n, n == 0))
        if ct == 0 and n + OD < 16: T(oload(n + OD))
st.mark(34)
for ct in range(2):
    for q in range(4): T(('ds', 'sx', f'ds_write_b128 v{48+q}, {vr(vSa+16*ct+4*q,4)} offset:{ct*128}'))
final_stage()
a.label('L_end'); a('s_endpgm')

a.pad_hazards_fast()
for e in a.check_waits(): print('WAITERR', e)
hdr = ['; generated by gen32.py (hand-written generator): single persistent kernel',
       f'; @launch grid=(256,1,1) block=(512,1,1) lds={LDS_TOTAL}', '.amdgcn_target "amdgcn-amd-amdhsa--gfx950"', '.text']
tail = ['.section .rodata,"a"', '.p2align 6', f'.amdhsa_kernel {K}', '  .amdhsa_next_free_vgpr 256', '  .amdhsa_next_free_sgpr 102',
        '  .amdhsa_accum_offset 256', '  .amdhsa_group_segment_fixed_size 0', '  .amdhsa_kernarg_size 72',
        '  .amdhsa_user_sgpr_count 2', '  .amdhsa_user_sgpr_kernarg_segment_ptr 1', '  .amdhsa_system_sgpr_workgroup_id_x 1', '.end_amdhsa_kernel']
open(sys.argv[1], 'w').write('\n'.join(hdr) + '\n' + a.text() + '\n'.join(tail) + '\n')
```

```python
import sys, struct
from asmlib import *

NAME = 'recurrent_scan__sliding_block__dense_activation_silu__prompt'
OPT = dict(stamp=0, spin=200000, hp=1, rotf=1, rot=1, w1e=1, aq=14, tw=0, hd=1, hm=1, hw=0, hh=0, hs=0, early=5, ap=3, ew=2, smp=27, nres=8, bp2=2, ap2=1, of=9, tlb=1, bc=-1, bq=0, wv=0, we=26, tsh=21, hwo=1, n1=15, sp=5, fp=1, f0=27, cfs=24, pl=2, sy=0, lag=2, pa=-1, pb=0, od=16, vo=1, tr=1, fpk=1, be=0, bw=12, sc=0, w2w=0, ve=1, mid=1, so=0, ps=4, ea=1, osc=1, vs=0, stg=0, ds=0, sa=8, lc=1, bp1=2, xe=1, ro=1, rc=0, rt=0, ta=-1, tb=-1, tc=-1, qa=8, hsl=24, rh=8)
for x in sys.argv[2:]:
    k, v = x.split('='); OPT[k] = int(v)
def f2u(x): return struct.unpack('<I', struct.pack('<f', x))[0]

QKVF = 0; HF = 0x600000; OF = 0xE00000; FLAGS = 0x1200000; STAMP = 0x1100000; WS_USED = 0x1400000
FSH = 7; F1 = 0x40000; F2 = 2 * F1
OSH = OPT.get('osh', 7)
OFL = 0x1000000
CSG = 0x1080000
sN = 80
XBYTES = 2048 * 448 * 2
LOG2E = 1.4426950408889634
pX, pWQ, pWO, pW1, pW2, pOUT, pDBG = 4, 6, 8, 12, 14, 16, 18
SWS, SA, SB, SC = 20, 24, 28, 32
sI, sRB, sJ, sROT, sHD, sRBA, sTB, sCB = 36, 37, 38, 39, 40, 41, 42, 43
sW = 10; sIDX = 11
t0, t1, t2, t3, t4 = 3, 44, 45, 46, 47
sM = 48
def R4(b): return f's[{b}:{b+3}]'
S = R4(SWS)
def SL(p): return (p % 3) * 32768
W1B = (98304, 32768)
def W1P(L, q): return W1B[L] + 8192 * q
KB = 98304; VB = 49152; WOB = (49152, 98304); SXB = (78848, 128000)
RA2 = 90112
def slot_addr(slot): return slot*8192 if slot < 6 else (RA2 if slot == 6 else 137216 + (slot - 7)*8192)
CS = 161792
STX = 155648
SYNC = CS + 1920
cCS0, cL1, cCS1, cAD, cB = 0, 4, 8, 12, 16
LDS_TOTAL = 163840

a = Asm(); T = Tr(a)
st = Stamps2(a, OPT['stamp'], T)
uid = [0]
def lab(p):
    uid[0] += 1; return f'L_{p}_{uid[0]}'
def srd(d, ptr, size):
    a(f's_mov_b32 s{d}, s{ptr}'); a(f's_and_b32 s{d+1}, s{ptr+1}, 0xffff'); a(f's_mov_b32 s{d+2}, {size}'); a(f's_mov_b32 s{d+3}, 0x20000')

def poll(vaddr, soff, nl, imm, vtmp, sleep=1):
    L = lab('poll'); E = lab('polle')
    a(f's_mov_b64 exec, {(1 << nl) - 1}'); a(f's_mov_b32 s{t4}, 0')
    a.label(L)
    a(f'buffer_load_dwordx2 {vr(vtmp,2)}, v{vaddr}, {S}, {soff} offen offset:{imm} sc1')
    a(f's_add_u32 s{t4}, s{t4}, 1')
    a('s_waitcnt vmcnt(0)')
    a(f'v_cmp_ne_u64 vcc, s[{sN}:{sN+1}], {vr(vtmp,2)}')
    a(f's_cbranch_vccz {E}')
    if sleep: a(f's_sleep {max(sleep, OPT.get("ps", 1))}')
    a(f's_cmp_lt_u32 s{t4}, {OPT["spin"]}'); a(f's_cbranch_scc1 {L}')
    a.label(E)
    a('s_mov_b64 exec, -1')
    T.vm = []
vN = 62
def nonce_take(sampled):
    L = lab('nz'); E = lab('nze')
    a(f's_mov_b32 s{t4}, 0')
    if sampled: T(('wvm', 'go')); a(f's_branch {L}c')
    a.label(L)
    a(f'buffer_load_dwordx2 {vr(vN,2)}, v{vZ}, s[60:63], 0 offen sc1'); a('s_waitcnt vmcnt(0)')
    a.label(L + 'c')
    a(f'v_readfirstlane_b32 s{sN+1}, v{vN+1}'); a(f'v_readfirstlane_b32 s{sN}, v{vN}'); a(f's_add_u32 s{t4}, s{t4}, 1')
    a(f's_cmp_lg_u32 s{sN+1}, 0'); a(f's_cbranch_scc1 {E}')
    a('s_sleep 2'); a(f's_cmp_lt_u32 s{t4}, {OPT["spin"]}'); a(f's_cbranch_scc1 {L}')
    a.label(E)

vL, vL16, vSy, vZ, vTt = 1, 2, 7, 8, 11
def spin(off, val, sleep=0):
    L = lab('sp'); E = lab('spe')
    a(f's_mov_b32 s{t4}, 0')
    a.label(L)
    a(f'ds_read_b32 v{vTt}, v{vSy} offset:{off}'); a(f's_add_u32 s{t4}, s{t4}, 1'); a('s_waitcnt lgkmcnt(0)')
    a(f'v_cmp_gt_u32 vcc, {val}, v{vTt}')
    a(f's_cbranch_vccz {E}')
    sleep = max(sleep, OPT.get('ss', 0))
    if sleep: a(f's_sleep {sleep}')
    a(f's_cmp_lt_u32 s{t4}, {OPT["spin"]*8}'); a(f's_cbranch_scc1 {L}')
    a.label(E)
    T.ds = []
def arrive(off):
    a('s_mov_b64 exec, 1'); a(f'v_mov_b32 v{vTt}, 1'); T(('ds', 'arr', f'ds_add_u32 v{vSy}, v{vTt} offset:{off}')); a('s_mov_b64 exec, -1')

def flag_store(imm, soff):
    o = [f'v_lshlrev_b32 v{vTt}, 3, v{vL}']
    if imm >= 4096:
        o.append(f'v_add_u32 v{vTt}, {imm}, v{vTt}'); imm = 0
    return o + [f's_mov_b64 exec, {0xffff if OPT.get("ff", 1) else 1}', ('vm', 'flag', f'buffer_store_dwordx2 {vr(vN,2)}, v{vTt}, {S}, s{soff} offen offset:{imm} sc1'), 's_mov_b64 exec, -1']

def tr_base(vd, vt, natural):
    a(f'v_lshrrev_b32 v{vd}, 5, v{vL}'); a(f'v_bfe_u32 v{vt}, v{vL}, 2, 2'); a(f'v_lshl_add_u32 v{vd}, v{vd}, {3 if natural else 2}, v{vt}')
    a(f'v_lshlrev_b32 v{vd}, 7, v{vd}')
    a(f'v_bfe_u32 v{vt}, v{vL}, 3, 1'); a(f'v_lshl_add_u32 v{vd}, v{vt}, 6, v{vd}')
    a(f'v_bfe_u32 v{vt}, v{vL}, 4, 1'); a(f'v_lshl_add_u32 v{vd}, v{vt}, 5, v{vd}')
    a(f'v_and_b32 v{vt}, 3, v{vL}'); a(f'v_lshl_add_u32 v{vd}, v{vt}, 3, v{vd}')

def full_pat(vd, vt, vt2, stride):
    a(f'v_lshrrev_b32 v{vt}, 3, v{vL}'); a(f'v_mul_u32_u24 v{vd}, {stride}, v{vt}')
    a(f'v_bfe_u32 v{vt}, v{vL}, 4, 1'); a(f'v_lshlrev_b32 v{vt}, 2, v{vt}'); a(f'v_and_b32 v{vt2}, 7, v{vL}'); a(f'v_xor_b32 v{vt}, v{vt}, v{vt2}')
    a(f'v_lshl_add_u32 v{vd}, v{vt}, 4, v{vd}')

def mfma(d, A, B, first=False): return f'v_mfma_f32_32x32x16_bf16 {vr(d,16)}, {vr(A,4)}, {vr(B,4)}, ' + ('0' if first else vr(d, 16))
def mfma16(d, A, B, first=False): return f'v_mfma_f32_16x16x32_bf16 {vr(d,4)}, {vr(A,4)}, {vr(B,4)}, ' + ('0' if first else vr(d, 4))

def silu_ops(b, tmp, n, sNeg):
    o = []
    for g in range(0, n, 4):
        ks = range(g, g + 4)
        o += [f'v_mul_f32 v{tmp+k}, s{sNeg}, v{b+k}' for k in ks]
        o += [f'v_exp_f32 v{tmp+k}, v{tmp+k}' for k in ks]
        o += [f'v_add_f32 v{tmp+k}, 1.0, v{tmp+k}' for k in ks]
        o += [f'v_rcp_f32 v{tmp+k}, v{tmp+k}' for k in ks]
        o += [f'v_mul_f32 v{b+k}, v{tmp+k}, v{b+k}' for k in ks]
    return o

K = NAME + '_kernel'
a.raw(f'.globl {K}'); a.raw('.p2align 8'); a.raw(f'.type {K},@function'); a.label(K)
a('s_cmp_ge_u32 s2, 256'); a('s_cbranch_scc1 L_end')
a('s_load_dwordx16 s[4:19], s[0:1], 0'); a('s_load_dwordx2 s[20:21], s[0:1], 64')
st.start()
a(f'v_readfirstlane_b32 s{t1}, v0'); a(f'v_and_b32 v{vL}, 63, v0'); a(f'v_lshlrev_b32 v{vL16}, 4, v{vL}')
a(f's_and_b32 s{t0}, s2, 7'); a(f's_lshr_b32 s{t2}, s2, 3')
a(f's_lshr_b32 s{t1}, s{t1}, 6'); a(f's_and_b32 s{sI}, s{t1}, 3')
a(f's_and_b32 s{sHD}, s{t2}, 1'); a(f's_lshl1_add_u32 s{sHD}, s{t0}, s{sHD}'); a(f's_lshr_b32 s{sRBA}, s{t2}, 1')
a(f's_sub_u32 s{t3}, s{t2}, 4'); a(f's_lshr_b32 s{sCB}, s{t3}, 2'); a(f's_and_b32 s{t3}, s{t3}, 3')
a(f's_lshl2_add_u32 s{sTB}, s{t0}, s{t3}')
a(f's_lshr_b32 s{sRB}, s{t0}, 1'); a(f's_lshl2_add_u32 s{sRB}, s{sRB}, s{t3}')
a(f's_and_b32 s{sJ}, s{t0}, 1'); a(f's_mul_i32 s{sJ}, s{sJ}, 7'); a(f's_add_u32 s{sJ}, s{sJ}, s{sCB}')
if OPT['rot']:
    a(f's_lshl1_add_u32 s{sROT}, s{t3}, s{sCB}'); a(f's_sub_u32 s{t3}, s{sROT}, 7'); a(f's_min_u32 s{sROT}, s{sROT}, s{t3}')
else: a(f's_mov_b32 s{sROT}, 0')
vXd, vQd, vWd = 240, 244, 30
a(f's_lshl_b32 s{t0}, s{sRB}, 7'); a(f's_lshl_b32 s{t3}, s{sI}, 5'); a(f's_add_u32 s{t0}, s{t0}, s{t3}')
a(f'v_lshrrev_b32 v9, 3, v{vL}'); a(f'v_add_u32 v10, s{t0}, v9'); a(f'v_mul_u32_u24 v{vXd}, 896, v10')
a(f'v_lshrrev_b32 v10, 4, v{vL}'); a(f'v_and_b32 v11, 7, v{vL}'); a('v_xor_b32 v12, v10, v11'); a(f'v_lshl_add_u32 v{vXd}, v12, 4, v{vXd}')
a(f'v_xor_b32 v{vXd+1}, 64, v{vXd}'); a(f'v_add_u32 v{vXd+2}, {2*6144}, v{vXd}'); a(f'v_add_u32 v{vXd+3}, {3*6144}, v{vXd+1}'); a(f'v_add_u32 v{vXd+1}, 6144, v{vXd+1}')
a('v_and_b32 v10, 1, v10'); a('v_lshlrev_b32 v10, 2, v10'); a('v_xor_b32 v10, v10, v11'); a('v_lshlrev_b32 v10, 4, v10')
a(f's_lshl_b32 s{t3}, s{sI}, 4'); a(f'v_add_u32 v9, s{t3}, v9')
a(f's_mul_i32 s{t0}, s{sJ}, 192'); a(f's_and_b32 s{t0}, s{t0}, 0xffffff80'); a(f's_add_u32 s{t0}, s{t0}, 1024'); a(f'v_mul_u32_u24 v{vQd}, 2688, v9'); a(f'v_add3_u32 v{vQd}, v{vQd}, v10, s{t0}')
a(f'v_add_u32 v{vQd+1}, {128-1024}, v{vQd}'); a(f'v_add_u32 v{vQd+2}, {8*2688-2048}, v{vQd}'); a(f'v_add_u32 v{vQd+3}, {8*2688+128-3072}, v{vQd}')
a(f's_lshl_b32 s{t0}, s{sJ}, 8'); a(f'v_mul_u32_u24 v{vWd}, 3584, v9'); a(f'v_add3_u32 v{vWd}, v{vWd}, v10, s{t0}'); a(f'v_add_u32 v{vWd+1}, {8*3584-1024}, v{vWd}')
sMx, sMw = 48, 49
a(f's_lshl_b32 s{sMx}, s{sI}, 12'); a(f's_lshl_b32 s{sMw}, s{sI}, 11')
for p in range(2):
    a(f's_add_u32 s{50+p}, s{sROT}, {p}'); a(f's_sub_u32 s{t3}, s{50+p}, 7'); a(f's_min_u32 s{50+p}, s{50+p}, s{t3}')
a('s_waitcnt lgkmcnt(0)')
a(f's_mov_b32 s{sW}, s{t1}'); a(f's_mov_b32 s{sIDX}, s{t2}')
a(f's_and_b32 s{SWS+1}, s{SWS+1}, 0xffff'); a(f's_mov_b32 s{SWS+2}, {WS_USED}'); a(f's_mov_b32 s{SWS+3}, 0x20000')
a(f's_cmp_lt_u32 s{sIDX}, 4'); a('s_cbranch_scc1 L_helper')
srd(SA, pX, XBYTES)
a(f's_sub_u32 s{SB}, s{pWQ}, 1024'); a(f's_subb_u32 s{SB+1}, s{pWQ+1}, 0'); a(f's_and_b32 s{SB+1}, s{SB+1}, 0xffff'); a(f's_mov_b32 s{SB+2}, {448*2688 + 1024}'); a(f's_mov_b32 s{SB+3}, 0x20000')
def x_dma(p):
    return [([f's_add_u32 m0, s{sMx}, {SL(p)}', f's_lshl_b32 s{t0}, s{50+p}, 7'] if i == 0 else []) +
            [('vm', f'p{p}', f'buffer_load_dwordx4 v{vXd+i}, {R4(SA)}, s{t0} offen offset:{i*1024} lds')] for i in range(4)]
def wq_dma(p):
    return [([f's_add_u32 m0, s{sMx}, {SL(p) + 16384}', f's_mul_i32 s{t0}, s{50+p}, {64*2688}'] if i == 0 else []) +
            [('vm', f'p{p}', f'buffer_load_dwordx4 v{vQd+i}, {R4(SB)}, s{t0} offen offset:{i*1024} lds')] for i in range(4)]
def w1_dma(L, q):
    return [[f's_add_u32 m0, s{sMw}, {W1P(L, q)}', f's_mul_i32 s{t0}, s{50+q}, {64*3584}'] + ([f's_add_u32 s{t0}, s{t0}, 128'] if L else []) +
            [('vm', f'l{L}', f'buffer_load_dwordx4 v{vWd}, {R4(SC)}, s{t0} offen lds')],
            [('vm', f'l{L}', f'buffer_load_dwordx4 v{vWd+1}, {R4(SC)}, s{t0} offen offset:1024 lds')]]
st.init(60); st.mark(47)
a(f's_cmp_ge_u32 s{sW}, 4'); a('s_cbranch_scc1 L_B')
for u in x_dma(0) + wq_dma(0): T(u)
st.mark(48)
a('s_branch L_A')
HELPER_AT = len(a.items)

vXa = 12
vT = 16
vNm, vR = 18, 20
vK1, vIr = 22, 23
vCa = 9
vWF = 32
vSel = 56
vAcc = 64
vCs = 96; vTm = 112; vCs2 = 240; vCs3 = 32
vX = 128
sQo, sHo, sFl = 57, 58, 59

def common_setup(role):
    for p in range(2, 7):
        a(f's_add_u32 s{50+p}, s{sROT}, {p}'); a(f's_sub_u32 s{t3}, s{50+p}, 7'); a(f's_min_u32 s{50+p}, s{50+p}, s{t3}')
    srd(SC, pW1, 448 * 3584)
    a(f'v_mov_b32 v{vZ}, 0'); a(f'v_mov_b32 v{vSy}, {SYNC}')
    a(f'v_and_b32 v10, 31, v{vL}'); a(f'v_lshlrev_b32 v{vXa}, 7, v10'); a(f'v_bfe_u32 v10, v{vL}, 1, 3'); a(f'v_lshrrev_b32 v11, 5, v{vL}')
    a('v_xor_b32 v10, v10, v11'); a(f'v_lshl_add_u32 v{vXa}, v10, 4, v{vXa}'); a(f'v_add_u32 v{vXa}, s{sMx}, v{vXa}')
    for s in range(1, 4): a(f'v_xor_b32 v{vXa+s}, {32*s}, v{vXa}')
    a(f'v_lshlrev_b32 v{vCa}, 4, v11'); a(f'v_add_u32 v{vCa}, {CS}, v{vCa}')
    tr_base(24, 10, True)
    a(f'v_lshl_add_u32 v27, v11, 10, v24')
    a(f's_and_b32 s{t0}, s{sJ}, 1')
    for k in range(2):
        if role == 'A': a(f's_add_u32 s{t1}, s{t0}, {k}')
        elif k == 0: a(f's_add_u32 s{t1}, s{t0}, 2')
        else: a(f's_min_u32 s{t1}, s{sI}, 2'); a(f's_add_u32 s{t1}, s{t1}, s{t0}')
        a(f's_and_b32 s{t2}, s{t1}, 1'); a(f's_lshl_b32 s{t2}, s{t2}, 6'); a(f's_lshr_b32 s{t1}, s{t1}, 1'); a(f's_lshl_b32 s{t1}, s{t1}, 10'); a(f's_add_u32 s{t1}, s{t1}, 16384')
        a(f'v_xor_b32 v{vT+k}, s{t2}, v27'); a(f'v_add_u32 v{vT+k}, s{t1}, v{vT+k}')
    a(f'v_and_b32 v10, 15, v{vL}'); a(f'v_bfe_u32 v11, v{vL}, 4, 1'); a('v_cmp_eq_u32 vcc, v10, v11'); a('v_mov_b32 v10, 0x3f803f80')
    for k in range(4 if role == 'B' else 0): a(f'v_cndmask_b32 v{vSel+k}, 0, v10, vcc')
    r = 0 if role == 'A' else 1
    a(f's_lshl2_add_u32 s{t0}, s{sRB}, s{sI}')
    a(f's_mul_i32 s{sQo}, s{t0}, 84'); a(f's_mul_i32 s{t1}, s{sJ}, 6'); a(f's_add_u32 s{sQo}, s{sQo}, s{t1}'); a(f's_add_u32 s{sQo}, s{sQo}, {4*r}'); a(f's_lshl_b32 s{sQo}, s{sQo}, 10')
    a(f's_mul_i32 s{sHo}, s{t0}, 112'); a(f's_lshl3_add_u32 s{sHo}, s{sJ}, s{sHo}'); a(f's_lshl_b32 s{sHo}, s{sHo}, 10'); a(f's_add_u32 s{sHo}, s{sHo}, {HF + 2048*(1-r)}')
    a(f's_mul_i32 s{sFl}, s{t0}, 14'); a(f's_add_u32 s{sFl}, s{sFl}, s{sJ}'); a(f's_lshl_b32 s{sFl}, s{sFl}, {FSH+1}'); a(f's_add_u32 s{sFl}, s{sFl}, {FLAGS + (r << FSH)}')

sOK = 19
def cs_load(role):
    hf = 1 if role == 'A' else 0
    a(f's_lshl_b32 s{t0}, s{sJ}, 10'); a(f's_add_u32 s{t0}, s{t0}, {CSG + hf*128}'); a(f's_mov_b32 m0, {CS + 384 + hf*256}')
    a(f'v_lshrrev_b32 v10, 5, v{vL}'); a('v_lshlrev_b32 v10, 7, v10'); a(f'v_and_b32 v11, 31, v{vL}'); a('v_add_lshl_u32 v10, v10, v11, 2')
    a(f'buffer_load_dword v10, {S}, s{t0} offen sc1 lds')
def cs_try(role):
    E = lab('cst')
    T(('wvm', 'cf')); a(f'v_cmp_ne_u64 vcc, s[{sN}:{sN+1}], v[28:29]'); a(f's_mov_b32 s{sOK}, vcc_lo'); a(f's_cbranch_vccnz {E}')
    cs_load(role)
    a.label(E)
def cs_late(role):
    E = lab('csl')
    a(f's_cmp_eq_u32 s{sOK}, 0'); a(f's_cbranch_scc1 {E}')
    a(f's_lshl_b32 s{t1}, s{sJ}, 10'); a(f's_add_u32 s{t1}, s{t1}, {CSG}')
    keep = list(T.vm)
    poll(25, f's{t1}', 2, 256, 28)
    cs_load(role); a('s_waitcnt vmcnt(0)')
    T.vm = keep
    a.label(E)
    hf = 1 if role == 'A' else 0
    for L in range(2):
        for g in range(4): T(('ds', f'hc{L}', f'ds_read_b128 {vr((vCs2, vCs)[L]+4*g,4)}, v{vCa} offset:{384 + hf*256 + L*128 + g*32}'))
    T(('wds', 'hc0'))
def touch(k):
    n = 28 if k < 2 else 14
    a(f's_sub_u32 s{t1}, s{sIDX}, 4'); a(f's_lshl3_add_u32 s{t1}, s{t1}, s{sW}'); a(f's_mul_i32 s{t1}, s{t1}, {56 if k < 2 else 14}')
    if k == 1: a(f's_add_u32 s{t1}, s{t1}, 28')
    a(f'v_min_u32 v61, {n-1}, v{vL}'); a(f'v_add_lshl_u32 v61, v61, s{t1}, 7')
    p = pW2 if k < 2 else pWO
    T(('vm', 'pf', f'global_load_dword v{252+k}, v61, s[{p}:{p+1}]'))
def p1a(role):
    A_ = role == 'A'
    vS = vTm
    def xreads(p): return [('ds', f'x{p}', f'ds_read_b128 {vr(vX+16*p+4*s,4)}, v{vXa+s} offset:{SL(p) & 0xffff}') for s in range(4)]
    def wreads(n):
        p = n >> 2; s = n & 3; b = n % 3
        return [('ds', f'w{n}', f'ds_read_b64_tr_b16 {vr(vWF+8*b+4*t+2*q,2)}, v{vT+t} offset:{(SL(p) & 0xffff) + s*4096 + q*512}') for t in range(2) for q in range(2)]
    def hop(p):
        d = (SL(p) & ~0xffff) - (SL(p - 1) & ~0xffff)
        if d == 0: return []
        op = 'v_add_u32' if d > 0 else 'v_subrev_u32'
        return [f'{op} v{v}, {abs(d)}, v{v}' for v in (vXa, vXa+1, vXa+2, vXa+3, vT, vT+1)]
    VS = OPT['vs']
    if VS or not A_:
        for r in range(4): a(f'v_mov_b32 v{vS+r}, 0')
        a(f'v_mov_b32 v{vS+4}, 0x3f803f80')
    def stats(p):
        ds = range(0, OPT['sa']) if A_ else range(OPT['sa'], 16)
        o = []
        for i, d in enumerate(ds):
            r = vX + 16*p + d; t = vS + 6 + 2*(i & 3)
            o.append([f'v_lshlrev_b32 v{t}, 16, v{r}', f'v_and_b32 v{t+1}, 0xffff0000, v{r}', f'v_add_f32 v{vS}, v{vS}, v{t}', f'v_add_f32 v{vS+1}, v{vS+1}, v{t+1}',
                      f'v_fmac_f32 v{vS+2}, v{t}, v{t}', f'v_fmac_f32 v{vS+3}, v{t+1}, v{t+1}'])
        res = []
        for i in range(0, len(o), 2):
            g = o[i:i+2]
            res += [x[0] for x in g] + [x[1] for x in g]
            for x in g: res += [x[2], x[4], x[3], x[5]]
        return res
    plan = {}
    for p in range(5): plan[p] = x_dma(p + 2) if A_ else wq_dma(p + 2)
    plan[5] = []; plan[6] = []
    PL = {0: ([(1,0,0),(2,0,2),(3,0,4),(4,0,6),(5,1,0),(5,1,2),(6,1,4),(6,1,6)], [(2,0,1),(3,0,3),(4,0,5),(5,1,1),(5,1,3),(6,1,5)]),
          1: ([(2,0,0),(3,0,1),(4,0,2),(5,0,3),(5,0,5),(5,1,0),(6,1,2),(6,1,4),(6,1,6)], [(5,0,4),(5,0,6),(6,1,1),(6,1,3),(6,1,5)]),
          2: ([(1,0,0),(2,0,1),(3,0,2),(4,0,3),(5,0,4),(5,0,6),(5,1,0),(6,1,2),(6,1,4),(6,1,5),(6,1,6)], [(5,0,5),(5,1,1),(6,1,3)]),
          3: ([(4,0,0),(5,0,1),(5,0,3),(5,0,5),(6,1,0),(6,1,2),(6,1,4),(6,1,6)], [(5,0,2),(5,0,4),(5,0,6),(6,1,1),(6,1,3),(6,1,5)])}[OPT['pl']]
    for p, L, q in PL[0 if A_ else 1]: plan[p] += w1_dma(L, q)
    st.mark(2); T(('w', 'p0', '*')); st.mark(3); a('s_barrier'); st.mark(4)
    xr = xreads(0)
    T(xr[:1] + wreads(0) + xr[1:2] + wreads(1) + xr[2:])
    for n in range(28):
        p = n >> 2; s = n & 3; b = n % 3
        ms = [[mfma(vAcc, vWF+8*b, vX+4*n, n == 0)], [mfma(vAcc+16, vWF+8*b+4, vX+4*n, n == 0) if A_ else mfma16(vAcc+16, vWF+8*b+4, vSel, n == 0)]]
        fill = []
        if s == 2 and p < 6:
            T(('w', f'p{p+1}', '*'))
            if p in (1, 4): st.mark(5 + p)
            a('s_barrier')
            if p in (1, 4): st.mark(6 + p)
            T(hop(p + 1))
            fill = xreads(p + 1)[:2] + wreads(n + 2)
        else:
            T(('wds', f'w{n}'))
            if s == 3 and p < 6: fill = xreads(p + 1)[2:]
            if n + 2 < 28: fill = fill + wreads(n + 2)
        ip, slot = (p + 1, s - 2) if s >= 2 else (p, s + 2)
        if ip <= 6:
            u = plan[ip]; k = len(u)
            if ip == 0: lo, hi = (slot - 2) * k // 2, (slot - 1) * k // 2
            else: lo, hi = (slot * k + 3) // 4, ((slot + 1) * k + 3) // 4
            for x in u[lo:hi]: fill += x
        if VS:
            so = stats(p); L = len(so)
            if p < 6: part = {1: so[:L//3], 2: so[L//3:2*L//3]}.get(s, [])
            else: part = {1: so[:L//2], 2: so[L//2:]}.get(s, [])
            if s == 0 and p > 0: pr = stats(p - 1); part = pr[2*len(pr)//3:]
            fill += part
        T(weave(ms, fill))
        if not VS and not A_ and s == 1:
            if p == 0: T(('wds', 'x0'))
            for d in range(16):
                r = vX + 16*p + d
                a(f'v_dot2c_f32_bf16 v{vS + (d&1)}, v{r}, v{vS+4}'); a(f'v_dot2c_f32_bf16 v{vS + 2 + (d&1)}, v{r}, v{r}')
        for k, key in enumerate(('ta', 'tb', 'tc')):
            if n == OPT[key]: touch(k)
        if n == 26 and A_ and OPT['xe']: final_setup()
        if n == OPT.get('gon', 14): T(('vm', 'go', f'buffer_load_dwordx2 {vr(vN,2)}, v{vZ}, s[60:63], 0 offen sc1'))
        if n == OPT['cfs']:
            a(f's_lshl_b32 s{t1}, s{sJ}, 10'); a(f's_add_u32 s{t1}, s{t1}, {CSG}'); a(f'v_and_b32 v25, 1, v{vL}'); a('v_lshlrev_b32 v25, 9, v25')
            T(('vm', 'cf', f'buffer_load_dwordx2 v[28:29], v25, {S}, s{t1} offen offset:256 sc1'))
        if (VS or not A_) and n == 26:
            a(f'v_add_f32 v{vS}, v{vS}, v{vS+1}'); a(f'v_add_f32 v{vS+2}, v{vS+2}, v{vS+3}')
            a(f'v_mov_b32 v{vS+1}, v{vS}'); a(f'v_mov_b32 v{vS+3}, v{vS+2}')
            a(f'v_and_b32 v21, 31, v{vL}'); a(f's_lshl_b32 s{t1}, s{sI}, 8'); a(f's_add_u32 s{t1}, s{t1}, {STX}'); a(f'v_lshl_add_u32 v21, v21, 3, s{t1}')
            a(f'v_permlane32_swap_b32 v{vS}, v{vS+1}'); a(f'v_permlane32_swap_b32 v{vS+2}, v{vS+3}')
            a(f'v_add_f32 v{vNm}, v{vS}, v{vS+1}'); a(f'v_add_f32 v{vNm+1}, v{vS+2}, v{vS+3}')
            T(('ds', 'st', f'ds_write_b64 v21, {vr(vNm,2)} offset:{0 if A_ else 1024}'))
    if not A_:
        a(f's_min_u32 s{t0}, s{sI}, 2'); a(f's_lshl_b32 s{t0}, s{t0}, 7'); a(f's_add_u32 s{t0}, s{t0}, {CS}')
        a(f'v_and_b32 v10, 1, v{vL}'); a('v_lshlrev_b32 v10, 6, v10'); a(f'v_and_b32 v11, 48, v{vL}'); a(f'v_add3_u32 v10, v10, v11, s{t0}')
        a('s_mov_b32 exec_lo, 0x00030003'); a('s_mov_b32 exec_hi, 0x00030003')
        T(('ds', 'st', f'ds_write_b128 v10, {vr(vAcc+16,4)}'))
        a('s_mov_b64 exec, -1')
    T(('wvm', 'l0'))
    if not OPT['lc']: nonce_take(True); cs_try(role)
    if A_: a(f's_setprio {OPT.get("aq3", 3)}')
    T(('wds', '*')); st.mark(11); a('s_barrier'); st.mark(12)
    if A_ and OPT['ew'] == 0: a_early()
    if not VS and A_:
        a(f'v_and_b32 v21, 31, v{vL}'); a(f's_lshl_b32 s{t1}, s{sI}, 8'); a(f's_add_u32 s{t1}, s{t1}, {STX}'); a(f'v_lshl_add_u32 v21, v21, 3, s{t1}')
    if VS: T(('ds', 'st', f'ds_read_b64 v[22:23], v21 offset:{1024 if A_ else 0}'))
    elif A_: T(('ds', 'st', f'ds_read_b64 {vr(vNm,2)}, v21 offset:1024'))
    tiles = (0, 1) if A_ else (2,)
    for k, t in enumerate(tiles):
        for g in range(4): T(('ds', f'cs{k}', f'ds_read_b128 {vr(vCs+16*k+4*g,4)}, v{vCa} offset:{t*128 + g*32}'))
    E = [('wds', 'st')]
    if VS: E += [f'v_add_f32 v{vNm}, v{vNm}, v22', f'v_add_f32 v{vNm+1}, v{vNm+1}, v23']
    E += [f'v_mul_f32 v{vNm}, {f2u(-1.0/448):#x}, v{vNm}', f'v_mul_f32 v{vNm+1}, {f2u(1.0/448):#x}, v{vNm+1}',
          f'v_fma_f32 v{vNm+1}, -v{vNm}, v{vNm}, v{vNm+1}', f'v_max_f32 v{vNm+1}, 0, v{vNm+1}', f'v_add_f32 v{vNm+1}, {f2u(1e-5):#x}, v{vNm+1}',
          f'v_rsq_f32 v{vR}, v{vNm+1}', f'v_sqrt_f32 v{vIr}, v{vNm+1}', f'v_mov_b32 v{vNm+1}, v{vNm}', f'v_mul_f32 v{vK1}, {f2u(-LOG2E):#x}, v{vR}']
    for k, t in enumerate(tiles):
        E.append([f's_mul_i32 s{t0}, s{sJ}, 3', f's_cmp_lt_u32 s{t0}, {14 - t}', f's_cselect_b32 s{t0}, {f2u(28**-0.5*LOG2E):#x}, 1.0', f'v_mul_f32 v26, s{t0}, v{vR}'])
        b = vAcc + 16*k
        E.append(('wds', f'cs{k}'))
        if OPT['be']:
            for s_ in range(2):
                E += [f'v_fma_f32 v{b+j}, v{vCs+16*k+j}, v{vNm}, v{b+j}' for j in range(8*s_, 8*s_ + 8)]
                E += [f'v_mul_f32 v{b+j}, v26, v{b+j}' for j in range(8*s_, 8*s_ + 8)]
                E += [f'v_cvt_pk_bf16_f32 v{b+4*s_+j}, v{b+8*s_+2*j}, v{b+8*s_+2*j+1}' for j in range(4)]
                E.append(('vm', 'q', f'buffer_store_dwordx4 {vr(b+4*s_,4)}, v{vL16}, {S}, s{sQo} offen offset:{k*2048 + s_*1024} sc1'))
        else:
            E.append('v_mov_b32 v27, v26')
            E += [f'v_pk_fma_f32 {vr(b+j,2)}, {vr(vCs+16*k+j,2)}, {vr(vNm,2)}, {vr(b+j,2)}' for j in range(0, 16, 2)]
            E += [f'v_pk_mul_f32 {vr(b+j,2)}, {vr(b+j,2)}, v[26:27]' for j in range(0, 16, 2)]
            for s_ in range(2):
                E += [f'v_cvt_pk_bf16_f32 v{b+4*s_+j}, v{b+8*s_+2*j}, v{b+8*s_+2*j+1}' for j in range(4)]
                E.append(('vm', 'q', f'buffer_store_dwordx4 {vr(b+4*s_,4)}, v{vL16}, {S}, s{sQo} offen offset:{k*2048 + s_*1024} sc1'))
    def chk():
        if OPT['lc']: nonce_take(True); cs_try(role)
    if OPT['be'] and not A_:
        W = OPT['bw']; ex = {n: E[n*len(E)//W:(n+1)*len(E)//W] for n in range(W)}
        ex[W + 2] = [('call', chk)]
        return ex
    T(E)
    if not A_ and OPT['bc'] >= 0:
        st.mark(13)
        return {OPT['bc']: [('call', chk)]}
    if A_: T(('wvm', 'l1')); arrive(cL1)
    chk()
    st.mark(13)
    return {}

NR = 6; PD = 4
def h_tile(L, hf, acc, ex={}):
    def rd(n): return [('ds', f'u{n}', f'ds_read_b64_tr_b16 {vr(vWF+4*(n%NR)+2*q,2)}, v{vT+L} offset:{W1P(L, n>>2) - W1B[L] + (16*(n&3)+4*q)*128}') for q in range(2)]
    for n in range(PD): T(rd(n))
    for n in range(28):
        if n + PD < 28: T(rd(n + PD))
        if n & 1 == 0: T(('wds', f'u{n+1}'))
        a(mfma(acc, vWF + 4*(n % NR), vX + 4*n, n == 0))
        if n in ex: T(ex[n])
def h_epi_items(acc, k, vCs, mid=None):
    o = []
    for g in range(0, 16, 4):
        ks = range(g, g + 4)
        o += [f'v_fma_f32 v{acc+j}, v{vCs+j}, v{vNm}, v{acc+j}' for j in ks]
        o += [f'v_mul_f32 v{vTm+j}, v{vK1}, v{acc+j}' for j in ks]
        o += [f'v_exp_f32 v{vTm+j}, v{vTm+j}' for j in ks]
        o += [f'v_fma_f32 v{vTm+j}, v{vTm+j}, v{vIr}, v{vIr}' for j in ks]
        o += [f'v_rcp_f32 v{vTm+j}, v{vTm+j}' for j in ks]
        o += [f'v_mul_f32 v{acc+j}, v{vTm+j}, v{acc+j}' for j in ks]
        if g == 4 and mid: o += mid
        if g & 4:
            s = g >> 3
            o += [f'v_cvt_pk_bf16_f32 v{acc+4*s+j}, v{acc+8*s+2*j}, v{acc+8*s+2*j+1}' for j in range(4)]
            o.append(('vm', f'h{k}', f'buffer_store_dwordx4 {vr(acc+4*s,4)}, v{vL16}, {S}, s{sHo} offen offset:{s*1024} sc1'))
    if k == 0: o.append(f's_add_u32 s{sHo}, s{sHo}, 4096')
    return o
def h_epi(acc, k, vCs, mid=None): T(h_epi_items(acc, k, vCs, mid))
def spread(items, ex, lo, hi):
    w = weave([[('mark', n)] for n in range(lo, hi)], items); cur = None
    for it in w:
        if isinstance(it, tuple) and it[0] == 'mark': cur = it[1]; ex.setdefault(cur, []); pos = 0
        else: ex[cur].insert(pos, it); pos += 1
    return ex

sST0, sG0, sTQ, sT7, sCT, sTT, sTo, sKI, sFl2 = 82, 83, 84, 85, 86, 87, 88, 89, 90
vFl = 5; vQ = 32
def att_setup():
    a(f's_mul_i32 s{t0}, s{sHD}, 7'); a(f's_lshr_b32 s{sST0}, s{t0}, 2'); a(f's_and_b32 s{sG0}, s{t0}, 3')
    a(f's_lshl2_add_u32 s{sTQ}, s{sRBA}, s{sI}')
    a(f's_mul_i32 s{t0}, s{sI}, 3'); a(f's_lshl2_add_u32 s{t0}, s{sRBA}, s{t0}'); a(f's_sub_u32 s{sT7}, s{t0}, 8')
    a(f's_and_b32 s{sCT}, s{sI}, 1'); a(f's_lshr_b32 s{sTT}, s{sI}, 1'); a(f's_lshl1_add_u32 s{sTo}, s{sTB}, s{sTT}')
    a(f'v_min_u32 v10, 13, v{vL}')
    a(f'v_lshrrev_b32 v26, 2, v10'); a(f'v_add_u32 v26, s{sT7}, v26'); a('v_max_i32 v26, 0, v26')
    a(f'v_bfe_u32 v27, v10, 1, 1'); a('v_mul_u32_u24 v27, 28, v27'); a('v_add_u32 v27, 28, v27')
    a(f'v_cmp_le_u32 vcc, 12, v10'); a(f'v_mov_b32 v28, s{sTQ}')
    a('v_cndmask_b32 v26, v26, v28, vcc'); a(f'v_cndmask_b32 v27, v27, v{vZ}, vcc')
    a(f'v_and_b32 v28, 1, v10'); a('v_lshl_add_u32 v27, v28, 1, v27'); a(f'v_add_u32 v27, s{sST0}, v27')
    a('v_lshrrev_b32 v27, 1, v27'); a('v_min_u32 v27, 41, v27')
    a('v_mul_u32_u24 v28, 43, v27'); a('v_lshrrev_b32 v28, 7, v28')
    a('v_mul_u32_u24 v29, 3, v28'); a('v_sub_u32 v29, v27, v29'); a('v_lshrrev_b32 v29, 1, v29')
    a('v_mul_u32_u24 v26, 14, v26'); a('v_add_lshl_u32 v26, v26, v28, 1'); a(f'v_add_lshl_u32 v{vFl}, v26, v29, {FSH}')
    a(f'v_add_u32 v{vFl}, {FLAGS}, v{vFl}')
    assert all((x * 43) >> 7 == x // 3 for x in range(42))
    a(f'v_lshrrev_b32 v26, 5, v{vL}'); a('v_add_u32 v26, 2, v26'); a(f'v_add_u32 v27, {0x40000000 if OPT["tr"] else 0}, v{vL16}')
    a(f'v_cmp_gt_u32 vcc, s{sG0}, v26'); a(f'v_cndmask_b32 v3, v{vL16}, v27, vcc')
    a(f'v_cmp_lt_u32 vcc, s{sG0}, v26'); a(f'v_cndmask_b32 v4, v{vL16}, v27, vcc')
SBUF = 49152
vXo2 = 61; vXv = 56
def final_setup():
    a(f's_lshl3_add_u32 s{t0}, s{sTB}, s{sW}'); a(f's_lshl_b32 s{t0}, s{t0}, 3'); a(f'v_lshrrev_b32 v10, 3, v{vL}'); a(f'v_add_u32 v10, s{t0}, v10')
    a(f'v_mul_u32_u24 v{vXo2}, 896, v10'); a(f'v_and_b32 v10, 7, v{vL}'); a(f'v_lshl_add_u32 v{vXo2}, v10, 4, v{vXo2}')
    a(f's_lshl_b32 s{t0}, s{sCB}, 7'); a(f'v_add_u32 v{vXo2}, s{t0}, v{vXo2}')
    T(('vm', 'x', f'global_load_dwordx4 {vr(vXv,4)}, v{vXo2}, s[{pX}:{pX+1}]'))
def xaddr(vd):
    a(f'v_lshrrev_b32 v10, 5, v{vL}'); a(f'v_and_b32 v11, 7, v{vL}'); a('v_xor_b32 v10, v10, v11'); a(f'v_lshlrev_b32 v{vd}, 8, v11'); a(f'v_lshl_add_u32 v{vd}, v10, 4, v{vd}')
def final_stage():
    vA0, vA1, vB0, vB1 = 12, 13, 14, 15
    srd(SC, pOUT, XBYTES)
    a(f'v_lshrrev_b32 v10, 3, v{vL}'); a(f'v_and_b32 v11, 7, v{vL}'); a('v_lshlrev_b32 v11, 1, v11'); a('v_xor_b32 v11, v11, v10')
    a('v_lshlrev_b32 v10, 8, v10'); a('v_lshl_add_u32 v10, v11, 4, v10')
    a(f's_lshl_b32 s{t0}, s{sW}, 13'); a(f's_cmp_eq_u32 s{sW}, 6'); a(f's_cselect_b32 s{t0}, {slot_addr(6)}, s{t0}'); a(f's_cmp_eq_u32 s{sW}, 7'); a(f's_cselect_b32 s{t0}, {slot_addr(7)}, s{t0}')
    a(f'v_add_u32 v{vA0}, s{t0}, v10'); a(f'v_xor_b32 v{vA1}, 16, v{vA0}')
    a(f's_lshl_b32 s{t0}, s{sW}, 11'); a(f's_add_u32 s{t0}, s{t0}, {SBUF}'); a(f'v_add_u32 v{vB0}, s{t0}, v10'); a(f'v_xor_b32 v{vB1}, 16, v{vB0}')
    a(f's_mov_b32 s52, {f2u(-LOG2E):#x}'); a('s_mov_b32 s53, s52')
    T(('wvm', 'x'))
    vXu = 200
    for j in range(4): a(f'v_lshlrev_b32 v{vXu+2*j}, 16, v{vXv+j}'); a(f'v_and_b32 v{vXu+2*j+1}, 0xffff0000, v{vXv+j}')
    T(('wds', '*'))
    st.mark(35)
    a('s_barrier')
    st.mark(36)
    vF = 144; vS_ = 176
    for kq in range(4):
        for e in range(2): T(('ds', f'f{kq}', f'ds_read_b128 {vr(vF+8*kq+4*e,4)}, v{vA0+e} offset:{kq*2048}'))
    for kh in range(2):
        for e in range(2): T(('ds', 's', f'ds_read_b128 {vr(vS_+8*kh+4*e,4)}, v{vB0+e} offset:{kh*16384}'))
    T(('wds', 'f1'))
    for j in range(0, 8, 2): a(f'v_pk_add_f32 {vr(vF+j,2)}, {vr(vF+j,2)}, {vr(vF+8+j,2)}')
    T(('wds', 'f3'))
    for j in range(0, 8, 2): a(f'v_pk_add_f32 {vr(vF+16+j,2)}, {vr(vF+16+j,2)}, {vr(vF+24+j,2)}')
    for j in range(0, 8, 2): a(f'v_pk_add_f32 {vr(vF+j,2)}, {vr(vF+j,2)}, {vr(vF+16+j,2)}')
    if OPT['fpk']:
        for j in range(0, 8, 2): a(f'v_pk_mul_f32 {vr(192+j,2)}, {vr(vF+j,2)}, s[52:53]')
        for j in range(8): a(f'v_exp_f32 v{192+j}, v{192+j}')
        T(('wds', '*'))
        for j in range(0, 8, 2): a(f'v_pk_add_f32 {vr(vS_+j,2)}, {vr(vS_+j,2)}, {vr(vS_+8+j,2)}')
        for j in range(0, 8, 2): a(f'v_pk_add_f32 {vr(192+j,2)}, {vr(192+j,2)}, 1.0 op_sel_hi:[1,0]')
        for j in range(8): a(f'v_rcp_f32 v{192+j}, v{192+j}')
        for j in range(0, 8, 2): a(f'v_pk_mul_f32 {vr(vS_+j,2)}, {vr(vS_+j,2)}, {vr(vF+j,2)}')
        for j in range(0, 8, 2): a(f'v_pk_fma_f32 {vr(vF+j,2)}, {vr(vS_+j,2)}, {vr(192+j,2)}, {vr(vXu+j,2)}')
    else: T(silu_ops(vF, 192, 8, 52))
    if not OPT['fpk']:
        T(('wds', '*'))
        for j in range(0, 8, 2): a(f'v_pk_add_f32 {vr(vS_+j,2)}, {vr(vS_+j,2)}, {vr(vS_+8+j,2)}')
        for j in range(0, 8, 2): a(f'v_pk_fma_f32 {vr(vF+j,2)}, {vr(vS_+j,2)}, {vr(vF+j,2)}, {vr(vXu+j,2)}')
    for j in range(4): a(f'v_cvt_pk_bf16_f32 v{vXv+j}, v{vF+2*j}, v{vF+2*j+1}')
    a(f'buffer_store_dwordx4 {vr(vXv,4)}, v{vXo2}, {R4(SC)}, 0 offen' + ('', ' sc1', ' sc0 sc1', ' nt', ' sc1 nt', ' sc0 sc1 nt')[OPT['osc']])
    st.mark(37)
    st.flush(SWS, STAMP, sW, vL)
vWo, vT0, vT1, vU0, vU1, vFa, vH0 = 3, 5, 6, 12, 13, 14, 30
sRg, sTab = 49, 66
fAcc = 64; vHr = 128; RH = OPT['rh']; vSB = 32; NS = 10; NRES = OPT['nres']
def wreg(k): return 248 - 8*k
assert vHr + 8*RH <= 256 - 8*NRES
slots = [0, 1, 2, 3, 6, 7, 8, 9, 4, 5]
if OPT['ro']: lorder = list(range(NS, NS + NRES)) + list(range(NS)) + list(range(NS + NRES, 28))
else: lorder = list(range(28))
lidx = {n: i for i, n in enumerate(lorder)}
def wdma(k):
    n = lorder[k]
    return [f's_add_u32 m0, s{sRg}, {slot_addr(slots[k % NS])}', f's_mul_i32 s{t1}, s{sTab + n % 14}, 14'] + ([f's_add_u32 s{t1}, s{t1}, {64*896}'] if n >= 14 else []) + [
            ('vm', f'W{k}', f'buffer_load_dwordx4 v{vWo}, {R4(SA)}, s{t1} offen lds'),
            ('vm', f'W{k}', f'buffer_load_dwordx4 v{vWo+1}, {R4(SA)}, s{t1} offen offset:1024 lds')]
def wread(k, dst):
    slot = slots[k % NS]
    vs, off = ((vT0, vT1), slot*8192) if slot < 6 else ((vU0, vU1), slot_addr(slot) - RA2)
    return [('ds', f'R{k}', f'ds_read_b64_tr_b16 {vr(dst+4*ct+2*q,2)}, v{vs[ct]} offset:{off + q*1024}') for ct in range(2) for q in range(2)]
NE = OPT['early']
def a_early():
    srd(SA, pW2, 1792 * 896)
    for k in range(NE): T(wdma(k))
a.label('L_A')
T.vm = ['p0'] * 8
common_setup('A')
full_pat(vWo, 10, 11, 896); a(f's_lshl_b32 s{t0}, s{sCB}, 7'); a(f'v_add_u32 v{vWo}, s{t0}, v{vWo}'); a(f'v_add_u32 v{vWo+1}, {8*896-1024}, v{vWo}')
a(f's_mul_i32 s{t0}, s{sI}, {14*1024}')
a(f's_mul_i32 s{t3}, s{sCB}, {OPT["rc"]*1024}'); a(f's_and_b32 s{t1}, s{sTB}, 3'); a(f's_mul_i32 s{t1}, s{t1}, {OPT["rt"]*1024}'); a(f's_add_u32 s{t3}, s{t3}, s{t1}')
a(f's_sub_u32 s{t1}, s{t3}, {14*1024}'); a(f's_min_u32 s{t3}, s{t3}, s{t1}')
for n in range(14):
    a(f's_add_u32 s{t1}, s{t0}, s{t3}'); a(f's_and_b32 s{t2}, s{t1}, 0xfffff000'); a(f's_add_u32 s{sTab+n}, s{t1}, s{t2}')
    if n < 13: a(f's_add_u32 s{t3}, s{t3}, 1024'); a(f's_cmp_eq_u32 s{t3}, {14*1024}'); a(f's_cselect_b32 s{t3}, 0, s{t3}')
srd(60, pDBG, 256)
a(f'v_and_b32 v10, 7, v{vL}'); a(f'v_lshl_add_u32 v10, v10, 2, v{vSy}'); a(f'ds_write_b32 v10, v{vZ}')
p1a('A')
a('s_setprio 0')
a(f'v_xor_b32 v24, 64, v24'); a(f'v_add_u32 v{vT}, {W1B[0]}, v24'); a(f'v_add_u32 v{vT+1}, {W1B[1]}, v24')
if OPT['ew'] == 1: a_early()
if OPT['ew'] == 2: srd(SA, pW2, 1792 * 896)
tr_base(10, 11, False); a(f'v_add_u32 v{vT0}, s{sRg}, v10')
a(f'v_xor_b32 v{vT1}, 64, v{vT0}'); a(f'v_add_u32 v{vU0}, {RA2}, v{vT0}'); a(f'v_xor_b32 v{vU1}, 64, v{vU0}')
a(f's_mul_i32 s{t0}, s{sTB}, {224*1024 if not OPT.get("fake") else 0}'); a(f's_add_u32 s{t0}, s{t0}, {HF}'); a(f'v_add_u32 v{vH0}, s{t0}, v{vL16}'); a(f'v_add_u32 v{vH0+1}, {112*1024}, v{vH0}')
a(f's_mul_i32 s{t0}, s{sI}, 7'); a(f's_lshr_b32 s{t0}, s{t0}, 1')
a(f'v_bfe_u32 v10, v{vL}, 1, 2'); a(f'v_add_u32 v10, s{t0}, v10')
a(f'v_bfe_u32 v{vFa}, v{vL}, 3, 1'); a(f's_lshl_b32 s{t0}, s{sTB}, 1'); a(f'v_add_u32 v{vFa}, s{t0}, v{vFa}'); a(f'v_mul_u32_u24 v{vFa}, 14, v{vFa}')
a(f'v_add_lshl_u32 v{vFa}, v{vFa}, v10, 1'); a(f'v_and_b32 v10, 1, v{vL}'); a(f'v_add_lshl_u32 v{vFa}, v{vFa}, v10, {FSH}'); a(f'v_add_u32 v{vFa}, {FLAGS + F1}, v{vFa}')
ex = {}
if OPT['ew'] == 1:
    final_setup()
    st.mark(14)
    T([('wvm', 'q')] + flag_store(0, sFl))
if OPT['ew'] == 2:
    ex[OPT['qa']] = [('wvm', 'q')] + flag_store(0, sFl)
    for k in range(NE):
        w = wdma(k); ex[OPT['qa'] + 2 + 3*k] = w[:-1]; ex[OPT['qa'] + 3 + 3*k] = w[-1:]
st.mark(16)
h_tile(0, 1, vAcc, ex)
st.mark(20)
arrive(cCS1)
if not OPT['ew']: T([('wvm', 'q')] + flag_store(0, sFl))
cs_late('A')
if not (OPT['wv'] & 2): h_epi(vAcc, 0, vCs2)
spin(cL1, 8)
f1 = [('wvm', 'h0')] + flag_store(F1, sFl)
ex = {} if (OPT['wv'] & 2) else {OPT['f0']: f1}
if NE == 5:
    spin(cCS1, 8)
    for k in range(5, 8):
        w = wdma(k)
        if OPT['w2w']: ex[OPT['w2w'] + 3*(k-5)] = w[:-1]; ex[OPT['w2w'] + 1 + 3*(k-5)] = w[-1:]
        else: T(w)
    NE = 8
if (OPT['wv'] & 2): spread(h_epi_items(vAcc, 0, vCs2), ex, 0, OPT['we'])
st.mark(21)
h_tile(1, 1, vAcc + 16, ex)
arrive(cAD)
a(f's_setprio {OPT["ap"]}')
st.mark(22)
h_epi(vAcc + 16, 1, vCs)
if (OPT['wv'] & 2): T(f1)
a(f's_setprio {OPT["ap2"]}')
st.mark(23)
spin(cAD, 8)
st.mark(40)
for k in range(NE, NS): T(wdma(k))
st.mark(41)
for k in range(NRES):
    T([('wvm', f'W{k}')] + wread(k, wreg(k)))
T(('wds', '*'))
st.mark(42)
def sample(off): return ([f'v_add_u32 v{vFa}, {F1}, v{vFa}'] if off == F2 else []) + [('vm', 'hf', f'buffer_load_dwordx2 v[28:29], v{vFa}, {S}, 0 offen sc1')]
if OPT['ew'] != 1 and not OPT['xe']: final_setup()
for k in range(NRES):
    if k == min(OPT['sp'], OPT.get('fp', 99)):
        st.mark(43); T([('wvm', 'h1')]); st.mark(44); T(flag_store(F2, sFl))
    if k == OPT['sp']: T(sample(F1)); st.mark(45)
    T(wdma(k + NS))
    if k == 4: st.mark(46)
def check(off):
    E = lab('hok')
    T(('wvm', 'hf')); a(f'v_cmp_ne_u64 vcc, s[{sN}:{sN+1}], v[28:29]'); a(f's_cbranch_vccz {E}')
    keep = list(T.vm)
    poll(vFa, '0', 16, 0, 28)
    T.vm = keep
    a.label(E)
if OPT['sp'] >= NRES:
    T(sample(F1))
    if OPT.get('fp', 99) >= NRES: T([('wvm', 'h1')] + flag_store(F2, sFl))
st.mark(24)
check(F1)
st.mark(26)
def hload(n):
    o = [f'v_add_u32 v{vH0}, 4096, v{vH0}', f'v_add_u32 v{vH0+1}, 4096, v{vH0+1}'] if n == 14 else []
    return o + [('vm', f'H{n}', f'buffer_load_dwordx4 {vr(vHr+8*(n%RH)+4*tt,4)}, v{vH0+tt}, {S}, s{sTab + n % 14} offen' + ('' if OPT.get('nosc') else ' sc1')) for tt in range(2)]
LA = RH - 1
for n in range(LA): T(hload(n))
def wsrc(n): return wreg(lidx[n]) if lidx[n] < NRES else vSB + 8*(n & 1)
if lidx[0] >= NRES: T([('wvm', f'W{lidx[0]}')] + wread(lidx[0], wsrc(0)))
TM = OPT.get('tm', 0)
for n in range(28 - TM):
    nx = n + 1
    if n + LA == 14: check(F2); st.mark(25)
    T(('w', f'H{n}', f'R{lidx[n]}'))
    if n in (0, 7, 14, 21): st.mark(27 + n // 7)
    rd = wread(lidx[nx], wsrc(nx)) if nx < 28 and lidx[nx] >= NRES else []
    if rd: T(('wvm', f'W{lidx[nx]}'))
    vm = []
    if n + LA < 28:
        h = hload(n + LA); vm += [h[:-1], h[-1:]]
    if lidx[n] >= NRES and lidx[n] + NS < 28:
        w = wdma(lidx[n] + NS); vm += [w[:-1], w[-1:]]
    if n + LA == 14 - OPT.get('sd', 3): vm.append([sample(F2)])
    ms = [mfma(fAcc + 16*(ct + 2*tt), wsrc(n) + 4*ct, vHr + 8*(n % RH) + 4*tt, n == 0) for tt in range(2) for ct in range(2)]
    for i in range(4):
        a(ms[i])
        T(rd[2*i:2*i+2])
        lo, hi = (i * len(vm) + 3) // 4, ((i + 1) * len(vm) + 3) // 4
        for u in vm[lo:hi]: T(u)
    if n == OPT['n1']: arrive(cCS0)
    if n == OPT['pa']: a('s_setprio 3')
    if OPT['sy']:
        pts = list(range(OPT['sy'] - 1, 21 - OPT['lag'], OPT['sy']))
        if n in pts: arrive(20)
        if n - OPT['lag'] in pts: spin(20, 4 * (pts.index(n - OPT['lag']) + 1))
    if n == 22:
        xaddr(16); a(f'v_add_u32 v16, s{sRg}, v16'); a(f'v_bfe_u32 v10, v{vL}, 3, 2')
        a(f'v_mov_b32 v11, {slot_addr(7)}'); a(f'v_mov_b32 v20, {slot_addr(6)}'); a('v_cmp_eq_u32 vcc, 2, v10'); a('v_cndmask_b32 v11, v11, v20, vcc')
        a('v_lshlrev_b32 v21, 13, v10'); a('v_add_u32 v20, 32768, v21'); a('v_cmp_gt_u32 vcc, 2, v10'); a('v_cndmask_b32 v11, v11, v20, vcc')
        a('v_add_u32 v20, v11, v16'); a('v_add_u32 v16, v21, v16')
        for q in range(1, 4): a(f'v_xor_b32 v{16+q}, {32*q}, v16'); a(f'v_xor_b32 v{20+q}, {32*q}, v20')
def pw(tt, ct): return [('ds', 'p', f'ds_write_b128 v{16+4*tt+q}, {vr(fAcc+16*(ct+2*tt)+4*q,4)} offset:{ct*128}') for q in range(4)]
if TM:
    last = list(range(28 - TM, 28)); src = {last[0]: wsrc(last[0])}
    for i, n in enumerate(last[1:]):
        src[n] = wreg(i); T([('wvm', f'W{lidx[n]}')] + wread(lidx[n], src[n]))
    tiles = [(tt, ct) for tt in range(2) for ct in range(2)]
    for ti, (tt, ct) in enumerate(tiles):
        g = []
        for n in last:
            pre = [('w', f'H{n}', f'R{lidx[n]}')] if ti == 0 else []
            g.append(pre + [mfma(fAcc + 16*(ct + 2*tt), src[n] + 4*ct, vHr + 8*(n % RH) + 4*tt)])
        T(weave(g, pw(*tiles[ti - 2]) if ti >= 2 else []))
    st.mark(31)
    T(pw(*tiles[2]) + pw(*tiles[3]))
else:
    st.mark(31)
    for tt in range(2):
        for ct in range(2): T(pw(tt, ct))
final_stage()
a('s_endpgm')

T.reset()
H0 = len(a.items)
a.label('L_helper')
srd(60, pDBG, 256); srd(SA, pW1, 448 * 3584)
a(f'v_mov_b32 v{vZ}, 0')
a(f's_or_b32 s{t0}, s2, s{sW}'); a('s_cbranch_scc1 L_nononce')
a(f's_memrealtime s[{sN}:{sN+1}]'); a('s_waitcnt lgkmcnt(0)'); a(f's_or_b32 s{sN+1}, s{sN+1}, 0x80000000')
a(f'v_mov_b32 v{vN}, s{sN}'); a(f'v_mov_b32 v{vN+1}, s{sN+1}')
a('s_mov_b64 exec, 1'); a(f'buffer_store_dwordx2 {vr(vN,2)}, v{vZ}, s[60:63], 0 offen sc1'); a('s_mov_b64 exec, -1')
a.label('L_nononce')
a('s_getpc_b64 s[28:29]'); a.label('L_pc')
a(f's_sub_u32 s28, s28, L_pc-{K}'); a('s_subb_u32 s29, s29, 0')
a(f's_lshl3_add_u32 s{t3}, s{sIDX}, s{sW}')
a(f's_lshl_b32 s{t0}, s{t3}, 11'); a(f'v_and_b32 v4, 15, v{vL}'); a('v_lshlrev_b32 v4, 7, v4'); a(f'v_add_u32 v4, s{t0}, v4')
a(f'v_min_u32 v4, L_end-{K}, v4'); T(('vm', 'pc', 'global_load_dword v3, v4, s[28:29]'))
if OPT['tlb']:
    sh = OPT['tsh']; npg = WS_USED >> sh
    a(f's_lshl_b32 s{t0}, s{t3}, 6'); a(f'v_add_u32 v5, s{t0}, v{vL}') if npg > 64 else a(f'v_mov_b32 v5, v{vL}')
    a(f'v_lshlrev_b32 v5, {sh}, v5')
    T(('vm', 'tl', f'buffer_load_dword v12, v5, {S}, 0 offen'))
    for k, (p, sz) in enumerate(((pW2, 1792*896), (pWO, 448*896), (pOUT, XBYTES), (pW1, 448*3584))):
        srd(SC, p, sz); T(('vm', 'tl', f'buffer_load_dword v{13+k}, v5, {R4(SC)}, 0 offen'))
if OPT['hd'] >= 1: T(('wvm', '*'))
if OPT['hd'] == 2: nonce_take(False)
a(f's_min_u32 s{t2}, s2, 27'); a(f's_mul_i32 s{t0}, s{sW}, {56*3584}'); a(f's_lshl_b32 s{t1}, s{t2}, 7'); a(f's_add_u32 s{t0}, s{t0}, s{t1}')
a(f'v_lshrrev_b32 v9, 3, v{vL}'); a('v_mul_u32_u24 v9, 3584, v9'); a(f'v_and_b32 v10, 7, v{vL}'); a('v_lshl_add_u32 v9, v10, 4, v9')
for i in range(7):
    T(('vm', f'c{i}', f'buffer_load_dwordx4 {vr(64+4*i,4)}, v9, {R4(SA)}, s{t0} offen')); a(f's_add_u32 s{t0}, s{t0}, {8*3584}')
st.init(60)
a(f'v_mov_b32 v{vSy}, {SYNC}'); a(f'ds_write_b32 v{vSy}, v{vZ} offset:{cB}'); a('v_mov_b32 v5, 8'); a(f'ds_write_b32 v{vSy}, v5 offset:{cAD}')
for i in range(7):
    T(('wvm', f'c{i}'))
    if i == 2 and OPT['hd'] != 2: T(('vm', 'go', f'buffer_load_dwordx2 {vr(vN,2)}, v{vZ}, s[60:63], 0 offen sc1'))
    d0 = 16 if i == 0 else 24
    for d in range(4):
        a(f'v_lshlrev_b32 v{d0+2*d}, 16, v{64+4*i+d}'); a(f'v_and_b32 v{d0+1+2*d}, 0xffff0000, v{64+4*i+d}')
    if i:
        for d in range(4): a(f'v_pk_add_f32 {vr(16+2*d,2)}, {vr(16+2*d,2)}, {vr(24+2*d,2)}')
a(f's_lshl_b32 s{t0}, s{sW}, 11'); a(f'v_lshlrev_b32 v12, 5, v{vL}'); a(f'v_add_u32 v12, s{t0}, v12')
a('ds_write_b128 v12, v[16:19]'); a('ds_write_b128 v12, v[20:23] offset:16')
a('s_waitcnt lgkmcnt(0)'); a('s_barrier')
st.mark(2)
if OPT['hd'] != 2: nonce_take(True)
a(f's_cmp_lg_u32 s{sW}, 0'); a('s_cbranch_scc1 L_hcs_done'); a('s_cmp_ge_u32 s2, 28'); a('s_cbranch_scc1 L_hcs_done')
a('s_setprio 3')
a(f'v_lshlrev_b32 v12, 2, v{vL}')
for g in range(4):
    for k in range(8): a(f'ds_read2st64_b32 {vr(64+16*g+2*k,2)}, v12 offset0:{16*g+2*k} offset1:{16*g+2*k+1}')
    a('s_waitcnt lgkmcnt(0)')
for w in (32, 16, 8, 4, 2):
    for k in range(0, w, 2): a(f'v_pk_add_f32 {vr(64+k,2)}, {vr(64+k,2)}, {vr(64+w+k,2)}')
a('v_add_f32 v64, v64, v65')
a(f's_lshl_b32 s{t0}, s2, 9'); a(f's_add_u32 s48, s{t0}, {CSG}')
a(f'buffer_store_dword v64, v12, {S}, s48 offen sc1'); a('s_waitcnt vmcnt(0)')
T(flag_store(256, 48))
a('s_setprio 0')
st.mark(3)
a.label('L_hcs_done')
a('s_barrier')
if OPT['hm']:
    a(f's_cmp_lt_u32 s{sW}, 4'); a('s_cbranch_scc1 L_nohm')
    srd(SC, pW2, 1792 * 896); srd(SB, pWO, 448 * 896)
    a(f's_lshl2_add_u32 s{t3}, s2, s{sI}'); a(f's_mul_i32 s{t0}, s{t3}, {98*128}')
    a(f'v_min_u32 v4, 48, v{vL}'); a('v_lshlrev_b32 v4, 7, v4')
    a(f'buffer_load_dword v40, v4, {R4(SC)}, s{t0} offen'); a(f's_add_u32 s{t0}, s{t0}, {49*128}'); a(f'buffer_load_dword v41, v4, {R4(SC)}, s{t0} offen')
    a(f's_mul_i32 s{t0}, s{t3}, {25*128}'); a(f'v_min_u32 v4, 24, v{vL}'); a('v_lshlrev_b32 v4, 7, v4')
    a(f'buffer_load_dword v42, v4, {R4(SB)}, s{t0} offen')
    a.label('L_nohm')
a(f's_cmp_ge_u32 s{sW}, 4'); a('s_cbranch_scc1 L_helperB')
a(f's_lshl2_add_u32 s{t3}, s{sIDX}, s{sI}')
if OPT['hw']:
    srd(SA, pW2, 1792 * 896)
    a(f'v_min_u32 v4, 55, v{vL}'); a('v_lshlrev_b32 v4, 7, v4'); a(f'v_add_u32 v5, {56*128}, v4')
    for k in range(7):
        a(f's_add_u32 s{t0}, s{sIDX}, {4*k}'); a(f's_cmp_ge_u32 s{t0}, 14'); a(f's_cselect_b32 s{t1}, 14, 0'); a(f's_cselect_b32 s{t2}, 4, 0'); a(f's_sub_u32 s{t0}, s{t0}, s{t1}')
        a(f's_mul_i32 s{t1}, s{sI}, 14'); a(f's_add_u32 s{t0}, s{t0}, s{t1}'); a(f's_and_b32 s{t1}, s{t0}, 0xfc'); a(f's_add_u32 s{t0}, s{t0}, s{t1}'); a(f's_add_u32 s{t0}, s{t0}, s{t2}')
        a(f's_mul_i32 s{t0}, s{t0}, {16*896}')
        a(f'buffer_load_dword v{20+2*k}, v4, {R4(SA)}, s{t0} offen'); a(f'buffer_load_dword v{21+2*k}, v5, {R4(SA)}, s{t0} offen')
st.mark(4)
if OPT['hh']:
    a(f's_and_b32 s{t0}, s2, 7'); a(f's_lshr_b32 s{t1}, s{t3}, 1'); a(f's_lshl3_add_u32 s{t0}, s{t0}, s{t1}')
    a(f's_and_b32 s{t1}, s{t3}, 1'); a(f's_mul_i32 s{t1}, s{t1}, 7'); a(f's_mul_i32 s{t0}, s{t0}, 14'); a(f's_add_u32 s{t2}, s{t0}, s{t1}')
    a(f's_lshl_b32 s48, s{t2}, {FSH+1}'); a(f's_add_u32 s48, s48, {FLAGS}'); a(f'v_lshlrev_b32 v4, {FSH}, v{vL}')
    a(f's_lshl_b32 s49, s{t2}, 13'); a(f's_add_u32 s49, s49, {HF}')
    a(f'v_and_b32 v5, 31, v{vL}'); a('v_lshlrev_b32 v5, 7, v5'); a(f'v_lshrrev_b32 v6, 5, v{vL}'); a('v_lshl_add_u32 v6, v6, 15, v5')
    for ph in range(2):
        a(f's_add_u32 s48, s48, {F1}'); poll(4, 's48', 14, 0, 12, sleep=6)
        st.mark(5 + ph)
        for k in range(4):
            a(f's_add_u32 s{t0}, s49, {k*8192 + ph*4096}')
            a(f'buffer_load_dword v{40+4*ph+k}, v{6 if k < 3 else 5}, {S}, s{t0} offen sc1')
        if ph == 0 and OPT['hwo']:
            srd(SB, pWO, 448 * 896)
            a(f'v_min_u32 v9, 48, v{vL}'); a('v_lshlrev_b32 v9, 7, v9'); a(f's_mul_i32 s{t0}, s{t3}, {196*128}')
            for i in range(4):
                a(f'buffer_load_dword v{50+i}, v9, {R4(SB)}, s{t0} offen'); a(f's_add_u32 s{t0}, s{t0}, {49*128}')
st.flush(SWS, STAMP, sW, vL)
a('s_endpgm')
a.label('L_helperB')
if OPT['hs']:
    srd(SA, pWO, 448 * 896)
    a(f's_lshl2_add_u32 s{t3}, s{sIDX}, s{sI}'); a(f's_mul_i32 s{t0}, s{t3}, {196*128}'); a(f's_mov_b32 s{t1}, 14')
    a('s_sleep 20')
    a.label('L_hsl')
    for k in range(14): a(f's_buffer_load_dword s{64+k}, {R4(SA)}, s{t0} offset:{128*k}')
    a(f's_add_u32 s{t0}, s{t0}, {14*128}'); a(f's_sub_u32 s{t1}, s{t1}, 1'); a('s_waitcnt lgkmcnt(0)'); a(f's_cmp_lg_u32 s{t1}, 0'); a('s_cbranch_scc1 L_hsl')

att_setup()
a(f's_mov_b32 s{sKI}, 0')
poll(vFl, '0', 14, 0, 28, sleep=OPT['hsl'])
a('s_branch L_att')

H1 = len(a.items)
blk = a.items[H0:H1]; del a.items[H0:H1]; a.items[HELPER_AT:HELPER_AT] = blk
T.reset()
a.label('L_B')
a(f's_setprio {OPT["bp1"]}')
common_setup('B')
srd(60, pDBG, 256)
att_setup()
st.mark(48)
for u in x_dma(1) + wq_dma(1): T(u)
exB = p1a('B')
a('s_setprio 2')
a(f'v_add_u32 v{vT}, {W1B[0]}, v24'); a(f'v_add_u32 v{vT+1}, {W1B[1]}, v24')
h_tile(0, 0, vAcc + 16, exB)
arrive(cCS1)
T(('wvm', 'l1')); arrive(cL1)
st.mark(16)
if OPT['bq']:
    assert not OPT['lc'] and T.vm[-2:] == ['q', 'q']
    a('s_waitcnt vmcnt(2)'); T.vm = ['q', 'q']
    cs_late('B')
    qf = [('wvm', 'q')] + flag_store(0, sFl)
    h_epi(vAcc + 16, 0, vCs2, mid=qf if OPT['bq'] == 1 else None)
    if OPT['bq'] == 2: T(qf)
else:
    T([('wvm', 'q')] + flag_store(0, sFl))
    cs_late('B')
    if not (OPT['wv'] & 1): h_epi(vAcc + 16, 0, vCs2)
spin(cL1, 8)
st.mark(17)
vVe, vVo, vKa, vV0, vV1 = 3, 4, 5, 6, 9
def kv_units(which):
    u = []
    for t in range(3):
        pre = ([f's_mul_i32 s{t2}, s{sI}, {3*3072}'] if t == 0 else []) + [f's_add_i32 s{t0}, s{sT7}, {t}', f's_max_i32 s{t0}, s{t0}, 0', f's_mul_i32 s{t0}, s{t0}, 84', f's_add_u32 s{t0}, s{t0}, s{sST0}',
               f's_add_u32 m0, s{t2}, {(KB, VB)[which] + t*3072}', f's_add_u32 s{t0}, s{t0}, {28*(which+1)}', f's_lshl_b32 s{t0}, s{t0}, 10']
        for s in range(3):
            v = (3, vL16 if which == 0 else 30, 4)[s]
            u.append((pre if s == 0 else []) + [('vm', 'KV'[which], f'buffer_load_dwordx4 v{v}, {S}, s{t0} offen offset:{1024*s} sc1 lds')])
    return u
def kv_dma(which):
    for u in kv_units(which): T(u)
def qk_issue():
    keep = list(T.vm)
    a(f's_mul_i32 s{t0}, s{sTQ}, 84'); a(f's_add_u32 s{t0}, s{t0}, s{sST0}'); a(f's_lshl_b32 s{t0}, s{t0}, 10')
    for s in range(3): a(f'buffer_load_dwordx4 {vr(vQ+4*s,4)}, v{(3, vL16, 4)[s]}, {S}, s{t0} offen offset:{1024*s} sc1')
    kv_dma(0)
    T.vm = keep
qsample = [('vm', 'qf', f'buffer_load_dwordx2 v[28:29], v{vFl}, {S}, 0 offen sc1')]
ex = {OPT['smp']: list(qsample)} if OPT['mid'] < 2 else {}
if (OPT['wv'] & 1): spread(h_epi_items(vAcc + 16, 0, vCs2), ex, 0, OPT['we'])
h_tile(1, 0, vAcc, ex)
arrive(cAD)
if OPT['mid'] < 2: spin(cCS1, 8)
st.mark(18)
def early_qk():
    T([('wvm', 'qf')] + flag_store(F1, sFl)); a(f'v_cmp_ne_u64 vcc, s[{sN}:{sN+1}], v[28:29]'); a(f's_mov_b32 s{sKI}, 0'); a('s_cbranch_vccnz L_noearly')
    qk_issue(); a(f's_mov_b32 s{sKI}, 1')
    a.label('L_noearly')
    st.mark(19)
if OPT['mid'] == 2:
    h_epi(vAcc, 1, vCs, mid=qsample)
    spin(cCS1, 8)
    early_qk()
elif OPT['mid'] == 3:
    h_epi(vAcc, 1, vCs)
    spin(cCS1, 8)
    T(qsample); early_qk()
elif OPT['mid']:
    h_epi(vAcc, 1, vCs, mid=[('call', early_qk)])
else:
    early_qk()
    h_epi(vAcc, 1, vCs)
a.label('L_att')
a('s_setprio 2')
a(f's_mov_b32 s{sFl2}, s{sFl}')
st.mark(20)
a(f's_cmp_lg_u32 s{sKI}, 0'); a('s_cbranch_scc1 L_kdone')
poll(vFl, '0', 14, 0, 28)
st.mark(21)
a(f's_cmp_lt_u32 s{sIDX}, 4'); a('s_cbranch_scc1 L_nohf0')
T(flag_store(F2, sFl2))
a.label('L_nohf0')
qk_issue()
a.label('L_kdone')
st.mark(22)
a(f'v_lshrrev_b32 v12, 5, v{vL}'); a('v_lshlrev_b32 v13, 6, v12'); a('v_xor_b32 v3, v13, v3'); a('v_xor_b32 v4, v13, v4'); a(f'v_xor_b32 v30, v13, v{vL16}'); a('v_xor_b32 v30, 128, v30')
def k_arrive():
    T(('wvm', 'K' if OPT['ve'] == 1 else '*')); st.mark(23); arrive(cB)
    a(f's_cmp_eq_u32 s{sKI}, 0'); a('s_cbranch_scc1 L_nohf')
    keep = list(T.vm); T(flag_store(F2, sFl2)); T.vm = keep
    a.label('L_nohf')
if OPT['ve'] == 1:
    spin(cAD, 8); T.vm = ['K']; kv_dma(1); st.mark(40)
    if OPT['ea']: k_arrive()
a(f's_mul_i32 s{t0}, s{sI}, 3072'); a(f's_add_u32 s{t1}, s{t0}, {KB}'); a(f'v_add_u32 v{vKa}, s{t1}, v{vL16}')
a(f'v_bfe_u32 v14, v{vL}, 4, 1'); a(f'v_and_b32 v15, 3, v{vL}'); a('v_lshl_add_u32 v14, v14, 2, v15'); a(f'v_add_u32 v14, s{sG0}, v14')
a('v_lshrrev_b32 v15, 2, v14'); a('v_and_b32 v16, 1, v14'); a('v_bfe_u32 v17, v14, 1, 1')
a(f'v_bfe_u32 v19, v{vL}, 2, 2'); a('v_lshl_add_u32 v18, v12, 2, v19')
a('v_and_b32 v19, 1, v15'); a('v_lshl_add_u32 v19, v19, 1, v16'); a('v_lshlrev_b32 v19, 2, v19'); a('v_xor_b32 v18, v18, v19')
a(f'v_lshlrev_b32 v{vV0}, 4, v18'); a(f'v_lshl_add_u32 v{vV0}, v17, 3, v{vV0}'); a(f'v_lshl_add_u32 v{vV0}, v16, 9, v{vV0}')
a(f'v_lshl_add_u32 v{vV0}, v15, 10, v{vV0}'); a(f'v_xor_b32 v{vV1}, 128, v{vV0}')
a(f's_add_u32 s{t0}, s{t0}, {VB}'); a(f'v_add_u32 v{vV0}, s{t0}, v{vV0}'); a(f'v_add_u32 v{vV1}, s{t0}, v{vV1}')
if OPT['vo']:
    a(f's_add_u32 s{t0}, s{sG0}, 7'); a(f's_lshr_b32 s{t1}, s{t0}, 2'); a(f's_lshl_b32 s{t1}, s{t1}, 10'); a(f's_and_b32 s{t2}, s{t0}, 1'); a(f's_lshl_b32 s{t2}, s{t2}, 9'); a(f's_add_u32 s{t1}, s{t1}, s{t2}')
    a(f's_and_b32 s{t2}, s{t0}, 2'); a(f's_lshl_b32 s{t2}, s{t2}, 2'); a(f's_add_u32 s{t1}, s{t1}, s{t2}'); a(f's_mul_i32 s{t2}, s{sI}, {3*3072}'); a(f's_add_u32 s{t1}, s{t1}, s{t2}'); a(f's_add_u32 s{t1}, s{t1}, {VB}')
    a(f'v_and_b32 v56, 31, v{vL}'); a('v_lshlrev_b32 v56, 4, v56'); a('v_mul_u32_u24 v57, 3072, v12'); a(f'v_add3_u32 v56, v56, v57, s{t1}')
    a('v_mov_b32 v58, 0x3f80'); a('v_mov_b32 v59, 0')
for j in range(16):
    c = 8*(j >> 2) + (j & 3)
    a(f's_mov_b32 s{sM+2*j}, {(0xffffffff << c) & 0xffffffff:#x}'); a(f's_mov_b32 s{sM+2*j+1}, {(0xffffffff << (c+4)) & 0xffffffff:#x}')
def msk(j): return f's[{sM+2*j}:{sM+2*j+1}]'
vOnes = 24; vBm = 28; vMk = 240
vSb = 64; vO = 192; vLs = 208; vP0 = 224; vP8 = 232; vM = 224
a('v_mov_b32 v14, 0xffff'); a('v_mov_b32 v15, 0xffff0000')
for j in range(8):
    a(f'v_cndmask_b32 v{vMk+j}, 0, v14, {msk(2*j)}'); a(f'v_cndmask_b32 v16, 0, v15, {msk(2*j+1)}'); a(f'v_or_b32 v{vMk+j}, v{vMk+j}, v16')
for k in range(4): a(f'v_mov_b32 v{vOnes+k}, 0x3f803f80')
for k in range(1, 4): a(f'v_mov_b32 v{vBm+k}, 0')
a(f'v_subrev_u32 v12, s{sG0}, v12')
if OPT['ve'] != 1: spin(cAD, 8)
if not OPT['ea']: k_arrive()
if not OPT['ve']: kv_dma(1); st.mark(40)
for s in range(3):
    for ap in range(2):
        a(f'v_add_u32 v13, {4*s+2*ap}, v12'); a('v_cmp_gt_u32 vcc, 7, v13')
        for k in range(2):
            r = vQ + 4*s + 2*ap + k
            a(f'v_cndmask_b32 v{r}, 0, v{r}, vcc')
spin(cB, 4)
st.mark(24)
vKF = (44, 12)
def sreg(r): return vO if r == 0 else vSb + 16 * (r - 1)
m8 = sreg(8)
sorder = [8, 0, 1, 2, 3, 4, 5, 6, 7]
def kreads(i): return [('ds', f'k{i}', f'ds_read_b128 {vr(vKF[i&1]+4*s,4)}, v{vKa} offset:{sorder[i]*3072 + s*1024}') for s in range(3)]
def maxops(b, first=False):
    o = []
    for h in range(2):
        for c in range(4):
            if first and h == 0: o.append(f'v_max_f32 v{vM+c}, v{b+c}, v{b+4+c}')
            else: o.append(f'v_max3_f32 v{vM+c}, v{vM+c}, v{b+8*h+c}, v{b+8*h+4+c}')
    return o
merge = [f'v_cndmask_b32 v{m8+j}, v{vO+j}, v{m8+j}, {msk(j)}' for j in range(16)]
fills = {3: merge[:12], 4: merge[12:] + maxops(m8, True), 5: maxops(sreg(1)) + maxops(sreg(2))[:4], 6: maxops(sreg(2))[4:] + maxops(sreg(3)),
         7: maxops(sreg(4)), 8: maxops(sreg(5))}
vun = kv_units(1) if OPT['ve'] == 2 else []
T(kreads(0))
for i in range(9):
    r = sorder[i]
    T(('wds', f'k{i}'))
    T(weave([[mfma(sreg(r), vKF[i & 1] + 4*s, vQ + 4*s, s == 0)] for s in range(3)], (kreads(i + 1) if i + 1 < 9 else []) + vun[3*i:3*i+3] + fills.get(i, [])))
T(maxops(sreg(6)))
st.mark(41); T(('wvm', 'V')); st.mark(42)
if OPT['vo']: T(('ds', 'vo', 'ds_write_b64 v56, v[58:59]')); T(('ds', 'vo', 'ds_write_b64 v56, v[58:59] offset:3072'))
arrive(cB)
T(maxops(sreg(7)))
a(f's_cmp_ge_u32 s{sTQ}, 8'); a('s_cbranch_scc1 L_valid')
NEG = f2u(-1e30)
a(f'v_mov_b32 v12, {NEG:#x}')
for j in range(16): a(f'v_cndmask_b32 v{m8+j}, v12, v{m8+j}, {msk(j)}')
for r in range(1, 8):
    a(f's_cmp_ge_u32 s{sTQ}, {8-r}'); a('s_cbranch_scc1 L_remax')
    for j in range(16): a(f'v_mov_b32 v{sreg(r)+j}, v12')
a.label('L_remax')
T(maxops(m8, True))
for r in range(1, 8): T(maxops(sreg(r)))
a.label('L_valid')
a(f'v_max3_f32 v{vM}, v{vM}, v{vM+1}, v{vM+2}'); a(f'v_max_f32 v{vM}, v{vM}, v{vM+3}')
a(f'v_mov_b32 v{vM+1}, v{vM}'); a(f'v_cmp_gt_u32 vcc, 32, v{vL}')
a(f'v_permlane32_swap_b32 v{vM}, v{vM+1}'); a(f'v_max_f32 v{vM}, v{vM}, v{vM+1}')
a(f'v_cvt_pk_bf16_f32 v{vM+1}, 0, v{vM}'); a(f'v_sub_f32 v{vM+1}, v{vM+1}, v{vM}'); a(f'v_cvt_pk_bf16_f32 v{vM+1}, -v{vM}, v{vM+1}')
a(f'v_cndmask_b32 v{vBm}, 0, v{vM+1}, vcc')
st.mark(25)
vVF = (44, 12)
porder = [1, 2, 3, 4, 5, 6, 7, 8, 0]
def vreads(i): return [('ds', f'v{i}', f'ds_read_b64_tr_b16 {vr(vVF[i&1]+4*ks+2*q,2)}, v{(vV0,vV1)[q]} offset:{porder[i]*3072 + ks*256}') for ks in range(2) for q in range(2)]
def sub(i): return mfma(sreg(porder[i]), vOnes, vBm)
def softmax(i):
    r = porder[i]; b = sreg(r); o = []
    for g in range(0, 16, 4):
        o += [f'v_exp_f32 v{b+j}, v{b+j}' for j in range(g, g + 4)]
        if g: o += [f'v_cvt_pk_bf16_f32 v{b+j}, v{b+2*j}, v{b+2*j+1}' for j in range(g//2 - 2, g//2)]
    o += [f'v_cvt_pk_bf16_f32 v{b+j}, v{b+2*j}, v{b+2*j+1}' for j in (6, 7)]
    if r == 8:
        o += [f'v_and_b32 v{vP8+j}, v{vMk+j}, v{b+j}' for j in range(8)]
        o += [f'v_bfi_b32 v{vP0+j}, v{vMk+j}, 0, v{b+j}' for j in range(8)]
    return o
def pv(i):
    r = porder[i]; P = vP0 if r == 0 else (vP8 if r == 8 else sreg(r)); vb = vVF[i & 1]
    g = []
    for ks in range(2):
        g.append([mfma(vO, vb + 4*ks, P + 4*ks, i == 0 and ks == 0)])
        if r and not OPT['vo']: g.append([mfma(vLs, vOnes, sreg(r) + 4*ks, i == 0 and ks == 0)])
    g[0] = [('wds', f'v{i}')] + g[0]
    return g
a(sub(0)); a(sub(1))
spin(cB, 8)
st.mark(26)
T(vreads(0)); T(weave([[sub(2)]], softmax(0)))
for i in range(9):
    fill = (vreads(i + 1) if i + 1 < 9 else []) + (softmax(i + 1) if i + 1 < 8 else [])
    T(weave(pv(i) + ([[sub(i + 3)]] if i + 3 < 8 else []), fill))
st.mark(27)
arrive(cB)
a(f's_lshl4_add_u32 s{t0}, s{sTQ}, s{sHD}'); a(f's_lshl_b32 s{t1}, s{t0}, 11'); a(f's_add_u32 s{t1}, s{t1}, {OF}')
a(f's_lshl_b32 s{t0}, s{t0}, {OSH}'); a(f's_add_u32 s48, s{t0}, {OFL}')
if OPT['vo']:
    a(f'v_mov_b32 v12, v{vO+12}'); a(f'v_mov_b32 v13, v{vO+12}'); a('v_permlane32_swap_b32 v12, v13'); a('v_rcp_f32 v12, v13')
else: a(f'v_rcp_f32 v12, v{vLs}')
a(f'v_cmp_gt_u32 vcc, 32, v{vL}')
for s in range(2):
    for j in range(8*s, 8*s + 8): a(f'v_mul_f32 v{vO+j}, v12, v{vO+j}')
    for j in range(4*s, 4*s + 4): a(f'v_cvt_pk_bf16_f32 v{vO+j}, v{vO+2*j}, v{vO+2*j+1}')
    if s: a(f'v_cndmask_b32 v{vO+6}, 0, v{vO+6}, vcc'); a(f'v_cndmask_b32 v{vO+7}, 0, v{vO+7}, vcc')
    T(('vm', 'o', f'buffer_store_dwordx4 {vr(vO+4*s,4)}, v{vL16}, {S}, s{t1} offen offset:{1024*s} sc1'))
st.mark(28)
a(f's_cmp_lt_u32 s{sIDX}, 4'); a('s_cbranch_scc0 L_cont')
keep = list(T.vm)
T([('wvm', 'o')] + flag_store(0, 48))
st.flush(SWS, STAMP, sW, vL)
a('s_endpgm')
a.label('L_cont')
T.vm = keep
srd(SA, pWO, 448 * 896)
vWo = 3
full_pat(vWo, 12, 13, 896); a(f's_lshl_b32 s{t0}, s{sCB}, 7'); a(f'v_add_u32 v{vWo}, s{t0}, v{vWo}')
spin(cB, 12)
if OPT['of'] < 0:
    T([('wvm', 'o')] + flag_store(0, 48)); st.mark(29)
a(f's_setprio {OPT["bp2"]}')
a(f's_mul_i32 s{t2}, s{sTT}, {WOB[1]-WOB[0]}'); a(f's_lshl_b32 s{t0}, s{sCT}, 10'); a(f's_add_u32 s{t2}, s{t2}, s{t0}')
a(f's_mul_i32 s{t1}, s{sTT}, {224*896}'); a(f's_mul_i32 s{t0}, s{sCT}, {8*896}'); a(f's_add_u32 s{t1}, s{t1}, s{t0}')
for i in range(15):
    if i == 14:
        a(f's_lshl_b32 s{t0}, s{sCT}, 11'); a(f's_sub_u32 s{t2}, s{t2}, s{t0}'); a(f's_mul_i32 s{t0}, s{sCT}, {16*896}'); a(f's_sub_u32 s{t1}, s{t1}, s{t0}')
    a(f's_add_u32 m0, s{t2}, {WOB[0] + 2048*i}'); a(f's_add_u32 s{t0}, s{t1}, {i*16*896}')
    T(('vm', 'wo', f'buffer_load_dwordx4 v{vWo}, {R4(SA)}, s{t0} offen lds'))
    if i == OPT['of']:
        T([('wvm', 'o')] + flag_store(0, 48)); st.mark(29)
final_setup()
vTa, vTb = 5, 6
tr_base(vTa, 12, False); a(f's_mul_i32 s{t0}, s{sCT}, {WOB[1]-WOB[0]}'); a(f's_add_u32 s{t0}, s{t0}, {WOB[0]}')
a(f'v_add_u32 v{vTa}, s{t0}, v{vTa}'); a(f'v_xor_b32 v{vTb}, 64, v{vTa}')
a(f'v_and_b32 v4, 7, v{vL}'); a(f'v_lshlrev_b32 v4, {OSH}, v4')
a(f's_lshl1_add_u32 s49, s{sTo}, s{sCT}'); a(f's_lshl_b32 s50, s49, {OSH+3}'); a(f's_add_u32 s50, s50, {OFL}')
st.mark(30)
T(('wvm', 'wo')); arrive(cB)
if OPT['n1'] < 0: T(('vm', 'of', f'buffer_load_dwordx2 v[12:13], v4, {S}, s50 offen sc1'))
spin(cB, 16)
st.mark(31)
if OPT['n1'] >= 0 and OPT['so']:
    spin(cCS0, 4, sleep=2); st.mark(38)
    T(('vm', 'of', f'buffer_load_dwordx2 v[12:13], v4, {S}, s50 offen sc1'))
vWA = 128; vOf = 64; vSa = 16
for n in range(16):
    for ct in range(2):
        for q in range(2):
            T(('ds', f'a{n}', f'ds_read_b64_tr_b16 {vr(vWA+8*n+4*ct+2*q,2)}, v{(vTa,vTb)[ct]} offset:{(28*(n>>1) + 16*(n&1) + 8*q)*128}'))
T(('wds', '*')); arrive(cB)
xaddr(48); a(f'v_bfe_u32 v10, v{vL}, 3, 2'); a('v_lshl_add_u32 v48, v10, 11, v48')
a(f's_lshl_b32 s{t0}, s{sCT}, 14'); a(f's_lshl_b32 s{t1}, s{sTT}, 13'); a(f's_add_u32 s{t0}, s{t0}, s{t1}'); a(f's_add_u32 s{t0}, s{t0}, {SBUF}'); a(f'v_add_u32 v48, s{t0}, v48')
for q in range(1, 4): a(f'v_xor_b32 v{48+q}, {32*q}, v48')
spin(cB, 20)
if OPT['n1'] >= 0 and not OPT['so']:
    spin(cCS0, 4, sleep=2); st.mark(38)
    T(('vm', 'of', f'buffer_load_dwordx2 v[12:13], v4, {S}, s50 offen sc1'))
T(('wvm', 'of')); a(f'v_cmp_ne_u64 vcc, s[{sN}:{sN+1}], v[12:13]'); a('s_cbranch_vccz L_ook')
poll(4, 's50', 8, 0, 12)
a.label('L_ook')
a('s_setprio 2')
st.mark(32)
a(f's_lshl_b32 s{t0}, s49, 14'); a(f's_add_u32 s{t0}, s{t0}, {OF}')
def oload(n):
    return [('vm', f'o{n}', f'buffer_load_dwordx4 {vr(vOf+4*n,4)}, v{vL16}, {S}, s{t0} offen offset:{(n&3)*1024} sc1')] + ([f's_add_u32 s{t0}, s{t0}, 4096'] if n & 3 == 3 else [])
OD = OPT.get('od', 10)
for n in range(OD): T(oload(n))
if OPT['pb'] >= 0: a(f's_setprio {OPT["pb"]}')
st.mark(33)
for n in range(16):
    T(('wvm', f'o{n}'))
    for ct in range(2):
        a(mfma(vSa + 16*ct, vWA + 8*n + 4*ct, vOf + 4*n, n == 0))
        if ct == 0 and n + OD < 16: T(oload(n + OD))
st.mark(34)
for ct in range(2):
    for q in range(4): T(('ds', 'sx', f'ds_write_b128 v{48+q}, {vr(vSa+16*ct+4*q,4)} offset:{ct*128}'))
final_stage()
a.label('L_end'); a('s_endpgm')

a.pad_hazards_fast()
for e in a.check_waits(): print('WAITERR', e)
hdr = ['; generated by gen34.py (hand-written generator): single persistent kernel',
       f'; @launch grid=(256,1,1) block=(512,1,1) lds={LDS_TOTAL}', '.amdgcn_target "amdgcn-amd-amdhsa--gfx950"', '.text']
tail = ['.section .rodata,"a"', '.p2align 6', f'.amdhsa_kernel {K}', '  .amdhsa_next_free_vgpr 256', '  .amdhsa_next_free_sgpr 102',
        '  .amdhsa_accum_offset 256', '  .amdhsa_group_segment_fixed_size 0', '  .amdhsa_kernarg_size 72',
        '  .amdhsa_user_sgpr_count 2', '  .amdhsa_user_sgpr_kernarg_segment_ptr 1', '  .amdhsa_system_sgpr_workgroup_id_x 1', '.end_amdhsa_kernel']
open(sys.argv[1], 'w').write('\n'.join(hdr) + '\n' + a.text() + '\n'.join(tail) + '\n')
```

```python
import sys, struct
from asmlib import *

NAME = 'recurrent_scan__sliding_block__dense_activation_silu__prompt'
OPT = dict(stamp=0, spin=200000, hp=1, rotf=1, rot=1, w1e=1, aq=14, tw=0, hd=1, hm=1, hw=0, hh=0, hs=0, early=5, ap=3, ew=2, smp=27, nres=8, bp2=2, ap2=1, of=9, tlb=0, bc=-1, bq=0, wv=0, fa=0, we=26, tsh=21, hwo=1, n1=15, sp=6, gon=24, cp=1, fp=1, f0=27, cfs=24, pl=2, sy=0, lag=2, pa=-1, pb=0, od=16, vo=1, tr=1, fpk=1, be=0, bw=12, sc=0, w2w=0, ve=1, mid=1, so=0, ps=4, ea=1, osc=1, vs=0, stg=0, ds=0, sa=8, lc=1, bp1=2, xe=1, ro=1, rc=0, rt=0, ta=-1, tb=-1, tc=-1, qa=8, hsl=24, rh=8)
for x in sys.argv[2:]:
    k, v = x.split('='); OPT[k] = int(v)
def f2u(x): return struct.unpack('<I', struct.pack('<f', x))[0]

QKVF = 0; HF = 0x600000; OF = 0xE00000; FLAGS = 0x1200000; STAMP = 0x1100000; WS_USED = 0x1400000
FSH = 7; F1 = 0x40000; F2 = 2 * F1
OSH = OPT.get('osh', 7)
OFL = 0x1000000
CSG = 0x1080000
sN = 80
XBYTES = 2048 * 448 * 2
LOG2E = 1.4426950408889634
pX, pWQ, pWO, pW1, pW2, pOUT, pDBG = 4, 6, 8, 12, 14, 16, 18
SWS, SA, SB, SC = 20, 24, 28, 32
sI, sRB, sJ, sROT, sHD, sRBA, sTB, sCB = 36, 37, 38, 39, 40, 41, 42, 43
sW = 10; sIDX = 11
t0, t1, t2, t3, t4 = 3, 44, 45, 46, 47
sM = 48
def R4(b): return f's[{b}:{b+3}]'
S = R4(SWS)
def SL(p): return (p % 3) * 32768
W1B = (98304, 32768)
def W1P(L, q): return W1B[L] + 8192 * q
KB = 98304; VB = 49152; WOB = (49152, 98304); SXB = (78848, 128000)
RA2 = 90112
def slot_addr(slot): return slot*8192 if slot < 6 else (RA2 if slot == 6 else 137216 + (slot - 7)*8192)
CS = 161792
STX = 155648
SYNC = CS + 1920
cCS0, cL1, cCS1, cAD, cB = 0, 4, 8, 12, 16
LDS_TOTAL = 163840

a = Asm(); T = Tr(a)
st = Stamps2(a, OPT['stamp'], T)
uid = [0]
def lab(p):
    uid[0] += 1; return f'L_{p}_{uid[0]}'
def srd(d, ptr, size):
    a(f's_mov_b32 s{d}, s{ptr}'); a(f's_and_b32 s{d+1}, s{ptr+1}, 0xffff'); a(f's_mov_b32 s{d+2}, {size}'); a(f's_mov_b32 s{d+3}, 0x20000')

def poll(vaddr, soff, nl, imm, vtmp, sleep=1):
    L = lab('poll'); E = lab('polle')
    a(f's_mov_b64 exec, {(1 << nl) - 1}'); a(f's_mov_b32 s{t4}, 0')
    a.label(L)
    a(f'buffer_load_dwordx2 {vr(vtmp,2)}, v{vaddr}, {S}, {soff} offen offset:{imm} sc1')
    a(f's_add_u32 s{t4}, s{t4}, 1')
    a('s_waitcnt vmcnt(0)')
    a(f'v_cmp_ne_u64 vcc, s[{sN}:{sN+1}], {vr(vtmp,2)}')
    a(f's_cbranch_vccz {E}')
    if sleep: a(f's_sleep {max(sleep, OPT.get("ps", 1))}')
    a(f's_cmp_lt_u32 s{t4}, {OPT["spin"]}'); a(f's_cbranch_scc1 {L}')
    a.label(E)
    a('s_mov_b64 exec, -1')
    T.vm = []
vN = 62
def nonce_take(sampled):
    L = lab('nz'); E = lab('nze')
    a(f's_mov_b32 s{t4}, 0')
    if sampled: T(('wvm', 'go')); a(f's_branch {L}c')
    a.label(L)
    a(f'buffer_load_dwordx2 {vr(vN,2)}, v{vZ}, s[60:63], 0 offen sc1'); a('s_waitcnt vmcnt(0)')
    a.label(L + 'c')
    a(f'v_readfirstlane_b32 s{sN+1}, v{vN+1}'); a(f'v_readfirstlane_b32 s{sN}, v{vN}'); a(f's_add_u32 s{t4}, s{t4}, 1')
    a(f's_cmp_lg_u32 s{sN+1}, 0'); a(f's_cbranch_scc1 {E}')
    a('s_sleep 2'); a(f's_cmp_lt_u32 s{t4}, {OPT["spin"]}'); a(f's_cbranch_scc1 {L}')
    a.label(E)

vL, vL16, vSy, vZ, vTt = 1, 2, 7, 8, 11
def spin(off, val, sleep=0):
    L = lab('sp'); E = lab('spe')
    a(f's_mov_b32 s{t4}, 0')
    a.label(L)
    a(f'ds_read_b32 v{vTt}, v{vSy} offset:{off}'); a(f's_add_u32 s{t4}, s{t4}, 1'); a('s_waitcnt lgkmcnt(0)')
    a(f'v_cmp_gt_u32 vcc, {val}, v{vTt}')
    a(f's_cbranch_vccz {E}')
    sleep = max(sleep, OPT.get('ss', 0))
    if sleep: a(f's_sleep {sleep}')
    a(f's_cmp_lt_u32 s{t4}, {OPT["spin"]*8}'); a(f's_cbranch_scc1 {L}')
    a.label(E)
    T.ds = []
def arrive(off):
    a('s_mov_b64 exec, 1'); a(f'v_mov_b32 v{vTt}, 1'); T(('ds', 'arr', f'ds_add_u32 v{vSy}, v{vTt} offset:{off}')); a('s_mov_b64 exec, -1')

def flag_store(imm, soff):
    o = [f'v_lshlrev_b32 v{vTt}, 3, v{vL}']
    if imm >= 4096:
        o.append(f'v_add_u32 v{vTt}, {imm}, v{vTt}'); imm = 0
    return o + [f's_mov_b64 exec, {0xffff if OPT.get("ff", 1) else 1}', ('vm', 'flag', f'buffer_store_dwordx2 {vr(vN,2)}, v{vTt}, {S}, s{soff} offen offset:{imm} sc1'), 's_mov_b64 exec, -1']

def tr_base(vd, vt, natural):
    a(f'v_lshrrev_b32 v{vd}, 5, v{vL}'); a(f'v_bfe_u32 v{vt}, v{vL}, 2, 2'); a(f'v_lshl_add_u32 v{vd}, v{vd}, {3 if natural else 2}, v{vt}')
    a(f'v_lshlrev_b32 v{vd}, 7, v{vd}')
    a(f'v_bfe_u32 v{vt}, v{vL}, 3, 1'); a(f'v_lshl_add_u32 v{vd}, v{vt}, 6, v{vd}')
    a(f'v_bfe_u32 v{vt}, v{vL}, 4, 1'); a(f'v_lshl_add_u32 v{vd}, v{vt}, 5, v{vd}')
    a(f'v_and_b32 v{vt}, 3, v{vL}'); a(f'v_lshl_add_u32 v{vd}, v{vt}, 3, v{vd}')

def full_pat(vd, vt, vt2, stride):
    a(f'v_lshrrev_b32 v{vt}, 3, v{vL}'); a(f'v_mul_u32_u24 v{vd}, {stride}, v{vt}')
    a(f'v_bfe_u32 v{vt}, v{vL}, 4, 1'); a(f'v_lshlrev_b32 v{vt}, 2, v{vt}'); a(f'v_and_b32 v{vt2}, 7, v{vL}'); a(f'v_xor_b32 v{vt}, v{vt}, v{vt2}')
    a(f'v_lshl_add_u32 v{vd}, v{vt}, 4, v{vd}')

def mfma(d, A, B, first=False): return f'v_mfma_f32_32x32x16_bf16 {vr(d,16)}, {vr(A,4)}, {vr(B,4)}, ' + ('0' if first else vr(d, 16))
def mfma16(d, A, B, first=False): return f'v_mfma_f32_16x16x32_bf16 {vr(d,4)}, {vr(A,4)}, {vr(B,4)}, ' + ('0' if first else vr(d, 4))

def silu_ops(b, tmp, n, sNeg):
    o = []
    for g in range(0, n, 4):
        ks = range(g, g + 4)
        o += [f'v_mul_f32 v{tmp+k}, s{sNeg}, v{b+k}' for k in ks]
        o += [f'v_exp_f32 v{tmp+k}, v{tmp+k}' for k in ks]
        o += [f'v_add_f32 v{tmp+k}, 1.0, v{tmp+k}' for k in ks]
        o += [f'v_rcp_f32 v{tmp+k}, v{tmp+k}' for k in ks]
        o += [f'v_mul_f32 v{b+k}, v{tmp+k}, v{b+k}' for k in ks]
    return o

K = NAME + '_kernel'
a.raw(f'.globl {K}'); a.raw('.p2align 8'); a.raw(f'.type {K},@function'); a.label(K)
a('s_cmp_ge_u32 s2, 256'); a('s_cbranch_scc1 L_end')
a('s_load_dwordx16 s[4:19], s[0:1], 0'); a('s_load_dwordx2 s[20:21], s[0:1], 64')
st.start()
a(f'v_readfirstlane_b32 s{t1}, v0')
if OPT['cp']: a('s_getpc_b64 s[92:93]'); a.label('L_pc0')
a(f's_lshr_b32 s{t2}, s2, 3')
if OPT['cp']:
    a(f's_lshl_b32 s{t0}, s{t2}, 9'); a(f's_add_u32 s{t0}, s{t0}, s{t1}'); a(f's_mul_i32 s{t0}, s{t0}, 5'); a(f's_lshr_b32 s{t0}, s{t0}, 1'); a(f's_min_u32 s{t0}, s{t0}, L_end-L_pc0-132')
    a(f's_load_dword s91, s[92:93], s{t0}'); a(f's_load_dword s90, s[92:93], s{t0} offset:128')
a(f'v_and_b32 v{vL}, 63, v0'); a(f'v_lshlrev_b32 v{vL16}, 4, v{vL}')
a(f's_and_b32 s{t0}, s2, 7')
a(f's_lshr_b32 s{t1}, s{t1}, 6'); a(f's_and_b32 s{sI}, s{t1}, 3')
a(f's_and_b32 s{sHD}, s{t2}, 1'); a(f's_lshl1_add_u32 s{sHD}, s{t0}, s{sHD}'); a(f's_lshr_b32 s{sRBA}, s{t2}, 1')
a(f's_sub_u32 s{t3}, s{t2}, 4'); a('s_cbranch_scc1 L_helper'); a(f's_lshr_b32 s{sCB}, s{t3}, 2'); a(f's_and_b32 s{t3}, s{t3}, 3')
a(f's_lshl2_add_u32 s{sTB}, s{t0}, s{t3}')
a(f's_lshr_b32 s{sRB}, s{t0}, 1'); a(f's_lshl2_add_u32 s{sRB}, s{sRB}, s{t3}')
a(f's_and_b32 s{sJ}, s{t0}, 1'); a(f's_mul_i32 s{sJ}, s{sJ}, 7'); a(f's_add_u32 s{sJ}, s{sJ}, s{sCB}')
if OPT['rot']:
    a(f's_lshl1_add_u32 s{sROT}, s{t3}, s{sCB}'); a(f's_sub_u32 s{t3}, s{sROT}, 7'); a(f's_min_u32 s{sROT}, s{sROT}, s{t3}')
else: a(f's_mov_b32 s{sROT}, 0')
vXd, vQd, vWd = 240, 244, 30
a(f's_lshl_b32 s{t0}, s{sRB}, 7'); a(f's_lshl_b32 s{t3}, s{sI}, 5'); a(f's_add_u32 s{t0}, s{t0}, s{t3}')
a(f'v_lshrrev_b32 v9, 3, v{vL}'); a(f'v_add_u32 v10, s{t0}, v9'); a(f'v_mul_u32_u24 v{vXd}, 896, v10')
a(f'v_lshrrev_b32 v10, 4, v{vL}'); a(f'v_and_b32 v11, 7, v{vL}'); a('v_xor_b32 v12, v10, v11'); a(f'v_lshl_add_u32 v{vXd}, v12, 4, v{vXd}')
a(f'v_xor_b32 v{vXd+1}, 64, v{vXd}'); a(f'v_add_u32 v{vXd+2}, {2*6144}, v{vXd}'); a(f'v_add_u32 v{vXd+3}, {3*6144}, v{vXd+1}'); a(f'v_add_u32 v{vXd+1}, 6144, v{vXd+1}')
a('v_and_b32 v10, 1, v10'); a('v_lshlrev_b32 v10, 2, v10'); a('v_xor_b32 v10, v10, v11'); a('v_lshlrev_b32 v10, 4, v10')
a(f's_lshl_b32 s{t3}, s{sI}, 4'); a(f'v_add_u32 v9, s{t3}, v9')
a(f's_mul_i32 s{t0}, s{sJ}, 192'); a(f's_and_b32 s{t0}, s{t0}, 0xffffff80'); a(f's_add_u32 s{t0}, s{t0}, 1024'); a(f'v_mul_u32_u24 v{vQd}, 2688, v9'); a(f'v_add3_u32 v{vQd}, v{vQd}, v10, s{t0}')
a(f'v_add_u32 v{vQd+1}, {128-1024}, v{vQd}'); a(f'v_add_u32 v{vQd+2}, {8*2688-2048}, v{vQd}'); a(f'v_add_u32 v{vQd+3}, {8*2688+128-3072}, v{vQd}')
sMx, sMw = 48, 49
a(f's_lshl_b32 s{sMx}, s{sI}, 12')
a(f's_mov_b32 s{SA+2}, {XBYTES}'); a(f's_mov_b32 s{SA+3}, 0x20000'); a(f's_mov_b32 s{SB+2}, {448*2688 + 1024}'); a(f's_mov_b32 s{SB+3}, 0x20000')
def late_decode():
    a(f's_mov_b32 s{sW}, s{t1}'); a(f's_mov_b32 s{sIDX}, s{t2}')
    a(f's_and_b32 s{SWS+1}, s{SWS+1}, 0xffff'); a(f's_mov_b32 s{SWS+2}, {WS_USED}'); a(f's_mov_b32 s{SWS+3}, 0x20000')
def srd_x(): a(f's_mov_b32 s{SA}, s{pX}'); a(f's_and_b32 s{SA+1}, s{pX+1}, 0xffff')
def srd_wq():
    a(f's_sub_u32 s{SB}, s{pWQ}, 1024'); a(f's_subb_u32 s{SB+1}, s{pWQ+1}, 0'); a(f's_and_b32 s{SB+1}, s{SB+1}, 0xffff')
def x_dma(p):
    return [([f's_add_u32 m0, s{sMx}, {SL(p)}', f's_lshl_b32 s{t0}, s{50+p}, 7'] if i == 0 else []) +
            [('vm', f'p{p}', f'buffer_load_dwordx4 v{vXd+i}, {R4(SA)}, s{t0} offen offset:{i*1024} lds')] for i in range(4)]
def wq_dma(p):
    return [([f's_add_u32 m0, s{sMx}, {SL(p) + 16384}', f's_mul_i32 s{t0}, s{50+p}, {64*2688}'] if i == 0 else []) +
            [('vm', f'p{p}', f'buffer_load_dwordx4 v{vQd+i}, {R4(SB)}, s{t0} offen offset:{i*1024} lds')] for i in range(4)]
def w1_dma(L, q):
    return [[f's_add_u32 m0, s{sMw}, {W1P(L, q)}', f's_mul_i32 s{t0}, s{50+q}, {64*3584}'] + ([f's_add_u32 s{t0}, s{t0}, 128'] if L else []) +
            [('vm', f'l{L}', f'buffer_load_dwordx4 v{vWd}, {R4(SC)}, s{t0} offen lds')],
            [('vm', f'l{L}', f'buffer_load_dwordx4 v{vWd+1}, {R4(SC)}, s{t0} offen offset:1024 lds')]]
a(f's_cmp_ge_u32 s{t1}, 4'); a('s_cbranch_scc1 L_B')
a(f's_mov_b32 m0, s{sMx}'); a(f's_lshl_b32 s{t0}, s{sROT}, 7'); a(f's_mul_i32 s{t3}, s{sROT}, {64*2688}')
a('s_waitcnt lgkmcnt(0)')
srd_x()
for i in range(4): a(f'buffer_load_dwordx4 v{vXd+i}, {R4(SA)}, s{t0} offen offset:{i*1024} lds')
a(f's_add_u32 m0, s{sMx}, 16384'); srd_wq()
for i in range(4): a(f'buffer_load_dwordx4 v{vQd+i}, {R4(SB)}, s{t3} offen offset:{i*1024} lds')
late_decode()
st.init(60); st.mark(48)
a('s_branch L_A')
HELPER_AT = len(a.items)

vXa = 12
vT = 16
vNm, vR = 18, 20
vK1, vIr = 22, 23
vCa = 9
vWF = 32
vSel = 56
vAcc = 64
vCs = 96; vTm = 112; vCs2 = 240; vCs3 = 32
vX = 128
sQo, sHo, sFl = 57, 58, 59

def common_setup(role):
    a(f's_lshl_b32 s{t0}, s{sJ}, 8'); a(f'v_mul_u32_u24 v{vWd}, 3584, v9'); a(f'v_add3_u32 v{vWd}, v{vWd}, v10, s{t0}'); a(f'v_add_u32 v{vWd+1}, {8*3584-1024}, v{vWd}')
    a(f's_lshl_b32 s{sMw}, s{sI}, 11')
    for p in range(0, 7):
        a(f's_add_u32 s{50+p}, s{sROT}, {p}'); a(f's_sub_u32 s{t3}, s{50+p}, 7'); a(f's_min_u32 s{50+p}, s{50+p}, s{t3}')
    srd(SC, pW1, 448 * 3584)
    a(f'v_mov_b32 v{vZ}, 0'); a(f'v_mov_b32 v{vSy}, {SYNC}')
    a(f'v_and_b32 v10, 31, v{vL}'); a(f'v_lshlrev_b32 v{vXa}, 7, v10'); a(f'v_bfe_u32 v10, v{vL}, 1, 3'); a(f'v_lshrrev_b32 v11, 5, v{vL}')
    a('v_xor_b32 v10, v10, v11'); a(f'v_lshl_add_u32 v{vXa}, v10, 4, v{vXa}'); a(f'v_add_u32 v{vXa}, s{sMx}, v{vXa}')
    for s in range(1, 4): a(f'v_xor_b32 v{vXa+s}, {32*s}, v{vXa}')
    a(f'v_lshlrev_b32 v{vCa}, 4, v11'); a(f'v_add_u32 v{vCa}, {CS}, v{vCa}')
    tr_base(24, 10, True)
    a(f'v_lshl_add_u32 v27, v11, 10, v24')
    a(f's_and_b32 s{t0}, s{sJ}, 1')
    for k in range(2):
        if role == 'A': a(f's_add_u32 s{t1}, s{t0}, {k}')
        elif k == 0: a(f's_add_u32 s{t1}, s{t0}, 2')
        else: a(f's_min_u32 s{t1}, s{sI}, 2'); a(f's_add_u32 s{t1}, s{t1}, s{t0}')
        a(f's_and_b32 s{t2}, s{t1}, 1'); a(f's_lshl_b32 s{t2}, s{t2}, 6'); a(f's_lshr_b32 s{t1}, s{t1}, 1'); a(f's_lshl_b32 s{t1}, s{t1}, 10'); a(f's_add_u32 s{t1}, s{t1}, 16384')
        a(f'v_xor_b32 v{vT+k}, s{t2}, v27'); a(f'v_add_u32 v{vT+k}, s{t1}, v{vT+k}')
    a(f'v_and_b32 v10, 15, v{vL}'); a(f'v_bfe_u32 v11, v{vL}, 4, 1'); a('v_cmp_eq_u32 vcc, v10, v11'); a('v_mov_b32 v10, 0x3f803f80')
    for k in range(4 if role == 'B' else 0): a(f'v_cndmask_b32 v{vSel+k}, 0, v10, vcc')
    r = 0 if role == 'A' else 1
    a(f's_lshl2_add_u32 s{t0}, s{sRB}, s{sI}')
    a(f's_mul_i32 s{sQo}, s{t0}, 84'); a(f's_mul_i32 s{t1}, s{sJ}, 6'); a(f's_add_u32 s{sQo}, s{sQo}, s{t1}'); a(f's_add_u32 s{sQo}, s{sQo}, {4*r}'); a(f's_lshl_b32 s{sQo}, s{sQo}, 10')
    a(f's_mul_i32 s{sHo}, s{t0}, 112'); a(f's_lshl3_add_u32 s{sHo}, s{sJ}, s{sHo}'); a(f's_lshl_b32 s{sHo}, s{sHo}, 10'); a(f's_add_u32 s{sHo}, s{sHo}, {HF + 2048*(1-r)}')
    a(f's_mul_i32 s{sFl}, s{t0}, 14'); a(f's_add_u32 s{sFl}, s{sFl}, s{sJ}'); a(f's_lshl_b32 s{sFl}, s{sFl}, {FSH+1}'); a(f's_add_u32 s{sFl}, s{sFl}, {FLAGS + (r << FSH)}')

sOK = 19
def cs_load(role):
    hf = 1 if role == 'A' else 0
    a(f's_lshl_b32 s{t0}, s{sJ}, 10'); a(f's_add_u32 s{t0}, s{t0}, {CSG + hf*128}'); a(f's_mov_b32 m0, {CS + 384 + hf*256}')
    a(f'v_lshrrev_b32 v10, 5, v{vL}'); a('v_lshlrev_b32 v10, 7, v10'); a(f'v_and_b32 v11, 31, v{vL}'); a('v_add_lshl_u32 v10, v10, v11, 2')
    a(f'buffer_load_dword v10, {S}, s{t0} offen sc1 lds')
def cs_try(role):
    E = lab('cst')
    T(('wvm', 'cf')); a(f'v_cmp_ne_u64 vcc, s[{sN}:{sN+1}], v[28:29]'); a(f's_mov_b32 s{sOK}, vcc_lo'); a(f's_cbranch_vccnz {E}')
    cs_load(role)
    a.label(E)
def cs_late(role):
    E = lab('csl')
    a(f's_cmp_eq_u32 s{sOK}, 0'); a(f's_cbranch_scc1 {E}')
    a(f's_lshl_b32 s{t1}, s{sJ}, 10'); a(f's_add_u32 s{t1}, s{t1}, {CSG}')
    keep = list(T.vm)
    poll(25, f's{t1}', 2, 256, 28)
    cs_load(role); a('s_waitcnt vmcnt(0)')
    T.vm = keep
    a.label(E)
    hf = 1 if role == 'A' else 0
    for L in range(2):
        for g in range(4): T(('ds', f'hc{L}', f'ds_read_b128 {vr((vCs2, vCs)[L]+4*g,4)}, v{vCa} offset:{384 + hf*256 + L*128 + g*32}'))
    T(('wds', 'hc0'))
def touch(k):
    n = 28 if k < 2 else 14
    a(f's_sub_u32 s{t1}, s{sIDX}, 4'); a(f's_lshl3_add_u32 s{t1}, s{t1}, s{sW}'); a(f's_mul_i32 s{t1}, s{t1}, {56 if k < 2 else 14}')
    if k == 1: a(f's_add_u32 s{t1}, s{t1}, 28')
    a(f'v_min_u32 v61, {n-1}, v{vL}'); a(f'v_add_lshl_u32 v61, v61, s{t1}, 7')
    p = pW2 if k < 2 else pWO
    T(('vm', 'pf', f'global_load_dword v{252+k}, v61, s[{p}:{p+1}]'))
def p1a(role):
    A_ = role == 'A'
    vS = vTm
    def xreads(p): return [('ds', f'x{p}', f'ds_read_b128 {vr(vX+16*p+4*s,4)}, v{vXa+s} offset:{SL(p) & 0xffff}') for s in range(4)]
    def wreads(n):
        p = n >> 2; s = n & 3; b = n % 3
        return [('ds', f'w{n}', f'ds_read_b64_tr_b16 {vr(vWF+8*b+4*t+2*q,2)}, v{vT+t} offset:{(SL(p) & 0xffff) + s*4096 + q*512}') for t in range(2) for q in range(2)]
    def hop(p):
        d = (SL(p) & ~0xffff) - (SL(p - 1) & ~0xffff)
        if d == 0: return []
        op = 'v_add_u32' if d > 0 else 'v_subrev_u32'
        return [f'{op} v{v}, {abs(d)}, v{v}' for v in (vXa, vXa+1, vXa+2, vXa+3, vT, vT+1)]
    VS = OPT['vs']
    if VS or not A_:
        for r in range(4): a(f'v_mov_b32 v{vS+r}, 0')
        a(f'v_mov_b32 v{vS+4}, 0x3f803f80')
    def stats(p):
        ds = range(0, OPT['sa']) if A_ else range(OPT['sa'], 16)
        o = []
        for i, d in enumerate(ds):
            r = vX + 16*p + d; t = vS + 6 + 2*(i & 3)
            o.append([f'v_lshlrev_b32 v{t}, 16, v{r}', f'v_and_b32 v{t+1}, 0xffff0000, v{r}', f'v_add_f32 v{vS}, v{vS}, v{t}', f'v_add_f32 v{vS+1}, v{vS+1}, v{t+1}',
                      f'v_fmac_f32 v{vS+2}, v{t}, v{t}', f'v_fmac_f32 v{vS+3}, v{t+1}, v{t+1}'])
        res = []
        for i in range(0, len(o), 2):
            g = o[i:i+2]
            res += [x[0] for x in g] + [x[1] for x in g]
            for x in g: res += [x[2], x[4], x[3], x[5]]
        return res
    plan = {}
    for p in range(5): plan[p] = x_dma(p + 2) if A_ else wq_dma(p + 2)
    plan[5] = []; plan[6] = []
    PL = {0: ([(1,0,0),(2,0,2),(3,0,4),(4,0,6),(5,1,0),(5,1,2),(6,1,4),(6,1,6)], [(2,0,1),(3,0,3),(4,0,5),(5,1,1),(5,1,3),(6,1,5)]),
          1: ([(2,0,0),(3,0,1),(4,0,2),(5,0,3),(5,0,5),(5,1,0),(6,1,2),(6,1,4),(6,1,6)], [(5,0,4),(5,0,6),(6,1,1),(6,1,3),(6,1,5)]),
          2: ([(1,0,0),(2,0,1),(3,0,2),(4,0,3),(5,0,4),(5,0,6),(5,1,0),(6,1,2),(6,1,4),(6,1,5),(6,1,6)], [(5,0,5),(5,1,1),(6,1,3)]),
          3: ([(4,0,0),(5,0,1),(5,0,3),(5,0,5),(6,1,0),(6,1,2),(6,1,4),(6,1,6)], [(5,0,2),(5,0,4),(5,0,6),(6,1,1),(6,1,3),(6,1,5)])}[OPT['pl']]
    for p, L, q in PL[0 if A_ else 1]: plan[p] += w1_dma(L, q)
    st.mark(2); T(('w', 'p0', '*')); st.mark(3); a('s_barrier'); st.mark(4)
    xr = xreads(0)
    T(xr[:1] + wreads(0) + xr[1:2] + wreads(1) + xr[2:])
    for n in range(28):
        p = n >> 2; s = n & 3; b = n % 3
        ms = [[mfma(vAcc, vWF+8*b, vX+4*n, n == 0)], [mfma(vAcc+16, vWF+8*b+4, vX+4*n, n == 0) if A_ else mfma16(vAcc+16, vWF+8*b+4, vSel, n == 0)]]
        fill = []
        if s == 2 and p < 6:
            T(('w', f'p{p+1}', '*'))
            if p in (1, 4): st.mark(5 + p)
            a('s_barrier')
            if p in (1, 4): st.mark(6 + p)
            T(hop(p + 1))
            fill = xreads(p + 1)[:2] + wreads(n + 2)
        else:
            T(('wds', f'w{n}'))
            if s == 3 and p < 6: fill = xreads(p + 1)[2:]
            if n + 2 < 28: fill = fill + wreads(n + 2)
        ip, slot = (p + 1, s - 2) if s >= 2 else (p, s + 2)
        if ip <= 6:
            u = plan[ip]; k = len(u)
            if ip == 0: lo, hi = (slot - 2) * k // 2, (slot - 1) * k // 2
            else: lo, hi = (slot * k + 3) // 4, ((slot + 1) * k + 3) // 4
            for x in u[lo:hi]: fill += x
        if VS:
            so = stats(p); L = len(so)
            if p < 6: part = {1: so[:L//3], 2: so[L//3:2*L//3]}.get(s, [])
            else: part = {1: so[:L//2], 2: so[L//2:]}.get(s, [])
            if s == 0 and p > 0: pr = stats(p - 1); part = pr[2*len(pr)//3:]
            fill += part
        T(weave(ms, fill))
        if not VS and not A_ and s == 1:
            if p == 0: T(('wds', 'x0'))
            for d in range(16):
                r = vX + 16*p + d
                a(f'v_dot2c_f32_bf16 v{vS + (d&1)}, v{r}, v{vS+4}'); a(f'v_dot2c_f32_bf16 v{vS + 2 + (d&1)}, v{r}, v{r}')
        for k, key in enumerate(('ta', 'tb', 'tc')):
            if n == OPT[key]: touch(k)
        if n == 26 and A_ and OPT['xe']: final_setup()
        if n == OPT.get('gon', 14): T(('vm', 'go', f'buffer_load_dwordx2 {vr(vN,2)}, v{vZ}, s[60:63], 0 offen sc1'))
        if n == OPT['cfs']:
            a(f's_lshl_b32 s{t1}, s{sJ}, 10'); a(f's_add_u32 s{t1}, s{t1}, {CSG}'); a(f'v_and_b32 v25, 1, v{vL}'); a('v_lshlrev_b32 v25, 9, v25')
            T(('vm', 'cf', f'buffer_load_dwordx2 v[28:29], v25, {S}, s{t1} offen offset:256 sc1'))
        if (VS or not A_) and n == 26:
            a(f'v_add_f32 v{vS}, v{vS}, v{vS+1}'); a(f'v_add_f32 v{vS+2}, v{vS+2}, v{vS+3}')
            a(f'v_mov_b32 v{vS+1}, v{vS}'); a(f'v_mov_b32 v{vS+3}, v{vS+2}')
            a(f'v_and_b32 v21, 31, v{vL}'); a(f's_lshl_b32 s{t1}, s{sI}, 8'); a(f's_add_u32 s{t1}, s{t1}, {STX}'); a(f'v_lshl_add_u32 v21, v21, 3, s{t1}')
            a(f'v_permlane32_swap_b32 v{vS}, v{vS+1}'); a(f'v_permlane32_swap_b32 v{vS+2}, v{vS+3}')
            a(f'v_add_f32 v{vNm}, v{vS}, v{vS+1}'); a(f'v_add_f32 v{vNm+1}, v{vS+2}, v{vS+3}')
            T(('ds', 'st', f'ds_write_b64 v21, {vr(vNm,2)} offset:{0 if A_ else 1024}'))
    if not A_:
        a(f's_min_u32 s{t0}, s{sI}, 2'); a(f's_lshl_b32 s{t0}, s{t0}, 7'); a(f's_add_u32 s{t0}, s{t0}, {CS}')
        a(f'v_and_b32 v10, 1, v{vL}'); a('v_lshlrev_b32 v10, 6, v10'); a(f'v_and_b32 v11, 48, v{vL}'); a(f'v_add3_u32 v10, v10, v11, s{t0}')
        a('s_mov_b32 exec_lo, 0x00030003'); a('s_mov_b32 exec_hi, 0x00030003')
        T(('ds', 'st', f'ds_write_b128 v10, {vr(vAcc+16,4)}'))
        a('s_mov_b64 exec, -1')
    T(('wvm', 'l0'))
    if not OPT['lc']: nonce_take(True); cs_try(role)
    if A_: a(f's_setprio {OPT.get("aq3", 3)}')
    T(('wds', '*')); st.mark(11); a('s_barrier'); st.mark(12)
    if A_ and OPT['ew'] == 0: a_early()
    if not VS and A_:
        a(f'v_and_b32 v21, 31, v{vL}'); a(f's_lshl_b32 s{t1}, s{sI}, 8'); a(f's_add_u32 s{t1}, s{t1}, {STX}'); a(f'v_lshl_add_u32 v21, v21, 3, s{t1}')
    if VS: T(('ds', 'st', f'ds_read_b64 v[22:23], v21 offset:{1024 if A_ else 0}'))
    elif A_: T(('ds', 'st', f'ds_read_b64 {vr(vNm,2)}, v21 offset:1024'))
    tiles = (0, 1) if A_ else (2,)
    for k, t in enumerate(tiles):
        for g in range(4): T(('ds', f'cs{k}', f'ds_read_b128 {vr(vCs+16*k+4*g,4)}, v{vCa} offset:{t*128 + g*32}'))
    E = [('wds', 'st')]
    if VS: E += [f'v_add_f32 v{vNm}, v{vNm}, v22', f'v_add_f32 v{vNm+1}, v{vNm+1}, v23']
    E += [f'v_mul_f32 v{vNm}, {f2u(-1.0/448):#x}, v{vNm}', f'v_mul_f32 v{vNm+1}, {f2u(1.0/448):#x}, v{vNm+1}',
          f'v_fma_f32 v{vNm+1}, -v{vNm}, v{vNm}, v{vNm+1}', f'v_max_f32 v{vNm+1}, 0, v{vNm+1}', f'v_add_f32 v{vNm+1}, {f2u(1e-5):#x}, v{vNm+1}',
          f'v_rsq_f32 v{vR}, v{vNm+1}', f'v_sqrt_f32 v{vIr}, v{vNm+1}', f'v_mov_b32 v{vNm+1}, v{vNm}', f'v_mul_f32 v{vK1}, {f2u(-LOG2E):#x}, v{vR}']
    for k, t in enumerate(tiles):
        E.append([f's_mul_i32 s{t0}, s{sJ}, 3', f's_cmp_lt_u32 s{t0}, {14 - t}', f's_cselect_b32 s{t0}, {f2u(28**-0.5*LOG2E):#x}, 1.0', f'v_mul_f32 v26, s{t0}, v{vR}'])
        b = vAcc + 16*k
        E.append(('wds', f'cs{k}'))
        if OPT['be']:
            for s_ in range(2):
                E += [f'v_fma_f32 v{b+j}, v{vCs+16*k+j}, v{vNm}, v{b+j}' for j in range(8*s_, 8*s_ + 8)]
                E += [f'v_mul_f32 v{b+j}, v26, v{b+j}' for j in range(8*s_, 8*s_ + 8)]
                E += [f'v_cvt_pk_bf16_f32 v{b+4*s_+j}, v{b+8*s_+2*j}, v{b+8*s_+2*j+1}' for j in range(4)]
                E.append(('vm', 'q', f'buffer_store_dwordx4 {vr(b+4*s_,4)}, v{vL16}, {S}, s{sQo} offen offset:{k*2048 + s_*1024} sc1'))
        else:
            E.append('v_mov_b32 v27, v26')
            E += [f'v_pk_fma_f32 {vr(b+j,2)}, {vr(vCs+16*k+j,2)}, {vr(vNm,2)}, {vr(b+j,2)}' for j in range(0, 16, 2)]
            E += [f'v_pk_mul_f32 {vr(b+j,2)}, {vr(b+j,2)}, v[26:27]' for j in range(0, 16, 2)]
            for s_ in range(2):
                E += [f'v_cvt_pk_bf16_f32 v{b+4*s_+j}, v{b+8*s_+2*j}, v{b+8*s_+2*j+1}' for j in range(4)]
                E.append(('vm', 'q', f'buffer_store_dwordx4 {vr(b+4*s_,4)}, v{vL16}, {S}, s{sQo} offen offset:{k*2048 + s_*1024} sc1'))
    def chk():
        if OPT['lc']: nonce_take(True); cs_try(role)
    if OPT['be'] and not A_:
        W = OPT['bw']; ex = {n: E[n*len(E)//W:(n+1)*len(E)//W] for n in range(W)}
        ex[W + 2] = [('call', chk)]
        return ex
    T(E)
    if not A_ and OPT['bc'] >= 0:
        st.mark(13)
        return {OPT['bc']: [('call', chk)]}
    if A_: T(('wvm', 'l1')); arrive(cL1)
    chk()
    st.mark(13)
    return {}

NR = 6; PD = 4
def h_tile(L, hf, acc, ex={}):
    def rd(n): return [('ds', f'u{n}', f'ds_read_b64_tr_b16 {vr(vWF+4*(n%NR)+2*q,2)}, v{vT+L} offset:{W1P(L, n>>2) - W1B[L] + (16*(n&3)+4*q)*128}') for q in range(2)]
    for n in range(PD): T(rd(n))
    for n in range(28):
        if n + PD < 28: T(rd(n + PD))
        if n & 1 == 0: T(('wds', f'u{n+1}'))
        a(mfma(acc, vWF + 4*(n % NR), vX + 4*n, n == 0))
        if n in ex: T(ex[n])
def h_epi_items(acc, k, vCs, mid=None):
    o = []
    for g in range(0, 16, 4):
        ks = range(g, g + 4)
        o += [f'v_fma_f32 v{acc+j}, v{vCs+j}, v{vNm}, v{acc+j}' for j in ks]
        o += [f'v_mul_f32 v{vTm+j}, v{vK1}, v{acc+j}' for j in ks]
        o += [f'v_exp_f32 v{vTm+j}, v{vTm+j}' for j in ks]
        o += [f'v_fma_f32 v{vTm+j}, v{vTm+j}, v{vIr}, v{vIr}' for j in ks]
        o += [f'v_rcp_f32 v{vTm+j}, v{vTm+j}' for j in ks]
        o += [f'v_mul_f32 v{acc+j}, v{vTm+j}, v{acc+j}' for j in ks]
        if g == 4 and mid: o += mid
        if g & 4:
            s = g >> 3
            o += [f'v_cvt_pk_bf16_f32 v{acc+4*s+j}, v{acc+8*s+2*j}, v{acc+8*s+2*j+1}' for j in range(4)]
            o.append(('vm', f'h{k}', f'buffer_store_dwordx4 {vr(acc+4*s,4)}, v{vL16}, {S}, s{sHo} offen offset:{s*1024} sc1'))
    if k == 0: o.append(f's_add_u32 s{sHo}, s{sHo}, 4096')
    return o
def h_epi(acc, k, vCs, mid=None): T(h_epi_items(acc, k, vCs, mid))
def spread(items, ex, lo, hi):
    w = weave([[('mark', n)] for n in range(lo, hi)], items); cur = None
    for it in w:
        if isinstance(it, tuple) and it[0] == 'mark': cur = it[1]; ex.setdefault(cur, []); pos = 0
        else: ex[cur].insert(pos, it); pos += 1
    return ex

sST0, sG0, sTQ, sT7, sCT, sTT, sTo, sKI, sFl2 = 82, 83, 84, 85, 86, 87, 88, 89, 90
vFl = 5; vQ = 32
def att_setup():
    a(f's_mul_i32 s{t0}, s{sHD}, 7'); a(f's_lshr_b32 s{sST0}, s{t0}, 2'); a(f's_and_b32 s{sG0}, s{t0}, 3')
    a(f's_lshl2_add_u32 s{sTQ}, s{sRBA}, s{sI}')
    a(f's_mul_i32 s{t0}, s{sI}, 3'); a(f's_lshl2_add_u32 s{t0}, s{sRBA}, s{t0}'); a(f's_sub_u32 s{sT7}, s{t0}, 8')
    a(f's_and_b32 s{sCT}, s{sI}, 1'); a(f's_lshr_b32 s{sTT}, s{sI}, 1'); a(f's_lshl1_add_u32 s{sTo}, s{sTB}, s{sTT}')
    a(f'v_min_u32 v10, 13, v{vL}')
    a(f'v_lshrrev_b32 v26, 2, v10'); a(f'v_add_u32 v26, s{sT7}, v26'); a('v_max_i32 v26, 0, v26')
    a(f'v_bfe_u32 v27, v10, 1, 1'); a('v_mul_u32_u24 v27, 28, v27'); a('v_add_u32 v27, 28, v27')
    a(f'v_cmp_le_u32 vcc, 12, v10'); a(f'v_mov_b32 v28, s{sTQ}')
    a('v_cndmask_b32 v26, v26, v28, vcc'); a(f'v_cndmask_b32 v27, v27, v{vZ}, vcc')
    a(f'v_and_b32 v28, 1, v10'); a('v_lshl_add_u32 v27, v28, 1, v27'); a(f'v_add_u32 v27, s{sST0}, v27')
    a('v_lshrrev_b32 v27, 1, v27'); a('v_min_u32 v27, 41, v27')
    a('v_mul_u32_u24 v28, 43, v27'); a('v_lshrrev_b32 v28, 7, v28')
    a('v_mul_u32_u24 v29, 3, v28'); a('v_sub_u32 v29, v27, v29'); a('v_lshrrev_b32 v29, 1, v29')
    a('v_mul_u32_u24 v26, 14, v26'); a('v_add_lshl_u32 v26, v26, v28, 1'); a(f'v_add_lshl_u32 v{vFl}, v26, v29, {FSH}')
    a(f'v_add_u32 v{vFl}, {FLAGS}, v{vFl}')
    assert all((x * 43) >> 7 == x // 3 for x in range(42))
    a(f'v_lshrrev_b32 v26, 5, v{vL}'); a('v_add_u32 v26, 2, v26'); a(f'v_add_u32 v27, {0x40000000 if OPT["tr"] else 0}, v{vL16}')
    a(f'v_cmp_gt_u32 vcc, s{sG0}, v26'); a(f'v_cndmask_b32 v3, v{vL16}, v27, vcc')
    a(f'v_cmp_lt_u32 vcc, s{sG0}, v26'); a(f'v_cndmask_b32 v4, v{vL16}, v27, vcc')
SBUF = 49152
vXo2 = 61; vXv = 56
def final_setup():
    a(f's_lshl3_add_u32 s{t0}, s{sTB}, s{sW}'); a(f's_lshl_b32 s{t0}, s{t0}, 3'); a(f'v_lshrrev_b32 v10, 3, v{vL}'); a(f'v_add_u32 v10, s{t0}, v10')
    a(f'v_mul_u32_u24 v{vXo2}, 896, v10'); a(f'v_and_b32 v10, 7, v{vL}'); a(f'v_lshl_add_u32 v{vXo2}, v10, 4, v{vXo2}')
    a(f's_lshl_b32 s{t0}, s{sCB}, 7'); a(f'v_add_u32 v{vXo2}, s{t0}, v{vXo2}')
    T(('vm', 'x', f'global_load_dwordx4 {vr(vXv,4)}, v{vXo2}, s[{pX}:{pX+1}]'))
def xaddr(vd):
    a(f'v_lshrrev_b32 v10, 5, v{vL}'); a(f'v_and_b32 v11, 7, v{vL}'); a('v_xor_b32 v10, v10, v11'); a(f'v_lshlrev_b32 v{vd}, 8, v11'); a(f'v_lshl_add_u32 v{vd}, v10, 4, v{vd}')
def final_stage():
    vA0, vA1, vB0, vB1 = 12, 13, 14, 15
    srd(SC, pOUT, XBYTES)
    a(f'v_lshrrev_b32 v10, 3, v{vL}'); a(f'v_and_b32 v11, 7, v{vL}'); a('v_lshlrev_b32 v11, 1, v11'); a('v_xor_b32 v11, v11, v10')
    a('v_lshlrev_b32 v10, 8, v10'); a('v_lshl_add_u32 v10, v11, 4, v10')
    a(f's_lshl_b32 s{t0}, s{sW}, 13'); a(f's_cmp_eq_u32 s{sW}, 6'); a(f's_cselect_b32 s{t0}, {slot_addr(6)}, s{t0}'); a(f's_cmp_eq_u32 s{sW}, 7'); a(f's_cselect_b32 s{t0}, {slot_addr(7)}, s{t0}')
    a(f'v_add_u32 v{vA0}, s{t0}, v10'); a(f'v_xor_b32 v{vA1}, 16, v{vA0}')
    a(f's_lshl_b32 s{t0}, s{sW}, 11'); a(f's_add_u32 s{t0}, s{t0}, {SBUF}'); a(f'v_add_u32 v{vB0}, s{t0}, v10'); a(f'v_xor_b32 v{vB1}, 16, v{vB0}')
    a(f's_mov_b32 s52, {f2u(-LOG2E):#x}'); a('s_mov_b32 s53, s52')
    T(('wvm', 'x'))
    vXu = 200
    for j in range(4): a(f'v_lshlrev_b32 v{vXu+2*j}, 16, v{vXv+j}'); a(f'v_and_b32 v{vXu+2*j+1}, 0xffff0000, v{vXv+j}')
    T(('wds', '*'))
    st.mark(35)
    a('s_barrier')
    st.mark(36)
    vF = 144; vS_ = 176
    for kq in range(4):
        for e in range(2): T(('ds', f'f{kq}', f'ds_read_b128 {vr(vF+8*kq+4*e,4)}, v{vA0+e} offset:{kq*2048}'))
    for kh in range(2):
        for e in range(2): T(('ds', 's', f'ds_read_b128 {vr(vS_+8*kh+4*e,4)}, v{vB0+e} offset:{kh*16384}'))
    T(('wds', 'f1'))
    for j in range(0, 8, 2): a(f'v_pk_add_f32 {vr(vF+j,2)}, {vr(vF+j,2)}, {vr(vF+8+j,2)}')
    T(('wds', 'f3'))
    for j in range(0, 8, 2): a(f'v_pk_add_f32 {vr(vF+16+j,2)}, {vr(vF+16+j,2)}, {vr(vF+24+j,2)}')
    for j in range(0, 8, 2): a(f'v_pk_add_f32 {vr(vF+j,2)}, {vr(vF+j,2)}, {vr(vF+16+j,2)}')
    if OPT['fpk']:
        for j in range(0, 8, 2): a(f'v_pk_mul_f32 {vr(192+j,2)}, {vr(vF+j,2)}, s[52:53]')
        for j in range(8): a(f'v_exp_f32 v{192+j}, v{192+j}')
        T(('wds', '*'))
        for j in range(0, 8, 2): a(f'v_pk_add_f32 {vr(vS_+j,2)}, {vr(vS_+j,2)}, {vr(vS_+8+j,2)}')
        for j in range(0, 8, 2): a(f'v_pk_add_f32 {vr(192+j,2)}, {vr(192+j,2)}, 1.0 op_sel_hi:[1,0]')
        for j in range(8): a(f'v_rcp_f32 v{192+j}, v{192+j}')
        for j in range(0, 8, 2): a(f'v_pk_mul_f32 {vr(vS_+j,2)}, {vr(vS_+j,2)}, {vr(vF+j,2)}')
        for j in range(0, 8, 2): a(f'v_pk_fma_f32 {vr(vF+j,2)}, {vr(vS_+j,2)}, {vr(192+j,2)}, {vr(vXu+j,2)}')
    else: T(silu_ops(vF, 192, 8, 52))
    if not OPT['fpk']:
        T(('wds', '*'))
        for j in range(0, 8, 2): a(f'v_pk_add_f32 {vr(vS_+j,2)}, {vr(vS_+j,2)}, {vr(vS_+8+j,2)}')
        for j in range(0, 8, 2): a(f'v_pk_fma_f32 {vr(vF+j,2)}, {vr(vS_+j,2)}, {vr(vF+j,2)}, {vr(vXu+j,2)}')
    for j in range(4): a(f'v_cvt_pk_bf16_f32 v{vXv+j}, v{vF+2*j}, v{vF+2*j+1}')
    a(f'buffer_store_dwordx4 {vr(vXv,4)}, v{vXo2}, {R4(SC)}, 0 offen' + ('', ' sc1', ' sc0 sc1', ' nt', ' sc1 nt', ' sc0 sc1 nt')[OPT['osc']])
    st.mark(37)
    st.flush(SWS, STAMP, sW, vL)
def final_a():
    arrive(24)
    srd(SC, pOUT, XBYTES)
    a(f'v_lshrrev_b32 v10, 3, v{vL}'); a(f'v_and_b32 v9, 7, v{vL}'); a('v_lshlrev_b32 v9, 1, v9'); a('v_xor_b32 v9, v9, v10')
    a('v_lshlrev_b32 v10, 8, v10'); a('v_lshl_add_u32 v10, v9, 4, v10')
    a(f's_lshl_b32 s{t0}, s{sI}, 13'); a(f'v_add_u32 v12, s{t0}, v10'); a('v_xor_b32 v13, 16, v12')
    a(f's_add_u32 s{t0}, s{t0}, 32768'); a(f's_cmp_eq_u32 s{sI}, 2'); a(f's_cselect_b32 s{t0}, {slot_addr(6)}, s{t0}'); a(f's_cmp_eq_u32 s{sI}, 3'); a(f's_cselect_b32 s{t0}, {slot_addr(7)}, s{t0}')
    a(f'v_add_u32 v14, s{t0}, v10'); a('v_xor_b32 v15, 16, v14')
    a(f's_add_u32 s{t0}, s{sRg}, {SBUF}'); a(f'v_add_u32 v24, s{t0}, v10'); a('v_xor_b32 v25, 16, v24')
    a(f's_mov_b32 s52, {f2u(-LOG2E):#x}'); a(f's_movk_i32 s53, {32*896}')
    vXu = 224; vF = 128; vS_ = 192
    for u, xv in enumerate((vXv, 48)):
        for j in range(4): a(f'v_lshlrev_b32 v{vXu+8*u+2*j}, 16, v{xv+j}'); a(f'v_and_b32 v{vXu+8*u+2*j+1}, 0xffff0000, v{xv+j}')
    st.mark(33)
    spin(24, 4)
    st.mark(34)
    for u in range(2):
        for kq in range(4):
            for e in range(2): T(('ds', f'f{u}{kq}', f'ds_read_b128 {vr(vF+16*kq+8*u+4*e,4)}, v{12+2*u+e} offset:{kq*2048}'))
    for u in range(2):
        b = vF + 8*u
        T(('wds', f'f{u}1'))
        for j in range(8): a(f'v_add_f32 v{b+j}, v{b+j}, v{b+16+j}')
        T(('wds', f'f{u}3'))
        for j in range(8): a(f'v_add_f32 v{b+32+j}, v{b+32+j}, v{b+48+j}')
        for j in range(8): a(f'v_add_f32 v{b+j}, v{b+j}, v{b+32+j}')
        T(silu_ops(b, 240, 8, 52))
    st.mark(35)
    a('s_barrier')
    st.mark(36)
    for u in range(2):
        for kh in range(2):
            for e in range(2): T(('ds', f's{u}', f'ds_read_b128 {vr(vS_+16*u+8*kh+4*e,4)}, v{24+e} offset:{kh*16384 + u*8192}'))
    for u in range(2):
        b = vF + 8*u; c = vS_ + 16*u; xv = (vXv, 48)[u]
        T(('wds', f's{u}'))
        for j in range(0, 8, 2): a(f'v_pk_add_f32 {vr(c+j,2)}, {vr(c+j,2)}, {vr(c+8+j,2)}')
        for j in range(0, 8, 2): a(f'v_pk_fma_f32 {vr(b+j,2)}, {vr(c+j,2)}, {vr(b+j,2)}, {vr(vXu+8*u+j,2)}')
        for j in range(4): a(f'v_cvt_pk_bf16_f32 v{xv+j}, v{b+2*j}, v{b+2*j+1}')
        a(f'buffer_store_dwordx4 {vr(xv,4)}, v{vXo2}, {R4(SC)}, {("0", "s53")[u]} offen' + ('', ' sc1', ' sc0 sc1', ' nt', ' sc1 nt', ' sc0 sc1 nt')[OPT['osc']])
    st.mark(37)
    st.flush(SWS, STAMP, sW, vL)
vWo, vT0, vT1, vU0, vU1, vFa, vH0 = 3, 5, 6, 12, 13, 14, 30
sRg, sTab = 49, 66
fAcc = 64; vHr = 128; RH = OPT['rh']; vSB = 32; NS = 10; NRES = OPT['nres']
def wreg(k): return 248 - 8*k
assert vHr + 8*RH <= 256 - 8*NRES
slots = [0, 1, 2, 3, 6, 7, 8, 9, 4, 5]
if OPT['ro']: lorder = list(range(NS, NS + NRES)) + list(range(NS)) + list(range(NS + NRES, 28))
else: lorder = list(range(28))
lidx = {n: i for i, n in enumerate(lorder)}
def wdma(k):
    n = lorder[k]
    return [f's_add_u32 m0, s{sRg}, {slot_addr(slots[k % NS])}', f's_mul_i32 s{t1}, s{sTab + n % 14}, 14'] + ([f's_add_u32 s{t1}, s{t1}, {64*896}'] if n >= 14 else []) + [
            ('vm', f'W{k}', f'buffer_load_dwordx4 v{vWo}, {R4(SA)}, s{t1} offen lds'),
            ('vm', f'W{k}', f'buffer_load_dwordx4 v{vWo+1}, {R4(SA)}, s{t1} offen offset:1024 lds')]
def wread(k, dst):
    slot = slots[k % NS]
    vs, off = ((vT0, vT1), slot*8192) if slot < 6 else ((vU0, vU1), slot_addr(slot) - RA2)
    return [('ds', f'R{k}', f'ds_read_b64_tr_b16 {vr(dst+4*ct+2*q,2)}, v{vs[ct]} offset:{off + q*1024}') for ct in range(2) for q in range(2)]
NE = OPT['early']
def a_early():
    srd(SA, pW2, 1792 * 896)
    for k in range(NE): T(wdma(k))
a.label('L_A')
T.vm = ['p0'] * 8
common_setup('A')
full_pat(vWo, 10, 11, 896); a(f's_lshl_b32 s{t0}, s{sCB}, 7'); a(f'v_add_u32 v{vWo}, s{t0}, v{vWo}'); a(f'v_add_u32 v{vWo+1}, {8*896-1024}, v{vWo}')
a(f's_mul_i32 s{t0}, s{sI}, {14*1024}')
a(f's_mul_i32 s{t3}, s{sCB}, {OPT["rc"]*1024}'); a(f's_and_b32 s{t1}, s{sTB}, 3'); a(f's_mul_i32 s{t1}, s{t1}, {OPT["rt"]*1024}'); a(f's_add_u32 s{t3}, s{t3}, s{t1}')
a(f's_sub_u32 s{t1}, s{t3}, {14*1024}'); a(f's_min_u32 s{t3}, s{t3}, s{t1}')
for n in range(14):
    a(f's_add_u32 s{t1}, s{t0}, s{t3}'); a(f's_and_b32 s{t2}, s{t1}, 0xfffff000'); a(f's_add_u32 s{sTab+n}, s{t1}, s{t2}')
    if n < 13: a(f's_add_u32 s{t3}, s{t3}, 1024'); a(f's_cmp_eq_u32 s{t3}, {14*1024}'); a(f's_cselect_b32 s{t3}, 0, s{t3}')
srd(60, pDBG, 256)
a(f'v_and_b32 v10, 7, v{vL}'); a(f'v_lshl_add_u32 v10, v10, 2, v{vSy}'); a(f'ds_write_b32 v10, v{vZ}')
p1a('A')
a('s_setprio 0')
a(f'v_xor_b32 v24, 64, v24'); a(f'v_add_u32 v{vT}, {W1B[0]}, v24'); a(f'v_add_u32 v{vT+1}, {W1B[1]}, v24')
if OPT['ew'] == 1: a_early()
if OPT['ew'] == 2: srd(SA, pW2, 1792 * 896)
tr_base(10, 11, False); a(f'v_add_u32 v{vT0}, s{sRg}, v10')
a(f'v_xor_b32 v{vT1}, 64, v{vT0}'); a(f'v_add_u32 v{vU0}, {RA2}, v{vT0}'); a(f'v_xor_b32 v{vU1}, 64, v{vU0}')
a(f's_mul_i32 s{t0}, s{sTB}, {224*1024 if not OPT.get("fake") else 0}'); a(f's_add_u32 s{t0}, s{t0}, {HF}'); a(f'v_add_u32 v{vH0}, s{t0}, v{vL16}'); a(f'v_add_u32 v{vH0+1}, {112*1024}, v{vH0}')
a(f's_mul_i32 s{t0}, s{sI}, 7'); a(f's_lshr_b32 s{t0}, s{t0}, 1')
a(f'v_bfe_u32 v10, v{vL}, 1, 2'); a(f'v_add_u32 v10, s{t0}, v10')
a(f'v_bfe_u32 v{vFa}, v{vL}, 3, 1'); a(f's_lshl_b32 s{t0}, s{sTB}, 1'); a(f'v_add_u32 v{vFa}, s{t0}, v{vFa}'); a(f'v_mul_u32_u24 v{vFa}, 14, v{vFa}')
a(f'v_add_lshl_u32 v{vFa}, v{vFa}, v10, 1'); a(f'v_and_b32 v10, 1, v{vL}'); a(f'v_add_lshl_u32 v{vFa}, v{vFa}, v10, {FSH}'); a(f'v_add_u32 v{vFa}, {FLAGS + F1}, v{vFa}')
ex = {}
if OPT['ew'] == 1:
    final_setup()
    st.mark(14)
    T([('wvm', 'q')] + flag_store(0, sFl))
if OPT['ew'] == 2:
    ex[OPT['qa']] = [('wvm', 'q')] + flag_store(0, sFl)
    for k in range(NE):
        w = wdma(k); ex[OPT['qa'] + 2 + 3*k] = w[:-1]; ex[OPT['qa'] + 3 + 3*k] = w[-1:]
st.mark(16)
h_tile(0, 1, vAcc, ex)
st.mark(20)
arrive(cCS1)
if not OPT['ew']: T([('wvm', 'q')] + flag_store(0, sFl))
cs_late('A')
if not (OPT['wv'] & 2): h_epi(vAcc, 0, vCs2)
spin(cL1, 8)
f1 = [('wvm', 'h0')] + flag_store(F1, sFl)
ex = {} if (OPT['wv'] & 2) else {OPT['f0']: f1}
if NE == 5:
    spin(cCS1, 8)
    for k in range(5, 8):
        w = wdma(k)
        if OPT['w2w']: ex[OPT['w2w'] + 3*(k-5)] = w[:-1]; ex[OPT['w2w'] + 1 + 3*(k-5)] = w[-1:]
        else: T(w)
    NE = 8
if (OPT['wv'] & 2): spread(h_epi_items(vAcc, 0, vCs2), ex, 0, OPT['we'])
st.mark(21)
h_tile(1, 1, vAcc + 16, ex)
arrive(cAD)
a(f's_setprio {OPT["ap"]}')
st.mark(22)
h_epi(vAcc + 16, 1, vCs)
if (OPT['wv'] & 2): T(f1)
a(f's_setprio {OPT["ap2"]}')
st.mark(23)
spin(cAD, 8)
st.mark(40)
for k in range(NE, NS): T(wdma(k))
st.mark(41)
for k in range(NRES):
    T([('wvm', f'W{k}')] + wread(k, wreg(k)))
T(('wds', '*'))
st.mark(42)
def sample(off): return ([f'v_add_u32 v{vFa}, {F1}, v{vFa}'] if off == F2 else []) + [('vm', 'hf', f'buffer_load_dwordx2 v[28:29], v{vFa}, {S}, 0 offen sc1')]
if OPT['ew'] != 1 and not OPT['xe']: final_setup()
for k in range(NRES):
    if k == min(OPT['sp'], OPT.get('fp', 99)):
        st.mark(43); T([('wvm', 'h1')]); st.mark(44); T(flag_store(F2, sFl))
    if k == OPT['sp']:
        if OPT['fa']:
            a(f'v_add_u32 v10, {32*896}, v{vXo2}'); T(('vm', 'x2', f'global_load_dwordx4 v[48:51], v10, s[{pX}:{pX+1}]'))
        T(sample(F1)); st.mark(45)
    T(wdma(k + NS))
    if k == 4: st.mark(46)
def check(off):
    E = lab('hok')
    T(('wvm', 'hf')); a(f'v_cmp_ne_u64 vcc, s[{sN}:{sN+1}], v[28:29]'); a(f's_cbranch_vccz {E}')
    keep = list(T.vm)
    poll(vFa, '0', 16, 0, 28)
    T.vm = keep
    a.label(E)
if OPT['sp'] >= NRES:
    T(sample(F1))
    if OPT.get('fp', 99) >= NRES: T([('wvm', 'h1')] + flag_store(F2, sFl))
st.mark(24)
check(F1)
st.mark(26)
def hload(n):
    o = [f'v_add_u32 v{vH0}, 4096, v{vH0}', f'v_add_u32 v{vH0+1}, 4096, v{vH0+1}'] if n == 14 else []
    return o + [('vm', f'H{n}', f'buffer_load_dwordx4 {vr(vHr+8*(n%RH)+4*tt,4)}, v{vH0+tt}, {S}, s{sTab + n % 14} offen' + ('' if OPT.get('nosc') else ' sc1')) for tt in range(2)]
LA = RH - 1
for n in range(LA): T(hload(n))
def wsrc(n): return wreg(lidx[n]) if lidx[n] < NRES else vSB + 8*(n & 1)
if lidx[0] >= NRES: T([('wvm', f'W{lidx[0]}')] + wread(lidx[0], wsrc(0)))
TM = OPT.get('tm', 0)
for n in range(28 - TM):
    nx = n + 1
    if n + LA == 14: check(F2); st.mark(25)
    T(('w', f'H{n}', f'R{lidx[n]}'))
    if n in (0, 7, 14, 21): st.mark(27 + n // 7)
    rd = wread(lidx[nx], wsrc(nx)) if nx < 28 and lidx[nx] >= NRES else []
    if rd: T(('wvm', f'W{lidx[nx]}'))
    vm = []
    if n + LA < 28:
        h = hload(n + LA); vm += [h[:-1], h[-1:]]
    if lidx[n] >= NRES and lidx[n] + NS < 28:
        w = wdma(lidx[n] + NS); vm += [w[:-1], w[-1:]]
    if n + LA == 14 - OPT.get('sd', 3): vm.append([sample(F2)])
    ms = [mfma(fAcc + 16*(ct + 2*tt), wsrc(n) + 4*ct, vHr + 8*(n % RH) + 4*tt, n == 0) for tt in range(2) for ct in range(2)]
    for i in range(4):
        a(ms[i])
        T(rd[2*i:2*i+2])
        lo, hi = (i * len(vm) + 3) // 4, ((i + 1) * len(vm) + 3) // 4
        for u in vm[lo:hi]: T(u)
    if n == OPT['n1']: arrive(cCS0)
    if n == OPT['pa']: a('s_setprio 3')
    if OPT['sy']:
        pts = list(range(OPT['sy'] - 1, 21 - OPT['lag'], OPT['sy']))
        if n in pts: arrive(20)
        if n - OPT['lag'] in pts: spin(20, 4 * (pts.index(n - OPT['lag']) + 1))
    if n == 22:
        xaddr(16); a(f'v_add_u32 v16, s{sRg}, v16'); a(f'v_bfe_u32 v10, v{vL}, 3, 2')
        a(f'v_mov_b32 v11, {slot_addr(7)}'); a(f'v_mov_b32 v20, {slot_addr(6)}'); a('v_cmp_eq_u32 vcc, 2, v10'); a('v_cndmask_b32 v11, v11, v20, vcc')
        a('v_lshlrev_b32 v21, 13, v10'); a('v_add_u32 v20, 32768, v21'); a('v_cmp_gt_u32 vcc, 2, v10'); a('v_cndmask_b32 v11, v11, v20, vcc')
        a('v_add_u32 v20, v11, v16'); a('v_add_u32 v16, v21, v16')
        for q in range(1, 4): a(f'v_xor_b32 v{16+q}, {32*q}, v16'); a(f'v_xor_b32 v{20+q}, {32*q}, v20')
def pw(tt, ct): return [('ds', 'p', f'ds_write_b128 v{16+4*tt+q}, {vr(fAcc+16*(ct+2*tt)+4*q,4)} offset:{ct*128}') for q in range(4)]
if TM:
    last = list(range(28 - TM, 28)); src = {last[0]: wsrc(last[0])}
    for i, n in enumerate(last[1:]):
        src[n] = wreg(i); T([('wvm', f'W{lidx[n]}')] + wread(lidx[n], src[n]))
    tiles = [(tt, ct) for tt in range(2) for ct in range(2)]
    for ti, (tt, ct) in enumerate(tiles):
        g = []
        for n in last:
            pre = [('w', f'H{n}', f'R{lidx[n]}')] if ti == 0 else []
            g.append(pre + [mfma(fAcc + 16*(ct + 2*tt), src[n] + 4*ct, vHr + 8*(n % RH) + 4*tt)])
        T(weave(g, pw(*tiles[ti - 2]) if ti >= 2 else []))
    st.mark(31)
    T(pw(*tiles[2]) + pw(*tiles[3]))
else:
    st.mark(31)
    for tt in range(2):
        for ct in range(2): T(pw(tt, ct))
final_a() if OPT['fa'] else final_stage()
a('s_endpgm')

T.reset()
H0 = len(a.items)
a.label('L_helper')
a(f's_mov_b32 s{sTB}, 0'); a(f's_mov_b32 s{sFl}, 0')
a('s_waitcnt lgkmcnt(0)')
late_decode()
srd(60, pDBG, 256); srd(SA, pW1, 448 * 3584)
a(f'v_mov_b32 v{vZ}, 0')
a(f's_or_b32 s{t0}, s2, s{sW}'); a('s_cbranch_scc1 L_nononce')
a(f's_memrealtime s[{sN}:{sN+1}]'); a('s_waitcnt lgkmcnt(0)'); a(f's_or_b32 s{sN+1}, s{sN+1}, 0x80000000')
a(f'v_mov_b32 v{vN}, s{sN}'); a(f'v_mov_b32 v{vN+1}, s{sN+1}')
a('s_mov_b64 exec, 1'); a(f'buffer_store_dwordx2 {vr(vN,2)}, v{vZ}, s[60:63], 0 offen sc1'); a('s_mov_b64 exec, -1')
a.label('L_nononce')
a('s_getpc_b64 s[28:29]'); a.label('L_pc')
a(f's_sub_u32 s28, s28, L_pc-{K}'); a('s_subb_u32 s29, s29, 0')
a(f's_lshl3_add_u32 s{t3}, s{sIDX}, s{sW}')
a(f's_lshl_b32 s{t0}, s{t3}, 11'); a(f'v_and_b32 v4, 15, v{vL}'); a('v_lshlrev_b32 v4, 7, v4'); a(f'v_add_u32 v4, s{t0}, v4')
a(f'v_min_u32 v4, L_end-{K}, v4'); T(('vm', 'pc', 'global_load_dword v3, v4, s[28:29]'))
if OPT['tlb']:
    sh = OPT['tsh']; npg = WS_USED >> sh
    a(f's_lshl_b32 s{t0}, s{t3}, 6'); a(f'v_add_u32 v5, s{t0}, v{vL}') if npg > 64 else a(f'v_mov_b32 v5, v{vL}')
    a(f'v_lshlrev_b32 v5, {sh}, v5')
    T(('vm', 'tl', f'buffer_load_dword v12, v5, {S}, 0 offen'))
    for k, (p, sz) in enumerate(((pW2, 1792*896), (pWO, 448*896), (pOUT, XBYTES), (pW1, 448*3584))):
        srd(SC, p, sz); T(('vm', 'tl', f'buffer_load_dword v{13+k}, v5, {R4(SC)}, 0 offen'))
if OPT['hd'] >= 1: T(('wvm', '*'))
if OPT['hd'] == 2: nonce_take(False)
a(f's_min_u32 s{t2}, s2, 27'); a(f's_mul_i32 s{t0}, s{sW}, {56*3584}'); a(f's_lshl_b32 s{t1}, s{t2}, 7'); a(f's_add_u32 s{t0}, s{t0}, s{t1}')
a(f'v_lshrrev_b32 v9, 3, v{vL}'); a('v_mul_u32_u24 v9, 3584, v9'); a(f'v_and_b32 v10, 7, v{vL}'); a('v_lshl_add_u32 v9, v10, 4, v9')
for i in range(7):
    T(('vm', f'c{i}', f'buffer_load_dwordx4 {vr(64+4*i,4)}, v9, {R4(SA)}, s{t0} offen')); a(f's_add_u32 s{t0}, s{t0}, {8*3584}')
st.init(60)
a(f'v_mov_b32 v{vSy}, {SYNC}'); a(f'ds_write_b32 v{vSy}, v{vZ} offset:{cB}'); a('v_mov_b32 v5, 8'); a(f'ds_write_b32 v{vSy}, v5 offset:{cAD}')
for i in range(7):
    T(('wvm', f'c{i}'))
    if i == 2 and OPT['hd'] != 2: T(('vm', 'go', f'buffer_load_dwordx2 {vr(vN,2)}, v{vZ}, s[60:63], 0 offen sc1'))
    d0 = 16 if i == 0 else 24
    for d in range(4):
        a(f'v_lshlrev_b32 v{d0+2*d}, 16, v{64+4*i+d}'); a(f'v_and_b32 v{d0+1+2*d}, 0xffff0000, v{64+4*i+d}')
    if i:
        for d in range(4): a(f'v_pk_add_f32 {vr(16+2*d,2)}, {vr(16+2*d,2)}, {vr(24+2*d,2)}')
a(f's_lshl_b32 s{t0}, s{sW}, 11'); a(f'v_lshlrev_b32 v12, 5, v{vL}'); a(f'v_add_u32 v12, s{t0}, v12')
a('ds_write_b128 v12, v[16:19]'); a('ds_write_b128 v12, v[20:23] offset:16')
a('s_waitcnt lgkmcnt(0)'); a('s_barrier')
st.mark(2)
if OPT['hd'] != 2: nonce_take(True)
a(f's_cmp_lg_u32 s{sW}, 0'); a('s_cbranch_scc1 L_hcs_done'); a('s_cmp_ge_u32 s2, 28'); a('s_cbranch_scc1 L_hcs_done')
a('s_setprio 3')
a(f'v_lshlrev_b32 v12, 2, v{vL}')
for g in range(4):
    for k in range(8): a(f'ds_read2st64_b32 {vr(64+16*g+2*k,2)}, v12 offset0:{16*g+2*k} offset1:{16*g+2*k+1}')
    a('s_waitcnt lgkmcnt(0)')
for w in (32, 16, 8, 4, 2):
    for k in range(0, w, 2): a(f'v_pk_add_f32 {vr(64+k,2)}, {vr(64+k,2)}, {vr(64+w+k,2)}')
a('v_add_f32 v64, v64, v65')
a(f's_lshl_b32 s{t0}, s2, 9'); a(f's_add_u32 s48, s{t0}, {CSG}')
a(f'buffer_store_dword v64, v12, {S}, s48 offen sc1'); a('s_waitcnt vmcnt(0)')
T(flag_store(256, 48))
a('s_setprio 0')
st.mark(3)
a.label('L_hcs_done')
a('s_barrier')
if OPT['hm']:
    a(f's_cmp_lt_u32 s{sW}, 4'); a('s_cbranch_scc1 L_nohm')
    srd(SC, pW2, 1792 * 896); srd(SB, pWO, 448 * 896)
    a(f's_lshl2_add_u32 s{t3}, s2, s{sI}'); a(f's_mul_i32 s{t0}, s{t3}, {98*128}')
    a(f'v_min_u32 v4, 48, v{vL}'); a('v_lshlrev_b32 v4, 7, v4')
    a(f'buffer_load_dword v40, v4, {R4(SC)}, s{t0} offen'); a(f's_add_u32 s{t0}, s{t0}, {49*128}'); a(f'buffer_load_dword v41, v4, {R4(SC)}, s{t0} offen')
    a(f's_mul_i32 s{t0}, s{t3}, {25*128}'); a(f'v_min_u32 v4, 24, v{vL}'); a('v_lshlrev_b32 v4, 7, v4')
    a(f'buffer_load_dword v42, v4, {R4(SB)}, s{t0} offen')
    a.label('L_nohm')
a(f's_cmp_ge_u32 s{sW}, 4'); a('s_cbranch_scc1 L_helperB')
a(f's_lshl2_add_u32 s{t3}, s{sIDX}, s{sI}')
if OPT['hw']:
    srd(SA, pW2, 1792 * 896)
    a(f'v_min_u32 v4, 55, v{vL}'); a('v_lshlrev_b32 v4, 7, v4'); a(f'v_add_u32 v5, {56*128}, v4')
    for k in range(7):
        a(f's_add_u32 s{t0}, s{sIDX}, {4*k}'); a(f's_cmp_ge_u32 s{t0}, 14'); a(f's_cselect_b32 s{t1}, 14, 0'); a(f's_cselect_b32 s{t2}, 4, 0'); a(f's_sub_u32 s{t0}, s{t0}, s{t1}')
        a(f's_mul_i32 s{t1}, s{sI}, 14'); a(f's_add_u32 s{t0}, s{t0}, s{t1}'); a(f's_and_b32 s{t1}, s{t0}, 0xfc'); a(f's_add_u32 s{t0}, s{t0}, s{t1}'); a(f's_add_u32 s{t0}, s{t0}, s{t2}')
        a(f's_mul_i32 s{t0}, s{t0}, {16*896}')
        a(f'buffer_load_dword v{20+2*k}, v4, {R4(SA)}, s{t0} offen'); a(f'buffer_load_dword v{21+2*k}, v5, {R4(SA)}, s{t0} offen')
st.mark(4)
if OPT['hh']:
    a(f's_and_b32 s{t0}, s2, 7'); a(f's_lshr_b32 s{t1}, s{t3}, 1'); a(f's_lshl3_add_u32 s{t0}, s{t0}, s{t1}')
    a(f's_and_b32 s{t1}, s{t3}, 1'); a(f's_mul_i32 s{t1}, s{t1}, 7'); a(f's_mul_i32 s{t0}, s{t0}, 14'); a(f's_add_u32 s{t2}, s{t0}, s{t1}')
    a(f's_lshl_b32 s48, s{t2}, {FSH+1}'); a(f's_add_u32 s48, s48, {FLAGS}'); a(f'v_lshlrev_b32 v4, {FSH}, v{vL}')
    a(f's_lshl_b32 s49, s{t2}, 13'); a(f's_add_u32 s49, s49, {HF}')
    a(f'v_and_b32 v5, 31, v{vL}'); a('v_lshlrev_b32 v5, 7, v5'); a(f'v_lshrrev_b32 v6, 5, v{vL}'); a('v_lshl_add_u32 v6, v6, 15, v5')
    for ph in range(2):
        a(f's_add_u32 s48, s48, {F1}'); poll(4, 's48', 14, 0, 12, sleep=6)
        st.mark(5 + ph)
        for k in range(4):
            a(f's_add_u32 s{t0}, s49, {k*8192 + ph*4096}')
            a(f'buffer_load_dword v{40+4*ph+k}, v{6 if k < 3 else 5}, {S}, s{t0} offen sc1')
        if ph == 0 and OPT['hwo']:
            srd(SB, pWO, 448 * 896)
            a(f'v_min_u32 v9, 48, v{vL}'); a('v_lshlrev_b32 v9, 7, v9'); a(f's_mul_i32 s{t0}, s{t3}, {196*128}')
            for i in range(4):
                a(f'buffer_load_dword v{50+i}, v9, {R4(SB)}, s{t0} offen'); a(f's_add_u32 s{t0}, s{t0}, {49*128}')
st.flush(SWS, STAMP, sW, vL)
a('s_endpgm')
a.label('L_helperB')
if OPT['hs']:
    srd(SA, pWO, 448 * 896)
    a(f's_lshl2_add_u32 s{t3}, s{sIDX}, s{sI}'); a(f's_mul_i32 s{t0}, s{t3}, {196*128}'); a(f's_mov_b32 s{t1}, 14')
    a('s_sleep 20')
    a.label('L_hsl')
    for k in range(14): a(f's_buffer_load_dword s{64+k}, {R4(SA)}, s{t0} offset:{128*k}')
    a(f's_add_u32 s{t0}, s{t0}, {14*128}'); a(f's_sub_u32 s{t1}, s{t1}, 1'); a('s_waitcnt lgkmcnt(0)'); a(f's_cmp_lg_u32 s{t1}, 0'); a('s_cbranch_scc1 L_hsl')

att_setup()
a(f's_mov_b32 s{sKI}, 0')
poll(vFl, '0', 14, 0, 28, sleep=OPT['hsl'])
a('s_branch L_att')

H1 = len(a.items)
blk = a.items[H0:H1]; del a.items[H0:H1]; a.items[HELPER_AT:HELPER_AT] = blk
T.reset()
a.label('L_B')
a('s_waitcnt lgkmcnt(0)')
late_decode(); srd_x(); srd_wq(); st.init(60); st.mark(47)
a(f's_setprio {OPT["bp1"]}')
common_setup('B')
srd(60, pDBG, 256)
att_setup()
st.mark(48)
for u in x_dma(1) + wq_dma(1): T(u)
exB = p1a('B')
a('s_setprio 2')
a(f'v_add_u32 v{vT}, {W1B[0]}, v24'); a(f'v_add_u32 v{vT+1}, {W1B[1]}, v24')
h_tile(0, 0, vAcc + 16, exB)
arrive(cCS1)
T(('wvm', 'l1')); arrive(cL1)
st.mark(16)
if OPT['bq']:
    assert not OPT['lc'] and T.vm[-2:] == ['q', 'q']
    a('s_waitcnt vmcnt(2)'); T.vm = ['q', 'q']
    cs_late('B')
    qf = [('wvm', 'q')] + flag_store(0, sFl)
    h_epi(vAcc + 16, 0, vCs2, mid=qf if OPT['bq'] == 1 else None)
    if OPT['bq'] == 2: T(qf)
else:
    T([('wvm', 'q')] + flag_store(0, sFl))
    cs_late('B')
    if not (OPT['wv'] & 1): h_epi(vAcc + 16, 0, vCs2)
spin(cL1, 8)
st.mark(17)
vVe, vVo, vKa, vV0, vV1 = 3, 4, 5, 6, 9
def kv_units(which):
    u = []
    for t in range(3):
        pre = ([f's_mul_i32 s{t2}, s{sI}, {3*3072}'] if t == 0 else []) + [f's_add_i32 s{t0}, s{sT7}, {t}', f's_max_i32 s{t0}, s{t0}, 0', f's_mul_i32 s{t0}, s{t0}, 84', f's_add_u32 s{t0}, s{t0}, s{sST0}',
               f's_add_u32 m0, s{t2}, {(KB, VB)[which] + t*3072}', f's_add_u32 s{t0}, s{t0}, {28*(which+1)}', f's_lshl_b32 s{t0}, s{t0}, 10']
        for s in range(3):
            v = (3, vL16 if which == 0 else 30, 4)[s]
            u.append((pre if s == 0 else []) + [('vm', 'KV'[which], f'buffer_load_dwordx4 v{v}, {S}, s{t0} offen offset:{1024*s} sc1 lds')])
    return u
def kv_dma(which):
    for u in kv_units(which): T(u)
def qk_issue():
    keep = list(T.vm)
    a(f's_mul_i32 s{t0}, s{sTQ}, 84'); a(f's_add_u32 s{t0}, s{t0}, s{sST0}'); a(f's_lshl_b32 s{t0}, s{t0}, 10')
    for s in range(3): a(f'buffer_load_dwordx4 {vr(vQ+4*s,4)}, v{(3, vL16, 4)[s]}, {S}, s{t0} offen offset:{1024*s} sc1')
    kv_dma(0)
    T.vm = keep
qsample = [('vm', 'qf', f'buffer_load_dwordx2 v[28:29], v{vFl}, {S}, 0 offen sc1')]
ex = {OPT['smp']: list(qsample)} if OPT['mid'] < 2 else {}
if (OPT['wv'] & 1): spread(h_epi_items(vAcc + 16, 0, vCs2), ex, 0, OPT['we'])
h_tile(1, 0, vAcc, ex)
arrive(cAD)
if OPT['mid'] < 2: spin(cCS1, 8)
st.mark(18)
def early_qk():
    T([('wvm', 'qf')] + flag_store(F1, sFl)); a(f'v_cmp_ne_u64 vcc, s[{sN}:{sN+1}], v[28:29]'); a(f's_mov_b32 s{sKI}, 0'); a('s_cbranch_vccnz L_noearly')
    qk_issue(); a(f's_mov_b32 s{sKI}, 1')
    a.label('L_noearly')
    st.mark(19)
if OPT['mid'] == 2:
    h_epi(vAcc, 1, vCs, mid=qsample)
    spin(cCS1, 8)
    early_qk()
elif OPT['mid'] == 3:
    h_epi(vAcc, 1, vCs)
    spin(cCS1, 8)
    T(qsample); early_qk()
elif OPT['mid']:
    h_epi(vAcc, 1, vCs, mid=[('call', early_qk)])
else:
    early_qk()
    h_epi(vAcc, 1, vCs)
a.label('L_att')
a('s_setprio 2')
a(f's_mov_b32 s{sFl2}, s{sFl}')
st.mark(20)
a(f's_cmp_lg_u32 s{sKI}, 0'); a('s_cbranch_scc1 L_kdone')
poll(vFl, '0', 14, 0, 28)
st.mark(21)
a(f's_cmp_lt_u32 s{sIDX}, 4'); a('s_cbranch_scc1 L_nohf0')
T(flag_store(F2, sFl2))
a.label('L_nohf0')
qk_issue()
a.label('L_kdone')
st.mark(22)
a(f'v_lshrrev_b32 v12, 5, v{vL}'); a('v_lshlrev_b32 v13, 6, v12'); a('v_xor_b32 v3, v13, v3'); a('v_xor_b32 v4, v13, v4'); a(f'v_xor_b32 v30, v13, v{vL16}'); a('v_xor_b32 v30, 128, v30')
def k_arrive():
    T(('wvm', 'K' if OPT['ve'] == 1 else '*')); st.mark(23); arrive(cB)
    a(f's_cmp_eq_u32 s{sKI}, 0'); a('s_cbranch_scc1 L_nohf')
    keep = list(T.vm); T(flag_store(F2, sFl2)); T.vm = keep
    a.label('L_nohf')
if OPT['ve'] == 1:
    spin(cAD, 8); T.vm = ['K']; kv_dma(1); st.mark(40)
    if OPT['ea']: k_arrive()
a(f's_mul_i32 s{t0}, s{sI}, 3072'); a(f's_add_u32 s{t1}, s{t0}, {KB}'); a(f'v_add_u32 v{vKa}, s{t1}, v{vL16}')
a(f'v_bfe_u32 v14, v{vL}, 4, 1'); a(f'v_and_b32 v15, 3, v{vL}'); a('v_lshl_add_u32 v14, v14, 2, v15'); a(f'v_add_u32 v14, s{sG0}, v14')
a('v_lshrrev_b32 v15, 2, v14'); a('v_and_b32 v16, 1, v14'); a('v_bfe_u32 v17, v14, 1, 1')
a(f'v_bfe_u32 v19, v{vL}, 2, 2'); a('v_lshl_add_u32 v18, v12, 2, v19')
a('v_and_b32 v19, 1, v15'); a('v_lshl_add_u32 v19, v19, 1, v16'); a('v_lshlrev_b32 v19, 2, v19'); a('v_xor_b32 v18, v18, v19')
a(f'v_lshlrev_b32 v{vV0}, 4, v18'); a(f'v_lshl_add_u32 v{vV0}, v17, 3, v{vV0}'); a(f'v_lshl_add_u32 v{vV0}, v16, 9, v{vV0}')
a(f'v_lshl_add_u32 v{vV0}, v15, 10, v{vV0}'); a(f'v_xor_b32 v{vV1}, 128, v{vV0}')
a(f's_add_u32 s{t0}, s{t0}, {VB}'); a(f'v_add_u32 v{vV0}, s{t0}, v{vV0}'); a(f'v_add_u32 v{vV1}, s{t0}, v{vV1}')
if OPT['vo']:
    a(f's_add_u32 s{t0}, s{sG0}, 7'); a(f's_lshr_b32 s{t1}, s{t0}, 2'); a(f's_lshl_b32 s{t1}, s{t1}, 10'); a(f's_and_b32 s{t2}, s{t0}, 1'); a(f's_lshl_b32 s{t2}, s{t2}, 9'); a(f's_add_u32 s{t1}, s{t1}, s{t2}')
    a(f's_and_b32 s{t2}, s{t0}, 2'); a(f's_lshl_b32 s{t2}, s{t2}, 2'); a(f's_add_u32 s{t1}, s{t1}, s{t2}'); a(f's_mul_i32 s{t2}, s{sI}, {3*3072}'); a(f's_add_u32 s{t1}, s{t1}, s{t2}'); a(f's_add_u32 s{t1}, s{t1}, {VB}')
    a(f'v_and_b32 v56, 31, v{vL}'); a('v_lshlrev_b32 v56, 4, v56'); a('v_mul_u32_u24 v57, 3072, v12'); a(f'v_add3_u32 v56, v56, v57, s{t1}')
    a('v_mov_b32 v58, 0x3f80'); a('v_mov_b32 v59, 0')
for j in range(16):
    c = 8*(j >> 2) + (j & 3)
    a(f's_mov_b32 s{sM+2*j}, {(0xffffffff << c) & 0xffffffff:#x}'); a(f's_mov_b32 s{sM+2*j+1}, {(0xffffffff << (c+4)) & 0xffffffff:#x}')
def msk(j): return f's[{sM+2*j}:{sM+2*j+1}]'
vOnes = 24; vBm = 28; vMk = 240
vSb = 64; vO = 192; vLs = 208; vP0 = 224; vP8 = 232; vM = 224
a('v_mov_b32 v14, 0xffff'); a('v_mov_b32 v15, 0xffff0000')
for j in range(8):
    a(f'v_cndmask_b32 v{vMk+j}, 0, v14, {msk(2*j)}'); a(f'v_cndmask_b32 v16, 0, v15, {msk(2*j+1)}'); a(f'v_or_b32 v{vMk+j}, v{vMk+j}, v16')
for k in range(4): a(f'v_mov_b32 v{vOnes+k}, 0x3f803f80')
for k in range(1, 4): a(f'v_mov_b32 v{vBm+k}, 0')
a(f'v_subrev_u32 v12, s{sG0}, v12')
if OPT['ve'] != 1: spin(cAD, 8)
if not OPT['ea']: k_arrive()
if not OPT['ve']: kv_dma(1); st.mark(40)
for s in range(3):
    for ap in range(2):
        a(f'v_add_u32 v13, {4*s+2*ap}, v12'); a('v_cmp_gt_u32 vcc, 7, v13')
        for k in range(2):
            r = vQ + 4*s + 2*ap + k
            a(f'v_cndmask_b32 v{r}, 0, v{r}, vcc')
spin(cB, 4)
st.mark(24)
vKF = (44, 12)
def sreg(r): return vO if r == 0 else vSb + 16 * (r - 1)
m8 = sreg(8)
sorder = [8, 0, 1, 2, 3, 4, 5, 6, 7]
def kreads(i): return [('ds', f'k{i}', f'ds_read_b128 {vr(vKF[i&1]+4*s,4)}, v{vKa} offset:{sorder[i]*3072 + s*1024}') for s in range(3)]
def maxops(b, first=False):
    o = []
    for h in range(2):
        for c in range(4):
            if first and h == 0: o.append(f'v_max_f32 v{vM+c}, v{b+c}, v{b+4+c}')
            else: o.append(f'v_max3_f32 v{vM+c}, v{vM+c}, v{b+8*h+c}, v{b+8*h+4+c}')
    return o
merge = [f'v_cndmask_b32 v{m8+j}, v{vO+j}, v{m8+j}, {msk(j)}' for j in range(16)]
fills = {3: merge[:12], 4: merge[12:] + maxops(m8, True), 5: maxops(sreg(1)) + maxops(sreg(2))[:4], 6: maxops(sreg(2))[4:] + maxops(sreg(3)),
         7: maxops(sreg(4)), 8: maxops(sreg(5))}
vun = kv_units(1) if OPT['ve'] == 2 else []
T(kreads(0))
for i in range(9):
    r = sorder[i]
    T(('wds', f'k{i}'))
    T(weave([[mfma(sreg(r), vKF[i & 1] + 4*s, vQ + 4*s, s == 0)] for s in range(3)], (kreads(i + 1) if i + 1 < 9 else []) + vun[3*i:3*i+3] + fills.get(i, [])))
T(maxops(sreg(6)))
st.mark(41); T(('wvm', 'V')); st.mark(42)
if OPT['vo']: T(('ds', 'vo', 'ds_write_b64 v56, v[58:59]')); T(('ds', 'vo', 'ds_write_b64 v56, v[58:59] offset:3072'))
arrive(cB)
T(maxops(sreg(7)))
a(f's_cmp_ge_u32 s{sTQ}, 8'); a('s_cbranch_scc1 L_valid')
NEG = f2u(-1e30)
a(f'v_mov_b32 v12, {NEG:#x}')
for j in range(16): a(f'v_cndmask_b32 v{m8+j}, v12, v{m8+j}, {msk(j)}')
for r in range(1, 8):
    a(f's_cmp_ge_u32 s{sTQ}, {8-r}'); a('s_cbranch_scc1 L_remax')
    for j in range(16): a(f'v_mov_b32 v{sreg(r)+j}, v12')
a.label('L_remax')
T(maxops(m8, True))
for r in range(1, 8): T(maxops(sreg(r)))
a.label('L_valid')
a(f'v_max3_f32 v{vM}, v{vM}, v{vM+1}, v{vM+2}'); a(f'v_max_f32 v{vM}, v{vM}, v{vM+3}')
a(f'v_mov_b32 v{vM+1}, v{vM}'); a(f'v_cmp_gt_u32 vcc, 32, v{vL}')
a(f'v_permlane32_swap_b32 v{vM}, v{vM+1}'); a(f'v_max_f32 v{vM}, v{vM}, v{vM+1}')
a(f'v_cvt_pk_bf16_f32 v{vM+1}, 0, v{vM}'); a(f'v_sub_f32 v{vM+1}, v{vM+1}, v{vM}'); a(f'v_cvt_pk_bf16_f32 v{vM+1}, -v{vM}, v{vM+1}')
a(f'v_cndmask_b32 v{vBm}, 0, v{vM+1}, vcc')
st.mark(25)
vVF = (44, 12)
porder = [1, 2, 3, 4, 5, 6, 7, 8, 0]
def vreads(i): return [('ds', f'v{i}', f'ds_read_b64_tr_b16 {vr(vVF[i&1]+4*ks+2*q,2)}, v{(vV0,vV1)[q]} offset:{porder[i]*3072 + ks*256}') for ks in range(2) for q in range(2)]
def sub(i): return mfma(sreg(porder[i]), vOnes, vBm)
def softmax(i):
    r = porder[i]; b = sreg(r); o = []
    for g in range(0, 16, 4):
        o += [f'v_exp_f32 v{b+j}, v{b+j}' for j in range(g, g + 4)]
        if g: o += [f'v_cvt_pk_bf16_f32 v{b+j}, v{b+2*j}, v{b+2*j+1}' for j in range(g//2 - 2, g//2)]
    o += [f'v_cvt_pk_bf16_f32 v{b+j}, v{b+2*j}, v{b+2*j+1}' for j in (6, 7)]
    if r == 8:
        o += [f'v_and_b32 v{vP8+j}, v{vMk+j}, v{b+j}' for j in range(8)]
        o += [f'v_bfi_b32 v{vP0+j}, v{vMk+j}, 0, v{b+j}' for j in range(8)]
    return o
def pv(i):
    r = porder[i]; P = vP0 if r == 0 else (vP8 if r == 8 else sreg(r)); vb = vVF[i & 1]
    g = []
    for ks in range(2):
        g.append([mfma(vO, vb + 4*ks, P + 4*ks, i == 0 and ks == 0)])
        if r and not OPT['vo']: g.append([mfma(vLs, vOnes, sreg(r) + 4*ks, i == 0 and ks == 0)])
    g[0] = [('wds', f'v{i}')] + g[0]
    return g
a(sub(0)); a(sub(1))
spin(cB, 8)
st.mark(26)
T(vreads(0)); T(weave([[sub(2)]], softmax(0)))
for i in range(9):
    fill = (vreads(i + 1) if i + 1 < 9 else []) + (softmax(i + 1) if i + 1 < 8 else [])
    T(weave(pv(i) + ([[sub(i + 3)]] if i + 3 < 8 else []), fill))
st.mark(27)
arrive(cB)
a(f's_lshl4_add_u32 s{t0}, s{sTQ}, s{sHD}'); a(f's_lshl_b32 s{t1}, s{t0}, 11'); a(f's_add_u32 s{t1}, s{t1}, {OF}')
a(f's_lshl_b32 s{t0}, s{t0}, {OSH}'); a(f's_add_u32 s48, s{t0}, {OFL}')
if OPT['vo']:
    a(f'v_mov_b32 v12, v{vO+12}'); a(f'v_mov_b32 v13, v{vO+12}'); a('v_permlane32_swap_b32 v12, v13'); a('v_rcp_f32 v12, v13')
else: a(f'v_rcp_f32 v12, v{vLs}')
a(f'v_cmp_gt_u32 vcc, 32, v{vL}')
for s in range(2):
    for j in range(8*s, 8*s + 8): a(f'v_mul_f32 v{vO+j}, v12, v{vO+j}')
    for j in range(4*s, 4*s + 4): a(f'v_cvt_pk_bf16_f32 v{vO+j}, v{vO+2*j}, v{vO+2*j+1}')
    if s: a(f'v_cndmask_b32 v{vO+6}, 0, v{vO+6}, vcc'); a(f'v_cndmask_b32 v{vO+7}, 0, v{vO+7}, vcc')
    T(('vm', 'o', f'buffer_store_dwordx4 {vr(vO+4*s,4)}, v{vL16}, {S}, s{t1} offen offset:{1024*s} sc1'))
st.mark(28)
a(f's_cmp_lt_u32 s{sIDX}, 4'); a('s_cbranch_scc0 L_cont')
keep = list(T.vm)
T([('wvm', 'o')] + flag_store(0, 48))
st.flush(SWS, STAMP, sW, vL)
a('s_endpgm')
a.label('L_cont')
T.vm = keep
srd(SA, pWO, 448 * 896)
vWo = 3
full_pat(vWo, 12, 13, 896); a(f's_lshl_b32 s{t0}, s{sCB}, 7'); a(f'v_add_u32 v{vWo}, s{t0}, v{vWo}')
spin(cB, 12)
if OPT['of'] < 0:
    T([('wvm', 'o')] + flag_store(0, 48)); st.mark(29)
a(f's_setprio {OPT["bp2"]}')
a(f's_mul_i32 s{t2}, s{sTT}, {WOB[1]-WOB[0]}'); a(f's_lshl_b32 s{t0}, s{sCT}, 10'); a(f's_add_u32 s{t2}, s{t2}, s{t0}')
a(f's_mul_i32 s{t1}, s{sTT}, {224*896}'); a(f's_mul_i32 s{t0}, s{sCT}, {8*896}'); a(f's_add_u32 s{t1}, s{t1}, s{t0}')
for i in range(15):
    if i == 14:
        a(f's_lshl_b32 s{t0}, s{sCT}, 11'); a(f's_sub_u32 s{t2}, s{t2}, s{t0}'); a(f's_mul_i32 s{t0}, s{sCT}, {16*896}'); a(f's_sub_u32 s{t1}, s{t1}, s{t0}')
    a(f's_add_u32 m0, s{t2}, {WOB[0] + 2048*i}'); a(f's_add_u32 s{t0}, s{t1}, {i*16*896}')
    T(('vm', 'wo', f'buffer_load_dwordx4 v{vWo}, {R4(SA)}, s{t0} offen lds'))
    if i == OPT['of']:
        T([('wvm', 'o')] + flag_store(0, 48)); st.mark(29)
if not OPT['fa']: final_setup()
vTa, vTb = 5, 6
tr_base(vTa, 12, False); a(f's_mul_i32 s{t0}, s{sCT}, {WOB[1]-WOB[0]}'); a(f's_add_u32 s{t0}, s{t0}, {WOB[0]}')
a(f'v_add_u32 v{vTa}, s{t0}, v{vTa}'); a(f'v_xor_b32 v{vTb}, 64, v{vTa}')
a(f'v_and_b32 v4, 7, v{vL}'); a(f'v_lshlrev_b32 v4, {OSH}, v4')
a(f's_lshl1_add_u32 s49, s{sTo}, s{sCT}'); a(f's_lshl_b32 s50, s49, {OSH+3}'); a(f's_add_u32 s50, s50, {OFL}')
st.mark(30)
T(('wvm', 'wo')); arrive(cB)
if OPT['n1'] < 0: T(('vm', 'of', f'buffer_load_dwordx2 v[12:13], v4, {S}, s50 offen sc1'))
spin(cB, 16)
st.mark(31)
if OPT['n1'] >= 0 and OPT['so']:
    spin(cCS0, 4, sleep=2); st.mark(38)
    T(('vm', 'of', f'buffer_load_dwordx2 v[12:13], v4, {S}, s50 offen sc1'))
vWA = 128; vOf = 64; vSa = 16
for n in range(16):
    for ct in range(2):
        for q in range(2):
            T(('ds', f'a{n}', f'ds_read_b64_tr_b16 {vr(vWA+8*n+4*ct+2*q,2)}, v{(vTa,vTb)[ct]} offset:{(28*(n>>1) + 16*(n&1) + 8*q)*128}'))
T(('wds', '*')); arrive(cB)
xaddr(48); a(f'v_bfe_u32 v10, v{vL}, 3, 2'); a('v_lshl_add_u32 v48, v10, 11, v48')
a(f's_lshl_b32 s{t0}, s{sCT}, 14'); a(f's_lshl_b32 s{t1}, s{sTT}, 13'); a(f's_add_u32 s{t0}, s{t0}, s{t1}'); a(f's_add_u32 s{t0}, s{t0}, {SBUF}'); a(f'v_add_u32 v48, s{t0}, v48')
for q in range(1, 4): a(f'v_xor_b32 v{48+q}, {32*q}, v48')
spin(cB, 20)
if OPT['n1'] >= 0 and not OPT['so']:
    spin(cCS0, 4, sleep=2); st.mark(38)
    T(('vm', 'of', f'buffer_load_dwordx2 v[12:13], v4, {S}, s50 offen sc1'))
T(('wvm', 'of')); a(f'v_cmp_ne_u64 vcc, s[{sN}:{sN+1}], v[12:13]'); a('s_cbranch_vccz L_ook')
poll(4, 's50', 8, 0, 12)
a.label('L_ook')
a('s_setprio 2')
st.mark(32)
a(f's_lshl_b32 s{t0}, s49, 14'); a(f's_add_u32 s{t0}, s{t0}, {OF}')
def oload(n):
    return [('vm', f'o{n}', f'buffer_load_dwordx4 {vr(vOf+4*n,4)}, v{vL16}, {S}, s{t0} offen offset:{(n&3)*1024} sc1')] + ([f's_add_u32 s{t0}, s{t0}, 4096'] if n & 3 == 3 else [])
OD = OPT.get('od', 10)
for n in range(OD): T(oload(n))
if OPT['pb'] >= 0: a(f's_setprio {OPT["pb"]}')
st.mark(33)
for n in range(16):
    T(('wvm', f'o{n}'))
    for ct in range(2):
        a(mfma(vSa + 16*ct, vWA + 8*n + 4*ct, vOf + 4*n, n == 0))
        if ct == 0 and n + OD < 16: T(oload(n + OD))
st.mark(34)
for ct in range(2):
    for q in range(4): T(('ds', 'sx', f'ds_write_b128 v{48+q}, {vr(vSa+16*ct+4*q,4)} offset:{ct*128}'))
if OPT['fa']:
    T(('wds', '*')); st.mark(35); a('s_barrier'); st.flush(SWS, STAMP, sW, vL)
else: final_stage()
a.label('L_end'); a('s_endpgm')

a.pad_hazards_fast()
for e in a.check_waits(): print('WAITERR', e)
hdr = ['; generated by gen36.py (hand-written generator): single persistent kernel',
       f'; @launch grid=(256,1,1) block=(512,1,1) lds={LDS_TOTAL}', '.amdgcn_target "amdgcn-amd-amdhsa--gfx950"', '.text']
tail = ['.section .rodata,"a"', '.p2align 6', f'.amdhsa_kernel {K}', '  .amdhsa_next_free_vgpr 256', '  .amdhsa_next_free_sgpr 102',
        '  .amdhsa_accum_offset 256', '  .amdhsa_group_segment_fixed_size 0', '  .amdhsa_kernarg_size 72',
        '  .amdhsa_user_sgpr_count 2', '  .amdhsa_user_sgpr_kernarg_segment_ptr 1', '  .amdhsa_system_sgpr_workgroup_id_x 1', '.end_amdhsa_kernel']
open(sys.argv[1], 'w').write('\n'.join(hdr) + '\n' + a.text() + '\n'.join(tail) + '\n')
```

```python
import re

def vr(b, n=1):
    return f'v{b}' if n == 1 else f'v[{b}:{b+n-1}]'
def ar(b, n=1):
    return f'a{b}' if n == 1 else f'a[{b}:{b+n-1}]'
def sr(b, n=1):
    return f's{b}' if n == 1 else f's[{b}:{b+n-1}]'

_reg_re = re.compile(r'^(-?)(abs\()?([vas])(\d+|\[(\d+):(\d+)\])\)?$')

def parse_reg(tok):
    tok = tok.strip()
    if tok == 'vcc': return [('s', 106), ('s', 107)]
    if tok == 'vcc_lo': return [('s', 106)]
    if tok == 'vcc_hi': return [('s', 107)]
    if tok == 'exec': return [('s', 126), ('s', 127)]
    if tok == 'exec_lo': return [('s', 126)]
    if tok == 'exec_hi': return [('s', 127)]
    if tok == 'm0': return [('s', 124)]
    tok = tok.replace('|', '')
    m = _reg_re.match(tok)
    if not m: return []
    k = m.group(3)
    if m.group(5) is not None:
        return [(k, i) for i in range(int(m.group(5)), int(m.group(6)) + 1)]
    return [(k, int(m.group(4)))]

TRANS = ('v_exp_f32', 'v_log_f32', 'v_rcp_f32', 'v_rsq_f32', 'v_sqrt_f32', 'v_sin_f32', 'v_cos_f32', 'v_rcp_iflag_f32')

class Ins:
    __slots__ = ('text', 'op', 'ops', 'defs', 'uses', 'kind', 'A', 'B', 'C', 'passes', 'target', 'mods', 'data')
    def __init__(self, text):
        self.text = text
        t = text.split(';')[0].strip()
        parts = t.split(None, 1)
        self.op = parts[0]
        rest = parts[1] if len(parts) > 1 else ''
        ops = []; depth = 0; cur = ''
        for ch in rest:
            if ch in '[(': depth += 1
            if ch in '])': depth -= 1
            if ch == ',' and depth == 0:
                ops.append(cur.strip()); cur = ''
            else: cur += ch
        if cur.strip(): ops.append(cur.strip())
        mods = ''
        if ops:
            sp = ops[-1].split(None, 1)
            if len(sp) > 1 and not self.op.startswith('s_waitcnt'):
                ops[-1] = sp[0]; mods = sp[1]
        self.ops = ops; self.mods = mods
        self.defs = []; self.uses = []; self.A = self.B = self.C = []; self.passes = 0; self.target = None; self.data = []
        op = self.op
        R = [parse_reg(o) for o in ops]
        if op.startswith('v_mfma'):
            self.kind = 'mfma'
            self.defs = R[0]; self.A = R[1]; self.B = R[2]; self.C = R[3]
            self.uses = R[1] + R[2] + R[3]
            self.passes = 8 if '32x32x16' in op else 4 if '16x16x32' in op else None
            assert self.passes, op
        elif op.startswith('v_'):
            self.kind = 'valu'
            base = op.replace('_e32', '').replace('_e64', '').replace('_dpp', '').replace('_sdwa', '')
            if base.startswith('v_cmpx'):
                self.defs = R[0] + [('s', 126), ('s', 127)]; self.uses = sum(R[1:], [])
            elif (base.startswith('v_permlane') and 'swap' in base) or base == 'v_swap_b32':
                self.defs = R[0] + R[1]; self.uses = R[0] + R[1]
            elif base in ('v_add_co_u32', 'v_sub_co_u32', 'v_addc_co_u32', 'v_subb_co_u32', 'v_mad_u64_u32'):
                self.defs = R[0] + R[1]; self.uses = sum(R[2:], [])
            elif base == 'v_nop':
                pass
            else:
                self.defs = R[0]; self.uses = sum(R[1:], [])
                if base in ('v_fmac_f32', 'v_dot2c_f32_bf16', 'v_writelane_b32', 'v_pk_fmac_f16') or '_dpp' in op or 'row_' in mods or 'quad_perm' in mods:
                    self.uses = self.uses + R[0]
        elif op.startswith('ds_'):
            self.kind = 'ds'
            if op.startswith('ds_read') or op.startswith('ds_bpermute') or op.startswith('ds_swizzle') or op.startswith('ds_permute') or '_rtn' in op:
                self.defs = R[0]; self.uses = sum(R[1:], [])
            else:
                self.uses = sum(R, []); self.data = sum(R[1:], [])
        elif op.startswith('buffer_') or op.startswith('global_'):
            self.kind = 'vmem'
            if op in ('buffer_inv', 'buffer_wbl2'):
                pass
            elif op.startswith('buffer_load'):
                if re.search(r'\blds\b', mods):
                    self.uses = sum(R, []) + [('s', 124)]
                else:
                    self.defs = R[0]; self.uses = sum(R[1:], [])
            elif op.startswith('global_load_lds'):
                self.uses = sum(R, []) + [('s', 124)]
            elif op.startswith('global_load'):
                self.defs = R[0]; self.uses = sum(R[1:], [])
            elif op.startswith('buffer_store'):
                self.uses = sum(R, []); self.data = R[0]
            elif op.startswith('global_store'):
                self.uses = sum(R, []); self.data = R[1]
            elif op.startswith('buffer_atomic'):
                self.uses = sum(R, []); self.data = R[0]
                if 'sc0' in mods: self.defs = R[0]
            elif op.startswith('global_atomic'):
                if 'sc0' in mods:
                    self.defs = R[0]; self.uses = sum(R[1:], []); self.data = R[2]
                else:
                    self.uses = sum(R, []); self.data = R[1]
            else: raise ValueError(text)
        elif op.startswith('s_load') or op.startswith('s_buffer_load') or op in ('s_memtime', 's_memrealtime'):
            self.kind = 'smem'; self.defs = R[0]; self.uses = sum(R[1:], [])
        elif op.startswith('s_'):
            self.kind = 'salu'
            if op.startswith('s_cbranch') or op == 's_branch':
                self.kind = 'branch'; self.target = ops[0]
            elif op in ('s_waitcnt', 's_nop', 's_barrier', 's_endpgm', 's_sleep', 's_setprio'):
                pass
            elif op.startswith('s_cmp') or op.startswith('s_bitcmp'):
                self.uses = sum(R, [])
            elif 'saveexec' in op:
                self.defs = R[0] + [('s', 126), ('s', 127)]; self.uses = R[1] + [('s', 126), ('s', 127)]
            else:
                self.defs = R[0]; self.uses = sum(R[1:], [])
                if op in ('s_addk_i32', 's_mulk_i32'): self.uses += R[0]
        else:
            raise ValueError('unknown instr: ' + text)
    def states(self):
        if self.op == 's_nop': return int(self.ops[0], 0) + 1
        return 1

def _ov(a, b):
    return bool(set(a) & set(b))

def required(p, c):
    need = 0
    vg = lambda l: [r for r in l if r[0] in 'va']
    sg = lambda l: [r for r in l if r[0] == 's']
    pb = p.op.replace('_e32', '').replace('_e64', '')
    cb = c.op.replace('_e32', '').replace('_e64', '')
    if p.kind == 'valu':
        pdv = vg(p.defs); pds = sg(p.defs)
        isdot = pb.startswith('v_dot')
        if c.kind == 'mfma' and _ov(pdv, c.uses): need = max(need, 3 if isdot else 2)
        if c.kind == 'mfma' and _ov(pds, [('s', 126), ('s', 127)]): need = max(need, 4)
        if isdot:
            if cb == pb:
                srcs = sum([parse_reg(o) for o in c.ops[1:3]], [])
                if _ov(pdv, srcs): need = max(need, 3)
            elif _ov(pdv, c.uses + c.defs): need = max(need, 3)
        if c.kind == 'valu':
            if any(pb.startswith(t) for t in TRANS) and not any(cb.startswith(t) for t in TRANS) and _ov(pdv, c.uses): need = max(need, 1)
            if cb.startswith('v_permlane') and _ov(pdv, c.uses): need = max(need, 2)
            if ('dpp' in c.op or 'quad_perm' in c.mods or 'row_' in c.mods) and _ov(pdv, c.uses): need = max(need, 2)
            if ('dpp' in c.op or 'quad_perm' in c.mods or 'row_' in c.mods) and _ov(pds, [('s', 126), ('s', 127)]): need = max(need, 5)
            if cb in ('v_readfirstlane_b32', 'v_readlane_b32') and _ov(pdv, c.uses): need = max(need, 1)
            if _ov(pds, sg(c.uses)):
                need = max(need, 4 if cb in ('v_readlane_b32', 'v_writelane_b32') else 2)
            if cb in ('v_cndmask_b32', 'v_addc_co_u32') and _ov(pds, [('s', 106)]) and 'vcc' in c.text: need = max(need, 2)
            if _ov(pds, [('s', 126), ('s', 127)]) and (cb in ('v_readfirstlane_b32', 'v_readlane_b32', 'v_writelane_b32') or cb.startswith('v_permlane')): need = max(need, 4)
            if ('sdwa' in p.op or 'op_sel' in p.mods) and not pb.startswith('v_pk_') and _ov(pdv, c.uses + c.defs): need = max(need, 1)
        if c.kind == 'vmem' and _ov(pds, sg(c.uses)): need = max(need, 5)
        if c.kind in ('salu', 'smem', 'branch') and _ov(pds, sg(c.uses)): need = max(need, 1)
        if c.kind == 'branch' and c.op in ('s_cbranch_vccz', 's_cbranch_vccnz') and _ov(pds, [('s', 106)]): need = max(need, 1)
    if p.kind == 'mfma':
        D = p.defs; n = p.passes
        big = {4: 8, 8: 12}[n]
        if c.kind == 'mfma':
            if _ov(D, c.A + c.B): need = max(need, big)
            if _ov(D, c.C):
                if not (c.C == D and c.passes == n): need = max(need, {4: 6, 8: 10}[n])
            elif _ov(D, c.defs): need = max(need, {4: 6, 8: 10}[n])
        elif c.kind in ('valu', 'vmem', 'ds'):
            if _ov(D, c.uses + c.defs): need = max(need, big)
        if c.kind == 'valu' and _ov(p.C, c.defs): need = max(need, {4: 3, 8: 7}[n])
    if p.kind == 'salu' and _ov(p.defs, [('s', 124)]):
        if c.kind in ('vmem', 'ds') and ('s', 124) in c.uses: need = max(need, 1)
    if p.kind == 'vmem' and p.data and len(p.data) >= 3:
        if _ov(p.data, c.defs): need = max(need, 2 if c.kind in ('valu', 'mfma') else 1)
    return need

class Asm:
    def __init__(self):
        self.items = []
    def __call__(self, text):
        for line in text.split('\n'):
            line = line.strip()
            if not line or line.startswith(';'): continue
            if line.endswith(':'): self.items.append(('label', line[:-1]))
            elif line.startswith('.'): self.items.append(('raw', line))
            else: self.items.append(Ins(line))
    def label(self, n): self.items.append(('label', n))
    def raw(self, t): self.items.append(('raw', t))
    def comment(self, t): self.items.append(('raw', '; ' + t))

    def pad_hazards(self, verbose=False):
        items = self.items
        changed = True; total = 0
        while changed:
            changed = False
            labels = {it[1]: i for i, it in enumerate(items) if isinstance(it, tuple) and it[0] == 'label'}
            branches = {}
            for i, it in enumerate(items):
                if isinstance(it, Ins) and it.kind == 'branch': branches.setdefault(it.target, []).append(i)
            for i, c in enumerate(items):
                if not isinstance(c, Ins): continue
                worst = 0
                stack = [(i - 1, 0)]; seen = set()
                while stack:
                    k, dist = stack.pop()
                    while k >= 0 and dist < 20:
                        if (k, dist) in seen: break
                        seen.add((k, dist))
                        it = items[k]
                        if isinstance(it, tuple):
                            if it[0] == 'label':
                                for b in branches.get(it[1], []): stack.append((b, dist))
                                if it[1].endswith('_kernel'): break
                            k -= 1; continue
                        if it.op in ('s_branch', 's_endpgm', 's_setpc_b64') and not (k in [b for bl in branches.values() for b in bl] and (k, dist) in [(x, y) for x, y in [(k, dist)]] and self._came_by_branch(k, i, items)):
                            if not getattr(self, '_edge', None) == (k, dist):
                                pass
                        need = required(it, c) - dist
                        if need > worst: worst = need
                        dist += it.states()
                        k -= 1
                if worst > 0:
                    items.insert(i, Ins(f's_nop {worst-1}'))
                    total += 1
                    if verbose: print('pad', worst, 'before', c.text)
                    changed = True
                    break_outer = True
                    break
        return total
    def _came_by_branch(self, k, i, items): return True

    def pad_hazards_fast(self, verbose=False):
        for _ in range(4):
            items = self.items
            branches = {}
            for i, it in enumerate(items):
                if isinstance(it, Ins) and it.kind == 'branch': branches.setdefault(it.target, []).append(i)
            ins_at = {}
            extra = {}
            for i, c in enumerate(items):
                if not isinstance(c, Ins): continue
                worst = 0; stack = [(i - 1, 0, False)]; seen = set()
                while stack:
                    k, dist, viabr = stack.pop()
                    while k >= 0 and dist < 14:
                        if (k, dist) in seen: break
                        seen.add((k, dist))
                        it = items[k]
                        if isinstance(it, tuple):
                            if it[0] == 'label':
                                for b in branches.get(it[1], []): stack.append((b, dist, True))
                                if it[1].endswith('_kernel'): break
                            k -= 1; continue
                        if it.op in ('s_branch', 's_endpgm') and not viabr: break
                        viabr = False
                        need = required(it, c) - dist
                        if need > worst: worst = need
                        dist += it.states() + extra.get(k, 0)
                        k -= 1
                if worst > 0:
                    extra[i] = worst
                    if verbose: print('pad', worst, 'before', c.text)
            if not extra: return
            new = []
            for i, it in enumerate(items):
                if i in extra: new.append(Ins(f's_nop {extra[i]-1}'))
                new.append(it)
            self.items = new

    def check_waits(self):
        vm = []; lg = []; errs = []
        for it in self.items:
            if not isinstance(it, Ins):
                continue
            if it.op == 's_waitcnt':
                m = re.search(r'vmcnt\((\d+)\)', it.text)
                if m:
                    n = int(m.group(1)); vm = vm[len(vm) - n:] if n < len(vm) and n > 0 else ([] if n == 0 else vm)
                m = re.search(r'lgkmcnt\((\d+)\)', it.text)
                if m:
                    n = int(m.group(1))
                    if n == 0: lg = []
                    else:
                        if any(x[1] == 'smem' for x in lg): errs.append('counted lgkmcnt with smem outstanding: ' + it.text)
                        lg = lg[len(lg) - n:] if n < len(lg) else lg
                continue
            if it.op in ('s_endpgm', 's_branch'):
                vm = []; lg = []; continue
            touched = set(it.uses + it.defs)
            for d, _k, t in vm + lg:
                if touched & set(d): errs.append(f'{it.text}  touches pending result of  {t}')
            if it.kind == 'vmem' and it.op not in ('buffer_inv', 'buffer_wbl2'):
                vm.append((it.defs, 'vmem', it.text))
                if len(vm) > 63: errs.append('vmcnt overflow at ' + it.text)
            elif it.kind == 'ds': lg.append((it.defs, 'ds', it.text))
            elif it.kind == 'smem': lg.append((it.defs, 'smem', it.text))
        return errs

    def text(self):
        out = []
        for it in self.items:
            if isinstance(it, Ins): out.append('    ' + it.text)
            elif it[0] == 'label': out.append(it[1] + ':')
            else: out.append(it[1])
        return '\n'.join(out) + '\n'

def interleave(main, fill, ratio=None):
    out = []; n = len(main); m = len(fill); j = 0
    for i, x in enumerate(main):
        out.append(x)
        tgt = (i + 1) * m // n
        while j < tgt:
            out.append(fill[j]); j += 1
    out += fill[j:]
    return out


class Stamps:
    def __init__(self, a, on, base=80, n=10):
        self.a=a; self.on=on; self.base=base; self.n=n
    def start(self):
        if not self.on: return
        b=self.base
        for i in range(self.n): self.a(f's_mov_b32 s{b+2*i}, 0')
        self.a(f's_memrealtime s[{b}:{b+1}]'); self.a(f's_memtime s[{b+2}:{b+3}]')
    def mark(self, i):
        if not self.on: return
        b=self.base+2*i
        self.a(f's_memtime s[{b}:{b+1}]')
    def flush(self, srdws, off, sW, tag):
        if not self.on: return
        a=self.a; b=self.base; n=self.n
        a('s_waitcnt vmcnt(0)')
        a(f's_memtime s[{b+2*(n-2)}:{b+2*(n-2)+1}]'); a(f's_memrealtime s[{b+2*(n-1)}:{b+2*(n-1)+1}]')
        a('s_waitcnt lgkmcnt(0)')
        a(f's_lshl_b32 s{b+1}, s2, 4'); a(f's_add_u32 s{b+1}, s{b+1}, s{sW}'); a(f's_lshl_b32 s{b+1}, s{b+1}, 6'); a(f's_add_u32 s{b+1}, s{b+1}, {off}')
        a('s_mov_b64 exec, 1')
        a('v_mov_b32 v0, 0')
        for i in range(n): a(f'v_mov_b32 v{4+i}, s{b+2*i}')
        a(f's_getreg_b32 s{b}, hwreg(HW_REG_XCC_ID)'); a(f'v_mov_b32 v14, s{b}')
        a(f's_getreg_b32 s{b}, hwreg(HW_REG_HW_ID)'); a(f'v_mov_b32 v15, s{b}')
        for i in range(3): a(f'buffer_store_dwordx4 v[{4+4*i}:{7+4*i}], v0, s[{srdws}:{srdws+3}], s{b+1} offen offset:{16*i}')


class Tr:
    def __init__(self, a):
        self.a = a; self.vm = []; self.ds = []
    def reset(self): self.vm = []; self.ds = []
    def _n(self, q, tag):
        idx = [i for i, t in enumerate(q) if t == tag]
        if not idx: return None
        return len(q) - 1 - idx[-1]
    def wait(self, vmtag=None, dstag=None):
        parts = []
        if vmtag is not None:
            n = 0 if vmtag == '*' else self._n(self.vm, vmtag)
            if n is not None and (self.vm or vmtag == '*'):
                assert n <= 63
                parts.append(f'vmcnt({n})'); self.vm = self.vm[len(self.vm) - n:] if n else []
        if dstag is not None:
            n = 0 if dstag == '*' else self._n(self.ds, dstag)
            if n is not None and (self.ds or dstag == '*'):
                n = min(n, 15)
                parts.append(f'lgkmcnt({n})'); self.ds = self.ds[len(self.ds) - n:] if n else []
        if parts: self.a('s_waitcnt ' + ' '.join(parts))
    def emit(self, items):
        if not isinstance(items, list): items = [items]
        for it in items:
            if isinstance(it, str): self.a(it)
            elif isinstance(it, list): self.emit(it)
            elif it[0] == 'vm': self.a(it[2]); self.vm.append(it[1])
            elif it[0] == 'ds': self.a(it[2]); self.ds.append(it[1])
            elif it[0] == 'wvm': self.wait(vmtag=it[1])
            elif it[0] == 'wds': self.wait(dstag=it[1])
            elif it[0] == 'w': self.wait(it[1], it[2])
            elif it[0] == 'call': it[1]()
            else: raise ValueError(it)
    __call__ = emit

def cost(it):
    if isinstance(it, list): return sum(cost(x) for x in it)
    if isinstance(it, tuple):
        return 0 if it[0] == 'call' else 1
    op = it.split()[0]
    if any(op.startswith(t) for t in TRANS): return 2
    return 1

def weave(groups, fill):
    tot = sum(cost(f) for f in fill); n = len(groups); out = []; j = 0; acc = 0
    for i, g in enumerate(groups):
        out += g
        tgt = tot * (i + 1) / n
        while j < len(fill) and acc + cost(fill[j]) / 2 <= tgt:
            out.append(fill[j]); acc += cost(fill[j]); j += 1
    out += fill[j:]
    return out


class Stamps2:
    def __init__(self, a, on, T=None, vreg=15, sp=98):
        self.a = a; self.on = on; self.v = vreg; self.sp = sp; self.T = T; self.names = {}
    def _w(self, i, rt=False):
        a = self.a; sp = self.sp
        a(f's_mem{"real" if rt else ""}time s[{sp}:{sp+1}]'); a('s_waitcnt lgkmcnt(0)'); a(f'v_writelane_b32 v{self.v}, s{sp}, {i}')
        if self.T: self.T.ds = []
    def start(self):
        if not self.on: return
        self.a(f's_memrealtime s[{self.sp-2}:{self.sp-1}]'); self.a(f's_memtime s[{self.sp-4}:{self.sp-3}]')
    def init(self, vreg):
        self.v = vreg
        if not self.on: return
        a = self.a
        a(f'v_mov_b32 v{vreg}, 0'); a(f'v_writelane_b32 v{vreg}, s{self.sp-2}, 0'); a(f'v_writelane_b32 v{vreg}, s{self.sp-4}, 1')
    RT = {4: 50, 12: 51, 20: 52, 24: 53, 28: 54, 32: 55}
    def mark(self, i, name=None):
        if not self.on or self.on == 3: return
        if self.on >= 4:
            self.nj = getattr(self, 'nj', 0) + 1; a = self.a; sp = self.sp
            a('s_cselect_b32 s97, 1, 0'); a(f's_memtime s[{sp}:{sp+1}]'); a('s_waitcnt lgkmcnt(0)')
            a(f's_and_b32 s{sp}, s{sp}, {0x1c if self.on == 4 else 0xc}'); a(f's_cbranch_scc1 L_jit{self.nj}'); a(f's_sleep {40 if self.on == 4 else 12}'); a.label(f'L_jit{self.nj}')
            a('s_cmp_lg_u32 s97, 0')
            if self.T: self.T.ds = []
            return
        self._w(i)
        if self.on >= 2 and i in self.RT: self._w(self.RT[i], True)
    def item(self, i, name=None):
        return ('call', lambda: self.mark(i, name))
    def flush(self, srdws, off, sW, vL):
        if not self.on: return
        a = self.a; sp = self.sp
        a('s_mov_b64 exec, -1'); a('s_waitcnt vmcnt(0)'); self._w(62); self._w(63, True)
        a(f's_getreg_b32 s{sp}, hwreg(HW_REG_XCC_ID)'); a(f'v_writelane_b32 v{self.v}, s{sp}, 61')
        a(f's_lshl_b32 s{sp}, s2, 3'); a(f's_add_u32 s{sp}, s{sp}, s{sW}'); a(f's_lshl_b32 s{sp}, s{sp}, 8'); a(f's_add_u32 s{sp}, s{sp}, {off}')
        a(f'v_lshlrev_b32 v0, 2, v{vL}')
        a(f'buffer_store_dword v{self.v}, v0, s[{srdws}:{srdws+3}], s{sp} offen')
```

```python
import sys, struct
from asmlib import *

NAME = 'recurrent_scan__sliding_block__dense_activation_silu__prompt'
OPT = dict(stamp=0, spin=200000, hp=1, rotf=1, rot=1, w1e=1, aq=14, tw=0, hd=1, hm=1, hw=0, hh=0, hs=0, early=5, ap=3, ew=2, smp=27, nres=8, bp2=2, ap2=1, of=9, tlb=0, bc=-1, bq=0, wv=0, fa=0, we=26, tsh=21, hwo=1, n1=15, sp=6, gon=24, cp=1, fp=1, f0=27, cfs=24, pl=2, sy=0, lag=2, pa=-1, pb=0, od=16, vo=1, tr=1, fpk=1, be=0, bw=12, sc=0, w2w=0, ve=1, mid=1, so=0, ps=4, ea=1, osc=1, vs=0, stg=0, ds=0, sa=8, lc=1, bp1=2, xe=1, ro=1, rc=0, rt=0, ta=-1, tb=-1, tc=-1, qa=8, hsl=24, rh=8)
for x in sys.argv[2:]:
    k, v = x.split('='); OPT[k] = int(v)
def f2u(x): return struct.unpack('<I', struct.pack('<f', x))[0]

QKVF = 0; HF = 0x600000; OF = 0xE00000; FLAGS = 0x1200000; STAMP = 0x1100000; WS_USED = 0x1400000
FSH = 7; F1 = 0x40000; F2 = 2 * F1
OSH = OPT.get('osh', 7)
OFL = 0x1000000
CSG = 0x1080000
sN = 80
XBYTES = 2048 * 448 * 2
LOG2E = 1.4426950408889634
pX, pWQ, pWO, pW1, pW2, pOUT, pDBG = 4, 6, 8, 12, 14, 16, 18
SWS, SA, SB, SC = 20, 24, 28, 32
sI, sRB, sJ, sROT, sHD, sRBA, sTB, sCB = 36, 37, 38, 39, 40, 41, 42, 43
sW = 10; sIDX = 11
t0, t1, t2, t3, t4 = 3, 44, 45, 46, 47
sM = 48
def R4(b): return f's[{b}:{b+3}]'
S = R4(SWS)
def SL(p): return (p % 3) * 32768
W1B = (98304, 32768)
def W1P(L, q): return W1B[L] + 8192 * q
KB = 98304; VB = 49152; WOB = (49152, 98304); SXB = (78848, 128000)
RA2 = 90112
def slot_addr(slot): return slot*8192 if slot < 6 else (RA2 if slot == 6 else 137216 + (slot - 7)*8192)
CS = 161792
STX = 155648
SYNC = CS + 1920
cCS0, cL1, cCS1, cAD, cB = 0, 4, 8, 12, 16
LDS_TOTAL = 163840

a = Asm(); T = Tr(a)
st = Stamps2(a, OPT['stamp'], T)
uid = [0]
def lab(p):
    uid[0] += 1; return f'L_{p}_{uid[0]}'
def srd(d, ptr, size):
    a(f's_mov_b32 s{d}, s{ptr}'); a(f's_and_b32 s{d+1}, s{ptr+1}, 0xffff'); a(f's_mov_b32 s{d+2}, {size}'); a(f's_mov_b32 s{d+3}, 0x20000')

def poll(vaddr, soff, nl, imm, vtmp, sleep=1):
    L = lab('poll'); E = lab('polle')
    a(f's_mov_b64 exec, {(1 << nl) - 1}'); a(f's_mov_b32 s{t4}, 0')
    a.label(L)
    a(f'buffer_load_dwordx2 {vr(vtmp,2)}, v{vaddr}, {S}, {soff} offen offset:{imm} sc1')
    a(f's_add_u32 s{t4}, s{t4}, 1')
    a('s_waitcnt vmcnt(0)')
    a(f'v_cmp_ne_u64 vcc, s[{sN}:{sN+1}], {vr(vtmp,2)}')
    a(f's_cbranch_vccz {E}')
    if sleep: a(f's_sleep {max(sleep, OPT.get("ps", 1))}')
    a(f's_cmp_lt_u32 s{t4}, {OPT["spin"]}'); a(f's_cbranch_scc1 {L}')
    a.label(E)
    a('s_mov_b64 exec, -1')
    T.vm = []
vN = 62
def nonce_take(sampled):
    L = lab('nz'); E = lab('nze')
    a(f's_mov_b32 s{t4}, 0')
    if sampled: T(('wvm', 'go')); a(f's_branch {L}c')
    a.label(L)
    a(f'buffer_load_dwordx2 {vr(vN,2)}, v{vZ}, s[60:63], 0 offen sc1'); a('s_waitcnt vmcnt(0)')
    a.label(L + 'c')
    a(f'v_readfirstlane_b32 s{sN+1}, v{vN+1}'); a(f'v_readfirstlane_b32 s{sN}, v{vN}'); a(f's_add_u32 s{t4}, s{t4}, 1')
    a(f's_cmp_lg_u32 s{sN+1}, 0'); a(f's_cbranch_scc1 {E}')
    a('s_sleep 2'); a(f's_cmp_lt_u32 s{t4}, {OPT["spin"]}'); a(f's_cbranch_scc1 {L}')
    a.label(E)

vL, vL16, vSy, vZ, vTt = 1, 2, 7, 8, 11
def spin(off, val, sleep=0):
    L = lab('sp'); E = lab('spe')
    a(f's_mov_b32 s{t4}, 0')
    a.label(L)
    a(f'ds_read_b32 v{vTt}, v{vSy} offset:{off}'); a(f's_add_u32 s{t4}, s{t4}, 1'); a('s_waitcnt lgkmcnt(0)')
    a(f'v_cmp_gt_u32 vcc, {val}, v{vTt}')
    a(f's_cbranch_vccz {E}')
    sleep = max(sleep, OPT.get('ss', 0))
    if sleep: a(f's_sleep {sleep}')
    a(f's_cmp_lt_u32 s{t4}, {OPT["spin"]*8}'); a(f's_cbranch_scc1 {L}')
    a.label(E)
    T.ds = []
def arrive(off):
    a('s_mov_b64 exec, 1'); a(f'v_mov_b32 v{vTt}, 1'); T(('ds', 'arr', f'ds_add_u32 v{vSy}, v{vTt} offset:{off}')); a('s_mov_b64 exec, -1')

def flag_store(imm, soff):
    o = [f'v_lshlrev_b32 v{vTt}, 3, v{vL}']
    if imm >= 4096:
        o.append(f'v_add_u32 v{vTt}, {imm}, v{vTt}'); imm = 0
    return o + [f's_mov_b64 exec, {0xffff if OPT.get("ff", 1) else 1}', ('vm', 'flag', f'buffer_store_dwordx2 {vr(vN,2)}, v{vTt}, {S}, s{soff} offen offset:{imm} sc1'), 's_mov_b64 exec, -1']

def tr_base(vd, vt, natural):
    a(f'v_lshrrev_b32 v{vd}, 5, v{vL}'); a(f'v_bfe_u32 v{vt}, v{vL}, 2, 2'); a(f'v_lshl_add_u32 v{vd}, v{vd}, {3 if natural else 2}, v{vt}')
    a(f'v_lshlrev_b32 v{vd}, 7, v{vd}')
    a(f'v_bfe_u32 v{vt}, v{vL}, 3, 1'); a(f'v_lshl_add_u32 v{vd}, v{vt}, 6, v{vd}')
    a(f'v_bfe_u32 v{vt}, v{vL}, 4, 1'); a(f'v_lshl_add_u32 v{vd}, v{vt}, 5, v{vd}')
    a(f'v_and_b32 v{vt}, 3, v{vL}'); a(f'v_lshl_add_u32 v{vd}, v{vt}, 3, v{vd}')

def full_pat(vd, vt, vt2, stride):
    a(f'v_lshrrev_b32 v{vt}, 3, v{vL}'); a(f'v_mul_u32_u24 v{vd}, {stride}, v{vt}')
    a(f'v_bfe_u32 v{vt}, v{vL}, 4, 1'); a(f'v_lshlrev_b32 v{vt}, 2, v{vt}'); a(f'v_and_b32 v{vt2}, 7, v{vL}'); a(f'v_xor_b32 v{vt}, v{vt}, v{vt2}')
    a(f'v_lshl_add_u32 v{vd}, v{vt}, 4, v{vd}')

def mfma(d, A, B, first=False): return f'v_mfma_f32_32x32x16_bf16 {vr(d,16)}, {vr(A,4)}, {vr(B,4)}, ' + ('0' if first else vr(d, 16))
def mfma16(d, A, B, first=False): return f'v_mfma_f32_16x16x32_bf16 {vr(d,4)}, {vr(A,4)}, {vr(B,4)}, ' + ('0' if first else vr(d, 4))

def silu_ops(b, tmp, n, sNeg):
    o = []
    for g in range(0, n, 4):
        ks = range(g, g + 4)
        o += [f'v_mul_f32 v{tmp+k}, s{sNeg}, v{b+k}' for k in ks]
        o += [f'v_exp_f32 v{tmp+k}, v{tmp+k}' for k in ks]
        o += [f'v_add_f32 v{tmp+k}, 1.0, v{tmp+k}' for k in ks]
        o += [f'v_rcp_f32 v{tmp+k}, v{tmp+k}' for k in ks]
        o += [f'v_mul_f32 v{b+k}, v{tmp+k}, v{b+k}' for k in ks]
    return o

K = NAME + '_kernel'
a.raw(f'.globl {K}'); a.raw('.p2align 8'); a.raw(f'.type {K},@function'); a.label(K)
a('s_cmp_ge_u32 s2, 256'); a('s_cbranch_scc1 L_end')
a('s_load_dwordx16 s[4:19], s[0:1], 0'); a('s_load_dwordx2 s[20:21], s[0:1], 64')
st.start()
a(f'v_readfirstlane_b32 s{t1}, v0')
if OPT['cp']: a('s_getpc_b64 s[92:93]'); a.label('L_pc0')
a(f's_lshr_b32 s{t2}, s2, 3')
if OPT['cp']:
    a(f's_lshl_b32 s{t0}, s{t2}, 9'); a(f's_add_u32 s{t0}, s{t0}, s{t1}'); a(f's_mul_i32 s{t0}, s{t0}, 5'); a(f's_lshr_b32 s{t0}, s{t0}, 1'); a(f's_min_u32 s{t0}, s{t0}, L_end-L_pc0-132')
    a(f's_load_dword s91, s[92:93], s{t0}'); a(f's_load_dword s90, s[92:93], s{t0} offset:128')
a(f'v_and_b32 v{vL}, 63, v0'); a(f'v_lshlrev_b32 v{vL16}, 4, v{vL}')
a(f's_and_b32 s{t0}, s2, 7')
a(f's_lshr_b32 s{t1}, s{t1}, 6'); a(f's_and_b32 s{sI}, s{t1}, 3')
a(f's_and_b32 s{sHD}, s{t2}, 1'); a(f's_lshl1_add_u32 s{sHD}, s{t0}, s{sHD}'); a(f's_lshr_b32 s{sRBA}, s{t2}, 1')
a(f's_sub_u32 s{t3}, s{t2}, 4'); a('s_cbranch_scc1 L_helper'); a(f's_lshr_b32 s{sCB}, s{t3}, 2'); a(f's_and_b32 s{t3}, s{t3}, 3')
a(f's_lshl2_add_u32 s{sTB}, s{t0}, s{t3}')
a(f's_lshr_b32 s{sRB}, s{t0}, 1'); a(f's_lshl2_add_u32 s{sRB}, s{sRB}, s{t3}')
a(f's_and_b32 s{sJ}, s{t0}, 1'); a(f's_mul_i32 s{sJ}, s{sJ}, 7'); a(f's_add_u32 s{sJ}, s{sJ}, s{sCB}')
if OPT['rot']:
    a(f's_lshl1_add_u32 s{sROT}, s{t3}, s{sCB}'); a(f's_sub_u32 s{t3}, s{sROT}, 7'); a(f's_min_u32 s{sROT}, s{sROT}, s{t3}')
else: a(f's_mov_b32 s{sROT}, 0')
vXd, vQd, vWd = 240, 244, 30
a(f's_lshl_b32 s{t0}, s{sRB}, 7'); a(f's_lshl_b32 s{t3}, s{sI}, 5'); a(f's_add_u32 s{t0}, s{t0}, s{t3}')
a(f'v_lshrrev_b32 v9, 3, v{vL}'); a(f'v_add_u32 v10, s{t0}, v9'); a(f'v_mul_u32_u24 v{vXd}, 896, v10')
a(f'v_lshrrev_b32 v10, 4, v{vL}'); a(f'v_and_b32 v11, 7, v{vL}'); a('v_xor_b32 v12, v10, v11'); a(f'v_lshl_add_u32 v{vXd}, v12, 4, v{vXd}')
a(f'v_xor_b32 v{vXd+1}, 64, v{vXd}'); a(f'v_add_u32 v{vXd+2}, {2*6144}, v{vXd}'); a(f'v_add_u32 v{vXd+3}, {3*6144}, v{vXd+1}'); a(f'v_add_u32 v{vXd+1}, 6144, v{vXd+1}')
a('v_and_b32 v10, 1, v10'); a('v_lshlrev_b32 v10, 2, v10'); a('v_xor_b32 v10, v10, v11'); a('v_lshlrev_b32 v10, 4, v10')
a(f's_lshl_b32 s{t3}, s{sI}, 4'); a(f'v_add_u32 v9, s{t3}, v9')
a(f's_mul_i32 s{t0}, s{sJ}, 192'); a(f's_and_b32 s{t0}, s{t0}, 0xffffff80'); a(f's_add_u32 s{t0}, s{t0}, 1024'); a(f'v_mul_u32_u24 v{vQd}, 2688, v9'); a(f'v_add3_u32 v{vQd}, v{vQd}, v10, s{t0}')
a(f'v_add_u32 v{vQd+1}, {128-1024}, v{vQd}'); a(f'v_add_u32 v{vQd+2}, {8*2688-2048}, v{vQd}'); a(f'v_add_u32 v{vQd+3}, {8*2688+128-3072}, v{vQd}')
sMx, sMw = 48, 49
a(f's_lshl_b32 s{sMx}, s{sI}, 12')
a(f's_mov_b32 s{SA+2}, {XBYTES}'); a(f's_mov_b32 s{SA+3}, 0x20000'); a(f's_mov_b32 s{SB+2}, {448*2688 + 1024}'); a(f's_mov_b32 s{SB+3}, 0x20000')
def late_decode():
    a(f's_mov_b32 s{sW}, s{t1}'); a(f's_mov_b32 s{sIDX}, s{t2}')
    a(f's_and_b32 s{SWS+1}, s{SWS+1}, 0xffff'); a(f's_mov_b32 s{SWS+2}, {WS_USED}'); a(f's_mov_b32 s{SWS+3}, 0x20000')
def srd_x(): a(f's_mov_b32 s{SA}, s{pX}'); a(f's_and_b32 s{SA+1}, s{pX+1}, 0xffff')
def srd_wq():
    a(f's_sub_u32 s{SB}, s{pWQ}, 1024'); a(f's_subb_u32 s{SB+1}, s{pWQ+1}, 0'); a(f's_and_b32 s{SB+1}, s{SB+1}, 0xffff')
def x_dma(p):
    return [([f's_add_u32 m0, s{sMx}, {SL(p)}', f's_lshl_b32 s{t0}, s{50+p}, 7'] if i == 0 else []) +
            [('vm', f'p{p}', f'buffer_load_dwordx4 v{vXd+i}, {R4(SA)}, s{t0} offen offset:{i*1024} lds')] for i in range(4)]
def wq_dma(p):
    return [([f's_add_u32 m0, s{sMx}, {SL(p) + 16384}', f's_mul_i32 s{t0}, s{50+p}, {64*2688}'] if i == 0 else []) +
            [('vm', f'p{p}', f'buffer_load_dwordx4 v{vQd+i}, {R4(SB)}, s{t0} offen offset:{i*1024} lds')] for i in range(4)]
def w1_dma(L, q):
    return [[f's_add_u32 m0, s{sMw}, {W1P(L, q)}', f's_mul_i32 s{t0}, s{50+q}, {64*3584}'] + ([f's_add_u32 s{t0}, s{t0}, 128'] if L else []) +
            [('vm', f'l{L}', f'buffer_load_dwordx4 v{vWd}, {R4(SC)}, s{t0} offen lds')],
            [('vm', f'l{L}', f'buffer_load_dwordx4 v{vWd+1}, {R4(SC)}, s{t0} offen offset:1024 lds')]]
a(f's_cmp_ge_u32 s{t1}, 4'); a('s_cbranch_scc1 L_B')
a(f's_mov_b32 m0, s{sMx}'); a(f's_lshl_b32 s{t0}, s{sROT}, 7'); a(f's_mul_i32 s{t3}, s{sROT}, {64*2688}')
a('s_waitcnt lgkmcnt(0)')
srd_x()
for i in range(4): a(f'buffer_load_dwordx4 v{vXd+i}, {R4(SA)}, s{t0} offen offset:{i*1024} lds')
a(f's_add_u32 m0, s{sMx}, 16384'); srd_wq()
for i in range(4): a(f'buffer_load_dwordx4 v{vQd+i}, {R4(SB)}, s{t3} offen offset:{i*1024} lds')
late_decode()
st.init(60); st.mark(48)
a('s_branch L_A')
HELPER_AT = len(a.items)

vXa = 12
vT = 16
vNm, vR = 18, 20
vK1, vIr = 22, 23
vCa = 9
vWF = 32
vSel = 56
vAcc = 64
vCs = 96; vTm = 112; vCs2 = 240; vCs3 = 32
vX = 128
sQo, sHo, sFl = 57, 58, 59

def common_setup(role):
    a(f's_lshl_b32 s{t0}, s{sJ}, 8'); a(f'v_mul_u32_u24 v{vWd}, 3584, v9'); a(f'v_add3_u32 v{vWd}, v{vWd}, v10, s{t0}'); a(f'v_add_u32 v{vWd+1}, {8*3584-1024}, v{vWd}')
    a(f's_lshl_b32 s{sMw}, s{sI}, 11')
    for p in range(0, 7):
        a(f's_add_u32 s{50+p}, s{sROT}, {p}'); a(f's_sub_u32 s{t3}, s{50+p}, 7'); a(f's_min_u32 s{50+p}, s{50+p}, s{t3}')
    srd(SC, pW1, 448 * 3584)
    a(f'v_mov_b32 v{vZ}, 0'); a(f'v_mov_b32 v{vSy}, {SYNC}')
    a(f'v_and_b32 v10, 31, v{vL}'); a(f'v_lshlrev_b32 v{vXa}, 7, v10'); a(f'v_bfe_u32 v10, v{vL}, 1, 3'); a(f'v_lshrrev_b32 v11, 5, v{vL}')
    a('v_xor_b32 v10, v10, v11'); a(f'v_lshl_add_u32 v{vXa}, v10, 4, v{vXa}'); a(f'v_add_u32 v{vXa}, s{sMx}, v{vXa}')
    for s in range(1, 4): a(f'v_xor_b32 v{vXa+s}, {32*s}, v{vXa}')
    a(f'v_lshlrev_b32 v{vCa}, 4, v11'); a(f'v_add_u32 v{vCa}, {CS}, v{vCa}')
    tr_base(24, 10, True)
    a(f'v_lshl_add_u32 v27, v11, 10, v24')
    a(f's_and_b32 s{t0}, s{sJ}, 1')
    for k in range(2):
        if role == 'A': a(f's_add_u32 s{t1}, s{t0}, {k}')
        elif k == 0: a(f's_add_u32 s{t1}, s{t0}, 2')
        else: a(f's_min_u32 s{t1}, s{sI}, 2'); a(f's_add_u32 s{t1}, s{t1}, s{t0}')
        a(f's_and_b32 s{t2}, s{t1}, 1'); a(f's_lshl_b32 s{t2}, s{t2}, 6'); a(f's_lshr_b32 s{t1}, s{t1}, 1'); a(f's_lshl_b32 s{t1}, s{t1}, 10'); a(f's_add_u32 s{t1}, s{t1}, 16384')
        a(f'v_xor_b32 v{vT+k}, s{t2}, v27'); a(f'v_add_u32 v{vT+k}, s{t1}, v{vT+k}')
    a(f'v_and_b32 v10, 15, v{vL}'); a(f'v_bfe_u32 v11, v{vL}, 4, 1'); a('v_cmp_eq_u32 vcc, v10, v11'); a('v_mov_b32 v10, 0x3f803f80')
    for k in range(4 if role == 'B' else 0): a(f'v_cndmask_b32 v{vSel+k}, 0, v10, vcc')
    r = 0 if role == 'A' else 1
    a(f's_lshl2_add_u32 s{t0}, s{sRB}, s{sI}')
    a(f's_mul_i32 s{sQo}, s{t0}, 84'); a(f's_mul_i32 s{t1}, s{sJ}, 6'); a(f's_add_u32 s{sQo}, s{sQo}, s{t1}'); a(f's_add_u32 s{sQo}, s{sQo}, {4*r}'); a(f's_lshl_b32 s{sQo}, s{sQo}, 10')
    a(f's_mul_i32 s{sHo}, s{t0}, 112'); a(f's_lshl3_add_u32 s{sHo}, s{sJ}, s{sHo}'); a(f's_lshl_b32 s{sHo}, s{sHo}, 10'); a(f's_add_u32 s{sHo}, s{sHo}, {HF + 2048*(1-r)}')
    a(f's_mul_i32 s{sFl}, s{t0}, 14'); a(f's_add_u32 s{sFl}, s{sFl}, s{sJ}'); a(f's_lshl_b32 s{sFl}, s{sFl}, {FSH+1}'); a(f's_add_u32 s{sFl}, s{sFl}, {FLAGS + (r << FSH)}')

sOK = 19
def cs_load(role):
    hf = 1 if role == 'A' else 0
    a(f's_lshl_b32 s{t0}, s{sJ}, 10'); a(f's_add_u32 s{t0}, s{t0}, {CSG + hf*128}'); a(f's_mov_b32 m0, {CS + 384 + hf*256}')
    a(f'v_lshrrev_b32 v10, 5, v{vL}'); a('v_lshlrev_b32 v10, 7, v10'); a(f'v_and_b32 v11, 31, v{vL}'); a('v_add_lshl_u32 v10, v10, v11, 2')
    a(f'buffer_load_dword v10, {S}, s{t0} offen sc1 lds')
def cs_try(role):
    E = lab('cst')
    T(('wvm', 'cf')); a(f'v_cmp_ne_u64 vcc, s[{sN}:{sN+1}], v[28:29]'); a(f's_mov_b32 s{sOK}, vcc_lo'); a(f's_cbranch_vccnz {E}')
    cs_load(role)
    a.label(E)
def cs_late(role):
    E = lab('csl')
    a(f's_cmp_eq_u32 s{sOK}, 0'); a(f's_cbranch_scc1 {E}')
    a(f's_lshl_b32 s{t1}, s{sJ}, 10'); a(f's_add_u32 s{t1}, s{t1}, {CSG}')
    keep = list(T.vm)
    poll(25, f's{t1}', 2, 256, 28)
    cs_load(role); a('s_waitcnt vmcnt(0)')
    T.vm = keep
    a.label(E)
    hf = 1 if role == 'A' else 0
    for L in range(2):
        for g in range(4): T(('ds', f'hc{L}', f'ds_read_b128 {vr((vCs2, vCs)[L]+4*g,4)}, v{vCa} offset:{384 + hf*256 + L*128 + g*32}'))
    T(('wds', 'hc0'))
def touch(k):
    n = 28 if k < 2 else 14
    a(f's_sub_u32 s{t1}, s{sIDX}, 4'); a(f's_lshl3_add_u32 s{t1}, s{t1}, s{sW}'); a(f's_mul_i32 s{t1}, s{t1}, {56 if k < 2 else 14}')
    if k == 1: a(f's_add_u32 s{t1}, s{t1}, 28')
    a(f'v_min_u32 v61, {n-1}, v{vL}'); a(f'v_add_lshl_u32 v61, v61, s{t1}, 7')
    p = pW2 if k < 2 else pWO
    T(('vm', 'pf', f'global_load_dword v{252+k}, v61, s[{p}:{p+1}]'))
def p1a(role):
    A_ = role == 'A'
    vS = vTm
    def xreads(p): return [('ds', f'x{p}', f'ds_read_b128 {vr(vX+16*p+4*s,4)}, v{vXa+s} offset:{SL(p) & 0xffff}') for s in range(4)]
    def wreads(n):
        p = n >> 2; s = n & 3; b = n % 3
        return [('ds', f'w{n}', f'ds_read_b64_tr_b16 {vr(vWF+8*b+4*t+2*q,2)}, v{vT+t} offset:{(SL(p) & 0xffff) + s*4096 + q*512}') for t in range(2) for q in range(2)]
    def hop(p):
        d = (SL(p) & ~0xffff) - (SL(p - 1) & ~0xffff)
        if d == 0: return []
        op = 'v_add_u32' if d > 0 else 'v_subrev_u32'
        return [f'{op} v{v}, {abs(d)}, v{v}' for v in (vXa, vXa+1, vXa+2, vXa+3, vT, vT+1)]
    VS = OPT['vs']
    if VS or not A_:
        for r in range(4): a(f'v_mov_b32 v{vS+r}, 0')
        a(f'v_mov_b32 v{vS+4}, 0x3f803f80')
    def stats(p):
        ds = range(0, OPT['sa']) if A_ else range(OPT['sa'], 16)
        o = []
        for i, d in enumerate(ds):
            r = vX + 16*p + d; t = vS + 6 + 2*(i & 3)
            o.append([f'v_lshlrev_b32 v{t}, 16, v{r}', f'v_and_b32 v{t+1}, 0xffff0000, v{r}', f'v_add_f32 v{vS}, v{vS}, v{t}', f'v_add_f32 v{vS+1}, v{vS+1}, v{t+1}',
                      f'v_fmac_f32 v{vS+2}, v{t}, v{t}', f'v_fmac_f32 v{vS+3}, v{t+1}, v{t+1}'])
        res = []
        for i in range(0, len(o), 2):
            g = o[i:i+2]
            res += [x[0] for x in g] + [x[1] for x in g]
            for x in g: res += [x[2], x[4], x[3], x[5]]
        return res
    plan = {}
    for p in range(5): plan[p] = x_dma(p + 2) if A_ else wq_dma(p + 2)
    plan[5] = []; plan[6] = []
    PL = {0: ([(1,0,0),(2,0,2),(3,0,4),(4,0,6),(5,1,0),(5,1,2),(6,1,4),(6,1,6)], [(2,0,1),(3,0,3),(4,0,5),(5,1,1),(5,1,3),(6,1,5)]),
          1: ([(2,0,0),(3,0,1),(4,0,2),(5,0,3),(5,0,5),(5,1,0),(6,1,2),(6,1,4),(6,1,6)], [(5,0,4),(5,0,6),(6,1,1),(6,1,3),(6,1,5)]),
          2: ([(1,0,0),(2,0,1),(3,0,2),(4,0,3),(5,0,4),(5,0,6),(5,1,0),(6,1,2),(6,1,4),(6,1,5),(6,1,6)], [(5,0,5),(5,1,1),(6,1,3)]),
          3: ([(4,0,0),(5,0,1),(5,0,3),(5,0,5),(6,1,0),(6,1,2),(6,1,4),(6,1,6)], [(5,0,2),(5,0,4),(5,0,6),(6,1,1),(6,1,3),(6,1,5)])}[OPT['pl']]
    for p, L, q in PL[0 if A_ else 1]: plan[p] += w1_dma(L, q)
    st.mark(2); T(('w', 'p0', '*')); st.mark(3); a('s_barrier'); st.mark(4)
    xr = xreads(0)
    T(xr[:1] + wreads(0) + xr[1:2] + wreads(1) + xr[2:])
    for n in range(28):
        p = n >> 2; s = n & 3; b = n % 3
        ms = [[mfma(vAcc, vWF+8*b, vX+4*n, n == 0)], [mfma(vAcc+16, vWF+8*b+4, vX+4*n, n == 0) if A_ else mfma16(vAcc+16, vWF+8*b+4, vSel, n == 0)]]
        fill = []
        if s == 2 and p < 6:
            T(('w', f'p{p+1}', '*'))
            if p in (1, 4): st.mark(5 + p)
            a('s_barrier')
            if p in (1, 4): st.mark(6 + p)
            T(hop(p + 1))
            fill = xreads(p + 1)[:2] + wreads(n + 2)
        else:
            T(('wds', f'w{n}'))
            if s == 3 and p < 6: fill = xreads(p + 1)[2:]
            if n + 2 < 28: fill = fill + wreads(n + 2)
        ip, slot = (p + 1, s - 2) if s >= 2 else (p, s + 2)
        if ip <= 6:
            u = plan[ip]; k = len(u)
            if ip == 0: lo, hi = (slot - 2) * k // 2, (slot - 1) * k // 2
            else: lo, hi = (slot * k + 3) // 4, ((slot + 1) * k + 3) // 4
            for x in u[lo:hi]: fill += x
        if VS:
            so = stats(p); L = len(so)
            if p < 6: part = {1: so[:L//3], 2: so[L//3:2*L//3]}.get(s, [])
            else: part = {1: so[:L//2], 2: so[L//2:]}.get(s, [])
            if s == 0 and p > 0: pr = stats(p - 1); part = pr[2*len(pr)//3:]
            fill += part
        T(weave(ms, fill))
        if not VS and not A_ and s == 1:
            if p == 0: T(('wds', 'x0'))
            for d in range(16):
                r = vX + 16*p + d
                a(f'v_dot2c_f32_bf16 v{vS + (d&1)}, v{r}, v{vS+4}'); a(f'v_dot2c_f32_bf16 v{vS + 2 + (d&1)}, v{r}, v{r}')
        for k, key in enumerate(('ta', 'tb', 'tc')):
            if n == OPT[key]: touch(k)
        if n == 26 and A_ and OPT['xe']: final_setup()
        if n == OPT.get('gon', 14): T(('vm', 'go', f'buffer_load_dwordx2 {vr(vN,2)}, v{vZ}, s[60:63], 0 offen sc1'))
        if n == OPT['cfs']:
            a(f's_lshl_b32 s{t1}, s{sJ}, 10'); a(f's_add_u32 s{t1}, s{t1}, {CSG}'); a(f'v_and_b32 v25, 1, v{vL}'); a('v_lshlrev_b32 v25, 9, v25')
            T(('vm', 'cf', f'buffer_load_dwordx2 v[28:29], v25, {S}, s{t1} offen offset:256 sc1'))
        if (VS or not A_) and n == 26:
            a(f'v_add_f32 v{vS}, v{vS}, v{vS+1}'); a(f'v_add_f32 v{vS+2}, v{vS+2}, v{vS+3}')
            a(f'v_mov_b32 v{vS+1}, v{vS}'); a(f'v_mov_b32 v{vS+3}, v{vS+2}')
            a(f'v_and_b32 v21, 31, v{vL}'); a(f's_lshl_b32 s{t1}, s{sI}, 8'); a(f's_add_u32 s{t1}, s{t1}, {STX}'); a(f'v_lshl_add_u32 v21, v21, 3, s{t1}')
            a(f'v_permlane32_swap_b32 v{vS}, v{vS+1}'); a(f'v_permlane32_swap_b32 v{vS+2}, v{vS+3}')
            a(f'v_add_f32 v{vNm}, v{vS}, v{vS+1}'); a(f'v_add_f32 v{vNm+1}, v{vS+2}, v{vS+3}')
            T(('ds', 'st', f'ds_write_b64 v21, {vr(vNm,2)} offset:{0 if A_ else 1024}'))
    if not A_:
        a(f's_min_u32 s{t0}, s{sI}, 2'); a(f's_lshl_b32 s{t0}, s{t0}, 7'); a(f's_add_u32 s{t0}, s{t0}, {CS}')
        a(f'v_and_b32 v10, 1, v{vL}'); a('v_lshlrev_b32 v10, 6, v10'); a(f'v_and_b32 v11, 48, v{vL}'); a(f'v_add3_u32 v10, v10, v11, s{t0}')
        a('s_mov_b32 exec_lo, 0x00030003'); a('s_mov_b32 exec_hi, 0x00030003')
        T(('ds', 'st', f'ds_write_b128 v10, {vr(vAcc+16,4)}'))
        a('s_mov_b64 exec, -1')
    T(('wvm', 'l0'))
    if not OPT['lc']: nonce_take(True); cs_try(role)
    if A_: a(f's_setprio {OPT.get("aq3", 3)}')
    T(('wds', '*')); st.mark(11); a('s_barrier'); st.mark(12)
    if A_ and OPT['ew'] == 0: a_early()
    if not VS and A_:
        a(f'v_and_b32 v21, 31, v{vL}'); a(f's_lshl_b32 s{t1}, s{sI}, 8'); a(f's_add_u32 s{t1}, s{t1}, {STX}'); a(f'v_lshl_add_u32 v21, v21, 3, s{t1}')
    if VS: T(('ds', 'st', f'ds_read_b64 v[22:23], v21 offset:{1024 if A_ else 0}'))
    elif A_: T(('ds', 'st', f'ds_read_b64 {vr(vNm,2)}, v21 offset:1024'))
    tiles = (0, 1) if A_ else (2,)
    for k, t in enumerate(tiles):
        for g in range(4): T(('ds', f'cs{k}', f'ds_read_b128 {vr(vCs+16*k+4*g,4)}, v{vCa} offset:{t*128 + g*32}'))
    E = [('wds', 'st')]
    if VS: E += [f'v_add_f32 v{vNm}, v{vNm}, v22', f'v_add_f32 v{vNm+1}, v{vNm+1}, v23']
    E += [f'v_mul_f32 v{vNm}, {f2u(-1.0/448):#x}, v{vNm}', f'v_mul_f32 v{vNm+1}, {f2u(1.0/448):#x}, v{vNm+1}',
          f'v_fma_f32 v{vNm+1}, -v{vNm}, v{vNm}, v{vNm+1}', f'v_max_f32 v{vNm+1}, 0, v{vNm+1}', f'v_add_f32 v{vNm+1}, {f2u(1e-5):#x}, v{vNm+1}',
          f'v_rsq_f32 v{vR}, v{vNm+1}', f'v_sqrt_f32 v{vIr}, v{vNm+1}', f'v_mov_b32 v{vNm+1}, v{vNm}', f'v_mul_f32 v{vK1}, {f2u(-LOG2E):#x}, v{vR}']
    for k, t in enumerate(tiles):
        E.append([f's_mul_i32 s{t0}, s{sJ}, 3', f's_cmp_lt_u32 s{t0}, {14 - t}', f's_cselect_b32 s{t0}, {f2u(28**-0.5*LOG2E):#x}, 1.0', f'v_mul_f32 v26, s{t0}, v{vR}'])
        b = vAcc + 16*k
        E.append(('wds', f'cs{k}'))
        if OPT['be']:
            for s_ in range(2):
                E += [f'v_fma_f32 v{b+j}, v{vCs+16*k+j}, v{vNm}, v{b+j}' for j in range(8*s_, 8*s_ + 8)]
                E += [f'v_mul_f32 v{b+j}, v26, v{b+j}' for j in range(8*s_, 8*s_ + 8)]
                E += [f'v_cvt_pk_bf16_f32 v{b+4*s_+j}, v{b+8*s_+2*j}, v{b+8*s_+2*j+1}' for j in range(4)]
                E.append(('vm', 'q', f'buffer_store_dwordx4 {vr(b+4*s_,4)}, v{vL16}, {S}, s{sQo} offen offset:{k*2048 + s_*1024} sc1'))
        else:
            E.append('v_mov_b32 v27, v26')
            E += [f'v_pk_fma_f32 {vr(b+j,2)}, {vr(vCs+16*k+j,2)}, {vr(vNm,2)}, {vr(b+j,2)}' for j in range(0, 16, 2)]
            E += [f'v_pk_mul_f32 {vr(b+j,2)}, {vr(b+j,2)}, v[26:27]' for j in range(0, 16, 2)]
            for s_ in range(2):
                E += [f'v_cvt_pk_bf16_f32 v{b+4*s_+j}, v{b+8*s_+2*j}, v{b+8*s_+2*j+1}' for j in range(4)]
                E.append(('vm', 'q', f'buffer_store_dwordx4 {vr(b+4*s_,4)}, v{vL16}, {S}, s{sQo} offen offset:{k*2048 + s_*1024} sc1'))
    def chk():
        if OPT['lc']: nonce_take(True); cs_try(role)
    if OPT['be'] and not A_:
        W = OPT['bw']; ex = {n: E[n*len(E)//W:(n+1)*len(E)//W] for n in range(W)}
        ex[W + 2] = [('call', chk)]
        return ex
    T(E)
    if not A_ and OPT['bc'] >= 0:
        st.mark(13)
        return {OPT['bc']: [('call', chk)]}
    if A_: T(('wvm', 'l1')); arrive(cL1)
    chk()
    st.mark(13)
    return {}

NR = 6; PD = 4
def h_tile(L, hf, acc, ex={}):
    def rd(n): return [('ds', f'u{n}', f'ds_read_b64_tr_b16 {vr(vWF+4*(n%NR)+2*q,2)}, v{vT+L} offset:{W1P(L, n>>2) - W1B[L] + (16*(n&3)+4*q)*128}') for q in range(2)]
    for n in range(PD): T(rd(n))
    for n in range(28):
        if n + PD < 28: T(rd(n + PD))
        if n & 1 == 0: T(('wds', f'u{n+1}'))
        a(mfma(acc, vWF + 4*(n % NR), vX + 4*n, n == 0))
        if n in ex: T(ex[n])
def h_epi_items(acc, k, vCs, mid=None):
    o = []
    for g in range(0, 16, 4):
        ks = range(g, g + 4)
        o += [f'v_fma_f32 v{acc+j}, v{vCs+j}, v{vNm}, v{acc+j}' for j in ks]
        o += [f'v_mul_f32 v{vTm+j}, v{vK1}, v{acc+j}' for j in ks]
        o += [f'v_exp_f32 v{vTm+j}, v{vTm+j}' for j in ks]
        o += [f'v_fma_f32 v{vTm+j}, v{vTm+j}, v{vIr}, v{vIr}' for j in ks]
        o += [f'v_rcp_f32 v{vTm+j}, v{vTm+j}' for j in ks]
        o += [f'v_mul_f32 v{acc+j}, v{vTm+j}, v{acc+j}' for j in ks]
        if g == 4 and mid: o += mid
        if g & 4:
            s = g >> 3
            o += [f'v_cvt_pk_bf16_f32 v{acc+4*s+j}, v{acc+8*s+2*j}, v{acc+8*s+2*j+1}' for j in range(4)]
            o.append(('vm', f'h{k}', f'buffer_store_dwordx4 {vr(acc+4*s,4)}, v{vL16}, {S}, s{sHo} offen offset:{s*1024} sc1'))
    if k == 0: o.append(f's_add_u32 s{sHo}, s{sHo}, 4096')
    return o
def h_epi(acc, k, vCs, mid=None): T(h_epi_items(acc, k, vCs, mid))
def spread(items, ex, lo, hi):
    w = weave([[('mark', n)] for n in range(lo, hi)], items); cur = None
    for it in w:
        if isinstance(it, tuple) and it[0] == 'mark': cur = it[1]; ex.setdefault(cur, []); pos = 0
        else: ex[cur].insert(pos, it); pos += 1
    return ex

sST0, sG0, sTQ, sT7, sCT, sTT, sTo, sKI, sFl2 = 82, 83, 84, 85, 86, 87, 88, 89, 90
vFl = 5; vQ = 32
def att_setup():
    a(f's_mul_i32 s{t0}, s{sHD}, 7'); a(f's_lshr_b32 s{sST0}, s{t0}, 2'); a(f's_and_b32 s{sG0}, s{t0}, 3')
    a(f's_lshl2_add_u32 s{sTQ}, s{sRBA}, s{sI}')
    a(f's_mul_i32 s{t0}, s{sI}, 3'); a(f's_lshl2_add_u32 s{t0}, s{sRBA}, s{t0}'); a(f's_sub_u32 s{sT7}, s{t0}, 8')
    a(f's_and_b32 s{sCT}, s{sI}, 1'); a(f's_lshr_b32 s{sTT}, s{sI}, 1'); a(f's_lshl1_add_u32 s{sTo}, s{sTB}, s{sTT}')
    a(f'v_min_u32 v10, 13, v{vL}')
    a(f'v_lshrrev_b32 v26, 2, v10'); a(f'v_add_u32 v26, s{sT7}, v26'); a('v_max_i32 v26, 0, v26')
    a(f'v_bfe_u32 v27, v10, 1, 1'); a('v_mul_u32_u24 v27, 28, v27'); a('v_add_u32 v27, 28, v27')
    a(f'v_cmp_le_u32 vcc, 12, v10'); a(f'v_mov_b32 v28, s{sTQ}')
    a('v_cndmask_b32 v26, v26, v28, vcc'); a(f'v_cndmask_b32 v27, v27, v{vZ}, vcc')
    a(f'v_and_b32 v28, 1, v10'); a('v_lshl_add_u32 v27, v28, 1, v27'); a(f'v_add_u32 v27, s{sST0}, v27')
    a('v_lshrrev_b32 v27, 1, v27'); a('v_min_u32 v27, 41, v27')
    a('v_mul_u32_u24 v28, 43, v27'); a('v_lshrrev_b32 v28, 7, v28')
    a('v_mul_u32_u24 v29, 3, v28'); a('v_sub_u32 v29, v27, v29'); a('v_lshrrev_b32 v29, 1, v29')
    a('v_mul_u32_u24 v26, 14, v26'); a('v_add_lshl_u32 v26, v26, v28, 1'); a(f'v_add_lshl_u32 v{vFl}, v26, v29, {FSH}')
    a(f'v_add_u32 v{vFl}, {FLAGS}, v{vFl}')
    assert all((x * 43) >> 7 == x // 3 for x in range(42))
    a(f'v_lshrrev_b32 v26, 5, v{vL}'); a('v_add_u32 v26, 2, v26'); a(f'v_add_u32 v27, {0x40000000 if OPT["tr"] else 0}, v{vL16}')
    a(f'v_cmp_gt_u32 vcc, s{sG0}, v26'); a(f'v_cndmask_b32 v3, v{vL16}, v27, vcc')
    a(f'v_cmp_lt_u32 vcc, s{sG0}, v26'); a(f'v_cndmask_b32 v4, v{vL16}, v27, vcc')
SBUF = 49152
vXo2 = 61; vXv = 56
def final_setup():
    a(f's_lshl3_add_u32 s{t0}, s{sTB}, s{sW}'); a(f's_lshl_b32 s{t0}, s{t0}, 3'); a(f'v_lshrrev_b32 v10, 3, v{vL}'); a(f'v_add_u32 v10, s{t0}, v10')
    a(f'v_mul_u32_u24 v{vXo2}, 896, v10'); a(f'v_and_b32 v10, 7, v{vL}'); a(f'v_lshl_add_u32 v{vXo2}, v10, 4, v{vXo2}')
    a(f's_lshl_b32 s{t0}, s{sCB}, 7'); a(f'v_add_u32 v{vXo2}, s{t0}, v{vXo2}')
    T(('vm', 'x', f'global_load_dwordx4 {vr(vXv,4)}, v{vXo2}, s[{pX}:{pX+1}]'))
def xaddr(vd):
    a(f'v_lshrrev_b32 v10, 5, v{vL}'); a(f'v_and_b32 v11, 7, v{vL}'); a('v_xor_b32 v10, v10, v11'); a(f'v_lshlrev_b32 v{vd}, 8, v11'); a(f'v_lshl_add_u32 v{vd}, v10, 4, v{vd}')
def final_stage():
    vA0, vA1, vB0, vB1 = 12, 13, 14, 15
    srd(SC, pOUT, XBYTES)
    a(f'v_lshrrev_b32 v10, 3, v{vL}'); a(f'v_and_b32 v11, 7, v{vL}'); a('v_lshlrev_b32 v11, 1, v11'); a('v_xor_b32 v11, v11, v10')
    a('v_lshlrev_b32 v10, 8, v10'); a('v_lshl_add_u32 v10, v11, 4, v10')
    a(f's_lshl_b32 s{t0}, s{sW}, 13'); a(f's_cmp_eq_u32 s{sW}, 6'); a(f's_cselect_b32 s{t0}, {slot_addr(6)}, s{t0}'); a(f's_cmp_eq_u32 s{sW}, 7'); a(f's_cselect_b32 s{t0}, {slot_addr(7)}, s{t0}')
    a(f'v_add_u32 v{vA0}, s{t0}, v10'); a(f'v_xor_b32 v{vA1}, 16, v{vA0}')
    a(f's_lshl_b32 s{t0}, s{sW}, 11'); a(f's_add_u32 s{t0}, s{t0}, {SBUF}'); a(f'v_add_u32 v{vB0}, s{t0}, v10'); a(f'v_xor_b32 v{vB1}, 16, v{vB0}')
    a(f's_mov_b32 s52, {f2u(-LOG2E):#x}'); a('s_mov_b32 s53, s52')
    T(('wvm', 'x'))
    vXu = 200
    for j in range(4): a(f'v_lshlrev_b32 v{vXu+2*j}, 16, v{vXv+j}'); a(f'v_and_b32 v{vXu+2*j+1}, 0xffff0000, v{vXv+j}')
    T(('wds', '*'))
    st.mark(35)
    a('s_barrier')
    st.mark(36)
    vF = 144; vS_ = 176
    for kq in range(4):
        for e in range(2): T(('ds', f'f{kq}', f'ds_read_b128 {vr(vF+8*kq+4*e,4)}, v{vA0+e} offset:{kq*2048}'))
    for kh in range(2):
        for e in range(2): T(('ds', 's', f'ds_read_b128 {vr(vS_+8*kh+4*e,4)}, v{vB0+e} offset:{kh*16384}'))
    T(('wds', 'f1'))
    for j in range(0, 8, 2): a(f'v_pk_add_f32 {vr(vF+j,2)}, {vr(vF+j,2)}, {vr(vF+8+j,2)}')
    T(('wds', 'f3'))
    for j in range(0, 8, 2): a(f'v_pk_add_f32 {vr(vF+16+j,2)}, {vr(vF+16+j,2)}, {vr(vF+24+j,2)}')
    for j in range(0, 8, 2): a(f'v_pk_add_f32 {vr(vF+j,2)}, {vr(vF+j,2)}, {vr(vF+16+j,2)}')
    if OPT['fpk']:
        for j in range(0, 8, 2): a(f'v_pk_mul_f32 {vr(192+j,2)}, {vr(vF+j,2)}, s[52:53]')
        for j in range(8): a(f'v_exp_f32 v{192+j}, v{192+j}')
        T(('wds', '*'))
        for j in range(0, 8, 2): a(f'v_pk_add_f32 {vr(vS_+j,2)}, {vr(vS_+j,2)}, {vr(vS_+8+j,2)}')
        for j in range(0, 8, 2): a(f'v_pk_add_f32 {vr(192+j,2)}, {vr(192+j,2)}, 1.0 op_sel_hi:[1,0]')
        for j in range(8): a(f'v_rcp_f32 v{192+j}, v{192+j}')
        for j in range(0, 8, 2): a(f'v_pk_mul_f32 {vr(vS_+j,2)}, {vr(vS_+j,2)}, {vr(vF+j,2)}')
        for j in range(0, 8, 2): a(f'v_pk_fma_f32 {vr(vF+j,2)}, {vr(vS_+j,2)}, {vr(192+j,2)}, {vr(vXu+j,2)}')
    else: T(silu_ops(vF, 192, 8, 52))
    if not OPT['fpk']:
        T(('wds', '*'))
        for j in range(0, 8, 2): a(f'v_pk_add_f32 {vr(vS_+j,2)}, {vr(vS_+j,2)}, {vr(vS_+8+j,2)}')
        for j in range(0, 8, 2): a(f'v_pk_fma_f32 {vr(vF+j,2)}, {vr(vS_+j,2)}, {vr(vF+j,2)}, {vr(vXu+j,2)}')
    for j in range(4): a(f'v_cvt_pk_bf16_f32 v{vXv+j}, v{vF+2*j}, v{vF+2*j+1}')
    a(f'buffer_store_dwordx4 {vr(vXv,4)}, v{vXo2}, {R4(SC)}, 0 offen' + ('', ' sc1', ' sc0 sc1', ' nt', ' sc1 nt', ' sc0 sc1 nt')[OPT['osc']])
    st.mark(37)
    st.flush(SWS, STAMP, sW, vL)
def final_a():
    arrive(24)
    srd(SC, pOUT, XBYTES)
    a(f'v_lshrrev_b32 v10, 3, v{vL}'); a(f'v_and_b32 v9, 7, v{vL}'); a('v_lshlrev_b32 v9, 1, v9'); a('v_xor_b32 v9, v9, v10')
    a('v_lshlrev_b32 v10, 8, v10'); a('v_lshl_add_u32 v10, v9, 4, v10')
    a(f's_lshl_b32 s{t0}, s{sI}, 13'); a(f'v_add_u32 v12, s{t0}, v10'); a('v_xor_b32 v13, 16, v12')
    a(f's_add_u32 s{t0}, s{t0}, 32768'); a(f's_cmp_eq_u32 s{sI}, 2'); a(f's_cselect_b32 s{t0}, {slot_addr(6)}, s{t0}'); a(f's_cmp_eq_u32 s{sI}, 3'); a(f's_cselect_b32 s{t0}, {slot_addr(7)}, s{t0}')
    a(f'v_add_u32 v14, s{t0}, v10'); a('v_xor_b32 v15, 16, v14')
    a(f's_add_u32 s{t0}, s{sRg}, {SBUF}'); a(f'v_add_u32 v24, s{t0}, v10'); a('v_xor_b32 v25, 16, v24')
    a(f's_mov_b32 s52, {f2u(-LOG2E):#x}'); a(f's_movk_i32 s53, {32*896}')
    vXu = 224; vF = 128; vS_ = 192
    for u, xv in enumerate((vXv, 48)):
        for j in range(4): a(f'v_lshlrev_b32 v{vXu+8*u+2*j}, 16, v{xv+j}'); a(f'v_and_b32 v{vXu+8*u+2*j+1}, 0xffff0000, v{xv+j}')
    st.mark(33)
    spin(24, 4)
    st.mark(34)
    for u in range(2):
        for kq in range(4):
            for e in range(2): T(('ds', f'f{u}{kq}', f'ds_read_b128 {vr(vF+16*kq+8*u+4*e,4)}, v{12+2*u+e} offset:{kq*2048}'))
    for u in range(2):
        b = vF + 8*u
        T(('wds', f'f{u}1'))
        for j in range(8): a(f'v_add_f32 v{b+j}, v{b+j}, v{b+16+j}')
        T(('wds', f'f{u}3'))
        for j in range(8): a(f'v_add_f32 v{b+32+j}, v{b+32+j}, v{b+48+j}')
        for j in range(8): a(f'v_add_f32 v{b+j}, v{b+j}, v{b+32+j}')
        T(silu_ops(b, 240, 8, 52))
    st.mark(35)
    a('s_barrier')
    st.mark(36)
    for u in range(2):
        for kh in range(2):
            for e in range(2): T(('ds', f's{u}', f'ds_read_b128 {vr(vS_+16*u+8*kh+4*e,4)}, v{24+e} offset:{kh*16384 + u*8192}'))
    for u in range(2):
        b = vF + 8*u; c = vS_ + 16*u; xv = (vXv, 48)[u]
        T(('wds', f's{u}'))
        for j in range(0, 8, 2): a(f'v_pk_add_f32 {vr(c+j,2)}, {vr(c+j,2)}, {vr(c+8+j,2)}')
        for j in range(0, 8, 2): a(f'v_pk_fma_f32 {vr(b+j,2)}, {vr(c+j,2)}, {vr(b+j,2)}, {vr(vXu+8*u+j,2)}')
        for j in range(4): a(f'v_cvt_pk_bf16_f32 v{xv+j}, v{b+2*j}, v{b+2*j+1}')
        a(f'buffer_store_dwordx4 {vr(xv,4)}, v{vXo2}, {R4(SC)}, {("0", "s53")[u]} offen' + ('', ' sc1', ' sc0 sc1', ' nt', ' sc1 nt', ' sc0 sc1 nt')[OPT['osc']])
    st.mark(37)
    st.flush(SWS, STAMP, sW, vL)
vWo, vT0, vT1, vU0, vU1, vFa, vH0 = 3, 5, 6, 12, 13, 14, 30
sRg, sTab = 49, 66
fAcc = 64; vHr = 128; RH = OPT['rh']; vSB = 32; NS = 10; NRES = OPT['nres']
def wreg(k): return 248 - 8*k
assert vHr + 8*RH <= 256 - 8*NRES
slots = [0, 1, 2, 3, 6, 7, 8, 9, 4, 5]
if OPT['ro']: lorder = list(range(NS, NS + NRES)) + list(range(NS)) + list(range(NS + NRES, 28))
else: lorder = list(range(28))
lidx = {n: i for i, n in enumerate(lorder)}
def wdma(k):
    n = lorder[k]
    return [f's_add_u32 m0, s{sRg}, {slot_addr(slots[k % NS])}', f's_mul_i32 s{t1}, s{sTab + n % 14}, 14'] + ([f's_add_u32 s{t1}, s{t1}, {64*896}'] if n >= 14 else []) + [
            ('vm', f'W{k}', f'buffer_load_dwordx4 v{vWo}, {R4(SA)}, s{t1} offen lds'),
            ('vm', f'W{k}', f'buffer_load_dwordx4 v{vWo+1}, {R4(SA)}, s{t1} offen offset:1024 lds')]
def wread(k, dst):
    slot = slots[k % NS]
    vs, off = ((vT0, vT1), slot*8192) if slot < 6 else ((vU0, vU1), slot_addr(slot) - RA2)
    return [('ds', f'R{k}', f'ds_read_b64_tr_b16 {vr(dst+4*ct+2*q,2)}, v{vs[ct]} offset:{off + q*1024}') for ct in range(2) for q in range(2)]
NE = OPT['early']
def a_early():
    srd(SA, pW2, 1792 * 896)
    for k in range(NE): T(wdma(k))
a.label('L_A')
T.vm = ['p0'] * 8
common_setup('A')
full_pat(vWo, 10, 11, 896); a(f's_lshl_b32 s{t0}, s{sCB}, 7'); a(f'v_add_u32 v{vWo}, s{t0}, v{vWo}'); a(f'v_add_u32 v{vWo+1}, {8*896-1024}, v{vWo}')
a(f's_mul_i32 s{t0}, s{sI}, {14*1024}')
a(f's_mul_i32 s{t3}, s{sCB}, {OPT["rc"]*1024}'); a(f's_and_b32 s{t1}, s{sTB}, 3'); a(f's_mul_i32 s{t1}, s{t1}, {OPT["rt"]*1024}'); a(f's_add_u32 s{t3}, s{t3}, s{t1}')
a(f's_sub_u32 s{t1}, s{t3}, {14*1024}'); a(f's_min_u32 s{t3}, s{t3}, s{t1}')
for n in range(14):
    a(f's_add_u32 s{t1}, s{t0}, s{t3}'); a(f's_and_b32 s{t2}, s{t1}, 0xfffff000'); a(f's_add_u32 s{sTab+n}, s{t1}, s{t2}')
    if n < 13: a(f's_add_u32 s{t3}, s{t3}, 1024'); a(f's_cmp_eq_u32 s{t3}, {14*1024}'); a(f's_cselect_b32 s{t3}, 0, s{t3}')
srd(60, pDBG, 256)
a(f'v_and_b32 v10, 7, v{vL}'); a(f'v_lshl_add_u32 v10, v10, 2, v{vSy}'); a(f'ds_write_b32 v10, v{vZ}')
p1a('A')
a('s_setprio 0')
a(f'v_xor_b32 v24, 64, v24'); a(f'v_add_u32 v{vT}, {W1B[0]}, v24'); a(f'v_add_u32 v{vT+1}, {W1B[1]}, v24')
if OPT['ew'] == 1: a_early()
if OPT['ew'] == 2: srd(SA, pW2, 1792 * 896)
tr_base(10, 11, False); a(f'v_add_u32 v{vT0}, s{sRg}, v10')
a(f'v_xor_b32 v{vT1}, 64, v{vT0}'); a(f'v_add_u32 v{vU0}, {RA2}, v{vT0}'); a(f'v_xor_b32 v{vU1}, 64, v{vU0}')
a(f's_mul_i32 s{t0}, s{sTB}, {224*1024 if not OPT.get("fake") else 0}'); a(f's_add_u32 s{t0}, s{t0}, {HF}'); a(f'v_add_u32 v{vH0}, s{t0}, v{vL16}'); a(f'v_add_u32 v{vH0+1}, {112*1024}, v{vH0}')
a(f's_mul_i32 s{t0}, s{sI}, 7'); a(f's_lshr_b32 s{t0}, s{t0}, 1')
a(f'v_bfe_u32 v10, v{vL}, 1, 2'); a(f'v_add_u32 v10, s{t0}, v10')
a(f'v_bfe_u32 v{vFa}, v{vL}, 3, 1'); a(f's_lshl_b32 s{t0}, s{sTB}, 1'); a(f'v_add_u32 v{vFa}, s{t0}, v{vFa}'); a(f'v_mul_u32_u24 v{vFa}, 14, v{vFa}')
a(f'v_add_lshl_u32 v{vFa}, v{vFa}, v10, 1'); a(f'v_and_b32 v10, 1, v{vL}'); a(f'v_add_lshl_u32 v{vFa}, v{vFa}, v10, {FSH}'); a(f'v_add_u32 v{vFa}, {FLAGS + F1}, v{vFa}')
ex = {}
if OPT['ew'] == 1:
    final_setup()
    st.mark(14)
    T([('wvm', 'q')] + flag_store(0, sFl))
if OPT['ew'] == 2:
    ex[OPT['qa']] = [('wvm', 'q')] + flag_store(0, sFl)
    for k in range(NE):
        w = wdma(k); ex[OPT['qa'] + 2 + 3*k] = w[:-1]; ex[OPT['qa'] + 3 + 3*k] = w[-1:]
st.mark(16)
h_tile(0, 1, vAcc, ex)
st.mark(20)
arrive(cCS1)
if not OPT['ew']: T([('wvm', 'q')] + flag_store(0, sFl))
cs_late('A')
if not (OPT['wv'] & 2): h_epi(vAcc, 0, vCs2)
spin(cL1, 8)
f1 = [('wvm', 'h0')] + flag_store(F1, sFl)
ex = {} if (OPT['wv'] & 2) else {OPT['f0']: f1}
if NE == 5:
    spin(cCS1, 8)
    for k in range(5, 8):
        w = wdma(k)
        if OPT['w2w']: ex[OPT['w2w'] + 3*(k-5)] = w[:-1]; ex[OPT['w2w'] + 1 + 3*(k-5)] = w[-1:]
        else: T(w)
    NE = 8
if (OPT['wv'] & 2): spread(h_epi_items(vAcc, 0, vCs2), ex, 0, OPT['we'])
st.mark(21)
h_tile(1, 1, vAcc + 16, ex)
arrive(cAD)
a(f's_setprio {OPT["ap"]}')
st.mark(22)
h_epi(vAcc + 16, 1, vCs)
if (OPT['wv'] & 2): T(f1)
a(f's_setprio {OPT["ap2"]}')
st.mark(23)
spin(cAD, 8)
st.mark(40)
for k in range(NE, NS): T(wdma(k))
st.mark(41)
for k in range(NRES):
    T([('wvm', f'W{k}')] + wread(k, wreg(k)))
T(('wds', '*'))
st.mark(42)
def sample(off): return ([f'v_add_u32 v{vFa}, {F1}, v{vFa}'] if off == F2 else []) + [('vm', 'hf', f'buffer_load_dwordx2 v[28:29], v{vFa}, {S}, 0 offen sc1')]
if OPT['ew'] != 1 and not OPT['xe']: final_setup()
for k in range(NRES):
    if k == min(OPT['sp'], OPT.get('fp', 99)):
        st.mark(43); T([('wvm', 'h1')]); st.mark(44); T(flag_store(F2, sFl))
    if k == OPT['sp']:
        if OPT['fa']:
            a(f'v_add_u32 v10, {32*896}, v{vXo2}'); T(('vm', 'x2', f'global_load_dwordx4 v[48:51], v10, s[{pX}:{pX+1}]'))
        T(sample(F1)); st.mark(45)
    T(wdma(k + NS))
    if k == 4: st.mark(46)
def check(off):
    E = lab('hok')
    T(('wvm', 'hf')); a(f'v_cmp_ne_u64 vcc, s[{sN}:{sN+1}], v[28:29]'); a(f's_cbranch_vccz {E}')
    keep = list(T.vm)
    poll(vFa, '0', 16, 0, 28)
    T.vm = keep
    a.label(E)
if OPT['sp'] >= NRES:
    T(sample(F1))
    if OPT.get('fp', 99) >= NRES: T([('wvm', 'h1')] + flag_store(F2, sFl))
st.mark(24)
check(F1)
st.mark(26)
def hload(n):
    o = [f'v_add_u32 v{vH0}, 4096, v{vH0}', f'v_add_u32 v{vH0+1}, 4096, v{vH0+1}'] if n == 14 else []
    return o + [('vm', f'H{n}', f'buffer_load_dwordx4 {vr(vHr+8*(n%RH)+4*tt,4)}, v{vH0+tt}, {S}, s{sTab + n % 14} offen' + ('' if OPT.get('nosc') else ' sc1')) for tt in range(2)]
LA = RH - 1
for n in range(LA): T(hload(n))
def wsrc(n): return wreg(lidx[n]) if lidx[n] < NRES else vSB + 8*(n & 1)
if lidx[0] >= NRES: T([('wvm', f'W{lidx[0]}')] + wread(lidx[0], wsrc(0)))
TM = OPT.get('tm', 0)
for n in range(28 - TM):
    nx = n + 1
    if n + LA == 14: check(F2); st.mark(25)
    T(('w', f'H{n}', f'R{lidx[n]}'))
    if n in (0, 7, 14, 21): st.mark(27 + n // 7)
    rd = wread(lidx[nx], wsrc(nx)) if nx < 28 and lidx[nx] >= NRES else []
    if rd: T(('wvm', f'W{lidx[nx]}'))
    vm = []
    if n + LA < 28:
        h = hload(n + LA); vm += [h[:-1], h[-1:]]
    if lidx[n] >= NRES and lidx[n] + NS < 28:
        w = wdma(lidx[n] + NS); vm += [w[:-1], w[-1:]]
    if n + LA == 14 - OPT.get('sd', 3): vm.append([sample(F2)])
    ms = [mfma(fAcc + 16*(ct + 2*tt), wsrc(n) + 4*ct, vHr + 8*(n % RH) + 4*tt, n == 0) for tt in range(2) for ct in range(2)]
    for i in range(4):
        a(ms[i])
        T(rd[2*i:2*i+2])
        lo, hi = (i * len(vm) + 3) // 4, ((i + 1) * len(vm) + 3) // 4
        for u in vm[lo:hi]: T(u)
    if n == OPT['n1']: arrive(cCS0)
    if n == OPT['pa']: a('s_setprio 3')
    if OPT['sy']:
        pts = list(range(OPT['sy'] - 1, 21 - OPT['lag'], OPT['sy']))
        if n in pts: arrive(20)
        if n - OPT['lag'] in pts: spin(20, 4 * (pts.index(n - OPT['lag']) + 1))
    if n == 22:
        xaddr(16); a(f'v_add_u32 v16, s{sRg}, v16'); a(f'v_bfe_u32 v10, v{vL}, 3, 2')
        a(f'v_mov_b32 v11, {slot_addr(7)}'); a(f'v_mov_b32 v20, {slot_addr(6)}'); a('v_cmp_eq_u32 vcc, 2, v10'); a('v_cndmask_b32 v11, v11, v20, vcc')
        a('v_lshlrev_b32 v21, 13, v10'); a('v_add_u32 v20, 32768, v21'); a('v_cmp_gt_u32 vcc, 2, v10'); a('v_cndmask_b32 v11, v11, v20, vcc')
        a('v_add_u32 v20, v11, v16'); a('v_add_u32 v16, v21, v16')
        for q in range(1, 4): a(f'v_xor_b32 v{16+q}, {32*q}, v16'); a(f'v_xor_b32 v{20+q}, {32*q}, v20')
def pw(tt, ct): return [('ds', 'p', f'ds_write_b128 v{16+4*tt+q}, {vr(fAcc+16*(ct+2*tt)+4*q,4)} offset:{ct*128}') for q in range(4)]
if TM:
    last = list(range(28 - TM, 28)); src = {last[0]: wsrc(last[0])}
    for i, n in enumerate(last[1:]):
        src[n] = wreg(i); T([('wvm', f'W{lidx[n]}')] + wread(lidx[n], src[n]))
    tiles = [(tt, ct) for tt in range(2) for ct in range(2)]
    for ti, (tt, ct) in enumerate(tiles):
        g = []
        for n in last:
            pre = [('w', f'H{n}', f'R{lidx[n]}')] if ti == 0 else []
            g.append(pre + [mfma(fAcc + 16*(ct + 2*tt), src[n] + 4*ct, vHr + 8*(n % RH) + 4*tt)])
        T(weave(g, pw(*tiles[ti - 2]) if ti >= 2 else []))
    st.mark(31)
    T(pw(*tiles[2]) + pw(*tiles[3]))
else:
    st.mark(31)
    for tt in range(2):
        for ct in range(2): T(pw(tt, ct))
final_a() if OPT['fa'] else final_stage()
a('s_endpgm')

T.reset()
H0 = len(a.items)
a.label('L_helper')
a(f's_mov_b32 s{sTB}, 0'); a(f's_mov_b32 s{sFl}, 0')
a('s_waitcnt lgkmcnt(0)')
late_decode()
srd(60, pDBG, 256); srd(SA, pW1, 448 * 3584)
a(f'v_mov_b32 v{vZ}, 0')
a(f's_or_b32 s{t0}, s2, s{sW}'); a('s_cbranch_scc1 L_nononce')
a(f's_memrealtime s[{sN}:{sN+1}]'); a('s_waitcnt lgkmcnt(0)'); a(f's_or_b32 s{sN+1}, s{sN+1}, 0x80000000')
a(f'v_mov_b32 v{vN}, s{sN}'); a(f'v_mov_b32 v{vN+1}, s{sN+1}')
a('s_mov_b64 exec, 1'); a(f'buffer_store_dwordx2 {vr(vN,2)}, v{vZ}, s[60:63], 0 offen sc1'); a('s_mov_b64 exec, -1')
a.label('L_nononce')
a('s_getpc_b64 s[28:29]'); a.label('L_pc')
a(f's_sub_u32 s28, s28, L_pc-{K}'); a('s_subb_u32 s29, s29, 0')
a(f's_lshl3_add_u32 s{t3}, s{sIDX}, s{sW}')
a(f's_lshl_b32 s{t0}, s{t3}, 11'); a(f'v_and_b32 v4, 15, v{vL}'); a('v_lshlrev_b32 v4, 7, v4'); a(f'v_add_u32 v4, s{t0}, v4')
a(f'v_min_u32 v4, L_end-{K}, v4'); T(('vm', 'pc', 'global_load_dword v3, v4, s[28:29]'))
if OPT['tlb']:
    sh = OPT['tsh']; npg = WS_USED >> sh
    a(f's_lshl_b32 s{t0}, s{t3}, 6'); a(f'v_add_u32 v5, s{t0}, v{vL}') if npg > 64 else a(f'v_mov_b32 v5, v{vL}')
    a(f'v_lshlrev_b32 v5, {sh}, v5')
    T(('vm', 'tl', f'buffer_load_dword v12, v5, {S}, 0 offen'))
    for k, (p, sz) in enumerate(((pW2, 1792*896), (pWO, 448*896), (pOUT, XBYTES), (pW1, 448*3584))):
        srd(SC, p, sz); T(('vm', 'tl', f'buffer_load_dword v{13+k}, v5, {R4(SC)}, 0 offen'))
if OPT['hd'] >= 1: T(('wvm', '*'))
if OPT['hd'] == 2: nonce_take(False)
a(f's_min_u32 s{t2}, s2, 27'); a(f's_mul_i32 s{t0}, s{sW}, {56*3584}'); a(f's_lshl_b32 s{t1}, s{t2}, 7'); a(f's_add_u32 s{t0}, s{t0}, s{t1}')
a(f'v_lshrrev_b32 v9, 3, v{vL}'); a('v_mul_u32_u24 v9, 3584, v9'); a(f'v_and_b32 v10, 7, v{vL}'); a('v_lshl_add_u32 v9, v10, 4, v9')
for i in range(7):
    T(('vm', f'c{i}', f'buffer_load_dwordx4 {vr(64+4*i,4)}, v9, {R4(SA)}, s{t0} offen')); a(f's_add_u32 s{t0}, s{t0}, {8*3584}')
st.init(60)
a(f'v_mov_b32 v{vSy}, {SYNC}'); a(f'ds_write_b32 v{vSy}, v{vZ} offset:{cB}'); a('v_mov_b32 v5, 8'); a(f'ds_write_b32 v{vSy}, v5 offset:{cAD}')
for i in range(7):
    T(('wvm', f'c{i}'))
    if i == 2 and OPT['hd'] != 2: T(('vm', 'go', f'buffer_load_dwordx2 {vr(vN,2)}, v{vZ}, s[60:63], 0 offen sc1'))
    d0 = 16 if i == 0 else 24
    for d in range(4):
        a(f'v_lshlrev_b32 v{d0+2*d}, 16, v{64+4*i+d}'); a(f'v_and_b32 v{d0+1+2*d}, 0xffff0000, v{64+4*i+d}')
    if i:
        for d in range(4): a(f'v_pk_add_f32 {vr(16+2*d,2)}, {vr(16+2*d,2)}, {vr(24+2*d,2)}')
a(f's_lshl_b32 s{t0}, s{sW}, 11'); a(f'v_lshlrev_b32 v12, 5, v{vL}'); a(f'v_add_u32 v12, s{t0}, v12')
a('ds_write_b128 v12, v[16:19]'); a('ds_write_b128 v12, v[20:23] offset:16')
a('s_waitcnt lgkmcnt(0)'); a('s_barrier')
st.mark(2)
if OPT['hd'] != 2: nonce_take(True)
a(f's_cmp_lg_u32 s{sW}, 0'); a('s_cbranch_scc1 L_hcs_done'); a('s_cmp_ge_u32 s2, 28'); a('s_cbranch_scc1 L_hcs_done')
a('s_setprio 3')
a(f'v_lshlrev_b32 v12, 2, v{vL}')
for g in range(4):
    for k in range(8): a(f'ds_read2st64_b32 {vr(64+16*g+2*k,2)}, v12 offset0:{16*g+2*k} offset1:{16*g+2*k+1}')
    a('s_waitcnt lgkmcnt(0)')
for w in (32, 16, 8, 4, 2):
    for k in range(0, w, 2): a(f'v_pk_add_f32 {vr(64+k,2)}, {vr(64+k,2)}, {vr(64+w+k,2)}')
a('v_add_f32 v64, v64, v65')
a(f's_lshl_b32 s{t0}, s2, 9'); a(f's_add_u32 s48, s{t0}, {CSG}')
a(f'buffer_store_dword v64, v12, {S}, s48 offen sc1'); a('s_waitcnt vmcnt(0)')
T(flag_store(256, 48))
a('s_setprio 0')
st.mark(3)
a.label('L_hcs_done')
a('s_barrier')
if OPT['hm']:
    a(f's_cmp_lt_u32 s{sW}, 4'); a('s_cbranch_scc1 L_nohm')
    srd(SC, pW2, 1792 * 896); srd(SB, pWO, 448 * 896)
    a(f's_lshl2_add_u32 s{t3}, s2, s{sI}'); a(f's_mul_i32 s{t0}, s{t3}, {98*128}')
    a(f'v_min_u32 v4, 48, v{vL}'); a('v_lshlrev_b32 v4, 7, v4')
    a(f'buffer_load_dword v40, v4, {R4(SC)}, s{t0} offen'); a(f's_add_u32 s{t0}, s{t0}, {49*128}'); a(f'buffer_load_dword v41, v4, {R4(SC)}, s{t0} offen')
    a(f's_mul_i32 s{t0}, s{t3}, {25*128}'); a(f'v_min_u32 v4, 24, v{vL}'); a('v_lshlrev_b32 v4, 7, v4')
    a(f'buffer_load_dword v42, v4, {R4(SB)}, s{t0} offen')
    a.label('L_nohm')
a(f's_cmp_ge_u32 s{sW}, 4'); a('s_cbranch_scc1 L_helperB')
a(f's_lshl2_add_u32 s{t3}, s{sIDX}, s{sI}')
if OPT['hw']:
    srd(SA, pW2, 1792 * 896)
    a(f'v_min_u32 v4, 55, v{vL}'); a('v_lshlrev_b32 v4, 7, v4'); a(f'v_add_u32 v5, {56*128}, v4')
    for k in range(7):
        a(f's_add_u32 s{t0}, s{sIDX}, {4*k}'); a(f's_cmp_ge_u32 s{t0}, 14'); a(f's_cselect_b32 s{t1}, 14, 0'); a(f's_cselect_b32 s{t2}, 4, 0'); a(f's_sub_u32 s{t0}, s{t0}, s{t1}')
        a(f's_mul_i32 s{t1}, s{sI}, 14'); a(f's_add_u32 s{t0}, s{t0}, s{t1}'); a(f's_and_b32 s{t1}, s{t0}, 0xfc'); a(f's_add_u32 s{t0}, s{t0}, s{t1}'); a(f's_add_u32 s{t0}, s{t0}, s{t2}')
        a(f's_mul_i32 s{t0}, s{t0}, {16*896}')
        a(f'buffer_load_dword v{20+2*k}, v4, {R4(SA)}, s{t0} offen'); a(f'buffer_load_dword v{21+2*k}, v5, {R4(SA)}, s{t0} offen')
st.mark(4)
if OPT['hh']:
    a(f's_and_b32 s{t0}, s2, 7'); a(f's_lshr_b32 s{t1}, s{t3}, 1'); a(f's_lshl3_add_u32 s{t0}, s{t0}, s{t1}')
    a(f's_and_b32 s{t1}, s{t3}, 1'); a(f's_mul_i32 s{t1}, s{t1}, 7'); a(f's_mul_i32 s{t0}, s{t0}, 14'); a(f's_add_u32 s{t2}, s{t0}, s{t1}')
    a(f's_lshl_b32 s48, s{t2}, {FSH+1}'); a(f's_add_u32 s48, s48, {FLAGS}'); a(f'v_lshlrev_b32 v4, {FSH}, v{vL}')
    a(f's_lshl_b32 s49, s{t2}, 13'); a(f's_add_u32 s49, s49, {HF}')
    a(f'v_and_b32 v5, 31, v{vL}'); a('v_lshlrev_b32 v5, 7, v5'); a(f'v_lshrrev_b32 v6, 5, v{vL}'); a('v_lshl_add_u32 v6, v6, 15, v5')
    for ph in range(2):
        a(f's_add_u32 s48, s48, {F1}'); poll(4, 's48', 14, 0, 12, sleep=6)
        st.mark(5 + ph)
        for k in range(4):
            a(f's_add_u32 s{t0}, s49, {k*8192 + ph*4096}')
            a(f'buffer_load_dword v{40+4*ph+k}, v{6 if k < 3 else 5}, {S}, s{t0} offen sc1')
        if ph == 0 and OPT['hwo']:
            srd(SB, pWO, 448 * 896)
            a(f'v_min_u32 v9, 48, v{vL}'); a('v_lshlrev_b32 v9, 7, v9'); a(f's_mul_i32 s{t0}, s{t3}, {196*128}')
            for i in range(4):
                a(f'buffer_load_dword v{50+i}, v9, {R4(SB)}, s{t0} offen'); a(f's_add_u32 s{t0}, s{t0}, {49*128}')
st.flush(SWS, STAMP, sW, vL)
a('s_endpgm')
a.label('L_helperB')
if OPT['hs']:
    srd(SA, pWO, 448 * 896)
    a(f's_lshl2_add_u32 s{t3}, s{sIDX}, s{sI}'); a(f's_mul_i32 s{t0}, s{t3}, {196*128}'); a(f's_mov_b32 s{t1}, 14')
    a('s_sleep 20')
    a.label('L_hsl')
    for k in range(14): a(f's_buffer_load_dword s{64+k}, {R4(SA)}, s{t0} offset:{128*k}')
    a(f's_add_u32 s{t0}, s{t0}, {14*128}'); a(f's_sub_u32 s{t1}, s{t1}, 1'); a('s_waitcnt lgkmcnt(0)'); a(f's_cmp_lg_u32 s{t1}, 0'); a('s_cbranch_scc1 L_hsl')

att_setup()
a(f's_mov_b32 s{sKI}, 0')
poll(vFl, '0', 14, 0, 28, sleep=OPT['hsl'])
a('s_branch L_att')

H1 = len(a.items)
blk = a.items[H0:H1]; del a.items[H0:H1]; a.items[HELPER_AT:HELPER_AT] = blk
T.reset()
a.label('L_B')
a('s_waitcnt lgkmcnt(0)')
late_decode(); srd_x(); srd_wq(); st.init(60); st.mark(47)
a(f's_setprio {OPT["bp1"]}')
common_setup('B')
srd(60, pDBG, 256)
att_setup()
st.mark(48)
for u in x_dma(1) + wq_dma(1): T(u)
exB = p1a('B')
a('s_setprio 2')
a(f'v_add_u32 v{vT}, {W1B[0]}, v24'); a(f'v_add_u32 v{vT+1}, {W1B[1]}, v24')
h_tile(0, 0, vAcc + 16, exB)
arrive(cCS1)
T(('wvm', 'l1')); arrive(cL1)
st.mark(16)
if OPT['bq']:
    assert not OPT['lc'] and T.vm[-2:] == ['q', 'q']
    a('s_waitcnt vmcnt(2)'); T.vm = ['q', 'q']
    cs_late('B')
    qf = [('wvm', 'q')] + flag_store(0, sFl)
    h_epi(vAcc + 16, 0, vCs2, mid=qf if OPT['bq'] == 1 else None)
    if OPT['bq'] == 2: T(qf)
else:
    T([('wvm', 'q')] + flag_store(0, sFl))
    cs_late('B')
    if not (OPT['wv'] & 1): h_epi(vAcc + 16, 0, vCs2)
spin(cL1, 8)
st.mark(17)
vVe, vVo, vKa, vV0, vV1 = 3, 4, 5, 6, 9
def kv_units(which):
    u = []
    for t in range(3):
        pre = ([f's_mul_i32 s{t2}, s{sI}, {3*3072}'] if t == 0 else []) + [f's_add_i32 s{t0}, s{sT7}, {t}', f's_max_i32 s{t0}, s{t0}, 0', f's_mul_i32 s{t0}, s{t0}, 84', f's_add_u32 s{t0}, s{t0}, s{sST0}',
               f's_add_u32 m0, s{t2}, {(KB, VB)[which] + t*3072}', f's_add_u32 s{t0}, s{t0}, {28*(which+1)}', f's_lshl_b32 s{t0}, s{t0}, 10']
        for s in range(3):
            v = (3, vL16 if which == 0 else 30, 4)[s]
            u.append((pre if s == 0 else []) + [('vm', 'KV'[which], f'buffer_load_dwordx4 v{v}, {S}, s{t0} offen offset:{1024*s} sc1 lds')])
    return u
def kv_dma(which):
    for u in kv_units(which): T(u)
def qk_issue():
    keep = list(T.vm)
    a(f's_mul_i32 s{t0}, s{sTQ}, 84'); a(f's_add_u32 s{t0}, s{t0}, s{sST0}'); a(f's_lshl_b32 s{t0}, s{t0}, 10')
    for s in range(3): a(f'buffer_load_dwordx4 {vr(vQ+4*s,4)}, v{(3, vL16, 4)[s]}, {S}, s{t0} offen offset:{1024*s} sc1')
    kv_dma(0)
    T.vm = keep
qsample = [('vm', 'qf', f'buffer_load_dwordx2 v[28:29], v{vFl}, {S}, 0 offen sc1')]
ex = {OPT['smp']: list(qsample)} if OPT['mid'] < 2 else {}
if (OPT['wv'] & 1): spread(h_epi_items(vAcc + 16, 0, vCs2), ex, 0, OPT['we'])
h_tile(1, 0, vAcc, ex)
arrive(cAD)
if OPT['mid'] < 2: spin(cCS1, 8)
st.mark(18)
def early_qk():
    T([('wvm', 'qf')] + flag_store(F1, sFl)); a(f'v_cmp_ne_u64 vcc, s[{sN}:{sN+1}], v[28:29]'); a(f's_mov_b32 s{sKI}, 0'); a('s_cbranch_vccnz L_noearly')
    qk_issue(); a(f's_mov_b32 s{sKI}, 1')
    a.label('L_noearly')
    st.mark(19)
if OPT['mid'] == 2:
    h_epi(vAcc, 1, vCs, mid=qsample)
    spin(cCS1, 8)
    early_qk()
elif OPT['mid'] == 3:
    h_epi(vAcc, 1, vCs)
    spin(cCS1, 8)
    T(qsample); early_qk()
elif OPT['mid']:
    h_epi(vAcc, 1, vCs, mid=[('call', early_qk)])
else:
    early_qk()
    h_epi(vAcc, 1, vCs)
a.label('L_att')
a('s_setprio 2')
a(f's_mov_b32 s{sFl2}, s{sFl}')
st.mark(20)
a(f's_cmp_lg_u32 s{sKI}, 0'); a('s_cbranch_scc1 L_kdone')
poll(vFl, '0', 14, 0, 28)
st.mark(21)
a(f's_cmp_lt_u32 s{sIDX}, 4'); a('s_cbranch_scc1 L_nohf0')
T(flag_store(F2, sFl2))
a.label('L_nohf0')
qk_issue()
a.label('L_kdone')
st.mark(22)
a(f'v_lshrrev_b32 v12, 5, v{vL}'); a('v_lshlrev_b32 v13, 6, v12'); a('v_xor_b32 v3, v13, v3'); a('v_xor_b32 v4, v13, v4'); a(f'v_xor_b32 v30, v13, v{vL16}'); a('v_xor_b32 v30, 128, v30')
def k_arrive():
    T(('wvm', 'K' if OPT['ve'] == 1 else '*')); st.mark(23); arrive(cB)
    a(f's_cmp_eq_u32 s{sKI}, 0'); a('s_cbranch_scc1 L_nohf')
    keep = list(T.vm); T(flag_store(F2, sFl2)); T.vm = keep
    a.label('L_nohf')
if OPT['ve'] == 1:
    spin(cAD, 8); T.vm = ['K']; kv_dma(1); st.mark(40)
    if OPT['ea']: k_arrive()
a(f's_mul_i32 s{t0}, s{sI}, 3072'); a(f's_add_u32 s{t1}, s{t0}, {KB}'); a(f'v_add_u32 v{vKa}, s{t1}, v{vL16}')
a(f'v_bfe_u32 v14, v{vL}, 4, 1'); a(f'v_and_b32 v15, 3, v{vL}'); a('v_lshl_add_u32 v14, v14, 2, v15'); a(f'v_add_u32 v14, s{sG0}, v14')
a('v_lshrrev_b32 v15, 2, v14'); a('v_and_b32 v16, 1, v14'); a('v_bfe_u32 v17, v14, 1, 1')
a(f'v_bfe_u32 v19, v{vL}, 2, 2'); a('v_lshl_add_u32 v18, v12, 2, v19')
a('v_and_b32 v19, 1, v15'); a('v_lshl_add_u32 v19, v19, 1, v16'); a('v_lshlrev_b32 v19, 2, v19'); a('v_xor_b32 v18, v18, v19')
a(f'v_lshlrev_b32 v{vV0}, 4, v18'); a(f'v_lshl_add_u32 v{vV0}, v17, 3, v{vV0}'); a(f'v_lshl_add_u32 v{vV0}, v16, 9, v{vV0}')
a(f'v_lshl_add_u32 v{vV0}, v15, 10, v{vV0}'); a(f'v_xor_b32 v{vV1}, 128, v{vV0}')
a(f's_add_u32 s{t0}, s{t0}, {VB}'); a(f'v_add_u32 v{vV0}, s{t0}, v{vV0}'); a(f'v_add_u32 v{vV1}, s{t0}, v{vV1}')
if OPT['vo']:
    a(f's_add_u32 s{t0}, s{sG0}, 7'); a(f's_lshr_b32 s{t1}, s{t0}, 2'); a(f's_lshl_b32 s{t1}, s{t1}, 10'); a(f's_and_b32 s{t2}, s{t0}, 1'); a(f's_lshl_b32 s{t2}, s{t2}, 9'); a(f's_add_u32 s{t1}, s{t1}, s{t2}')
    a(f's_and_b32 s{t2}, s{t0}, 2'); a(f's_lshl_b32 s{t2}, s{t2}, 2'); a(f's_add_u32 s{t1}, s{t1}, s{t2}'); a(f's_mul_i32 s{t2}, s{sI}, {3*3072}'); a(f's_add_u32 s{t1}, s{t1}, s{t2}'); a(f's_add_u32 s{t1}, s{t1}, {VB}')
    a(f'v_and_b32 v56, 31, v{vL}'); a('v_lshlrev_b32 v56, 4, v56'); a('v_mul_u32_u24 v57, 3072, v12'); a(f'v_add3_u32 v56, v56, v57, s{t1}')
    a('v_mov_b32 v58, 0x3f80'); a('v_mov_b32 v59, 0')
for j in range(16):
    c = 8*(j >> 2) + (j & 3)
    a(f's_mov_b32 s{sM+2*j}, {(0xffffffff << c) & 0xffffffff:#x}'); a(f's_mov_b32 s{sM+2*j+1}, {(0xffffffff << (c+4)) & 0xffffffff:#x}')
def msk(j): return f's[{sM+2*j}:{sM+2*j+1}]'
vOnes = 24; vBm = 28; vMk = 240
vSb = 64; vO = 192; vLs = 208; vP0 = 224; vP8 = 232; vM = 224
a('v_mov_b32 v14, 0xffff'); a('v_mov_b32 v15, 0xffff0000')
for j in range(8):
    a(f'v_cndmask_b32 v{vMk+j}, 0, v14, {msk(2*j)}'); a(f'v_cndmask_b32 v16, 0, v15, {msk(2*j+1)}'); a(f'v_or_b32 v{vMk+j}, v{vMk+j}, v16')
for k in range(4): a(f'v_mov_b32 v{vOnes+k}, 0x3f803f80')
for k in range(1, 4): a(f'v_mov_b32 v{vBm+k}, 0')
a(f'v_subrev_u32 v12, s{sG0}, v12')
if OPT['ve'] != 1: spin(cAD, 8)
if not OPT['ea']: k_arrive()
if not OPT['ve']: kv_dma(1); st.mark(40)
for s in range(3):
    for ap in range(2):
        a(f'v_add_u32 v13, {4*s+2*ap}, v12'); a('v_cmp_gt_u32 vcc, 7, v13')
        for k in range(2):
            r = vQ + 4*s + 2*ap + k
            a(f'v_cndmask_b32 v{r}, 0, v{r}, vcc')
spin(cB, 4)
st.mark(24)
vKF = (44, 12)
def sreg(r): return vO if r == 0 else vSb + 16 * (r - 1)
m8 = sreg(8)
sorder = [8, 0, 1, 2, 3, 4, 5, 6, 7]
def kreads(i): return [('ds', f'k{i}', f'ds_read_b128 {vr(vKF[i&1]+4*s,4)}, v{vKa} offset:{sorder[i]*3072 + s*1024}') for s in range(3)]
def maxops(b, first=False):
    o = []
    for h in range(2):
        for c in range(4):
            if first and h == 0: o.append(f'v_max_f32 v{vM+c}, v{b+c}, v{b+4+c}')
            else: o.append(f'v_max3_f32 v{vM+c}, v{vM+c}, v{b+8*h+c}, v{b+8*h+4+c}')
    return o
merge = [f'v_cndmask_b32 v{m8+j}, v{vO+j}, v{m8+j}, {msk(j)}' for j in range(16)]
fills = {3: merge[:12], 4: merge[12:] + maxops(m8, True), 5: maxops(sreg(1)) + maxops(sreg(2))[:4], 6: maxops(sreg(2))[4:] + maxops(sreg(3)),
         7: maxops(sreg(4)), 8: maxops(sreg(5))}
vun = kv_units(1) if OPT['ve'] == 2 else []
T(kreads(0))
for i in range(9):
    r = sorder[i]
    T(('wds', f'k{i}'))
    T(weave([[mfma(sreg(r), vKF[i & 1] + 4*s, vQ + 4*s, s == 0)] for s in range(3)], (kreads(i + 1) if i + 1 < 9 else []) + vun[3*i:3*i+3] + fills.get(i, [])))
T(maxops(sreg(6)))
st.mark(41); T(('wvm', 'V')); st.mark(42)
if OPT['vo']: T(('ds', 'vo', 'ds_write_b64 v56, v[58:59]')); T(('ds', 'vo', 'ds_write_b64 v56, v[58:59] offset:3072'))
arrive(cB)
T(maxops(sreg(7)))
a(f's_cmp_ge_u32 s{sTQ}, 8'); a('s_cbranch_scc1 L_valid')
NEG = f2u(-1e30)
a(f'v_mov_b32 v12, {NEG:#x}')
for j in range(16): a(f'v_cndmask_b32 v{m8+j}, v12, v{m8+j}, {msk(j)}')
for r in range(1, 8):
    a(f's_cmp_ge_u32 s{sTQ}, {8-r}'); a('s_cbranch_scc1 L_remax')
    for j in range(16): a(f'v_mov_b32 v{sreg(r)+j}, v12')
a.label('L_remax')
T(maxops(m8, True))
for r in range(1, 8): T(maxops(sreg(r)))
a.label('L_valid')
a(f'v_max3_f32 v{vM}, v{vM}, v{vM+1}, v{vM+2}'); a(f'v_max_f32 v{vM}, v{vM}, v{vM+3}')
a(f'v_mov_b32 v{vM+1}, v{vM}'); a(f'v_cmp_gt_u32 vcc, 32, v{vL}')
a(f'v_permlane32_swap_b32 v{vM}, v{vM+1}'); a(f'v_max_f32 v{vM}, v{vM}, v{vM+1}')
a(f'v_cvt_pk_bf16_f32 v{vM+1}, 0, v{vM}'); a(f'v_sub_f32 v{vM+1}, v{vM+1}, v{vM}'); a(f'v_cvt_pk_bf16_f32 v{vM+1}, -v{vM}, v{vM+1}')
a(f'v_cndmask_b32 v{vBm}, 0, v{vM+1}, vcc')
st.mark(25)
vVF = (44, 12)
porder = [1, 2, 3, 4, 5, 6, 7, 8, 0]
def vreads(i): return [('ds', f'v{i}', f'ds_read_b64_tr_b16 {vr(vVF[i&1]+4*ks+2*q,2)}, v{(vV0,vV1)[q]} offset:{porder[i]*3072 + ks*256}') for ks in range(2) for q in range(2)]
def sub(i): return mfma(sreg(porder[i]), vOnes, vBm)
def softmax(i):
    r = porder[i]; b = sreg(r); o = []
    for g in range(0, 16, 4):
        o += [f'v_exp_f32 v{b+j}, v{b+j}' for j in range(g, g + 4)]
        if g: o += [f'v_cvt_pk_bf16_f32 v{b+j}, v{b+2*j}, v{b+2*j+1}' for j in range(g//2 - 2, g//2)]
    o += [f'v_cvt_pk_bf16_f32 v{b+j}, v{b+2*j}, v{b+2*j+1}' for j in (6, 7)]
    if r == 8:
        o += [f'v_and_b32 v{vP8+j}, v{vMk+j}, v{b+j}' for j in range(8)]
        o += [f'v_bfi_b32 v{vP0+j}, v{vMk+j}, 0, v{b+j}' for j in range(8)]
    return o
def pv(i):
    r = porder[i]; P = vP0 if r == 0 else (vP8 if r == 8 else sreg(r)); vb = vVF[i & 1]
    g = []
    for ks in range(2):
        g.append([mfma(vO, vb + 4*ks, P + 4*ks, i == 0 and ks == 0)])
        if r and not OPT['vo']: g.append([mfma(vLs, vOnes, sreg(r) + 4*ks, i == 0 and ks == 0)])
    g[0] = [('wds', f'v{i}')] + g[0]
    return g
a(sub(0)); a(sub(1))
spin(cB, 8)
st.mark(26)
T(vreads(0)); T(weave([[sub(2)]], softmax(0)))
for i in range(9):
    fill = (vreads(i + 1) if i + 1 < 9 else []) + (softmax(i + 1) if i + 1 < 8 else [])
    T(weave(pv(i) + ([[sub(i + 3)]] if i + 3 < 8 else []), fill))
st.mark(27)
arrive(cB)
a(f's_lshl4_add_u32 s{t0}, s{sTQ}, s{sHD}'); a(f's_lshl_b32 s{t1}, s{t0}, 11'); a(f's_add_u32 s{t1}, s{t1}, {OF}')
a(f's_lshl_b32 s{t0}, s{t0}, {OSH}'); a(f's_add_u32 s48, s{t0}, {OFL}')
if OPT['vo']:
    a(f'v_mov_b32 v12, v{vO+12}'); a(f'v_mov_b32 v13, v{vO+12}'); a('v_permlane32_swap_b32 v12, v13'); a('v_rcp_f32 v12, v13')
else: a(f'v_rcp_f32 v12, v{vLs}')
a(f'v_cmp_gt_u32 vcc, 32, v{vL}')
for s in range(2):
    for j in range(8*s, 8*s + 8): a(f'v_mul_f32 v{vO+j}, v12, v{vO+j}')
    for j in range(4*s, 4*s + 4): a(f'v_cvt_pk_bf16_f32 v{vO+j}, v{vO+2*j}, v{vO+2*j+1}')
    if s: a(f'v_cndmask_b32 v{vO+6}, 0, v{vO+6}, vcc'); a(f'v_cndmask_b32 v{vO+7}, 0, v{vO+7}, vcc')
    T(('vm', 'o', f'buffer_store_dwordx4 {vr(vO+4*s,4)}, v{vL16}, {S}, s{t1} offen offset:{1024*s} sc1'))
st.mark(28)
a(f's_cmp_lt_u32 s{sIDX}, 4'); a('s_cbranch_scc0 L_cont')
keep = list(T.vm)
T([('wvm', 'o')] + flag_store(0, 48))
st.flush(SWS, STAMP, sW, vL)
a('s_endpgm')
a.label('L_cont')
T.vm = keep
srd(SA, pWO, 448 * 896)
vWo = 3
full_pat(vWo, 12, 13, 896); a(f's_lshl_b32 s{t0}, s{sCB}, 7'); a(f'v_add_u32 v{vWo}, s{t0}, v{vWo}')
spin(cB, 12)
if OPT['of'] < 0:
    T([('wvm', 'o')] + flag_store(0, 48)); st.mark(29)
a(f's_setprio {OPT["bp2"]}')
a(f's_mul_i32 s{t2}, s{sTT}, {WOB[1]-WOB[0]}'); a(f's_lshl_b32 s{t0}, s{sCT}, 10'); a(f's_add_u32 s{t2}, s{t2}, s{t0}')
a(f's_mul_i32 s{t1}, s{sTT}, {224*896}'); a(f's_mul_i32 s{t0}, s{sCT}, {8*896}'); a(f's_add_u32 s{t1}, s{t1}, s{t0}')
for i in range(15):
    if i == 14:
        a(f's_lshl_b32 s{t0}, s{sCT}, 11'); a(f's_sub_u32 s{t2}, s{t2}, s{t0}'); a(f's_mul_i32 s{t0}, s{sCT}, {16*896}'); a(f's_sub_u32 s{t1}, s{t1}, s{t0}')
    a(f's_add_u32 m0, s{t2}, {WOB[0] + 2048*i}'); a(f's_add_u32 s{t0}, s{t1}, {i*16*896}')
    T(('vm', 'wo', f'buffer_load_dwordx4 v{vWo}, {R4(SA)}, s{t0} offen lds'))
    if i == OPT['of']:
        T([('wvm', 'o')] + flag_store(0, 48)); st.mark(29)
if not OPT['fa']: final_setup()
vTa, vTb = 5, 6
tr_base(vTa, 12, False); a(f's_mul_i32 s{t0}, s{sCT}, {WOB[1]-WOB[0]}'); a(f's_add_u32 s{t0}, s{t0}, {WOB[0]}')
a(f'v_add_u32 v{vTa}, s{t0}, v{vTa}'); a(f'v_xor_b32 v{vTb}, 64, v{vTa}')
a(f'v_and_b32 v4, 7, v{vL}'); a(f'v_lshlrev_b32 v4, {OSH}, v4')
a(f's_lshl1_add_u32 s49, s{sTo}, s{sCT}'); a(f's_lshl_b32 s50, s49, {OSH+3}'); a(f's_add_u32 s50, s50, {OFL}')
st.mark(30)
T(('wvm', 'wo')); arrive(cB)
if OPT['n1'] < 0: T(('vm', 'of', f'buffer_load_dwordx2 v[12:13], v4, {S}, s50 offen sc1'))
spin(cB, 16)
st.mark(31)
if OPT['n1'] >= 0 and OPT['so']:
    spin(cCS0, 4, sleep=2); st.mark(38)
    T(('vm', 'of', f'buffer_load_dwordx2 v[12:13], v4, {S}, s50 offen sc1'))
vWA = 128; vOf = 64; vSa = 16
for n in range(16):
    for ct in range(2):
        for q in range(2):
            T(('ds', f'a{n}', f'ds_read_b64_tr_b16 {vr(vWA+8*n+4*ct+2*q,2)}, v{(vTa,vTb)[ct]} offset:{(28*(n>>1) + 16*(n&1) + 8*q)*128}'))
T(('wds', '*')); arrive(cB)
xaddr(48); a(f'v_bfe_u32 v10, v{vL}, 3, 2'); a('v_lshl_add_u32 v48, v10, 11, v48')
a(f's_lshl_b32 s{t0}, s{sCT}, 14'); a(f's_lshl_b32 s{t1}, s{sTT}, 13'); a(f's_add_u32 s{t0}, s{t0}, s{t1}'); a(f's_add_u32 s{t0}, s{t0}, {SBUF}'); a(f'v_add_u32 v48, s{t0}, v48')
for q in range(1, 4): a(f'v_xor_b32 v{48+q}, {32*q}, v48')
spin(cB, 20)
if OPT['n1'] >= 0 and not OPT['so']:
    spin(cCS0, 4, sleep=2); st.mark(38)
    T(('vm', 'of', f'buffer_load_dwordx2 v[12:13], v4, {S}, s50 offen sc1'))
T(('wvm', 'of')); a(f'v_cmp_ne_u64 vcc, s[{sN}:{sN+1}], v[12:13]'); a('s_cbranch_vccz L_ook')
poll(4, 's50', 8, 0, 12)
a.label('L_ook')
a('s_setprio 2')
st.mark(32)
a(f's_lshl_b32 s{t0}, s49, 14'); a(f's_add_u32 s{t0}, s{t0}, {OF}')
def oload(n):
    return [('vm', f'o{n}', f'buffer_load_dwordx4 {vr(vOf+4*n,4)}, v{vL16}, {S}, s{t0} offen offset:{(n&3)*1024} sc1')] + ([f's_add_u32 s{t0}, s{t0}, 4096'] if n & 3 == 3 else [])
OD = OPT.get('od', 10)
for n in range(OD): T(oload(n))
if OPT['pb'] >= 0: a(f's_setprio {OPT["pb"]}')
st.mark(33)
for n in range(16):
    T(('wvm', f'o{n}'))
    for ct in range(2):
        a(mfma(vSa + 16*ct, vWA + 8*n + 4*ct, vOf + 4*n, n == 0))
        if ct == 0 and n + OD < 16: T(oload(n + OD))
st.mark(34)
for ct in range(2):
    for q in range(4): T(('ds', 'sx', f'ds_write_b128 v{48+q}, {vr(vSa+16*ct+4*q,4)} offset:{ct*128}'))
if OPT['fa']:
    T(('wds', '*')); st.mark(35); a('s_barrier'); st.flush(SWS, STAMP, sW, vL)
else: final_stage()
a.label('L_end'); a('s_endpgm')

a.pad_hazards_fast()
for e in a.check_waits(): print('WAITERR', e)
hdr = ['; out = x + attn(LN(x)) * silu(ffn(LN(x)))   -- one persistent launch, 256 workgroups x 8 waves (own generator script, gen36.py)',
       f'; @launch grid=(256,1,1) block=(512,1,1) lds={LDS_TOTAL}',
       '; kernarg: x 0, wqkv 8, wo 16, (B_x 24 unused by the reference), w1 32, w2 40, out 48, debug 56, ws 64',
       '; workgroups 32..255 (workers): [128 tokens x (96 qkv + 128 ffn columns)] GEMM on raw x, LayerNorm applied in the epilogue',
       ';   y = rstd * (acc - mean * colsum(W)); then waves 4-7 run sliding-window attention (128 queries x 1 head, exact row max) and the',
       ';   wo GEMM, waves 0-3 the w2 GEMM of a 64 x 64 output tile; all 8 waves combine and store the tile.',
       '; workgroups 0..31 (helpers): column sums of w1, first read of w2 / wo, attention.',
       '; hand-offs through ws (MFMA fragment blocks): write-through stores, vmcnt drain, then a flag line holding a per-launch nonce',
       ';   (64-bit clock value published by workgroup 0 in the zeroed debug buffer); consumers read flags and data with sc1 loads.',
       '.amdgcn_target "amdgcn-amd-amdhsa--gfx950"', '.text']
tail = ['.section .rodata,"a"', '.p2align 6', f'.amdhsa_kernel {K}', '  .amdhsa_next_free_vgpr 256', '  .amdhsa_next_free_sgpr 102',
        '  .amdhsa_accum_offset 256', '  .amdhsa_group_segment_fixed_size 0', '  .amdhsa_kernarg_size 72',
        '  .amdhsa_user_sgpr_count 2', '  .amdhsa_user_sgpr_kernarg_segment_ptr 1', '  .amdhsa_system_sgpr_workgroup_id_x 1', '.end_amdhsa_kernel']
open(sys.argv[1], 'w').write('\n'.join(hdr) + '\n' + a.text() + '\n'.join(tail) + '\n')
```
